```python
import torch

def _softmax(x, axis=-1):
    return torch.softmax(x, dim=axis)
def _gelu(x):
    return torch.nn.functional.gelu(x, approximate="tanh")
def _silu(x):
    return torch.nn.functional.silu(x)
def _sigmoid(x):
    return torch.sigmoid(x)
def _layernorm(x, axis=-1, eps=1e-5):
    m = x.mean(dim=axis, keepdim=True)
    v = x.var(dim=axis, keepdim=True, unbiased=False)
    return (x - m) / torch.sqrt(v + eps)
def _scatter_add(tgt, idx, src, axis=0):
    return tgt.clone().index_add_(axis, idx, src)
def _segment_sum(src, seg, n):
    out = torch.zeros((n,) + src.shape[1:], dtype=src.dtype)
    return out.index_add_(0, seg, src)
def _pad(x, pw):
    flat = tuple(v for pair in reversed(pw) for v in pair)
    return torch.nn.functional.pad(x, flat)

kernel_name = 'recurrent_scan__sliding_local_dilated__dense_activation_squared_relu__prompt'

def setup_inputs():

    _w = (lambda a: (lambda t: t.to(torch.bfloat16) if t.is_floating_point() else t)(torch.as_tensor(a)))
    def _A_setup():
        B, S, D = 1, 2048, 640
        return {
            "x": _w((lambda *s: torch.randn(*s, dtype=torch.bfloat16) * 0.05)(B, S, D)),
            "wqkv": _w((lambda *s: torch.randn(*s, dtype=torch.bfloat16) * 0.05)(D, 3 * D)),
            "wo": _w((lambda *s: torch.randn(*s, dtype=torch.bfloat16) * 0.05)(D, D)),
        }
    _A_in = _A_setup()

    def _B_setup():
        B, S, D, F = 1, 2048, 640, 1536
        return {
            "x": _w((lambda *s: torch.randn(*s, dtype=torch.bfloat16) * 0.05)(B, S, D)),
            "w1": _w((lambda *s: torch.randn(*s, dtype=torch.bfloat16) * 0.05)(D, F)),
            "b1": _w((lambda *s: torch.randn(*s, dtype=torch.bfloat16) * 0.4)(F)),
            "w2": _w((lambda *s: torch.randn(*s, dtype=torch.bfloat16) * 0.05)(F, D)),
            "b2": _w((lambda *s: torch.randn(*s, dtype=torch.bfloat16) * 1.6)(D)),
        }
    _B_in = _B_setup()

    return {
        "A_x": _A_in["x"],
        "A_wqkv": _A_in["wqkv"],
        "A_wo": _A_in["wo"],
        "B_x": _B_in["x"],
        "B_w1": _B_in["w1"],
        "B_b1": _B_in["b1"],
        "B_w2": _B_in["w2"],
        "B_b2": _B_in["b2"],
    }

def reference(A_x, A_wqkv, A_wo, B_x, B_w1, B_b1, B_w2, B_b2):
    def _A_ref(x, wqkv, wo):
        B, S, D = x.shape
        H = 32; Dh = D // H
        W, dil = 8, 2
        qkv = (lambda x, *d: x.permute(*d))((x @ wqkv).reshape(B, S, 3, H, Dh), 2, 0, 3, 1, 4)
        q, k, v = qkv[0], qkv[1], qkv[2]
        scale = Dh ** -0.5
        pos = torch.arange(S)
        off = torch.arange(W) * dil
        idx = pos[:, None] - off[None, :]
        mask = idx >= 0
        idx_c = torch.where(mask, idx, 0).reshape(-1)
        kg = k[:, :, idx_c, :].reshape(B, H, S, W, Dh)
        vg = v[:, :, idx_c, :].reshape(B, H, S, W, Dh)
        logits = torch.einsum("bhsd,bhswd->bhsw", q, kg) * scale
        logits = torch.where(mask[None, None, :, :], logits, -1e9)
        attn = _softmax(logits, axis=-1)
        o = torch.einsum("bhsw,bhswd->bhsd", attn, vg)
        return (lambda x, *d: x.permute(*d))(o, 0, 2, 1, 3).reshape(B, S, D) @ wo

    def _B_ref(x, w1, b1, w2, b2):
        h = torch.einsum("bsd,df->bsf", x, w1) + b1
        zero = torch.zeros_like(h)
        r = torch.where(h > zero, h, zero)
        h = r * r
        out = torch.einsum("bsf,fd->bsd", h, w2) + b2
        return out

    x = A_x
    xn = _layernorm(x, axis=-1)
    s = _A_ref(xn, A_wqkv, A_wo)
    g = _silu(_B_ref(xn, B_w1, B_b1, B_w2, B_b2))
    return x + s * g
```

```python
import sys

NAME = "recurrent_scan__sliding_local_dilated__dense_activation_squared_relu__prompt"
OUT = f"cdna_kernels/{NAME}.s"

L = []


def e(s=""):
    L.append("    " + s if s and not s.endswith(":") else s)


def lab(s):
    L.append(s + ":")


def vr(a, n=1):
    return f"v{a}" if n == 1 else f"v[{a}:{a+n-1}]"


def sr(a, n=1):
    return f"s{a}" if n == 1 else f"s[{a}:{a+n-1}]"


def f32bits(x):
    import struct
    return struct.unpack("<I", struct.pack("<f", x))[0]


A2_OFF = 0
A2_SIZE = 128 * 68 * 1024
B2_OFF = A2_SIZE
B2_SIZE = 8 * 68 * 5 * 1024
WS_USED = A2_SIZE + B2_SIZE

Q_P, Q_GP = 480, 3968
Q_XB = 8 * Q_GP
Q_STAGE = Q_XB + 9 * 2048
F_P, F_GP = 416, 3456
F_XB = 8 * F_GP
F_STAGE = F_XB + 8 * 2048
Q_MISC = 3 * Q_STAGE
F_JOB = 3 * F_STAGE
F_MISC = F_JOB + 5 * 5120
M_ST = 0
M_CS = 1152
M_B1 = 1152 + 1024
M_SIZE = M_B1 + 768
K1_LDS = max(Q_MISC, F_MISC) + M_SIZE
assert K1_LDS <= 163840
PLANE = 5120

K2_STAGE = 36864
K2_X = 4 * K2_STAGE
K2_B2 = K2_X + 10240
K2_LDS = K2_B2 + 320


def srd(d, base, nrec):
    e(f"s_mov_b32 s{d}, s{base}")
    e(f"s_and_b32 s{d+1}, s{base+1}, 0xffff")
    e(f"s_mov_b32 s{d+2}, {nrec}")
    e(f"s_mov_b32 s{d+3}, 0x00020000")


def interleave(mfmas, fillers, per=2, lead=0):
    fi = 0
    for _ in range(lead):
        if fi < len(fillers):
            e(fillers[fi]); fi += 1
    for m in mfmas:
        e(m)
        for _ in range(per):
            if fi < len(fillers):
                e(fillers[fi]); fi += 1
    while fi < len(fillers):
        e(fillers[fi]); fi += 1


S_X, S_W, S_WS, S_R = 8, 12, 16, 20
sWave, sS, sC, sT, sG, sRB = 40, 41, 42, 43, 44, 45
sCur, sNxt, sKW, sKX, sIt = 46, 47, 48, 49, 50
sWoff, sXoff = 51, 52
sMaskW = 54
sMaskH = 56
sU0 = 58
sU1 = 59
sTmp = 60
sMask4 = 70

vLane = 1
vX0, vX1, vH0, vH1 = 2, 3, 4, 5
vWd = 6
vWl, vXl0, vXl1 = 10, 11, 12
vWa, vXa = 13, 14
vS1, vS2, vS1h, vS2h = 16, 17, 18, 19
vT = 20
vOnes = 28
vACC = 32
vHACC = 96
vWF = 104
vXF = 168
K1_VGPRS = 192


def acc(u, i):
    return vACC + (u * 2 + i) * 4


def wf(b, u):
    return vWF + (b * 8 + u) * 4


def xf(b, i):
    return vXF + (b * 3 + i) * 4


def stats_ops(xreg, s1, s2, t0):
    ops = []
    for d in range(4):
        lo, hi = t0 + (d & 1) * 2, t0 + (d & 1) * 2 + 1
        ops.append(f"v_lshlrev_b32 v{lo}, 16, v{xreg+d}")
        ops.append(f"v_and_b32 v{hi}, 0xffff0000, v{xreg+d}")
        ops.append(f"v_add_f32 v{s1}, v{s1}, v{lo}")
        ops.append(f"v_fmac_f32 v{s2}, v{lo}, v{lo}")
        ops.append(f"v_add_f32 v{s1}, v{s1}, v{hi}")
        ops.append(f"v_fmac_f32 v{s2}, v{hi}, v{hi}")
    return ops


def k1_dma(typ, halo):
    P2 = 960 if typ == "Q" else 832
    o = []
    o.append(f"s_add_u32 m0, s{sCur}, s{sWoff}")
    o.append(f"s_mov_b64 exec, s[{sMaskW}:{sMaskW+1}]")
    for t in range(4):
        o.append(f"buffer_load_dwordx4 v{vWd+t}, s[{S_W}:{S_W+3}], s{sKW} offen offset:{P2*t} lds")
    o.append("s_mov_b64 exec, -1")
    o.append(f"s_add_u32 m0, s{sCur}, s{sXoff}")
    o.append(f"s_add_u32 s{sKW}, s{sKW}, {64*(3840 if typ=='Q' else 3072)}")
    o.append(f"buffer_load_dwordx4 v{vX0}, s[{S_X}:{S_X+3}], s{sKX} offen lds")
    o.append(f"buffer_load_dwordx4 v{vX1}, s[{S_X}:{S_X+3}], s{sKX} offen offset:1024 lds")
    if halo:
        o.append(f"s_add_u32 m0, s{sCur}, {Q_XB}")
        o.append(f"s_mov_b64 exec, s[{sMaskH}:{sMaskH+1}]")
        o.append(f"buffer_load_dwordx4 v{vH0}, s[{S_X}:{S_X+3}], s{sKX} offen lds")
        o.append("s_mov_b64 exec, -1")
        o.append(f"buffer_load_dwordx4 v{vH1}, s[{S_X}:{S_X+3}], s{sKX} offen offset:1024 lds")
    o.append(f"s_add_u32 s{sKX}, s{sKX}, 128")
    return o


def k1_reads(typ, s, c, ks, b, sbase):
    P, GP, XB = (Q_P, Q_GP, Q_XB) if typ == "Q" else (F_P, F_GP, F_XB)
    nu = (8 if c == 0 else 7) if typ == "Q" else 6
    o = []
    o.append(f"v_add_u32 v{vXa}, s{sbase}, v{vXl0 if ks == 0 else vXl1}")
    o.append(f"v_add_u32 v{vWa}, s{sbase}, v{vWl}")
    xr = []
    for i in range(2):
        off = XB + 2048 * (2 * s + i + (1 if typ == "Q" else 0))
        xr.append(f"ds_read_b128 {vr(xf(b,i),4)}, v{vXa} offset:{off}")
    if typ == "Q":
        xr.append(f"ds_read_b128 {vr(xf(b,2),4)}, v{vXa} offset:{XB}")
    wr = []
    for u in range(nu):
        if typ == "Q":
            U = 8 * c + u
            col = (U // 5) * 160 + 8 * (U % 5)
        else:
            col = 32 * (6 * c + u)
        for h in range(2):
            off = ks * 4 * GP + h * 4 * P + col
            wr.append(f"ds_read_b64_tr_b16 {vr(wf(b,u)+2*h,2)}, v{vWa} offset:{off}")
    return o + xr[:2] + wr[:4] + xr[2:] + wr[4:]


def k1_halo_units(typ, s, c):
    if typ == "Q":
        us = [2 * s, 2 * s + 1]
        if c == 1 and s == 3:
            us = [6]
        return us
    tab = {0: [[0, 1], [2, 3], [4], [5]], 1: [[0], [1], [2, 3], [4, 5]]}
    return tab[c][s]


def k1_mfmas(typ, s, c, b):
    nu = (8 if c == 0 else 7) if typ == "Q" else 6
    hu = k1_halo_units(typ, s, c)
    o = []
    for u in range(nu):
        for i in range(2):
            a = acc(u, i)
            o.append(f"v_mfma_f32_16x16x32_bf16 {vr(a,4)}, {vr(wf(b,u),4)}, {vr(xf(b,i),4)}, {vr(a,4)}")
        if u in hu:
            a = vHACC + 4 * hu.index(u)
            bsrc = xf(b, 2) if typ == "Q" else vOnes
            o.append(f"v_mfma_f32_16x16x32_bf16 {vr(a,4)}, {vr(wf(b,u),4)}, {vr(bsrc,4)}, {vr(a,4)}")
    return o


def k1_loop(typ, s, c):
    halo = typ == "Q" and s == 3 and c == 1
    N = 8 if halo else 6
    STG = Q_STAGE if typ == "Q" else F_STAGE
    tag = f"{typ}{s}{c}"
    lab(f"L_k1_{tag}")
    hu = k1_halo_units(typ, s, c)
    base = 8 * c if typ == "Q" else 6 * c
    dummy = 15 if typ == "Q" else 12
    e(f"s_mov_b32 s{sU0}, {base+hu[0]}")
    e(f"s_mov_b32 s{sU1}, {base+hu[1] if len(hu) > 1 else dummy}")
    if typ == "Q":
        for st in range(3):
            e(f"s_mov_b32 s{sCur}, {st*STG}")
            for x in k1_dma(typ, halo):
                e(x)
        e(f"s_waitcnt vmcnt({2*N}) lgkmcnt(0)")
    e("s_barrier")
    e(f"s_mov_b32 s{sCur}, 0")
    e(f"s_mov_b32 s{sNxt}, {STG}")
    e(f"s_mov_b32 s{sIt}, 0")
    for x in k1_reads(typ, s, c, 0, 0, sCur):
        e(x)
    e("s_waitcnt lgkmcnt(0)")
    lab(f"L_k1_{tag}_loop")
    fill = k1_reads(typ, s, c, 1, 1, sCur) + stats_ops(xf(0, c), vS1, vS2, vT)
    if halo:
        fill += stats_ops(xf(0, 2), vS1h, vS2h, vT + 4)
    interleave(k1_mfmas(typ, s, c, 0), fill, per=(4 if halo else 3), lead=2)
    e(f"s_cmp_lt_u32 s{sIt}, 8")
    e(f"s_cbranch_scc1 L_k1_{tag}_w1")
    e("s_waitcnt vmcnt(0)")
    lab(f"L_k1_{tag}_w1")
    e(f"s_waitcnt vmcnt({N}) lgkmcnt(0)")
    e("s_barrier")
    mf = k1_mfmas(typ, s, c, 1)
    rd = k1_reads(typ, s, c, 0, 0, sNxt)
    e(rd[0]); e(rd[1])
    e(mf[0]); e(rd[2]); e(rd[3])
    e(mf[1]); e(rd[4]); e(rd[5])
    e(f"s_cmp_lt_u32 s{sIt}, 7")
    e(f"s_cbranch_scc0 L_k1_{tag}_nodma")
    for x in k1_dma(typ, halo):
        e(x)
    lab(f"L_k1_{tag}_nodma")
    fill = rd[6:] + stats_ops(xf(1, c), vS1, vS2, vT)
    if halo:
        fill += stats_ops(xf(1, 2), vS1h, vS2h, vT + 4)
    fill += [f"s_mov_b32 s{sCur}, s{sNxt}",
             f"s_add_u32 s{sNxt}, s{sNxt}, {STG}",
             f"s_cmp_eq_u32 s{sNxt}, {3*STG}",
             f"s_cselect_b32 s{sNxt}, 0, s{sNxt}",
             f"s_add_u32 s{sIt}, s{sIt}, 1"]
    interleave(mf[2:], fill, per=(5 if halo else 3))
    e(f"s_cmp_lt_u32 s{sIt}, 10")
    e("s_waitcnt lgkmcnt(0)")
    e(f"s_cbranch_scc1 L_k1_{tag}_loop")
    e(f"s_branch L_k1_epi_{typ}")


def reduce_stats(s1, s2, t):
    for sw in ("v_permlane32_swap_b32", "v_permlane16_swap_b32"):
        e(f"v_mov_b32 v{t}, v{s1}")
        e(f"v_mov_b32 v{t+1}, v{s2}")
        e("s_nop 1")
        e(f"{sw} v{s1}, v{t}")
        e(f"{sw} v{s2}, v{t+1}")
        e("s_nop 1")
        e(f"v_add_f32 v{s1}, v{s1}, v{t}")
        e(f"v_add_f32 v{s2}, v{s2}, v{t+1}")
    e(f"v_mul_f32 v{s1}, {hex(f32bits(-1.0/640))}, v{s1}")
    e(f"v_mul_f32 v{s2}, {hex(f32bits(1.0/640))}, v{s2}")
    e(f"v_fma_f32 v{s2}, -v{s1}, v{s1}, v{s2}")
    e(f"v_max_f32 v{s2}, 0, v{s2}")
    e(f"v_add_f32 v{s2}, {hex(f32bits(1e-5))}, v{s2}")
    e(f"v_rsq_f32 v{s2}, v{s2}")
    e("s_nop 0")


def gen_k1():
    e(".p2align 8")
    e(".globl k1_kernel")
    e(".type k1_kernel,@function")
    lab("k1_kernel")
    e("s_cmp_ge_u32 s2, 256")
    e("s_cbranch_scc1 L_k1_end")
    e("s_load_dwordx4 s[4:7], s[0:1], 0")
    e("s_load_dwordx2 s[28:29], s[0:1], 16")
    e("s_load_dwordx4 s[32:35], s[0:1], 32")
    e("s_load_dwordx2 s[36:37], s[0:1], 48")
    e("s_load_dwordx2 s[38:39], s[0:1], 80")
    e(f"v_lshrrev_b32 v{vT}, 6, v0")
    e(f"v_and_b32 v{vLane}, 63, v0")
    e(f"v_readfirstlane_b32 s{sWave}, v{vT}")
    e(f"s_and_b32 s{sTmp}, s2, 3")
    e(f"s_lshl_b32 s{sTmp}, s{sTmp}, 1")
    e(f"s_bfe_u32 s{sG}, s2, 0x10004")
    e(f"s_add_u32 s{sG}, s{sG}, s{sTmp}")
    e(f"s_bfe_u32 s{sTmp}, s2, 0x10002")
    e(f"s_lshl_b32 s{sTmp}, s{sTmp}, 3")
    e(f"s_lshr_b32 s{sRB}, s2, 5")
    e(f"s_add_u32 s{sRB}, s{sRB}, s{sTmp}")
    e(f"s_and_b32 s{sS}, s{sWave}, 3")
    e(f"s_lshr_b32 s{sC}, s{sWave}, 2")
    e(f"s_lshl_b32 s{sT}, s{sS}, 1")
    e(f"s_add_u32 s{sT}, s{sT}, s{sC}")
    e(f"v_lshrrev_b32 v{vT}, 4, v{vLane}")
    e(f"v_and_b32 v{vT+1}, 7, v{vLane}")
    e(f"v_xor_b32 v{vT+1}, v{vT+1}, v{vT}")
    e(f"v_lshlrev_b32 v{vT+1}, 4, v{vT+1}")
    e(f"v_lshrrev_b32 v{vT+2}, 3, v{vLane}")
    e(f"v_mul_u32_u24 v{vT+2}, 2560, v{vT+2}")
    e(f"v_add_u32 v{vT+3}, v{vT+2}, v{vT+1}")
    e(f"v_xor_b32 v{vT+1}, 64, v{vT+1}")
    e(f"v_add_u32 v{vT+4}, v{vT+2}, v{vT+1}")
    e(f"s_lshl_b32 s{sTmp}, s{sRB}, 7")
    e(f"s_lshl_b32 s{sTmp+1}, s{sS}, 5")
    e(f"s_add_u32 s{sTmp+1}, s{sTmp+1}, s{sTmp}")
    e(f"s_add_u32 s{sTmp+1}, s{sTmp+1}, s{sC}")
    e(f"s_mul_i32 s{sTmp+1}, s{sTmp+1}, 1280")
    e(f"v_add_u32 v{vX0}, s{sTmp+1}, v{vT+3}")
    e(f"s_add_u32 s{sTmp+1}, s{sTmp+1}, {16*1280-1024}")
    e(f"v_add_u32 v{vX1}, s{sTmp+1}, v{vT+4}")
    e(f"s_mul_i32 s{sTmp+1}, s{sTmp}, 1280")
    e(f"s_sub_u32 s{sTmp+1}, s{sTmp+1}, {16*1280}")
    e(f"v_add_u32 v{vH0}, s{sTmp+1}, v{vT+3}")
    e(f"s_add_u32 s{sTmp+1}, s{sTmp+1}, {1280-1024}")
    e(f"v_add_u32 v{vH1}, s{sTmp+1}, v{vT+4}")
    e(f"v_and_b32 v{vT+1}, 15, v{vLane}")
    e(f"v_lshrrev_b32 v{vT+2}, 1, v{vT+1}")
    e(f"v_xor_b32 v{vT+2}, v{vT+2}, v{vT}")
    e(f"v_lshlrev_b32 v{vT+2}, 4, v{vT+2}")
    e(f"v_lshl_add_u32 v{vXl0}, v{vT+1}, 7, v{vT+2}")
    e(f"v_xor_b32 v{vXl1}, 64, v{vXl0}")
    for r in list(range(vACC, vHACC + 8)) + [vS1, vS2, vS1h, vS2h]:
        e(f"v_mov_b32 v{r}, 0")
    e(f"s_mov_b32 s{sKW}, 0")
    e(f"s_mov_b32 s{sKX}, 0")
    e(f"s_mov_b32 s{sMask4}, 0x00010001")
    e(f"s_mov_b32 s{sMask4+1}, 0x00010001")
    e(f"v_bfe_u32 v{vT+1}, v{vLane}, 2, 2")
    e(f"v_and_b32 v{vT+2}, 3, v{vLane}")
    e("s_bitcmp1_b32 s2, 3")
    e("s_cbranch_scc1 L_k1_F")

    e(f"v_mul_u32_u24 v{vWl}, {Q_GP}, v{vT}")
    e(f"v_mul_u32_u24 v{vT+3}, {Q_P}, v{vT+1}")
    e(f"v_add_u32 v{vWl}, v{vWl}, v{vT+3}")
    e(f"v_mul_u32_u24 v{vT+3}, 40, v{vT+2}")
    e(f"v_add_u32 v{vWl}, v{vWl}, v{vT+3}")
    e(f"v_cmp_le_u32 vcc, 30, v{vLane}")
    e(f"v_mov_b32 v{vT+3}, 0")
    e(f"v_mov_b32 v{vT+4}, 30")
    e(f"v_cndmask_b32 v{vT+3}, v{vT+3}, v{vT+4}, vcc")
    e(f"v_sub_u32 v{vT+4}, v{vLane}, v{vT+3}")
    e(f"v_mul_u32_u24 v{vT+3}, 128, v{vT+3}")
    e(f"v_mul_u32_u24 v{vT+5}, 26, v{vT+4}")
    e(f"v_lshrrev_b32 v{vT+5}, 8, v{vT+5}")
    e(f"v_mul_u32_u24 v{vT+6}, 10, v{vT+5}")
    e(f"v_sub_u32 v{vT+4}, v{vT+4}, v{vT+6}")
    e(f"v_lshl_add_u32 v{vT+3}, v{vT+4}, 4, v{vT+3}")
    e(f"v_add_u32 v{vT+5}, 1, v{vT+5}")
    e(f"v_cmp_le_u32 vcc, 3, v{vT+5}")
    e(f"v_mov_b32 v{vT+6}, 0")
    e("s_nop 0")
    e(f"v_cndmask_b32 v{vT+5}, v{vT+5}, v{vT+6}, vcc")
    e(f"v_mul_u32_u24 v{vT+5}, 1280, v{vT+5}")
    e(f"v_add_u32 v{vT+3}, v{vT+3}, v{vT+5}")
    e(f"s_mul_i32 s{sTmp}, s{sWave}, {8*3840}")
    e(f"s_mul_i32 s{sTmp+1}, s{sG}, 160")
    e(f"s_add_u32 s{sTmp}, s{sTmp}, s{sTmp+1}")
    e(f"v_add_u32 v{vWd}, s{sTmp}, v{vT+3}")
    for t in range(1, 4):
        e(f"v_add_u32 v{vWd+t}, {6720*t}, v{vWd}")
    e(f"s_mul_i32 s{sWoff}, s{sWave}, {Q_GP}")
    e(f"s_lshl_b32 s{sXoff}, s{sT}, 11")
    e(f"s_add_u32 s{sXoff}, s{sXoff}, {Q_XB+2048}")
    e(f"s_mov_b32 s{sMaskW}, -1")
    e(f"s_mov_b32 s{sMaskW+1}, 0x0fffffff")
    e(f"s_mov_b32 s{sMaskH}, 0xffffff00")
    e(f"s_mov_b32 s{sMaskH+1}, -1")
    e(f"v_and_b32 v{vT+3}, 31, v{vLane}")
    e(f"v_lshlrev_b32 v{vT+3}, 2, v{vT+3}")
    e(f"v_mov_b32 v{vT+4}, 0x3f803f80")
    e(f"ds_write_b32 v{vT+3}, v{vT+4} offset:{Q_XB}")
    e(f"v_add_u32 v{vT+3}, {Q_STAGE}, v{vT+3}")
    e(f"ds_write_b32 v{vT+3}, v{vT+4} offset:{Q_XB}")
    e(f"v_add_u32 v{vT+3}, {Q_STAGE}, v{vT+3}")
    e(f"ds_write_b32 v{vT+3}, v{vT+4} offset:{Q_XB}")
    e("s_waitcnt lgkmcnt(0)")
    srd(S_X, 4, 2048 * 1280)
    srd(S_W, 6, 640 * 3840)
    srd(S_WS, 38, WS_USED)
    for w in range(7):
        e(f"s_cmp_eq_u32 s{sWave}, {w}")
        e(f"s_cbranch_scc1 L_k1_Q{w&3}{w>>2}")
    e("s_branch L_k1_Q31")

    lab("L_k1_F")
    e(f"v_mul_u32_u24 v{vWl}, {F_GP}, v{vT}")
    e(f"v_mul_u32_u24 v{vT+3}, {F_P}, v{vT+1}")
    e(f"v_add_u32 v{vWl}, v{vWl}, v{vT+3}")
    e(f"v_lshl_add_u32 v{vWl}, v{vT+2}, 3, v{vWl}")
    e(f"v_cmp_le_u32 vcc, 26, v{vLane}")
    e(f"v_mov_b32 v{vT+3}, 0")
    e(f"v_mov_b32 v{vT+4}, {3072-26*16}")
    e(f"v_cndmask_b32 v{vT+3}, v{vT+3}, v{vT+4}, vcc")
    e(f"v_lshl_add_u32 v{vT+3}, v{vLane}, 4, v{vT+3}")
    e(f"s_mul_i32 s{sTmp}, s{sWave}, {8*3072}")
    e(f"s_mul_i32 s{sTmp+1}, s{sG}, 384")
    e(f"s_add_u32 s{sTmp}, s{sTmp}, s{sTmp+1}")
    e(f"v_add_u32 v{vWd}, s{sTmp}, v{vT+3}")
    for t in range(1, 4):
        e(f"v_add_u32 v{vWd+t}, {5312*t}, v{vWd}")
    e(f"s_mul_i32 s{sWoff}, s{sWave}, {F_GP}")
    e(f"s_lshl_b32 s{sXoff}, s{sT}, 11")
    e(f"s_add_u32 s{sXoff}, s{sXoff}, {F_XB}")
    e(f"s_mov_b32 s{sMaskW}, 0xfcffffff")
    e(f"s_mov_b32 s{sMaskW+1}, 0x0003ffff")
    for r in range(4):
        e(f"v_mov_b32 v{vOnes+r}, 0x3f803f80")
    sF, sKS, sCG, sBase, sA, sB = sTmp, sTmp + 1, sTmp + 2, sTmp + 3, sTmp + 4, sTmp + 5
    sP, sTt = sTmp + 6, sTmp + 7
    e(f"s_lshr_b32 s{sF}, s2, 4")
    e(f"s_bfe_u32 s{sKS}, s2, 0x20001")
    e(f"s_mul_i32 s{sKS}, s{sKS}, 17")
    e(f"s_and_b32 s{sCG}, s2, 1")
    e(f"s_lshl_b32 s{sCG}, s{sCG}, 2")
    e(f"s_cmp_lt_u32 s{sWave}, 4")
    e(f"s_cselect_b32 s{sP}, s{sF}, 16")
    e(f"s_cselect_b32 s{sTt}, s{sWave}, s{sF}")
    e(f"s_add_u32 s{sKS}, s{sKS}, s{sP}")
    e(f"s_add_u32 s{sCG}, s{sCG}, s{sTt}")
    e(f"s_mul_i32 s{sP}, s{sKS}, 52")
    e(f"s_lshr_b32 s{sP}, s{sP}, 8")
    e(f"s_mul_i32 s{sTt}, s{sP}, 5")
    e(f"s_sub_u32 s{sTt}, s{sKS}, s{sTt}")
    e(f"s_mul_i32 s{sP}, s{sP}, 160")
    e(f"s_lshr_b32 s{sBase}, s{sTt}, 1")
    e(f"s_mul_i32 s{sBase}, s{sBase}, 80")
    e(f"s_and_b32 s{sA}, s{sTt}, 1")
    e(f"s_lshl_b32 s{sA}, s{sA}, 3")
    e(f"s_add_u32 s{sBase}, s{sBase}, s{sA}")
    e(f"s_cmp_eq_u32 s{sTt}, 4")
    e(f"s_cselect_b32 s{sBase}, 16, s{sBase}")
    e(f"s_cselect_b32 s{sA}, 40, 20")
    e(f"s_cselect_b32 s{sB}, 20, 4")
    e(f"s_add_u32 s{sBase}, s{sBase}, s{sP}")
    e(f"s_sub_u32 s{sP}, s{sKS}, 20")
    e(f"s_lshl_b32 s{sP}, s{sP}, 5")
    e("s_waitcnt lgkmcnt(0)")
    e(f"s_mov_b32 s{S_R+2}, {640*1280}")
    e(f"s_cmp_lt_u32 s{sKS}, 20")
    e(f"s_cselect_b32 s{sBase}, s{sBase}, s{sP}")
    e(f"s_cselect_b32 s{sA}, s{sA}, 4")
    e(f"s_cselect_b32 s{sB}, s{sB}, 16")
    e(f"s_cselect_b32 s{S_R}, s28, s36")
    e(f"s_cselect_b32 s{S_R+1}, s29, s37")
    e(f"s_cselect_b32 s{S_R+2}, s{S_R+2}, {1536*1280}")
    e(f"s_and_b32 s{S_R+1}, s{S_R+1}, 0xffff")
    e(f"s_mov_b32 s{S_R+3}, 0x00020000")
    srd(S_X, 4, 2048 * 1280)
    srd(S_W, 32, 640 * 3072)
    srd(S_WS, 38, WS_USED)
    srd(24, 34, 1536 * 2)
    N = 6
    e(f"s_cmp_eq_u32 s{sWave}, 7")
    e("s_cbranch_scc1 L_k1_F_b1")
    e(f"s_cmp_lt_u32 s{sWave}, 4")
    e("s_cbranch_scc1 L_k1_F_job")
    e(f"s_cmp_gt_u32 s{sWave}, 4")
    e("s_cbranch_scc1 L_k1_F_plain")
    e(f"s_cmp_lt_u32 s{sF}, 4")
    e("s_cbranch_scc1 L_k1_F_job")
    lab("L_k1_F_plain")
    for st in range(3):
        e(f"s_mov_b32 s{sCur}, {st*F_STAGE}")
        for x in k1_dma("F", False):
            e(x)
    e(f"s_waitcnt vmcnt({2*N})")
    e("s_branch L_k1_F_disp")
    lab("L_k1_F_b1")
    e(f"s_mul_i32 s{sP}, s{sG}, 384")
    e(f"v_lshlrev_b32 v{vT+3}, 3, v{vLane}")
    e(f"buffer_load_dwordx2 v[{vWF}:{vWF+1}], v{vT+3}, s[24:27], s{sP} offen")
    for st in range(3):
        e(f"s_mov_b32 s{sCur}, {st*F_STAGE}")
        for x in k1_dma("F", False):
            e(x)
    e(f"s_waitcnt vmcnt({3*N})")
    e(f"v_lshlrev_b32 v{vWF+4}, 16, v{vWF}")
    e(f"v_and_b32 v{vWF+5}, 0xffff0000, v{vWF}")
    e(f"v_lshlrev_b32 v{vWF+6}, 16, v{vWF+1}")
    e(f"v_and_b32 v{vWF+7}, 0xffff0000, v{vWF+1}")
    e(f"v_lshlrev_b32 v{vT+3}, 4, v{vLane}")
    e(f"v_add_u32 v{vT+3}, {F_MISC+M_B1}, v{vT+3}")
    e(f"s_mov_b32 s{sP}, -1")
    e(f"s_mov_b32 s{sP+1}, 0xffff")
    e(f"s_mov_b64 exec, s[{sP}:{sP+1}]")
    e(f"ds_write_b128 v{vT+3}, v[{vWF+4}:{vWF+7}]")
    e("s_mov_b64 exec, -1")
    e(f"s_waitcnt vmcnt({2*N}) lgkmcnt(0)")
    e("s_branch L_k1_F_disp")
    lab("L_k1_F_job")
    e(f"s_mul_i32 s{sP}, s{sWave}, 5120")
    e(f"s_add_u32 s{sP}, s{sP}, {F_JOB}")
    e(f"s_mul_i32 s{sBase}, s{sBase}, 1280")
    e(f"s_mul_i32 s{sTt}, s{sCG}, 160")
    e(f"s_add_u32 s{sBase}, s{sBase}, s{sTt}")
    e(f"s_mul_i32 s{sA}, s{sA}, 1280")
    e(f"s_mul_i32 s{sB}, s{sB}, 1280")
    for i in range(5):
        q, rho, t1, t2 = vT + 3, vT + 4, vT + 5, vT + 6
        e(f"v_add_u32 v{q}, {64*i}, v{vLane}")
        e(f"v_mul_u32_u24 v{rho}, 205, v{q}")
        e(f"v_lshrrev_b32 v{rho}, 11, v{rho}")
        e(f"v_mul_u32_u24 v{t1}, 10, v{rho}")
        e(f"v_sub_u32 v{q}, v{q}, v{t1}")
        e(f"v_lshlrev_b32 v{q}, 4, v{q}")
        e(f"v_and_b32 v{t1}, 3, v{rho}")
        e(f"v_mul_u32_u24 v{t1}, 1280, v{t1}")
        e(f"v_add_u32 v{q}, v{q}, v{t1}")
        e(f"v_bfe_u32 v{t1}, v{rho}, 2, 2")
        e(f"v_mad_u32_u24 v{q}, v{t1}, s{sA}, v{q}")
        e(f"v_lshrrev_b32 v{t1}, 4, v{rho}")
        e(f"v_mad_u32_u24 v{q}, v{t1}, s{sB}, v{q}")
        e(f"s_add_u32 m0, s{sP}, {1024*i}")
        e("s_nop 0")
        e(f"buffer_load_dwordx4 v{q}, s[{S_R}:{S_R+3}], s{sBase} offen lds")
    for st in range(2):
        e(f"s_mov_b32 s{sCur}, {st*F_STAGE}")
        for x in k1_dma("F", False):
            e(x)
    e(f"v_lshrrev_b32 v{vT+3}, 2, v{vLane}")
    e(f"v_mul_u32_u24 v{vT+3}, 160, v{vT+3}")
    e(f"v_mul_u32_u24 v{vT+4}, 40, v{vT+2}")
    e(f"v_add3_u32 v{vT+3}, v{vT+3}, v{vT+4}, s{sP}")
    e(f"s_mul_i32 s{sBase}, s{sCG}, 68")
    e(f"s_add_u32 s{sBase}, s{sBase}, s{sKS}")
    e(f"s_mul_i32 s{sBase}, s{sBase}, 5120")
    e(f"s_add_u32 s{sBase}, s{sBase}, {B2_OFF}")
    e(f"s_add_u32 s{sA}, s{sBase}, 4096")
    e(f"v_lshlrev_b32 v{vT+4}, 4, v{vLane}")
    e(f"s_waitcnt vmcnt({2*N})")
    for U in range(5):
        for h in range(2):
            e(f"ds_read_b64_tr_b16 {vr(vWF+4*U+2*h,2)}, v{vT+3} offset:{8*U+2560*h}")
    for U in range(5):
        e(f"s_waitcnt lgkmcnt({8-2*U})")
        if U < 4:
            e(f"buffer_store_dwordx4 {vr(vWF+4*U,4)}, v{vT+4}, s[{S_WS}:{S_WS+3}], s{sBase} offen offset:{1024*U}")
        else:
            e(f"buffer_store_dwordx4 {vr(vWF+4*U,4)}, v{vT+4}, s[{S_WS}:{S_WS+3}], s{sA} offen")
    e(f"s_mov_b32 s{sCur}, {2*F_STAGE}")
    for x in k1_dma("F", False):
        e(x)
    e(f"s_waitcnt vmcnt({2*N+5})")
    lab("L_k1_F_disp")
    for w in range(7):
        e(f"s_cmp_eq_u32 s{sWave}, {w}")
        e(f"s_cbranch_scc1 L_k1_F{w&3}{w>>2}")
    e("s_branch L_k1_F31")

    for typ in "QF":
        for c in range(2):
            for s in range(4):
                k1_loop(typ, s, c)

    lab("L_k1_epi_Q")
    vG, vSlot, vA1, vA2 = vT + 4, vT + 5, vT + 6, vT + 7
    reduce_stats(vS1, vS2, vT)
    e(f"v_lshrrev_b32 v{vG}, 4, v{vLane}")
    e(f"v_and_b32 v{vSlot}, 15, v{vLane}")
    e(f"v_lshlrev_b32 v{vA1}, 3, v{vSlot}")
    e(f"v_add_u32 v{vA1}, {Q_MISC+M_ST}, v{vA1}")
    e(f"s_lshl_b32 s{sTmp}, s{sT}, 7")
    e(f"v_add_u32 v{vA2}, s{sTmp}, v{vA1}")
    e(f"ds_write_b64 v{vA2}, v[{vS1}:{vS1+1}] offset:128")
    e(f"s_cmp_lg_u32 s{sWave}, 7")
    e("s_cbranch_scc1 L_k1_q_nohs")
    reduce_stats(vS1h, vS2h, vT)
    e(f"ds_write_b64 v{vA1}, v[{vS1h}:{vS1h+1}]")
    lab("L_k1_q_nohs")
    vCSl = vXa
    e(f"v_lshlrev_b32 v{vCSl}, 4, v{vG}")
    e(f"v_add_u32 v{vCSl}, {Q_MISC+M_CS}, v{vCSl}")
    e(f"s_lshl_b32 s{sTmp}, s{sU0}, 6")
    e(f"s_lshl_b32 s{sTmp+1}, s{sU1}, 6")
    e(f"v_add_u32 v{vT}, s{sTmp}, v{vCSl}")
    e(f"v_add_u32 v{vT+1}, s{sTmp+1}, v{vCSl}")
    e(f"s_mov_b64 exec, s[{sMask4}:{sMask4+1}]")
    e(f"ds_write_b128 v{vT}, v[{vHACC}:{vHACC+3}]")
    e(f"ds_write_b128 v{vT+1}, v[{vHACC+4}:{vHACC+7}]")
    e("s_mov_b64 exec, -1")
    vPw, vPh = vX0, vX1
    e(f"v_mul_u32_u24 v{vPw}, 640, v{vG}")
    e(f"v_lshrrev_b32 v{vPh}, 3, v{vSlot}")
    e(f"v_mul_u32_u24 v{vPh}, {2560-64}, v{vPh}")
    e(f"v_lshl_add_u32 v{vPw}, v{vSlot}, 3, v{vPw}")
    e(f"v_add_u32 v{vPh}, v{vPh}, v{vPw}")
    e(f"s_mul_i32 s{sTmp}, s{sU0}, {PLANE}")
    e(f"s_mul_i32 s{sTmp+1}, s{sU1}, {PLANE}")
    e(f"v_add_u32 v{vH0}, s{sTmp}, v{vPh}")
    e(f"v_add_u32 v{vH1}, s{sTmp+1}, v{vPh}")
    vAt, vAq, vAv = vWd, vWd + 1, vWd + 2
    e(f"s_mul_i32 s{sTmp}, s{sC}, 2560")
    e(f"s_lshl_b32 s{sTmp+1}, s{sS}, 7")
    e(f"s_add_u32 s{sTmp}, s{sTmp}, s{sTmp+1}")
    e(f"v_add_u32 v{vAt}, s{sTmp}, v{vPw}")
    e(f"v_add_u32 v{vAq}, {10*PLANE+64}, v{vAt}")
    e(f"v_bfe_u32 v{vT}, v{vLane}, 2, 2")
    e(f"v_and_b32 v{vT+1}, 3, v{vLane}")
    e(f"v_lshl_add_u32 v{vT}, v{vT+1}, 2, v{vT}")
    e(f"v_mul_u32_u24 v{vAv}, 640, v{vG}")
    e(f"v_lshl_add_u32 v{vAv}, v{vT}, 3, v{vAv}")
    e(f"v_add_u32 v{vAv}, s{sTmp}, v{vAv}")
    e(f"s_mul_i32 s{sTmp}, s{sC}, {8*PLANE}")
    e(f"s_add_u32 s{sTmp}, s{sTmp}, s{sTmp+1}")
    e(f"s_add_u32 s{sTmp}, s{sTmp}, 64")
    e(f"v_add_u32 v{vPw}, s{sTmp}, v{vPw}")
    e(f"s_lshl_b32 s{sTmp}, s{sS}, 8")
    e(f"v_add_u32 v{vA2}, s{sTmp}, v{vA1}")
    e(f"s_lshl_b32 s{sTmp}, s{sC}, 9")
    e(f"v_add_u32 v{vWa}, s{sTmp}, v{vCSl}")
    e("s_waitcnt lgkmcnt(0)")
    e("s_barrier")
    vST = vXF
    vCS = vWF
    vCSH = vWF + 32
    e(f"ds_read_b64 v[{vST}:{vST+1}], v{vA2} offset:128")
    e(f"ds_read_b64 v[{vST+2}:{vST+3}], v{vA2} offset:256")
    e(f"ds_read_b64 v[{vST+4}:{vST+5}], v{vA1}")
    for u in range(8):
        e(f"ds_read_b128 {vr(vCS+4*u,4)}, v{vWa} offset:{64*u}")
    e(f"s_lshl_b32 s{sTmp}, s{sU0}, 6")
    e(f"s_lshl_b32 s{sTmp+1}, s{sU1}, 6")
    e(f"v_add_u32 v{vT}, s{sTmp}, v{vCSl}")
    e(f"v_add_u32 v{vT+1}, s{sTmp+1}, v{vCSl}")
    e(f"ds_read_b128 {vr(vCSH,4)}, v{vT}")
    e(f"ds_read_b128 {vr(vCSH+4,4)}, v{vT+1}")

    def norm_unit(a, cs, st, addr, off):
        for h in range(2):
            e(f"v_pk_fma_f32 v[{a+2*h}:{a+2*h+1}], v[{cs+2*h}:{cs+2*h+1}], v[{st}:{st+1}], v[{a+2*h}:{a+2*h+1}] op_sel:[0,0,0] op_sel_hi:[1,0,1]")
        for h in range(2):
            e(f"v_pk_mul_f32 v[{a+2*h}:{a+2*h+1}], v[{a+2*h}:{a+2*h+1}], v[{st}:{st+1}] op_sel:[0,1] op_sel_hi:[1,1]")
        e(f"v_cvt_pk_bf16_f32 v{a}, v{a}, v{a+1}")
        e(f"v_cvt_pk_bf16_f32 v{a+1}, v{a+2}, v{a+3}")
        e(f"ds_write_b64 v{addr}, v[{a}:{a+1}] offset:{off}")

    e("s_waitcnt lgkmcnt(0)")
    for u in range(8):
        if u == 7:
            e(f"s_cmp_eq_u32 s{sC}, 1")
            e("s_cbranch_scc1 L_k1_q_skip7")
        for i in range(2):
            norm_unit(acc(u, i), vCS + 4 * u, vST + 2 * i, vPw, u * PLANE + i * 2560)
    lab("L_k1_q_skip7")
    norm_unit(vHACC, vCSH, vST + 4, vH0, 0)
    norm_unit(vHACC + 4, vCSH + 4, vST + 4, vH1, 0)
    vLg = vACC
    vLg = vWF + 40
    vKf = vACC
    vVf = vACC + 30
    vQf = vWF + 52
    vO = vXF
    vPf = vWF
    BIG = 2.0 ** 100
    q4, gq, lo, hi = vT, vT + 1, vT + 2, vT + 3
    e(f"v_and_b32 v{q4}, 3, v{vLane}")
    e(f"v_bfe_u32 v{gq}, v{vLane}, 2, 2")
    e(f"v_lshlrev_b32 v{gq}, 2, v{gq}")
    e(f"s_or_b32 s{sTmp}, s{sRB}, s{sS}")
    e(f"s_cmp_eq_u32 s{sTmp}, 0")
    e(f"s_cselect_b32 s{sTmp}, 8, 0")
    e(f"v_sub_u32 v{lo}, s{sTmp}, v{gq}")
    e(f"v_add_u32 v{hi}, 1, v{q4}")
    e(f"v_max_i32 v{lo}, v{lo}, v{hi}")
    e(f"v_cvt_f32_i32 v{lo}, v{lo}")
    e(f"v_cvt_f32_i32 v{hi}, v{q4}")
    e(f"v_mov_b32 v{vT+6}, {hex(f32bits(-BIG))}")
    e(f"v_mov_b32 v{vT+7}, {hex(f32bits(BIG))}")
    e(f"v_mov_b32 v{vLg}, v{vT+6}")
    for p in range(1, 8):
        e(f"v_fmaak_f32 v{vLg+p}, v{lo}, v{vT+6}, {hex(f32bits(p*BIG))}")
        e(f"v_min_f32 v{vLg+p}, 0, v{vLg+p}")
    e(f"v_mov_b32 v{vLg+8}, 0")
    for p in range(9, 12):
        e(f"v_fmaak_f32 v{vLg+p}, v{hi}, v{vT+7}, {hex(f32bits(-(p-8)*BIG))}")
        e(f"v_min_f32 v{vLg+p}, 0, v{vLg+p}")
    e(f"s_lshl_b32 s{sTmp}, s{sRB}, 3")
    e(f"s_add_u32 s{sTmp}, s{sTmp}, s{sT}")
    e(f"s_mul_i32 s{sTmp}, s{sTmp}, 68")
    e(f"s_lshr_b32 s{sTmp+1}, s{sG}, 1")
    e(f"s_mul_i32 s{sTmp+1}, s{sTmp+1}, 5")
    e(f"s_add_u32 s{sTmp}, s{sTmp}, s{sTmp+1}")
    e(f"s_and_b32 s{sTmp+1}, s{sG}, 1")
    e(f"s_lshl_b32 s{sTmp+2}, s{sTmp+1}, 1")
    e(f"s_add_u32 s{sTmp+2}, s{sTmp+2}, s{sTmp}")
    e(f"s_lshl_b32 s{sTmp+2}, s{sTmp+2}, 10")
    e(f"s_add_u32 s{sTmp}, s{sTmp}, 4")
    e(f"s_lshl_b32 s{sTmp}, s{sTmp}, 10")
    e(f"s_lshl_b32 s{sTmp+1}, s{sTmp+1}, 9")
    e(f"s_add_u32 s{sTmp}, s{sTmp}, s{sTmp+1}")
    vOa, vOb = vX0, vX1
    e(f"v_lshlrev_b32 v{vOa}, 4, v{vLane}")
    e(f"v_lshrrev_b32 v{vOb}, 5, v{vLane}")
    e(f"v_lshlrev_b32 v{vOb}, 8, v{vOb}")
    e(f"v_lshl_add_u32 v{vOb}, v{vSlot}, 4, v{vOb}")
    e(f"v_bfe_u32 v{vT+6}, v{vLane}, 4, 1")
    e(f"v_lshl_add_u32 v{vOb}, v{vT+6}, 3, v{vOb}")
    e("s_waitcnt lgkmcnt(0)")
    e("s_barrier")
    def qk_reads(t):
        e(f"ds_read_b64 {vr(vQf+2*t,2)}, v{vAq} offset:{t*PLANE}")
        for kb in range(3):
            e(f"ds_read_b64 {vr(vKf+2*(3*t+kb),2)}, v{vAt} offset:{t*PLANE+32*kb}")
    for t in range(3):
        qk_reads(t)
    for t in range(5):
        e(f"s_waitcnt lgkmcnt({min(8, 4*(4-t))})")
        for kb in range(3):
            e(f"v_mfma_f32_4x4x4_16b_bf16 {vr(vLg+4*kb,4)}, {vr(vKf+2*(3*t+kb),2)}, {vr(vQf+2*t,2)}, {vr(vLg+4*kb,4)}")
        if t < 2:
            qk_reads(t + 3)
    for kb in range(3):
        for t in range(5):
            e(f"ds_read_b64_tr_b16 {vr(vVf+2*(5*kb+t),2)}, v{vAv} offset:{(5+t)*PLANE+32*kb}")
    m = vT
    e(f"v_max3_f32 v{m}, v{vLg+1}, v{vLg+2}, v{vLg+3}")
    e(f"v_max3_f32 v{m+1}, v{vLg+4}, v{vLg+5}, v{vLg+6}")
    e(f"v_max3_f32 v{m+2}, v{vLg+7}, v{vLg+8}, v{vLg+9}")
    e(f"v_max3_f32 v{m}, v{m}, v{vLg+10}, v{vLg+11}")
    e(f"v_max3_f32 v{m}, v{m}, v{m+1}, v{m+2}")
    cexp = (20 ** -0.5) * 1.4426950408889634
    e(f"s_mov_b32 s{sTmp+3}, {hex(f32bits(cexp))}")
    e(f"v_mul_f32 v{m}, {hex(f32bits(-cexp))}, v{m}")
    for p in range(1, 12):
        e(f"v_fma_f32 v{vLg+p}, v{vLg+p}, s{sTmp+3}, v{m}")
    for p in range(1, 12):
        e(f"v_exp_f32 v{vLg+p}, v{vLg+p}")
    e(f"v_add_f32 v{m}, v{vLg+1}, v{vLg+2}")
    e(f"v_add_f32 v{m+1}, v{vLg+3}, v{vLg+4}")
    for p in range(5, 11, 2):
        e(f"v_add_f32 v{m}, v{m}, v{vLg+p}")
        e(f"v_add_f32 v{m+1}, v{m+1}, v{vLg+p+1}")
    e(f"v_add_f32 v{m}, v{m}, v{vLg+11}")
    e(f"v_add_f32 v{m}, v{m}, v{m+1}")
    e(f"v_rcp_f32 v{m}, v{m}")
    e(f"v_mov_b32 v{vLg}, 0")
    for p in range(1, 12):
        e(f"v_mul_f32 v{vLg+p}, v{vLg+p}, v{m}")
    for j in range(6):
        e(f"v_cvt_pk_bf16_f32 v{vPf+j}, v{vLg+2*j}, v{vLg+2*j+1}")
    e("s_waitcnt lgkmcnt(0)")
    e("s_nop 0")
    for kb in range(3):
        for t in range(5):
            cin = "0" if kb == 0 else vr(vO + 4 * t, 4)
            e(f"v_mfma_f32_4x4x4_16b_bf16 {vr(vO+4*t,4)}, {vr(vVf+2*(5*kb+t),2)}, {vr(vPf+2*kb,2)}, {cin}")
    e("s_nop 1")
    vOp = vWF + 8
    for t in range(5):
        if t == 4:
            e("s_nop 0")
        e(f"v_cvt_pk_bf16_f32 v{vOp+2*t}, v{vO+4*t}, v{vO+4*t+1}")
        e(f"v_cvt_pk_bf16_f32 v{vOp+2*t+1}, v{vO+4*t+2}, v{vO+4*t+3}")
    e(f"buffer_store_dwordx4 {vr(vOp,4)}, v{vOa}, s[{S_WS}:{S_WS+3}], s{sTmp+2} offen")
    e(f"buffer_store_dwordx4 {vr(vOp+4,4)}, v{vOa}, s[{S_WS}:{S_WS+3}], s{sTmp+2} offen offset:1024")
    e(f"buffer_store_dwordx2 {vr(vOp+8,2)}, v{vOb}, s[{S_WS}:{S_WS+3}], s{sTmp} offen")
    e("s_endpgm")

    lab("L_k1_epi_F")
    reduce_stats(vS1, vS2, vT)
    e(f"v_lshrrev_b32 v{vG}, 4, v{vLane}")
    e(f"v_and_b32 v{vSlot}, 15, v{vLane}")
    e(f"v_lshlrev_b32 v{vA1}, 3, v{vSlot}")
    e(f"v_add_u32 v{vA1}, {F_MISC+M_ST}, v{vA1}")
    e(f"s_lshl_b32 s{sTmp}, s{sT}, 7")
    e(f"v_add_u32 v{vA2}, s{sTmp}, v{vA1}")
    e(f"ds_write_b64 v{vA2}, v[{vS1}:{vS1+1}]")
    e(f"v_lshlrev_b32 v{vCSl}, 4, v{vG}")
    e(f"v_add_u32 v{vCSl}, {F_MISC+M_CS}, v{vCSl}")
    e(f"s_lshl_b32 s{sTmp}, s{sU0}, 6")
    e(f"s_lshl_b32 s{sTmp+1}, s{sU1}, 6")
    e(f"v_add_u32 v{vT}, s{sTmp}, v{vCSl}")
    e(f"v_add_u32 v{vT+1}, s{sTmp+1}, v{vCSl}")
    e(f"s_mov_b64 exec, s[{sMask4}:{sMask4+1}]")
    e(f"ds_write_b128 v{vT}, v[{vHACC}:{vHACC+3}]")
    e(f"ds_write_b128 v{vT+1}, v[{vHACC+4}:{vHACC+7}]")
    e("s_mov_b64 exec, -1")
    e(f"s_lshl_b32 s{sTmp}, s{sS}, 8")
    e(f"v_add_u32 v{vA2}, s{sTmp}, v{vA1}")
    e(f"s_mul_i32 s{sTmp}, s{sC}, 384")
    e(f"v_add_u32 v{vWa}, s{sTmp}, v{vCSl}")
    e(f"s_lshl_b32 s{sTmp}, s{sRB}, 3")
    e(f"s_lshl_b32 s{sTmp+1}, s{sS}, 1")
    e(f"s_add_u32 s{sTmp}, s{sTmp}, s{sTmp+1}")
    e(f"s_mul_i32 s{sTmp}, s{sTmp}, 68")
    e(f"s_mul_i32 s{sTmp+1}, s{sG}, 6")
    e(f"s_add_u32 s{sTmp}, s{sTmp}, s{sTmp+1}")
    e(f"s_mul_i32 s{sTmp+1}, s{sC}, 3")
    e(f"s_add_u32 s{sTmp}, s{sTmp}, s{sTmp+1}")
    e(f"s_add_u32 s{sTmp}, s{sTmp}, 20")
    e(f"s_lshl_b32 s{sTmp}, s{sTmp}, 10")
    e(f"s_add_u32 s{sTmp+1}, s{sTmp}, {68*1024}")
    e(f"v_lshlrev_b32 v{vX0}, 4, v{vLane}")
    e("s_waitcnt lgkmcnt(0)")
    e("s_barrier")
    vB1 = vWF + 24
    e(f"ds_read_b64 v[{vST}:{vST+1}], v{vA2}")
    e(f"ds_read_b64 v[{vST+2}:{vST+3}], v{vA2} offset:128")
    for u in range(6):
        e(f"ds_read_b128 {vr(vCS+4*u,4)}, v{vWa} offset:{64*u}")
        e(f"ds_read_b128 {vr(vB1+4*u,4)}, v{vWa} offset:{64*u+M_B1-M_CS}")
    vPk = vWF + 48
    k = 0
    for pr in range(3):
        e(f"s_waitcnt lgkmcnt({8-4*pr})")
        for i in range(2):
            pk = vPk + 4 * (k & 3); k += 1
            st = vST + 2 * i
            for uu in range(2):
                u = 2 * pr + uu
                a = acc(u, i)
                cs, b1 = vCS + 4 * u, vB1 + 4 * u
                for h in range(2):
                    e(f"v_pk_fma_f32 v[{a+2*h}:{a+2*h+1}], v[{cs+2*h}:{cs+2*h+1}], v[{st}:{st+1}], v[{a+2*h}:{a+2*h+1}] op_sel:[0,0,0] op_sel_hi:[1,0,1]")
                for h in range(2):
                    e(f"v_pk_fma_f32 v[{a+2*h}:{a+2*h+1}], v[{a+2*h}:{a+2*h+1}], v[{st}:{st+1}], v[{b1+2*h}:{b1+2*h+1}] op_sel:[0,1,0] op_sel_hi:[1,1,1]")
                for r in range(4):
                    e(f"v_max_f32 v{a+r}, 0, v{a+r}")
                for h in range(2):
                    e(f"v_pk_mul_f32 v[{a+2*h}:{a+2*h+1}], v[{a+2*h}:{a+2*h+1}], v[{a+2*h}:{a+2*h+1}]")
                e(f"v_cvt_pk_bf16_f32 v{pk+2*uu}, v{a}, v{a+1}")
                e(f"v_cvt_pk_bf16_f32 v{pk+2*uu+1}, v{a+2}, v{a+3}")
            e(f"buffer_store_dwordx4 {vr(pk,4)}, v{vX0}, s[{S_WS}:{S_WS+3}], s{sTmp+i} offen offset:{1024*pr}")
    lab("L_k1_end")
    e("s_endpgm")


def gen_k2():
    S_WS2, S_X2, S_OUT, S_BB = 8, 12, 16, 20
    sWv, sRt, sHf, sCG, sRB64 = 30, 31, 32, 33, 34
    sCur2, sDst, sSrc, sSrc2, sIt2, sM = 35, 36, 37, 38, 39, 40
    sT2 = 44
    vL, vL16, vAa, vBa, vT2 = 1, 2, 3, 4, 6
    vXd = 5
    vAcc, vSav = 16, 28
    vFr = 40
    K2V = 104
    e(".p2align 8")
    e(".globl k2_kernel")
    e(".type k2_kernel,@function")
    lab("k2_kernel")
    e("s_cmp_ge_u32 s2, 256")
    e("s_cbranch_scc1 L_k2_end")
    e("s_load_dwordx2 s[4:5], s[0:1], 0")
    e("s_load_dwordx4 s[24:27], s[0:1], 56")
    e("s_load_dwordx2 s[28:29], s[0:1], 80")
    e(f"v_lshrrev_b32 v{vT2}, 6, v0")
    e(f"v_and_b32 v{vL}, 63, v0")
    e(f"v_readfirstlane_b32 s{sWv}, v{vT2}")
    e(f"v_lshlrev_b32 v{vL16}, 4, v{vL}")
    e(f"s_bfe_u32 s{sRB64}, s2, 0x20001")
    e(f"s_lshl_b32 s{sRB64}, s{sRB64}, 3")
    e(f"s_lshr_b32 s{sT2}, s2, 5")
    e(f"s_add_u32 s{sRB64}, s{sRB64}, s{sT2}")
    e(f"s_and_b32 s{sCG}, s2, 1")
    e(f"s_lshl_b32 s{sCG}, s{sCG}, 2")
    e(f"s_bfe_u32 s{sT2}, s2, 0x20003")
    e(f"s_add_u32 s{sCG}, s{sCG}, s{sT2}")
    e(f"s_and_b32 s{sRt}, s{sWv}, 3")
    e(f"s_lshr_b32 s{sHf}, s{sWv}, 2")
    for r in range(12):
        e(f"v_mov_b32 v{vAcc+r}, 0")
    e(f"s_lshl_b32 s{sT2}, s{sRt}, 12")
    e(f"s_add_u32 s{sT2}, s{sT2}, 20480")
    e(f"v_add_u32 v{vT2+8}, s{sT2}, v{vL16}")
    e(f"v_mul_u32_u24 v{vT2}, 26, v{vL}")
    e(f"v_lshrrev_b32 v{vT2}, 8, v{vT2}")
    e(f"v_mul_u32_u24 v{vT2+1}, 10, v{vT2}")
    e(f"v_sub_u32 v{vT2+1}, v{vL}, v{vT2+1}")
    e(f"v_mul_u32_u24 v{vT2}, 2560, v{vT2}")
    e(f"v_lshl_add_u32 v{vXd}, v{vT2+1}, 4, v{vT2}")
    e(f"s_lshl_b32 s{sT2}, s{sRB64}, 6")
    e(f"s_lshr_b32 s{sT2+1}, s{sRt}, 1")
    e(f"s_lshl_b32 s{sT2+1}, s{sT2+1}, 5")
    e(f"s_add_u32 s{sT2}, s{sT2}, s{sT2+1}")
    e(f"s_and_b32 s{sT2+1}, s{sRt}, 1")
    e(f"s_add_u32 s{sT2}, s{sT2}, s{sT2+1}")
    e(f"s_mul_i32 s{sT2}, s{sT2}, 1280")
    e(f"s_mul_i32 s{sT2+1}, s{sCG}, 160")
    e(f"s_add_u32 s{sT2+2}, s{sT2}, s{sT2+1}")
    e("s_waitcnt lgkmcnt(0)")
    srd(S_WS2, 28, WS_USED)
    srd(S_X2, 4, 2048 * 1280)
    srd(S_OUT, 26, 2048 * 1280)
    srd(S_BB, 24, 1280)
    e(f"s_mov_b32 s{sIt2}, 0")
    e(f"s_cmp_eq_u32 s{sHf}, 1")
    e("s_cbranch_scc1 L_k2_h1")

    for hf in range(2):
        N = 4 if hf == 0 else 5
        units = [0, 1, 2] if hf == 0 else [3, 4]
        nu = len(units)
        lab(f"L_k2_h{hf}")
        if hf == 0:
            e(f"s_lshl_b32 s{sSrc}, s{sRB64}, 2")
            e(f"s_add_u32 s{sSrc}, s{sSrc}, s{sRt}")
            e(f"s_mul_i32 s{sSrc}, s{sSrc}, {68*1024}")
            e(f"s_lshl_b32 s{sM}, s{sRt}, 12")
            e(f"s_add_u32 s{sM}, s{sM}, 20480")
            step = 4096
        else:
            e(f"s_mul_i32 s{sSrc}, s{sCG}, 68")
            e(f"s_add_u32 s{sSrc}, s{sSrc}, s{sRt}")
            e(f"s_mul_i32 s{sSrc}, s{sSrc}, 5120")
            e(f"s_add_u32 s{sSrc}, s{sSrc}, {B2_OFF}")
            e(f"s_mul_i32 s{sM}, s{sRt}, 5120")
            step = 20480

        def dma():
            o = [f"s_add_u32 m0, s{sDst}, s{sM}"]
            if hf == 1:
                o.append(f"s_add_u32 s{sSrc2}, s{sSrc}, 4096")
            else:
                o.append("s_nop 0")
            for i in range(4):
                o.append(f"buffer_load_dwordx4 v{vL16}, s[{S_WS2}:{S_WS2+3}], s{sSrc} offen offset:{1024*i} lds")
            if hf == 1:
                o.append(f"s_add_u32 m0, m0, 4096")
                o.append("s_nop 0")
                o.append(f"buffer_load_dwordx4 v{vL16}, s[{S_WS2}:{S_WS2+3}], s{sSrc2} offen lds")
            o.append(f"s_add_u32 s{sSrc}, s{sSrc}, {step}")
            return o

        if hf == 1:
            e(f"s_mul_i32 s{sT2}, s{sCG}, 160")
            e(f"v_lshlrev_b32 v{vT2}, 2, v{vL}")
            e(f"buffer_load_dword v{vT2+2}, v{vT2}, s[{S_BB}:{S_BB+3}], s{sT2} offen")
        for st in range(3):
            e(f"s_mov_b32 s{sDst}, {st*K2_STAGE}")
            for x in dma():
                e(x)
        if hf == 1:
            e(f"s_waitcnt vmcnt({3*N})")
            e(f"v_lshlrev_b32 v{vT2+4}, 16, v{vT2+2}")
            e(f"v_and_b32 v{vT2+5}, 0xffff0000, v{vT2+2}")
            e(f"v_lshlrev_b32 v{vT2}, 3, v{vL}")
            e(f"v_add_u32 v{vT2}, {K2_B2}, v{vT2}")
            e(f"s_mov_b32 s{sT2}, -1")
            e(f"s_mov_b32 s{sT2+1}, 0xff")
            e(f"s_mov_b64 exec, s[{sT2}:{sT2+1}]")
            e(f"ds_write_b64 v{vT2}, v[{vT2+4}:{vT2+5}]")
            e("s_mov_b64 exec, -1")
        e(f"s_mov_b32 s{sCur2}, 0")
        e(f"s_mov_b32 s{sDst}, {3*K2_STAGE}")
        lab(f"L_k2_h{hf}_loop")
        e(f"s_cmp_lt_u32 s{sIt2}, 15")
        e(f"s_cbranch_scc1 L_k2_h{hf}_w")
        e(f"s_waitcnt vmcnt({N+2})")
        e(f"s_cmp_lt_u32 s{sIt2}, 16")
        e(f"s_cbranch_scc1 L_k2_h{hf}_w")
        e("s_waitcnt vmcnt(0)")
        lab(f"L_k2_h{hf}_w")
        e(f"s_waitcnt vmcnt({2*N}) lgkmcnt(0)")
        e("s_barrier")
        e(f"v_add_u32 v{vAa}, s{sCur2}, v{vT2+8}")
        e(f"v_add_u32 v{vBa}, s{sCur2}, v{vL16}")

        def fr(ks, i):
            return vFr + (ks * 4 + i) * 4
        rds = []
        for ks in range(4):
            rds.append(f"ds_read_b128 {vr(fr(ks,0),4)}, v{vAa} offset:{1024*ks}")
            for i, U in enumerate(units):
                rds.append(f"ds_read_b128 {vr(fr(ks,1+i),4)}, v{vBa} offset:{(ks*5+U)*1024}")
        per = nu + 1
        for x in rds[:3 * per]:
            e(x)
        e(f"s_cmp_lt_u32 s{sIt2}, 14")
        e(f"s_cbranch_scc0 L_k2_h{hf}_nodma")
        for x in dma():
            e(x)
        e(f"s_cmp_lg_u32 s{sIt2}, 5")
        e(f"s_cbranch_scc1 L_k2_h{hf}_go")
        for r in range(4 * nu):
            e(f"v_mov_b32 v{vSav+r}, v{vAcc+r}")
            e(f"v_mov_b32 v{vAcc+r}, 0")
        e(f"s_branch L_k2_h{hf}_go")
        lab(f"L_k2_h{hf}_nodma")
        e(f"s_cmp_lg_u32 s{sIt2}, 14")
        e(f"s_cbranch_scc1 L_k2_h{hf}_go")
        e(f"s_mul_i32 s{sT2}, s{sRt}, 2560")
        e(f"s_add_u32 m0, s{sT2}, {K2_X+1280*hf}")
        e(f"s_add_u32 s{sT2}, s{sT2+2}, {16*1280*hf}")
        e(f"s_add_u32 s{sT2+1}, s{sT2}, {8*1280-640}")
        e(f"s_mov_b32 s{sT2+4}, -1")
        e(f"s_mov_b32 s{sT2+5}, 0xff")
        e(f"s_mov_b64 exec, s[{sT2+4}:{sT2+5}]")
        e(f"buffer_load_dwordx4 v{vXd}, s[{S_X2}:{S_X2+3}], s{sT2} offen lds")
        e(f"buffer_load_dwordx4 v{vXd}, s[{S_X2}:{S_X2+3}], s{sT2+1} offen offset:640 lds")
        e("s_mov_b64 exec, -1")
        lab(f"L_k2_h{hf}_go")
        for ks in range(4):
            if ks == 0:
                e(f"s_waitcnt lgkmcnt({2*per})")
            elif ks == 1:
                e(f"s_waitcnt lgkmcnt({2*per})")
            else:
                e(f"s_waitcnt lgkmcnt({(3-ks)*per})")
            for i in range(nu):
                a = vAcc + 4 * i
                e(f"v_mfma_f32_16x16x32_bf16 {vr(a,4)}, {vr(fr(ks,1+i),4)}, {vr(fr(ks,0),4)}, {vr(a,4)}")
            if ks == 0:
                for x in rds[3 * per:]:
                    e(x)
        e(f"s_mov_b32 s{sDst}, s{sCur2}")
        e(f"s_add_u32 s{sCur2}, s{sCur2}, {K2_STAGE}")
        e(f"s_cmp_eq_u32 s{sCur2}, {4*K2_STAGE}")
        e(f"s_cselect_b32 s{sCur2}, 0, s{sCur2}")
        e(f"s_add_u32 s{sIt2}, s{sIt2}, 1")
        e(f"s_cmp_lt_u32 s{sIt2}, 17")
        e(f"s_cbranch_scc1 L_k2_h{hf}_loop")
        nel = 4 * nu
        cb = 0 if hf == 0 else 12
        vG, vSl = vT2, vT2 + 1
        e(f"v_lshrrev_b32 v{vG}, 4, v{vL}")
        e(f"v_and_b32 v{vSl}, 15, v{vL}")
        e(f"v_mul_u32_u24 v{vT2+2}, 80, v{vG}")
        vBb = vFr
        e(f"v_add_u32 v{vT2+2}, {K2_B2+cb*4}, v{vT2+2}")
        for i in range(nu):
            e(f"ds_read_b128 {vr(vBb+4*i,4)}, v{vT2+2} offset:{16*i}")
        e(f"v_mul_u32_u24 v{vT2+3}, 160, v{vSl}")
        e(f"v_mul_u32_u24 v{vT2+4}, 40, v{vG}")
        e(f"s_mul_i32 s{sT2}, s{sRt}, 2560")
        e(f"s_add_u32 s{sT2}, s{sT2}, {K2_X+2*cb}")
        e(f"v_add3_u32 v{vT2+3}, v{vT2+3}, v{vT2+4}, s{sT2}")
        vXx = vFr + 16
        for i in range(nu):
            e(f"ds_read_b64 {vr(vXx+2*i,2)}, v{vT2+3} offset:{8*i}")
        e(f"v_mul_u32_u24 v{vT2+5}, 2560, v{vSl}")
        e(f"v_add_u32 v{vT2+5}, v{vT2+5}, v{vT2+4}")
        e(f"s_mov_b32 s{sT2}, {hex(f32bits(-1.4426950408889634))}")
        e("s_waitcnt lgkmcnt(0)")
        vE = vFr + 32
        vXf = vFr + 48
        for r in range(nel):
            e(f"v_add_f32 v{vAcc+r}, v{vAcc+r}, v{vBb+r}")
        for r in range(nel):
            e(f"v_mul_f32 v{vE+r}, s{sT2}, v{vAcc+r}")
        for r in range(nel):
            e(f"v_exp_f32 v{vE+r}, v{vE+r}")
        for r in range(nel):
            e(f"v_mul_f32 v{vAcc+r}, v{vAcc+r}, v{vSav+r}")
        for r in range(nel):
            e(f"v_add_f32 v{vE+r}, 1.0, v{vE+r}")
        for r in range(nel):
            e(f"v_rcp_f32 v{vE+r}, v{vE+r}")
        for d in range(nel // 2):
            e(f"v_lshlrev_b32 v{vXf+2*d}, 16, v{vXx+d}")
            e(f"v_and_b32 v{vXf+2*d+1}, 0xffff0000, v{vXx+d}")
        for r in range(nel):
            e(f"v_fmac_f32 v{vXf+r}, v{vAcc+r}, v{vE+r}")
        for d in range(nel // 2):
            e(f"v_cvt_pk_bf16_f32 v{vBb+d}, v{vXf+2*d}, v{vXf+2*d+1}")
        e(f"buffer_store_dwordx4 {vr(vBb,4)}, v{vT2+5}, s[{S_OUT}:{S_OUT+3}], s{sT2+2} offen offset:{2*cb}")
        if hf == 0:
            e(f"buffer_store_dwordx2 {vr(vBb+4,2)}, v{vT2+5}, s[{S_OUT}:{S_OUT+3}], s{sT2+2} offen offset:16")
        e("s_endpgm")
    lab("L_k2_end")
    e("s_endpgm")
    return K2V


def kd(name, vg, sg=96):
    L.append(f".amdhsa_kernel {name}")
    L.append(f"  .amdhsa_next_free_vgpr {vg}")
    L.append(f"  .amdhsa_next_free_sgpr {sg}")
    L.append(f"  .amdhsa_accum_offset {(vg+3)//4*4}")
    L.append("  .amdhsa_group_segment_fixed_size 0")
    L.append("  .amdhsa_kernarg_size 88")
    L.append("  .amdhsa_user_sgpr_count 2")
    L.append("  .amdhsa_user_sgpr_kernarg_segment_ptr 1")
    L.append("  .amdhsa_system_sgpr_workgroup_id_x 1")
    L.append(".end_amdhsa_kernel")


def main():
    L.append("; Fused LN + [QKV|W1] GEMM + dilated local attention (k1) ; [o|h] x [wo;w2] GEMM + gating epilogue (k2)")
    L.append(f"; @launch kernel=k1_kernel grid=(256,1,1) block=(512,1,1) lds={K1_LDS}")
    L.append(f"; @launch kernel=k2_kernel grid=(256,1,1) block=(512,1,1) lds={K2_LDS}")
    L.append('.amdgcn_target "amdgcn-amd-amdhsa--gfx950"')
    L.append(".text")
    gen_k1()
    k2v = gen_k2()
    L.append('.section .rodata,"a"')
    L.append(".p2align 6")
    kd("k1_kernel", K1_VGPRS)
    L.append(".p2align 6")
    kd("k2_kernel", k2v)
    out = sys.argv[1] if len(sys.argv) > 1 else OUT
    open(out, "w").write("\n".join(L) + "\n")
    print("wrote", out, len(L), "lines")


main()
```

```python
import sys
import os
import struct

NAME = "recurrent_scan__sliding_local_dilated__dense_activation_squared_relu__prompt"
OUT = f"cdna_kernels/{NAME}.s"
STAMP = os.environ.get("STAMP") == "1"
STAMP_OFF = 16 << 20
L = []


def e(s=""):
    L.append("    " + s)


def lab(s):
    L.append(s + ":")


def vr(a, n=1):
    return f"v{a}" if n == 1 else f"v[{a}:{a+n-1}]"


def f32(x):
    return hex(struct.unpack("<I", struct.pack("<f", x))[0])


A2_OFF = 0
A2_SIZE = 128 * 68 * 1024
B2N_OFF = A2_SIZE
B2W_OFF = B2N_OFF + 4 * 68 * 4096
ST_OFF = B2W_OFF + 4 * 68 * 6144
FL_OFF = ST_OFF + 2048 * 8
WS_USED = FL_OFF + 256 * 128 if not STAMP else (32 << 20)

Q_P, Q_GP = 480, 3968
Q_XB = 8 * Q_GP
Q_STAGE = Q_XB + 9 * 2048
F_P, F_GP = 416, 3456
F_XB = 8 * F_GP
F_STAGE = F_XB + 8 * 2048
PLANE = 5120
Q_PL = Q_STAGE
Q_MISC = 3 * Q_STAGE
QM_ST, QM_CS, QM_RK = 0, 1152, 2112
Q_X2 = 153600
Q_B2 = Q_X2 + 8192
F_JOB = 3 * F_STAGE
F_MISC = 158720
FM_ST, FM_CS, FM_B1 = 0, 1024, 1792
F_X2 = 143360
F_B2 = F_X2 + 12288
LDS_TOTAL = 162048
assert Q_B2 + 256 <= LDS_TOTAL and F_MISC + FM_B1 + 768 <= LDS_TOTAL and F_B2 + 384 <= F_MISC
assert F_JOB + 2 * 4096 + 3 * 6144 <= F_MISC and Q_MISC + QM_RK + 640 <= Q_X2
P2 = {"Q": dict(n=4, slot=16384, nslot=9, first=8, X=Q_X2, B2=Q_B2, boff=B2N_OFF),
      "F": dict(n=6, slot=20480, nslot=7, first=3, X=F_X2, B2=F_B2, boff=B2W_OFF)}

S_X, S_W, S_WS, S_R, S_DBG = 8, 12, 16, 20, 24
sWave, sS, sG, sRB = 40, 41, 42, 43
sCur, sNxt, sKW, sKX, sIt = 44, 45, 46, 47, 48
sWoff, sXoff, sHoff = 49, 50, 51
sMaskW, sMaskH = 52, 54
sT = 56
sA = 70
sRh, sU0, sH0, sNH = 70, 71, 72, 73
sSt = 80

vLane = 1
vX0, vX1, vH0 = 2, 3, 4
vWd = 6
vWl, vXl0, vXl1, vWa, vXa = 10, 11, 12, 13, 14
vT = 16
vOnes = 28
vACC = 32
vHACC = 96
vWF = 112
vXF = 128
NVGPR = 168


def acc(u, i):
    return vACC + (u * 4 + i) * 4


def wf(u):
    return vWF + 4 * u


def xf(b, i):
    return vXF + (b * 5 + i) * 4


def srd(d, base, nrec):
    e(f"s_mov_b32 s{d}, s{base}")
    e(f"s_and_b32 s{d+1}, s{base+1}, 0xffff")
    e(f"s_mov_b32 s{d+2}, {nrec}")
    e(f"s_mov_b32 s{d+3}, 0x00020000")


def stamp(i, real=False):
    if STAMP:
        e(f"{'s_memrealtime' if real else 's_memtime'} s[100:101]")
        e("s_waitcnt lgkmcnt(0)")
        e(f"s_mov_b32 s{sSt+i}, s100")


def stamp_flush():
    if STAMP:
        e("s_waitcnt vmcnt(0)")
        stamp(13)
        stamp(15, real=True)
        for i in range(16):
            e(f"v_mov_b32 v{32+i}, s{sSt+i}")
        e(f"s_mul_i32 s{sT}, s2, 12")
        e(f"s_add_u32 s{sT}, s{sT}, s{sWave}")
        e(f"s_lshl_b32 s{sT}, s{sT}, 6")
        e(f"s_add_u32 s{sT}, s{sT}, {STAMP_OFF}")
        e("v_mov_b32 v48, 0")
        e("s_mov_b64 exec, 1")
        for i in range(4):
            e(f"buffer_store_dwordx4 v[{32+4*i}:{35+4*i}], v48, s[{S_WS}:{S_WS+3}], s{sT} offen offset:{16*i}")


QCFG = [(0, 0, 4, 0, 4), (0, 4, 4, 0, 4), (0, 8, 4, 0, 2), (1, 4, 4, 0, 0),
        (0, 12, 3, 0, 2), (1, 12, 3, 2, 1), (1, 0, 4, 0, 0), (1, 8, 4, 2, 2)]
FCFG = [(0, 0, 4, 0, 2), (0, 6, 4, 0, 2), (1, 0, 4, 2, 2), (1, 6, 4, 2, 2),
        (0, 4, 2, 0, 1), (0, 10, 2, 0, 1), (1, 4, 2, 1, 1), (1, 10, 2, 1, 1)]


def p1_dma(typ):
    P2_ = 960 if typ == "Q" else 832
    GP = Q_GP if typ == "Q" else F_GP
    RP = 3840 if typ == "Q" else 3072
    e(f"s_add_u32 m0, s{sCur}, s{sXoff}")
    e(f"s_add_u32 s{sT}, s{sKX}, 1280")
    e(f"buffer_load_dwordx4 v{vX0}, s[{S_X}:{S_X+3}], s{sKX} offen lds")
    e(f"buffer_load_dwordx4 v{vX1}, s[{S_X}:{S_X+3}], s{sKX} offen offset:1024 lds")
    e(f"s_add_u32 m0, m0, 2048")
    e("s_nop 0")
    e(f"buffer_load_dwordx4 v{vX0}, s[{S_X}:{S_X+3}], s{sT} offen lds")
    e(f"buffer_load_dwordx4 v{vX1}, s[{S_X}:{S_X+3}], s{sT} offen offset:1024 lds")
    if typ == "Q":
        e(f"s_add_u32 m0, s{sCur}, s{sHoff}")
        e(f"s_mov_b64 exec, s[{sMaskH}:{sMaskH+1}]")
        e(f"buffer_load_dwordx4 v{vH0}, s[{S_X}:{S_X+3}], s{sKX} offen lds")
    e(f"s_add_u32 m0, s{sCur}, s{sWoff}")
    e(f"s_mov_b64 exec, s[{sMaskW}:{sMaskW+1}]")
    for t in range(4):
        e(f"buffer_load_dwordx4 v{vWd+t}, s[{S_W}:{S_W+3}], s{sKW} offen offset:{P2_*t} lds")
    e(f"s_add_u32 m0, m0, {4*GP}")
    e(f"s_add_u32 s{sT}, s{sKW}, {32*RP}")
    for t in range(4):
        e(f"buffer_load_dwordx4 v{vWd+t}, s[{S_W}:{S_W+3}], s{sT} offen offset:{P2_*t} lds")
    e("s_mov_b64 exec, -1")
    e(f"s_add_u32 s{sKW}, s{sKW}, {64*RP}")
    e(f"s_add_u32 s{sKX}, s{sKX}, 128")
    STG = Q_STAGE if typ == "Q" else F_STAGE
    e(f"s_add_u32 s{sCur}, s{sCur}, {STG}")
    e(f"s_cmp_eq_u32 s{sCur}, {3*STG}")
    e(f"s_cselect_b32 s{sCur}, 0, s{sCur}")


def p1_loop(typ, w):
    rh, u0, nu, h0, nh = (QCFG if typ == "Q" else FCFG)[w]
    STG = Q_STAGE if typ == "Q" else F_STAGE
    P, GP, XB = (Q_P, Q_GP, Q_XB) if typ == "Q" else (F_P, F_GP, F_XB)
    tag = f"{typ}{w}"
    usehx = typ == "Q" and nh > 0

    def xreads(b):
        o = []
        for i in range(4):
            off = XB + 2048 * (4 * rh + i + (1 if typ == "Q" else 0))
            o.append(f"ds_read_b128 {vr(xf(b,i),4)}, v{vXa} offset:{off}")
        if usehx:
            o.append(f"ds_read_b128 {vr(xf(b,4),4)}, v{vXa} offset:{XB}")
        return o

    def wreads(u, ks):
        U = u0 + u
        col = (U // 5) * 160 + 8 * (U % 5) if typ == "Q" else 32 * U
        return [f"ds_read_b64_tr_b16 {vr(wf(u)+2*h,2)}, v{vWa} offset:{ks*4*GP+h*4*P+col}" for h in range(2)]

    def mfmas(u, b):
        o = [f"v_mfma_f32_16x16x32_bf16 {vr(acc(u,i),4)}, {vr(wf(u),4)}, {vr(xf(b,i),4)}, {vr(acc(u,i),4)}" for i in range(4)]
        if h0 <= u < h0 + nh:
            a = vHACC + 4 * (u - h0)
            bsrc = xf(b, 4) if typ == "Q" else vOnes
            o.append(f"v_mfma_f32_16x16x32_bf16 {vr(a,4)}, {vr(wf(u),4)}, {vr(bsrc,4)}, {vr(a,4)}")
        return o

    lab(f"L_p1_{tag}")
    e(f"s_mov_b32 s{sRh}, {rh}")
    e(f"s_mov_b32 s{sU0}, {u0}")
    e(f"s_mov_b32 s{sH0}, {u0+h0}")
    e(f"s_mov_b32 s{sNH}, {nh}")
    stamp(2)
    e("s_barrier")
    stamp(3)
    for x in xreads(0):
        e(x)
    for u in range(nu):
        for x in wreads(u, 0):
            e(x)
    e(f"v_mov_b32 v{vXa}, v{vXl1}")
    e("s_waitcnt lgkmcnt(0)")
    lab(f"L_p1_{tag}_loop")
    body = []
    NB = 1
    for ph in range(2):
        pend = []
        if ph == 0:
            pend += [("l", x, ("x", 1)) for x in xreads(1)]
        for u in range(nu):
            if ph == 1 and u == NB:
                body.append(("o", f"v_add_u32 v{vXa}, s{sNxt}, v{vXl0}"))
                body.append(("o", f"v_add_u32 v{vWa}, s{sNxt}, v{vWl}"))
                body.append(("w0", "s_waitcnt vmcnt(0) lgkmcnt(0)"))
                body.append(("o", "s_barrier"))
                pend = [("l", x, ("x", 0)) for x in xreads(0)] + pend
            ms = mfmas(u, ph)
            rem_after = sum(len(mfmas(uu, ph)) for uu in range(u + 1, nu))
            for mi, m in enumerate(ms):
                body.append(("m", m, [("w", u, ph), ("x", ph)] if mi == 0 else []))
                if mi == len(ms) - 1:
                    pend += [("l", x, ("w", u, 1 - ph)) for x in wreads(u, 1 - ph)]
                if not (ph == 1 and u < NB):
                    left = len(ms) - 1 - mi + rem_after + 1
                    k = 1 if len(pend) <= left else 2
                    while pend and k > 0:
                        body.append(pend.pop(0)); k -= 1
        while pend:
            body.append(pend.pop(0))
        if ph == 1:
            body.append(("o", f"v_add_u32 v{vXa}, s{sNxt}, v{vXl1}"))
            body.append(("o", f"s_add_u32 s{sNxt}, s{sNxt}, {STG}"))
            body.append(("o", f"s_cmp_eq_u32 s{sNxt}, {3*STG}"))
            body.append(("o", f"s_cselect_b32 s{sNxt}, 0, s{sNxt}"))
            body.append(("o", f"s_add_u32 s{sIt}, s{sIt}, 1"))
    n = len(body)
    waits = {}
    covered, ops = -1, []
    for pos, it in enumerate(body + body):
        if it[0] == "l":
            ops.append(it[2])
        elif it[0] == "w0":
            covered = len(ops) - 1
        elif it[0] == "m" and it[2]:
            need = -1
            for tg in it[2]:
                idx = [i for i, t in enumerate(ops) if t == tg]
                if idx:
                    need = max(need, idx[-1])
            if need > covered:
                cnt = min(13, len(ops) - 1 - need)
                covered = len(ops) - 1 - cnt
                if pos >= n:
                    waits[pos - n] = min(cnt, waits.get(pos - n, 99))
                else:
                    waits[pos] = cnt
    ops, covered = [], -1
    for pos, it in enumerate(body * 3):
        p0 = pos % n
        if p0 in waits:
            covered = max(covered, len(ops) - 1 - waits[p0])
        if it[0] == "l":
            ops.append(it[2])
        elif it[0] == "w0":
            covered = len(ops) - 1
        elif it[0] == "m" and it[2]:
            for tg in it[2]:
                idx = [i for i, t in enumerate(ops) if t == tg]
                assert not idx or idx[-1] <= covered, (tag, pos, tg)
    for pos, it in enumerate(body):
        if pos in waits:
            e(f"s_waitcnt lgkmcnt({waits[pos]})")
        e(it[1])
    e(f"s_cmp_lt_u32 s{sIt}, 10")
    e(f"s_cbranch_scc1 L_p1_{tag}_loop")
    e("s_waitcnt lgkmcnt(0)")
    stamp(4)
    e(f"s_branch L_epi_{typ}{nu}")


_spin = [0]


def spin_check(vreg, want_s, reload_fn):
    k = _spin[0]; _spin[0] += 1
    e(f"s_mov_b32 s{sT+7}, 0")
    lab(f"L_spin{k}")
    e(f"v_cmp_ne_u32 vcc, s{want_s}, v{vreg}")
    e("s_nop 4")
    e(f"s_cbranch_vccz L_spin{k}_ok")
    e(f"s_add_u32 s{sT+7}, s{sT+7}, 1")
    e(f"s_cmp_gt_u32 s{sT+7}, 0x40000")
    e(f"s_cbranch_scc1 L_spin{k}_ok")
    e("s_sleep 4")
    reload_fn()
    e("s_waitcnt vmcnt(0)")
    e(f"s_branch L_spin{k}")
    lab(f"L_spin{k}_ok")


def loader(typ):
    N = 13 if typ == "Q" else 12
    p = P2[typ]
    n, SLOT, NSLOT = p["n"], p["slot"], p["nslot"]
    NBq = n // 2
    N2 = 2 + NBq
    vP, vFa, vL16, vSa = vT + 8, vT + 9, vT + 10, vT + 11
    sSrcA, sSrcB, sDst, sMA, sMB, sOne, sFl = sA, sA + 1, sA + 2, sA + 3, sA + 4, sA + 5, sA + 6
    e(f"s_mov_b32 s{sCur}, 0")
    p1_dma(typ)
    p1_dma(typ)
    srd(S_WS, 68, WS_USED)
    srd(S_DBG, 66, 256)
    e(f"s_waitcnt vmcnt({N})")
    e("s_barrier")
    p1_dma(typ)
    e(f"v_lshlrev_b32 v{vL16}, 4, v{vLane}")
    e(f"v_lshlrev_b32 v{vFa}, 7, v{vLane}")
    e(f"v_lshlrev_b32 v{vSa}, 2, v{vLane}")
    e(f"s_bfe_u32 s{sT}, s2, 0x20001")
    e(f"s_lshl_b32 s{sT}, s{sT}, 3")
    e(f"s_lshr_b32 s{sT+1}, s2, 5")
    e(f"s_add_u32 s{sT}, s{sT}, s{sT+1}")
    e(f"s_lshr_b32 s{sFl}, s{sT}, 1")
    e(f"s_lshl_b32 s{sFl}, s{sFl}, 11")
    e(f"s_add_u32 s{sFl}, s{sFl}, {FL_OFF}")
    e(f"s_lshl_b32 s{sSrcA}, s{sT}, 2")
    e(f"s_add_u32 s{sSrcA}, s{sSrcA}, s{sS}")
    e(f"s_mul_i32 s{sSrcA}, s{sSrcA}, {68*1024}")
    e(f"s_and_b32 s{sT}, s2, 1")
    e(f"s_lshl_b32 s{sT}, s{sT}, 1")
    e(f"s_bfe_u32 s{sT+1}, s2, 0x10004")
    e(f"s_add_u32 s{sT}, s{sT}, s{sT+1}")
    e(f"s_mul_i32 s{sSrcB}, s{sT}, {68*n*1024}")
    e(f"s_mul_i32 s{sMB}, s{sS}, {NBq*1024}")
    e(f"s_add_u32 s{sSrcB}, s{sSrcB}, s{sMB}")
    e(f"s_add_u32 s{sSrcB}, s{sSrcB}, {p['boff']}")
    e(f"s_lshl_b32 s{sMA}, s{sS}, 11")
    e(f"s_add_u32 s{sMA}, s{sMA}, {2*n*1024}")
    e(f"s_mov_b32 s{sOne}, 1")
    e(f"s_mov_b32 s{sIt}, 0")
    lab(f"L_ld{typ}_loop")
    e(f"s_waitcnt vmcnt({N})")
    e("s_barrier")
    e(f"s_cmp_lg_u32 s{sIt}, 0")
    e(f"s_cbranch_scc1 L_ld{typ}_noflag")
    e(f"s_lshl_b32 s{sT}, s{sRB}, 4")
    e(f"s_add_u32 s{sT}, s{sT}, s{sG}")
    if typ == "F":
        e(f"s_add_u32 s{sT}, s{sT}, 8")
    e(f"v_mov_b32 v{vT}, 1")
    e(f"v_mov_b32 v{vT+1}, 0")
    e(f"s_cmp_eq_u32 s{sS}, 0")
    e(f"s_cselect_b32 s{sT}, s{sT}, 0x1000")
    e("s_mov_b64 exec, 1")
    e(f"buffer_store_byte v{vT}, v{vT+1}, s[{S_DBG}:{S_DBG+3}], s{sT} offen sc1")
    e("s_mov_b64 exec, -1")
    lab(f"L_ld{typ}_noflag")
    p1_dma(typ)
    e(f"s_add_u32 s{sIt}, s{sIt}, 1")
    e(f"s_cmp_lt_u32 s{sIt}, 6")
    e(f"s_cbranch_scc1 L_ld{typ}_loop")

    def load_dbg():
        e(f"buffer_load_dword v{vP}, v{vSa}, s[{S_DBG}:{S_DBG+3}], 0 offen sc1")
    e(f"s_waitcnt vmcnt({N})")
    e("s_barrier")
    load_dbg()
    p1_dma(typ)
    per = 36 if typ == "Q" else 32
    e(f"s_mul_i32 s{sT}, s{sS}, {per}")
    e(f"v_add_u32 v{vT}, s{sT}, v{vLane}")
    e(f"v_and_b32 v{vT+1}, 15, v{vT}")
    e(f"v_lshrrev_b32 v{vT+2}, 4, v{vT}")
    if typ == "Q":
        e(f"v_subrev_u32 v{vT+3}, 1, v{vT+2}")
        e(f"v_lshrrev_b32 v{vT+4}, 1, v{vT+3}")
        e(f"v_lshlrev_b32 v{vT+4}, 5, v{vT+4}")
        e(f"v_and_b32 v{vT+3}, 1, v{vT+3}")
        e(f"v_lshl_add_u32 v{vT+3}, v{vT+1}, 1, v{vT+3}")
        e(f"v_add_u32 v{vT+3}, v{vT+3}, v{vT+4}")
        e(f"v_and_b32 v{vT+4}, 7, v{vT+1}")
        e(f"v_lshrrev_b32 v{vT+5}, 3, v{vT+1}")
        e(f"v_lshl_add_u32 v{vT+4}, v{vT+4}, 1, v{vT+5}")
        e(f"v_cmp_eq_u32 vcc, 0, v{vT+2}")
        e(f"v_subrev_u32 v{vT+4}, 16, v{vT+4}")
        e("s_nop 0")
        e(f"v_cndmask_b32 v{vT+3}, v{vT+3}, v{vT+4}, vcc")
        e(f"v_add_u32 v{vT+4}, 16, v{vT+3}")
        e(f"v_and_b32 v{vT+5}, 1, v{vT+4}")
        e(f"v_lshrrev_b32 v{vT+4}, 1, v{vT+4}")
        e(f"v_mul_u32_u24 v{vT+5}, 320, v{vT+5}")
        e(f"v_lshl_add_u32 v{vT+4}, v{vT+4}, 2, v{vT+5}")
        e(f"v_add_u32 v{vT+4}, {Q_MISC+QM_RK}, v{vT+4}")
    else:
        e(f"v_lshrrev_b32 v{vT+4}, 1, v{vT+2}")
        e(f"v_lshlrev_b32 v{vT+4}, 5, v{vT+4}")
        e(f"v_and_b32 v{vT+3}, 1, v{vT+2}")
        e(f"v_lshl_add_u32 v{vT+3}, v{vT+1}, 1, v{vT+3}")
        e(f"v_add_u32 v{vT+3}, v{vT+3}, v{vT+4}")
    e(f"s_lshl_b32 s{sT}, s{sRB}, 7")
    e(f"v_add_u32 v{vT+3}, s{sT}, v{vT+3}")
    e(f"v_max_i32 v{vT+3}, 0, v{vT+3}")
    e(f"v_lshlrev_b32 v{vT+3}, 3, v{vT+3}")
    e(f"v_lshlrev_b32 v{vT}, 3, v{vT}")
    e(f"v_add_u32 v{vT}, {(Q_MISC+QM_ST) if typ == 'Q' else (F_MISC+FM_ST)}, v{vT}")
    e(f"s_waitcnt vmcnt({N})")
    e("s_barrier")
    e(f"s_mov_b32 s{sT+6}, 0x01010101")
    spin_check(vP, sT + 6, load_dbg)
    e(f"s_mov_b32 s{sT}, {ST_OFF}")
    e(f"s_mov_b32 s{sT+2}, -1")
    e(f"s_mov_b32 s{sT+3}, {0xf if typ == 'Q' else 0}")
    e(f"s_mov_b64 exec, s[{sT+2}:{sT+3}]")
    e(f"buffer_load_dwordx2 v[{vT+6}:{vT+7}], v{vT+3}, s[{S_WS}:{S_WS+3}], s{sT} offen sc1")
    e("s_waitcnt vmcnt(0)")
    e(f"ds_write_b64 v{vT}, v[{vT+6}:{vT+7}]")
    if typ == "Q":
        e(f"ds_write_b32 v{vT+4}, v{vT+7}")
    e("s_mov_b64 exec, -1")
    e("s_waitcnt lgkmcnt(0)")
    e("s_barrier")

    def dmaB():
        e(f"s_add_u32 m0, s{sDst}, s{sMB}")
        e("s_nop 0")
        for i in range(NBq):
            e(f"buffer_load_dwordx4 v{vL16}, s[{S_WS}:{S_WS+3}], s{sSrcB} offen offset:{1024*i} sc1 lds")
        e(f"s_add_u32 s{sSrcB}, s{sSrcB}, {2*n*1024}")

    def dmaA():
        e(f"s_add_u32 m0, s{sDst}, s{sMA}")
        e("s_nop 0")
        for i in range(2):
            e(f"buffer_load_dwordx4 v{vL16}, s[{S_WS}:{S_WS+3}], s{sSrcA} offen offset:{1024*i} sc1 lds")
        e(f"s_add_u32 s{sSrcA}, s{sSrcA}, 2048")

    def adv():
        e(f"s_add_u32 s{sDst}, s{sDst}, {SLOT}")
        e(f"s_cmp_eq_u32 s{sDst}, {NSLOT*SLOT}")
        e(f"s_cselect_b32 s{sDst}, 0, s{sDst}")

    def stage():
        dmaB(); dmaA(); adv()

    def slot_of(k):
        return ((p["first"] + k) % NSLOT) * SLOT

    def load_flags(off):
        def f():
            e("s_mov_b64 exec, 0xff")
            e(f"buffer_load_dword v{vP}, v{vFa}, s[{S_WS}:{S_WS+3}], s{sFl} offen offset:{off} sc1")
        return f

    def own_flag():
        e(f"s_lshl_b32 s{sT}, s{sRB}, 4")
        e(f"s_add_u32 s{sT}, s{sT}, s{sG}")
        e(f"s_lshl_b32 s{sT}, s{sT}, 7")
        e(f"s_add_u32 s{sT}, s{sT}, {FL_OFF + (1024 if typ == 'F' else 0)}")
        e(f"s_cmp_eq_u32 s{sS}, 0")
        e(f"s_cselect_b32 s{sT}, s{sT}, 0x7f000000")
        e(f"v_mov_b32 v{vT}, 1")
        e(f"v_mov_b32 v{vT+1}, 0")
        e("s_mov_b64 exec, 1")
        e(f"buffer_store_dword v{vT}, v{vT+1}, s[{S_WS}:{S_WS+3}], s{sT} offen sc1")
        e("s_mov_b64 exec, -1")

    PRE = 4
    nearly = 1 if typ == "Q" else 4
    for k in range(nearly):
        e(f"s_mov_b32 s{sDst}, {slot_of(k)}")
        dmaB()
    e("s_barrier")
    e("s_barrier")
    for k in range(nearly, PRE):
        e(f"s_mov_b32 s{sDst}, {slot_of(k)}")
        dmaB()
    if typ == "Q":
        load_flags(1024)()
        e("s_mov_b64 exec, -1")
        e("s_barrier")
    else:
        e("s_barrier")
        own_flag()
        load_flags(1024)()
        e("s_mov_b64 exec, -1")
    e("s_waitcnt vmcnt(0)")
    e("s_mov_b64 exec, 0xff")
    spin_check(vP, sOne, load_flags(1024))
    e("s_mov_b64 exec, -1")
    stamp(5)
    for k in range(PRE):
        e(f"s_mov_b32 s{sDst}, {slot_of(k)}")
        dmaA()
    e(f"s_mov_b32 s{sDst}, {slot_of(PRE)}")
    issued = PRE
    q = [2] * PRE
    t = 0
    LOOK = NSLOT - 1
    extra = []

    def allowed(t):
        return sum(q[t + 1:]) + sum(1 for x in extra if x >= t)

    while issued - t - 1 < LOOK - 1 or t < 3:
        e(f"s_waitcnt vmcnt({allowed(t)})")
        e("s_barrier")
        if typ == "Q" and t == 2:
            own_flag()
            extra.append(issued - 1)
        k = 0
        while issued <= t + LOOK and k < 2:
            stage(); q.append(N2); issued += 1; k += 1
        t += 1
    assert issued == t + LOOK, (issued, t)
    T_POLL = 24 - LOOK - 3
    T_CHK = 24 - LOOK
    assert t <= T_POLL
    e(f"s_mov_b32 s{sIt}, {t}")
    lab(f"L_ld{typ}_p2a")
    e(f"s_waitcnt vmcnt({(LOOK-1)*N2})")
    e("s_barrier")
    stage()
    e(f"s_add_u32 s{sIt}, s{sIt}, 1")
    e(f"s_cmp_lt_u32 s{sIt}, {T_POLL}")
    e(f"s_cbranch_scc1 L_ld{typ}_p2a")
    load_flags(0)()
    e("s_mov_b64 exec, -1")
    for tt in range(T_POLL, T_CHK):
        e(f"s_waitcnt vmcnt({(LOOK-1)*N2+1})")
        e("s_barrier")
        stage()
    e(f"s_waitcnt vmcnt({3*N2})")
    e("s_mov_b64 exec, 0xff")
    spin_check(vP, sOne, load_flags(0))
    e("s_mov_b64 exec, -1")
    e(f"s_mov_b32 s{sIt}, {T_CHK}")
    lab(f"L_ld{typ}_p2b")
    e(f"s_waitcnt vmcnt({(LOOK-1)*N2})")
    e("s_barrier")
    stage()
    e(f"s_add_u32 s{sIt}, s{sIt}, 1")
    e(f"s_cmp_lt_u32 s{sIt}, {34-LOOK}")
    e(f"s_cbranch_scc1 L_ld{typ}_p2b")
    nch = 2 * n
    rows_per = 64 // nch
    if typ == "F":
        rows_per = 4
    nin = 16 // rows_per
    srd(S_R, 38, 1280)
    if typ == "Q":
        e(f"v_lshrrev_b32 v{vT}, 3, v{vLane}")
        e(f"v_and_b32 v{vT+1}, 7, v{vLane}")
    else:
        e(f"v_mul_u32_u24 v{vT}, 43, v{vLane}")
        e(f"v_lshrrev_b32 v{vT}, 9, v{vT}")
        e(f"v_mul_u32_u24 v{vT+1}, 12, v{vT}")
        e(f"v_sub_u32 v{vT+1}, v{vLane}, v{vT+1}")
    e(f"v_mul_u32_u24 v{vT}, 2560, v{vT}")
    e(f"v_lshl_add_u32 v{vT}, v{vT+1}, 4, v{vT}")
    p2_rowcol(typ, sT, sT + 1)
    e(f"s_mul_i32 s{sT+2}, s{sS}, {16*nch*16}")
    e(f"s_add_u32 m0, s{sT+2}, {p['X']}")
    if typ == "F":
        e(f"s_mov_b32 s{sT+2}, -1")
        e(f"s_mov_b32 s{sT+3}, 0xffff")
        e(f"s_mov_b64 exec, s[{sT+2}:{sT+3}]")
    for i in range(nin):
        lo = rows_per * nch * 16 * i
        e(f"s_add_u32 s{sT+4}, s{sT}, {i*rows_per*2560-lo}")
        e(f"buffer_load_dwordx4 v{vT}, s[{S_X}:{S_X+3}], s{sT+4} offen offset:{lo} lds")
    e("s_mov_b64 exec, -1")
    e(f"buffer_load_dword v{vT+2}, v{vSa}, s[{S_R}:{S_R+3}], s{sT+1} offen")
    e(f"v_lshlrev_b32 v{vT}, 3, v{vLane}")
    e(f"v_add_u32 v{vT}, {p['B2']}, v{vT}")
    nx = nin + 1
    for tt in range(34 - LOOK, 34):
        rem = 33 - tt
        if rem > 0:
            e(f"s_waitcnt vmcnt({rem*N2+nx})")
        else:
            e("s_waitcnt vmcnt(0)")
            e(f"v_lshlrev_b32 v{vT+4}, 16, v{vT+2}")
            e(f"v_and_b32 v{vT+5}, 0xffff0000, v{vT+2}")
            e(f"s_mov_b32 s{sT+2}, -1")
            e(f"s_mov_b32 s{sT+3}, {0 if typ == 'Q' else 0xffff}")
            e(f"s_mov_b64 exec, s[{sT+2}:{sT+3}]")
            e(f"ds_write_b64 v{vT}, v[{vT+4}:{vT+5}]")
            e("s_waitcnt lgkmcnt(0)")
        e("s_barrier")
    if STAMP:
        e("s_mov_b64 exec, -1")
    stamp_flush()
    e("s_endpgm")


def p2_rowcol(typ, sd, sc):
    e(f"s_bfe_u32 s{sd}, s2, 0x20001")
    e(f"s_lshl_b32 s{sd}, s{sd}, 3")
    e(f"s_lshr_b32 s{sc}, s2, 5")
    e(f"s_add_u32 s{sd}, s{sd}, s{sc}")
    e(f"s_lshl_b32 s{sd}, s{sd}, 6")
    e(f"s_lshr_b32 s{sc}, s{sS}, 1")
    e(f"s_lshl_b32 s{sc}, s{sc}, 5")
    e(f"s_add_u32 s{sd}, s{sd}, s{sc}")
    e(f"s_and_b32 s{sc}, s{sS}, 1")
    e(f"s_add_u32 s{sd}, s{sd}, s{sc}")
    e(f"s_mul_i32 s{sd}, s{sd}, 1280")
    e(f"s_and_b32 s{sc}, s2, 1")
    e(f"s_lshl_b32 s{sc}, s{sc}, 1")
    e(f"s_bfe_u32 s{sd+2}, s2, 0x10004")
    e(f"s_add_u32 s{sc}, s{sc}, s{sd+2}")
    e(f"s_mul_i32 s{sc}, s{sc}, 320")
    if typ == "F":
        e(f"s_add_u32 s{sc}, s{sc}, 128")
    e(f"s_add_u32 s{sd}, s{sd}, s{sc}")


def p2_compute(typ):
    p = P2[typ]
    n, SLOT, NSLOT = p["n"], p["slot"], p["nslot"]
    nu = n // 2
    vAl, vBl, vAa, vBa = 2, 3, 4, 5
    vF, vS = 32, 44
    vFr = 64
    sHf = sA

    def fr(st, ks, i):
        return vFr + ((st * 2 + ks) * (1 + nu) + i) * 4
    lab(f"L_p2_{typ}")
    e(f"s_lshr_b32 s{sHf}, s{sWave}, 2")
    e(f"v_lshlrev_b32 v{vBl}, 4, v{vLane}")
    e(f"s_lshl_b32 s{sT}, s{sS}, 11")
    e(f"s_add_u32 s{sT}, s{sT}, {2*n*1024}")
    e(f"v_add_u32 v{vAl}, s{sT}, v{vBl}")
    e(f"s_mul_i32 s{sT}, s{sHf}, {nu*1024}")
    e(f"v_add_u32 v{vBl}, s{sT}, v{vBl}")
    for r in range(4 * nu):
        e(f"v_mov_b32 v{vF+r}, 0")
        e(f"v_mov_b32 v{vS+r}, 0")
    for r in range(2 * (1 + nu) * 4):
        e(f"v_mov_b32 v{fr(1,0,0)+r}, 0")
    e(f"s_mov_b32 s{sCur}, {p['first']*SLOT}")
    e(f"s_mov_b32 s{sIt}, 0")
    stamp(9)

    def half(st, accprev, first_wait=False):
        e(f"v_add_u32 v{vAa}, s{sCur}, v{vAl}")
        e(f"v_add_u32 v{vBa}, s{sCur}, v{vBl}")
        e("s_waitcnt vmcnt(0) lgkmcnt(0)" if first_wait else "s_waitcnt lgkmcnt(0)")
        e("s_barrier")
        rds = []
        for ks in range(2):
            rds.append(f"ds_read_b128 {vr(fr(st,ks,0),4)}, v{vAa} offset:{1024*ks}")
            for i in range(nu):
                rds.append(f"ds_read_b128 {vr(fr(st,ks,1+i),4)}, v{vBa} offset:{(ks*n+i)*1024}")
        ms = []
        for ks in range(2):
            for i in range(nu):
                a = accprev + 4 * i
                ms.append(f"v_mfma_f32_16x16x32_bf16 {vr(a,4)}, {vr(fr(1-st,ks,1+i),4)}, {vr(fr(1-st,ks,0),4)}, {vr(a,4)}")
        sal = [f"s_add_u32 s{sCur}, s{sCur}, {SLOT}", f"s_cmp_eq_u32 s{sCur}, {NSLOT*SLOT}", f"s_cselect_b32 s{sCur}, 0, s{sCur}"]
        e(rds.pop(0)); e(rds.pop(0))
        for m in ms:
            e(m)
            if rds:
                e(rds.pop(0))
            if rds and len(rds) > len(ms) - ms.index(m) - 1:
                e(rds.pop(0))
        for x in rds + sal:
            e(x)

    lab(f"L_p2_{typ}_h")
    e(f"s_cmp_eq_u32 s{sIt}, 0")
    e(f"s_cbranch_scc1 L_p2_{typ}_nv")
    e("s_waitcnt vmcnt(0)")
    lab(f"L_p2_{typ}_nv")
    half(0, vF)
    if STAMP:
        e(f"s_cmp_lg_u32 s{sIt}, 0")
        e(f"s_cbranch_scc1 L_p2_{typ}_ns")
        stamp(10)
        lab(f"L_p2_{typ}_ns")
    half(1, vF)
    e(f"s_add_u32 s{sIt}, s{sIt}, 1")
    e(f"s_cmp_lt_u32 s{sIt}, 12")
    e(f"s_cbranch_scc1 L_p2_{typ}_h")
    half(0, vF)
    half(1, vS)
    lab(f"L_p2_{typ}_o")
    half(0, vS)
    half(1, vS)
    e(f"s_add_u32 s{sIt}, s{sIt}, 1")
    e(f"s_cmp_lt_u32 s{sIt}, 16")
    e(f"s_cbranch_scc1 L_p2_{typ}_o")
    nel = 4 * nu
    vG, vSl = vT, vT + 1
    vBb, vXx, vE, vXf = fr(0, 0, 0), fr(0, 0, 0) + 12, 128, 144
    e(f"v_lshrrev_b32 v{vG}, 4, v{vLane}")
    e(f"v_and_b32 v{vSl}, 15, v{vLane}")
    e(f"v_mul_u32_u24 v{vT+2}, {16*n}, v{vG}")
    e(f"s_mul_i32 s{sT}, s{sHf}, {8*n}")
    e(f"s_add_u32 s{sT}, s{sT}, {p['B2']}")
    e(f"v_add_u32 v{vT+2}, s{sT}, v{vT+2}")
    e(f"v_mul_u32_u24 v{vT+3}, {32*n}, v{vSl}")
    e(f"v_mul_u32_u24 v{vT+4}, {8*n}, v{vG}")
    e(f"s_mul_i32 s{sT}, s{sS}, {16*32*n}")
    e(f"s_mul_i32 s{sT+1}, s{sHf}, {4*n}")
    e(f"s_add_u32 s{sT}, s{sT}, s{sT+1}")
    e(f"s_add_u32 s{sT}, s{sT}, {p['X']}")
    e(f"v_add3_u32 v{vT+3}, v{vT+3}, v{vT+4}, s{sT}")
    e(f"v_mul_u32_u24 v{vT+5}, 2560, v{vSl}")
    e(f"v_add3_u32 v{vT+5}, v{vT+5}, v{vT+4}, s{sT+1}")
    e("s_waitcnt lgkmcnt(0)")
    for i in range(nu):
        e(f"ds_read_b128 {vr(vBb+4*i,4)}, v{vT+2} offset:{16*i}")
    for i in range(nu):
        e(f"ds_read_b64 {vr(vXx+2*i,2)}, v{vT+3} offset:{8*i}")
    for ks in range(2):
        for i in range(nu):
            a = vS + 4 * i
            e(f"v_mfma_f32_16x16x32_bf16 {vr(a,4)}, {vr(fr(1,ks,1+i),4)}, {vr(fr(1,ks,0),4)}, {vr(a,4)}")
    stamp(11)
    p2_rowcol(typ, sT, sT + 1)
    srd(S_R, 64, 2048 * 1280)
    e(f"s_mov_b32 s{sT+1}, {f32(-1.4426950408889634)}")
    e("s_waitcnt lgkmcnt(0)")
    for r in range(nel):
        e(f"v_add_f32 v{vF+r}, v{vF+r}, v{vBb+r}")
    for r in range(nel):
        e(f"v_mul_f32 v{vE+r}, s{sT+1}, v{vF+r}")
    for r in range(nel):
        e(f"v_exp_f32 v{vE+r}, v{vE+r}")
    for d in range(nel // 2):
        e(f"v_lshlrev_b32 v{vXf+2*d}, 16, v{vXx+d}")
        e(f"v_and_b32 v{vXf+2*d+1}, 0xffff0000, v{vXx+d}")
    for r in range(nel):
        e(f"v_add_f32 v{vE+r}, 1.0, v{vE+r}")
    for r in range(nel):
        e(f"v_rcp_f32 v{vE+r}, v{vE+r}")
    for r in range(nel):
        e(f"v_mul_f32 v{vF+r}, v{vF+r}, v{vS+r}")
    for r in range(nel):
        e(f"v_fmac_f32 v{vXf+r}, v{vF+r}, v{vE+r}")
    for d in range(nel // 2):
        e(f"v_cvt_pk_bf16_f32 v{vBb+d}, v{vXf+2*d}, v{vXf+2*d+1}")
    e(f"buffer_store_dwordx4 {vr(vBb,4)}, v{vT+5}, s[{S_R}:{S_R+3}], s{sT} offen")
    if typ == "F":
        e(f"buffer_store_dwordx2 {vr(vBb+4,2)}, v{vT+5}, s[{S_R}:{S_R+3}], s{sT} offen offset:16")
    stamp(12)
    stamp_flush()
    e("s_endpgm")


def wave_sum(v, t):
    for ctl in ("quad_perm:[1,0,3,2]", "quad_perm:[2,3,0,1]", "row_half_mirror", "row_mirror"):
        e("s_nop 1")
        e(f"v_add_f32_dpp v{v}, v{v}, v{v} {ctl} row_mask:0xf bank_mask:0xf")
    for sw in ("v_permlane16_swap_b32", "v_permlane32_swap_b32"):
        e(f"v_mov_b32 v{t}, v{v}")
        e("s_nop 1")
        e(f"{sw} v{v}, v{t}")
        e("s_nop 0")
        e(f"v_add_f32 v{v}, v{v}, v{t}")


def gen():
    K = NAME + "_kernel"
    L.append(f".globl {K}")
    L.append(".p2align 8")
    L.append(f".type {K},@function")
    lab(K)
    e("s_cmp_ge_u32 s2, 256")
    e("s_cbranch_scc1 L_end")
    stamp(0)
    stamp(14, real=True)
    e("s_load_dwordx4 s[4:7], s[0:1], 0")
    e("s_load_dwordx8 s[32:39], s[0:1], 32")
    e("s_load_dwordx2 s[28:29], s[0:1], 16")
    e("s_load_dwordx4 s[64:67], s[0:1], 64")
    e("s_load_dwordx2 s[68:69], s[0:1], 80")
    e(f"v_lshrrev_b32 v{vT}, 6, v0")
    e(f"v_and_b32 v{vLane}, 63, v0")
    e(f"v_readfirstlane_b32 s{sWave}, v{vT}")
    e(f"s_and_b32 s{sT}, s2, 3")
    e(f"s_lshl_b32 s{sT}, s{sT}, 1")
    e(f"s_bfe_u32 s{sG}, s2, 0x10004")
    e(f"s_add_u32 s{sG}, s{sG}, s{sT}")
    e(f"s_bfe_u32 s{sT}, s2, 0x10002")
    e(f"s_lshl_b32 s{sT}, s{sT}, 3")
    e(f"s_lshr_b32 s{sRB}, s2, 5")
    e(f"s_add_u32 s{sRB}, s{sRB}, s{sT}")
    e(f"s_and_b32 s{sS}, s{sWave}, 3")
    e(f"v_lshrrev_b32 v{vT}, 4, v{vLane}")
    e(f"s_cmp_lt_u32 s{sWave}, 8")
    e("s_cbranch_scc1 L_compute")

    e(f"v_and_b32 v{vT+1}, 7, v{vLane}")
    e(f"v_xor_b32 v{vT+5}, v{vT+1}, v{vT}")
    e(f"v_lshlrev_b32 v{vT+5}, 4, v{vT+5}")
    e(f"v_lshrrev_b32 v{vT+2}, 3, v{vLane}")
    e(f"v_mul_u32_u24 v{vT+2}, 2560, v{vT+2}")
    e(f"v_add_u32 v{vT+3}, v{vT+2}, v{vT+5}")
    e(f"v_xor_b32 v{vT+5}, 64, v{vT+5}")
    e(f"v_add_u32 v{vT+4}, v{vT+2}, v{vT+5}")
    e(f"s_lshl_b32 s{sT}, s{sRB}, 7")
    e(f"s_lshl_b32 s{sT+1}, s{sS}, 5")
    e(f"s_add_u32 s{sT+1}, s{sT+1}, s{sT}")
    e(f"s_mul_i32 s{sT+1}, s{sT+1}, 1280")
    e(f"v_add_u32 v{vX0}, s{sT+1}, v{vT+3}")
    e(f"s_add_u32 s{sT+1}, s{sT+1}, {16*1280-1024}")
    e(f"v_add_u32 v{vX1}, s{sT+1}, v{vT+4}")
    e(f"s_mov_b32 s{sKW}, 0")
    e(f"s_mov_b32 s{sKX}, 0")
    e("s_bitcmp1_b32 s2, 3")
    e("s_cbranch_scc1 L_ldF")
    e(f"s_lshl_b32 s{sT+1}, s{sS}, 1")
    e(f"v_add_u32 v{vT+3}, s{sT+1}, v{vT}")
    e(f"v_xor_b32 v{vT+3}, v{vT+3}, v{vT+1}")
    e(f"v_and_b32 v{vT+3}, 7, v{vT+3}")
    e(f"v_lshl_add_u32 v{vT+3}, v{vT+3}, 4, v{vT+2}")
    e(f"s_and_b32 s{sT+1}, s{sS}, 1")
    e(f"s_lshl_b32 s{sT+1}, s{sT+1}, 3")
    e(f"s_lshr_b32 s{sT+2}, s{sS}, 1")
    e(f"s_add_u32 s{sT+1}, s{sT+1}, s{sT+2}")
    e(f"s_add_u32 s{sT+1}, s{sT+1}, s{sT}")
    e(f"s_sub_u32 s{sT+1}, s{sT+1}, 16")
    e(f"s_mul_i32 s{sT+1}, s{sT+1}, 1280")
    e(f"v_add_u32 v{vH0}, s{sT+1}, v{vT+3}")
    e(f"s_lshl_b32 s{sHoff}, s{sS}, 9")
    e(f"s_add_u32 s{sHoff}, s{sHoff}, {Q_XB}")
    e(f"s_cmp_eq_u32 s{sS}, 0")
    e(f"s_cselect_b32 s{sMaskH}, 0xffffff00, -1")
    e(f"s_mov_b32 s{sMaskH+1}, 0")
    e(f"v_cmp_le_u32 vcc, 30, v{vLane}")
    e(f"v_mov_b32 v{vT+3}, 0")
    e(f"v_mov_b32 v{vT+4}, 30")
    e(f"v_cndmask_b32 v{vT+3}, v{vT+3}, v{vT+4}, vcc")
    e(f"v_sub_u32 v{vT+4}, v{vLane}, v{vT+3}")
    e(f"v_mul_u32_u24 v{vT+3}, 128, v{vT+3}")
    e(f"v_mul_u32_u24 v{vT+5}, 26, v{vT+4}")
    e(f"v_lshrrev_b32 v{vT+5}, 8, v{vT+5}")
    e(f"v_mul_u32_u24 v{vT+6}, 10, v{vT+5}")
    e(f"v_sub_u32 v{vT+4}, v{vT+4}, v{vT+6}")
    e(f"v_lshl_add_u32 v{vT+3}, v{vT+4}, 4, v{vT+3}")
    e(f"v_add_u32 v{vT+5}, 1, v{vT+5}")
    e(f"v_cmp_le_u32 vcc, 3, v{vT+5}")
    e(f"v_mov_b32 v{vT+6}, 0")
    e(f"s_mul_i32 s{sT}, s{sS}, {8*3840}")
    e(f"v_cndmask_b32 v{vT+5}, v{vT+5}, v{vT+6}, vcc")
    e(f"v_mul_u32_u24 v{vT+5}, 1280, v{vT+5}")
    e(f"v_add_u32 v{vT+3}, v{vT+3}, v{vT+5}")
    e(f"s_mul_i32 s{sT+1}, s{sG}, 160")
    e(f"s_add_u32 s{sT}, s{sT}, s{sT+1}")
    e(f"v_add_u32 v{vWd}, s{sT}, v{vT+3}")
    for t in range(1, 4):
        e(f"v_add_u32 v{vWd+t}, {6720*t}, v{vWd}")
    e(f"s_mul_i32 s{sWoff}, s{sS}, {Q_GP}")
    e(f"s_lshl_b32 s{sXoff}, s{sS}, 12")
    e(f"s_add_u32 s{sXoff}, s{sXoff}, {Q_XB+2048}")
    e(f"s_mov_b32 s{sMaskW}, -1")
    e(f"s_mov_b32 s{sMaskW+1}, 0x0fffffff")
    e("s_waitcnt lgkmcnt(0)")
    srd(S_X, 4, 2048 * 1280)
    srd(S_W, 6, 640 * 3840)
    loader("Q")
    lab("L_ldF")
    e(f"v_cmp_le_u32 vcc, 26, v{vLane}")
    e(f"v_mov_b32 v{vT+3}, 0")
    e(f"v_mov_b32 v{vT+4}, {3072-26*16}")
    e(f"v_cndmask_b32 v{vT+3}, v{vT+3}, v{vT+4}, vcc")
    e(f"v_lshl_add_u32 v{vT+3}, v{vLane}, 4, v{vT+3}")
    e(f"s_mul_i32 s{sT}, s{sS}, {8*3072}")
    e(f"s_mul_i32 s{sT+1}, s{sG}, 384")
    e(f"s_add_u32 s{sT}, s{sT}, s{sT+1}")
    e(f"v_add_u32 v{vWd}, s{sT}, v{vT+3}")
    for t in range(1, 4):
        e(f"v_add_u32 v{vWd+t}, {5312*t}, v{vWd}")
    e(f"s_mul_i32 s{sWoff}, s{sS}, {F_GP}")
    e(f"s_lshl_b32 s{sXoff}, s{sS}, 12")
    e(f"s_add_u32 s{sXoff}, s{sXoff}, {F_XB}")
    e(f"s_mov_b32 s{sMaskW}, 0xfcffffff")
    e(f"s_mov_b32 s{sMaskW+1}, 0x0003ffff")
    e("s_waitcnt lgkmcnt(0)")
    srd(S_X, 4, 2048 * 1280)
    srd(S_W, 32, 640 * 3072)
    loader("F")

    lab("L_compute")
    e(f"v_and_b32 v{vT+1}, 15, v{vLane}")
    e(f"v_lshrrev_b32 v{vT+2}, 1, v{vT+1}")
    e(f"v_xor_b32 v{vT+2}, v{vT+2}, v{vT}")
    e(f"v_lshlrev_b32 v{vT+2}, 4, v{vT+2}")
    e(f"v_lshl_add_u32 v{vXl0}, v{vT+1}, 7, v{vT+2}")
    e(f"v_xor_b32 v{vXl1}, 64, v{vXl0}")
    e(f"v_mov_b32 v{vXa}, v{vXl0}")
    e(f"v_bfe_u32 v{vT+1}, v{vLane}, 2, 2")
    e(f"v_and_b32 v{vT+2}, 3, v{vLane}")
    e(f"s_mov_b32 s{sIt}, 0")
    e(f"s_lshl_b32 s{sT}, s{sRB}, 4")
    e(f"s_add_u32 s{sT}, s{sT}, s{sG}")
    e(f"s_and_b32 s{sT+1}, s2, 8")
    e(f"s_add_u32 s{sT}, s{sT}, s{sT+1}")
    e(f"s_lshl_b32 s{sT}, s{sT}, 7")
    e(f"s_add_u32 s{sT}, s{sT}, {FL_OFF}")
    e(f"s_cmp_eq_u32 s{sWave}, 0")
    e(f"s_cselect_b32 s{sT}, s{sT}, 0x7f000000")
    e(f"v_mov_b32 v{vT+3}, 0")
    e("s_waitcnt lgkmcnt(0)")
    stamp(1)
    srd(S_WS, 68, WS_USED)
    e("s_mov_b64 exec, 1")
    e(f"buffer_store_dword v{vT+3}, v{vT+3}, s[{S_WS}:{S_WS+3}], s{sT} offen sc1")
    e("s_mov_b64 exec, -1")
    e("s_bitcmp1_b32 s2, 3")
    e("s_cbranch_scc1 L_F")
    e(f"v_mul_u32_u24 v{vWl}, {Q_GP}, v{vT}")
    e(f"v_mul_u32_u24 v{vT+3}, {Q_P}, v{vT+1}")
    e(f"v_add_u32 v{vWl}, v{vWl}, v{vT+3}")
    e(f"v_mul_u32_u24 v{vT+3}, 40, v{vT+2}")
    e(f"v_add_u32 v{vWl}, v{vWl}, v{vT+3}")
    e(f"v_mov_b32 v{vWa}, v{vWl}")
    e(f"v_and_b32 v{vT+3}, 31, v{vLane}")
    e(f"v_lshlrev_b32 v{vT+3}, 2, v{vT+3}")
    e(f"v_mov_b32 v{vT+4}, 0x3f803f80")
    e(f"ds_write_b32 v{vT+3}, v{vT+4} offset:{Q_XB}")
    e(f"v_add_u32 v{vT+3}, {Q_STAGE}, v{vT+3}")
    e(f"ds_write_b32 v{vT+3}, v{vT+4} offset:{Q_XB}")
    e(f"v_add_u32 v{vT+3}, {Q_STAGE}, v{vT+3}")
    e(f"ds_write_b32 v{vT+3}, v{vT+4} offset:{Q_XB}")
    for r in range(vACC, vHACC + 16):
        e(f"v_mov_b32 v{r}, 0")
    e(f"s_mov_b32 s{sNxt}, {Q_STAGE}")
    e("s_waitcnt lgkmcnt(0)")
    for w in range(7):
        e(f"s_cmp_eq_u32 s{sWave}, {w}")
        e(f"s_cbranch_scc1 L_p1_Q{w}")
    e("s_branch L_p1_Q7")

    lab("L_F")
    e(f"v_mul_u32_u24 v{vWl}, {F_GP}, v{vT}")
    e(f"v_mul_u32_u24 v{vT+3}, {F_P}, v{vT+1}")
    e(f"v_add_u32 v{vWl}, v{vWl}, v{vT+3}")
    e(f"v_lshl_add_u32 v{vWl}, v{vT+2}, 3, v{vWl}")
    e(f"v_mov_b32 v{vWa}, v{vWl}")
    srd(S_X, 4, 2048 * 1280)
    sRow, sF, sKS, sPair, sBase, sJa, sJb, sP, sTt, sJl = [sA + i for i in range(10)]
    vR = 128
    vL16, vL4 = vT + 8, vT + 9
    e(f"v_lshlrev_b32 v{vL16}, 4, v{vLane}")
    e(f"v_lshlrev_b32 v{vL4}, 2, v{vLane}")
    e(f"s_lshl_b32 s{sRow}, s{sRB}, 7")
    e(f"s_bfe_u32 s{sT}, s2, 0x10004")
    e(f"s_lshl_b32 s{sT}, s{sT}, 6")
    e(f"s_add_u32 s{sRow}, s{sRow}, s{sT}")
    e(f"s_and_b32 s{sT}, s2, 3")
    e(f"s_lshl_b32 s{sT}, s{sT}, 4")
    e(f"s_lshl_b32 s{sT+1}, s{sWave}, 1")
    e(f"s_add_u32 s{sT+1}, s{sT+1}, s{sT}")
    e(f"s_add_u32 s{sT+1}, s{sT+1}, s{sRow}")
    e(f"s_mul_i32 s{sT+2}, s{sT+1}, 1280")
    e(f"s_lshl_b32 s{sT+5}, s{sT+1}, 3")
    e(f"s_add_u32 s{sT+5}, s{sT+5}, {ST_OFF}")
    e(f"buffer_load_dwordx4 {vr(vR,4)}, v{vL16}, s[{S_X}:{S_X+3}], s{sT+2} offen")
    e(f"buffer_load_dword v{vR+4}, v{vL4}, s[{S_X}:{S_X+3}], s{sT+2} offen offset:1024")
    e(f"buffer_load_dwordx4 {vr(vR+8,4)}, v{vL16}, s[{S_X}:{S_X+3}], s{sT+2} offen offset:1280")
    e(f"buffer_load_dword v{vR+12}, v{vL4}, s[{S_X}:{S_X+3}], s{sT+2} offen offset:2304")
    srd(S_DBG, 34, 3072)
    e(f"s_mul_i32 s{sT+2}, s{sG}, 384")
    e(f"v_lshlrev_b32 v{vT+3}, 3, v{vLane}")
    e(f"buffer_load_dwordx2 v[144:145], v{vT+3}, s[{S_DBG}:{S_DBG+3}], s{sT+2} offen")
    e(f"s_lshr_b32 s{sF}, s2, 4")
    e(f"s_bfe_u32 s{sKS}, s2, 0x20001")
    e(f"s_mul_i32 s{sKS}, s{sKS}, 17")
    e(f"s_cmp_lt_u32 s{sWave}, 4")
    e(f"s_cselect_b32 s{sP}, s{sF}, 16")
    e(f"s_cselect_b32 s{sTt}, s{sWave}, s{sF}")
    e(f"s_add_u32 s{sKS}, s{sKS}, s{sP}")
    e(f"s_and_b32 s{sPair}, s2, 1")
    e(f"s_lshl_b32 s{sPair}, s{sPair}, 1")
    e(f"s_lshr_b32 s{sP}, s{sTt}, 1")
    e(f"s_add_u32 s{sPair}, s{sPair}, s{sP}")
    e(f"s_and_b32 s{sJl}, s{sTt}, 1")
    e(f"s_add_u32 s{sJl}, s{sJl}, 1")
    e(f"s_cmp_gt_u32 s{sWave}, 4")
    e(f"s_cselect_b32 s{sJl}, 0, s{sJl}")
    e(f"s_cmp_gt_u32 s{sTt}, 3")
    e(f"s_cselect_b32 s{sJl}, 0, s{sJl}")
    e(f"s_sub_u32 s{sT+2}, s{sKS}, 48")
    e(f"s_mul_i32 s{sP}, s{sT+2}, 52")
    e(f"s_lshr_b32 s{sP}, s{sP}, 8")
    e(f"s_mul_i32 s{sTt}, s{sP}, 5")
    e(f"s_sub_u32 s{sTt}, s{sT+2}, s{sTt}")
    e(f"s_mul_i32 s{sP}, s{sP}, 160")
    e(f"s_lshr_b32 s{sBase}, s{sTt}, 1")
    e(f"s_mul_i32 s{sBase}, s{sBase}, 80")
    e(f"s_and_b32 s{sJa}, s{sTt}, 1")
    e(f"s_lshl_b32 s{sJa}, s{sJa}, 3")
    e(f"s_add_u32 s{sBase}, s{sBase}, s{sJa}")
    e(f"s_cmp_eq_u32 s{sTt}, 4")
    e(f"s_cselect_b32 s{sBase}, 16, s{sBase}")
    e(f"s_cselect_b32 s{sJa}, 40, 20")
    e(f"s_cselect_b32 s{sJb}, 20, 4")
    e(f"s_add_u32 s{sBase}, s{sBase}, s{sP}")
    e(f"s_lshl_b32 s{sP}, s{sKS}, 5")
    e(f"s_mov_b32 s{S_R+2}, {640*1280}")
    e(f"s_cmp_ge_u32 s{sKS}, 48")
    e(f"s_cselect_b32 s{sBase}, s{sBase}, s{sP}")
    e(f"s_cselect_b32 s{sJa}, s{sJa}, 4")
    e(f"s_cselect_b32 s{sJb}, s{sJb}, 16")
    e(f"s_cselect_b32 s{S_R}, s28, s36")
    e(f"s_cselect_b32 s{S_R+1}, s29, s37")
    e(f"s_cselect_b32 s{S_R+2}, s{S_R+2}, {1536*1280}")
    e(f"s_and_b32 s{S_R+1}, s{S_R+1}, 0xffff")
    e(f"s_mov_b32 s{S_R+3}, 0x00020000")
    e(f"s_mul_i32 s{sBase}, s{sBase}, 1280")
    e(f"s_mul_i32 s{sP}, s{sPair}, 320")
    e(f"s_add_u32 s{sBase}, s{sBase}, s{sP}")
    e(f"s_mul_i32 s{sJa}, s{sJa}, 1280")
    e(f"s_mul_i32 s{sJb}, s{sJb}, 1280")
    e(f"s_lshr_b32 s{sP}, s{sWave}, 1")
    e(f"s_mul_i32 s{sP}, s{sP}, 10240")
    e(f"s_and_b32 s{sTt}, s{sWave}, 1")
    e(f"s_lshl_b32 s{sTt}, s{sTt}, 12")
    e(f"s_add_u32 s{sP}, s{sP}, s{sTt}")
    e(f"s_add_u32 s{sP}, s{sP}, {F_JOB}")
    e(f"s_cmp_eq_u32 s{sJl}, 0")
    e("s_cbranch_scc1 L_F_nojob_i")
    e(f"s_mov_b32 m0, s{sP}")
    e(f"s_cmp_eq_u32 s{sJl}, 2")
    e("s_cbranch_scc1 L_F_jobW_i")
    for part, nch in ((0, 8), (1, 12)):
        if part == 1:
            lab("L_F_jobW_i")
        for i in range(nch // 2):
            q, rho, t1 = vT + 3, vT + 4, vT + 5
            e(f"v_add_u32 v{q}, {64*i}, v{vLane}")
            if nch == 8:
                e(f"v_lshrrev_b32 v{rho}, 3, v{q}")
                e(f"v_and_b32 v{q}, 7, v{q}")
            else:
                e(f"v_mul_u32_u24 v{rho}, 171, v{q}")
                e(f"v_lshrrev_b32 v{rho}, 11, v{rho}")
                e(f"v_mul_u32_u24 v{t1}, 12, v{rho}")
                e(f"v_sub_u32 v{q}, v{q}, v{t1}")
            e(f"v_and_b32 v{t1}, 3, v{rho}")
            e(f"v_mul_u32_u24 v{t1}, 1280, v{t1}")
            e(f"v_lshl_add_u32 v{q}, v{q}, 4, v{t1}")
            e(f"v_bfe_u32 v{t1}, v{rho}, 2, 2")
            e(f"v_mad_u32_u24 v{q}, v{t1}, s{sJa}, v{q}")
            e(f"v_lshrrev_b32 v{t1}, 4, v{rho}")
            e(f"v_mad_u32_u24 v{q}, v{t1}, s{sJb}, v{q}")
            if part == 1:
                e(f"v_add_u32 v{q}, 128, v{q}")
            e(f"buffer_load_dwordx4 v{q}, s[{S_R}:{S_R+3}], s{sBase} offen lds")
            e(f"s_add_u32 m0, m0, 1024")
        if part == 0:
            e("s_branch L_F_nojob_i")
    lab("L_F_nojob_i")
    e(f"s_cmp_eq_u32 s{sJl}, 0")
    e("s_cbranch_scc0 L_F_w4")
    e("s_waitcnt vmcnt(0)")
    lab("L_F_w4")
    e("s_waitcnt vmcnt(4)")
    e(f"v_lshlrev_b32 v148, 16, v144")
    e(f"v_and_b32 v149, 0xffff0000, v144")
    e(f"v_lshlrev_b32 v150, 16, v145")
    e(f"v_and_b32 v151, 0xffff0000, v145")
    e(f"v_add_u32 v{vT+3}, {F_MISC+FM_B1}, v{vL16}")
    e(f"s_mov_b32 s{sT+2}, -1")
    e(f"s_mov_b32 s{sT+3}, 0xffff")
    e(f"s_mov_b64 exec, s[{sT+2}:{sT+3}]")
    e(f"ds_write_b128 v{vT+3}, v[148:151]")
    e("s_mov_b64 exec, -1")
    vU = 32
    for r in range(2):
        for d in range(5):
            e(f"v_lshlrev_b32 v{vU+16*r+2*d}, 16, v{vR+8*r+d}")
            e(f"v_and_b32 v{vU+16*r+2*d+1}, 0xffff0000, v{vR+8*r+d}")
    vM = 64
    for r in range(2):
        e(f"v_add_f32 v{vM+r}, v{vU+16*r}, v{vU+16*r+1}")
    for k in range(2, 10):
        for r in range(2):
            e(f"v_add_f32 v{vM+r}, v{vM+r}, v{vU+16*r+k}")
    for r in range(2):
        wave_sum(vM + r, vM + 4)
        e(f"v_mul_f32 v{vM+r}, {f32(-1.0/640)}, v{vM+r}")
    for k in range(10):
        for r in range(2):
            e(f"v_add_f32 v{vU+16*r+k}, v{vU+16*r+k}, v{vM+r}")
    for r in range(2):
        e(f"v_mul_f32 v{vM+2+r}, v{vU+16*r}, v{vU+16*r}")
    for k in range(1, 10):
        for r in range(2):
            e(f"v_fmac_f32 v{vM+2+r}, v{vU+16*r+k}, v{vU+16*r+k}")
    for r in range(2):
        wave_sum(vM + 2 + r, vM + 4)
        e(f"v_mov_b32 v{vM+4}, {f32(1e-5)}")
        e(f"v_fmac_f32 v{vM+4}, {f32(1.0/640)}, v{vM+2+r}")
        e(f"v_rsq_f32 v{vM+9+2*r}, v{vM+4}")
        e(f"v_mov_b32 v{vM+8+2*r}, v{vM+r}")
    e(f"v_mov_b32 v{vT+3}, 0")
    e("s_mov_b64 exec, 1")
    e(f"buffer_store_dwordx4 {vr(vM+8,4)}, v{vT+3}, s[{S_WS}:{S_WS+3}], s{sT+5} offen sc1")
    e("s_mov_b64 exec, -1")
    e(f"v_mul_u32_u24 v{vT+3}, 26, v{vLane}")
    e(f"v_lshrrev_b32 v{vT+3}, 8, v{vT+3}")
    e(f"v_mul_u32_u24 v{vT+4}, 10, v{vT+3}")
    e(f"v_sub_u32 v{vT+4}, v{vLane}, v{vT+4}")
    e(f"s_mul_i32 s{sT+2}, s{sWave}, 6")
    e(f"v_add_u32 v{vT+3}, s{sT+2}, v{vT+3}")
    e(f"s_and_b32 s{sT}, s2, 3")
    e(f"s_lshl_b32 s{sT}, s{sT}, 4")
    e(f"v_cmp_le_u32 vcc, s{sT}, v{vT+3}")
    e(f"v_add_u32 v{vT+5}, 16, v{vT+3}")
    e(f"v_lshlrev_b32 v{vT+4}, 7, v{vT+4}")
    e(f"v_cndmask_b32 v{vT+3}, v{vT+3}, v{vT+5}, vcc")
    e(f"v_mul_u32_u24 v{vT+3}, 1280, v{vT+3}")
    e(f"v_add_u32 v{vT+3}, v{vT+3}, v{vT+4}")
    e(f"s_mul_i32 s{sT+2}, s{sRow}, 1280")
    e(f"s_mov_b32 s{sT}, -1")
    e(f"s_mov_b32 s{sT+1}, 0x0fffffff")
    e(f"s_mov_b64 exec, s[{sT}:{sT+1}]")
    e(f"buffer_load_dword v{vT+10}, v{vT+3}, s[{S_X}:{S_X+3}], s{sT+2} offen")
    e("s_mov_b64 exec, -1")
    e(f"v_mul_u32_u24 v{vT+3}, 57, v{vLane}")
    e(f"v_lshrrev_b32 v{vT+3}, 9, v{vT+3}")
    e(f"v_mul_u32_u24 v{vT+4}, 9, v{vT+3}")
    e(f"v_sub_u32 v{vT+4}, v{vLane}, v{vT+4}")
    e(f"v_mul_u32_u24 v{vT+5}, 86, v{vT+4}")
    e(f"v_lshrrev_b32 v{vT+5}, 8, v{vT+5}")
    e(f"v_mul_u32_u24 v{vT+3}, 3840, v{vT+3}")
    e(f"v_lshl_add_u32 v{vT+3}, v{vT+4}, 7, v{vT+3}")
    e(f"v_mul_u32_u24 v{vT+5}, {1280-384}, v{vT+5}")
    e(f"v_add_u32 v{vT+3}, v{vT+3}, v{vT+5}")
    e(f"s_mul_i32 s{sT}, s{sF}, 40")
    e(f"s_mul_i32 s{sT+1}, s{sWave}, 5")
    e(f"s_add_u32 s{sT}, s{sT}, s{sT+1}")
    e(f"s_and_b32 s{sT+1}, s2, 3")
    e(f"s_mul_i32 s{sT+2}, s{sT+1}, 320")
    e(f"s_and_b32 s{sT+2}, s{sT+2}, 0xffffff80")
    e(f"s_mul_i32 s{sT+3}, s{sT}, 3840")
    e(f"s_add_u32 s{sT+2}, s{sT+2}, s{sT+3}")
    srd(S_W, 6, 640 * 3840)
    e(f"s_mov_b32 s{sT+6}, -1")
    e(f"s_mov_b32 s{sT+7}, 0x1fff")
    e(f"s_mov_b64 exec, s[{sT+6}:{sT+7}]")
    e(f"buffer_load_dword v{vT+10}, v{vT+3}, s[{S_W}:{S_W+3}], s{sT+2} offen")
    e("s_mov_b64 exec, -1")
    e(f"v_mul_u32_u24 v{vT+3}, 43, v{vLane}")
    e(f"v_lshrrev_b32 v{vT+3}, 8, v{vT+3}")
    e(f"v_mul_u32_u24 v{vT+3}, {3072-768}, v{vT+3}")
    e(f"v_lshl_add_u32 v{vT+3}, v{vLane}, 7, v{vT+3}")
    e(f"s_mul_i32 s{sT+2}, s{sT+1}, 768")
    e(f"s_mul_i32 s{sT+3}, s{sT}, 3072")
    e(f"s_add_u32 s{sT+2}, s{sT+2}, s{sT+3}")
    srd(S_W, 32, 640 * 3072)
    e(f"s_mov_b64 exec, 0x3fffffff")
    e(f"buffer_load_dword v{vT+10}, v{vT+3}, s[{S_W}:{S_W+3}], s{sT+2} offen")
    e("s_mov_b64 exec, -1")
    e(f"s_cmp_eq_u32 s{sJl}, 0")
    e("s_cbranch_scc1 L_F_nojob_p")
    e(f"s_mul_i32 s{sT}, s{sPair}, 68")
    e(f"s_add_u32 s{sT}, s{sT}, s{sKS}")
    e(f"v_lshrrev_b32 v{vT+3}, 2, v{vLane}")
    e("s_waitcnt vmcnt(4)")
    e(f"s_cmp_eq_u32 s{sJl}, 2")
    e("s_cbranch_scc1 L_F_jobW_p")
    for part, n in ((0, 4), (1, 6)):
        if part == 1:
            lab("L_F_jobW_p")
        pitch = 32 * n
        e(f"v_mul_u32_u24 v{vT+3}, {pitch}, v{vT+3}")
        e(f"v_mul_u32_u24 v{vT+4}, {8*n}, v{vT+2}")
        e(f"v_add3_u32 v{vT+3}, v{vT+3}, v{vT+4}, s{sP}")
        e(f"s_mul_i32 s{sT}, s{sT}, {n*1024}")
        e(f"s_add_u32 s{sT}, s{sT}, {B2N_OFF if part == 0 else B2W_OFF}")
        e(f"s_add_u32 s{sT+1}, s{sT}, 4096")
        for U in range(n):
            for h in range(2):
                e(f"ds_read_b64_tr_b16 {vr(128+4*U+2*h,2)}, v{vT+3} offset:{8*U+16*pitch*h}")
        for U in range(n):
            e(f"s_waitcnt lgkmcnt({2*(n-1-U)})")
            e(f"buffer_store_dwordx4 {vr(128+4*U,4)}, v{vL16}, s[{S_WS}:{S_WS+3}], s{sT + (U >> 2)} offen offset:{1024*(U&3)} sc1")
        if part == 0:
            e("s_branch L_F_nojob_p")
    lab("L_F_nojob_p")
    for r in range(vACC, vHACC + 8):
        e(f"v_mov_b32 v{r}, 0")
    for r in range(4):
        e(f"v_mov_b32 v{vOnes+r}, 0x3f803f80")
    e(f"s_mov_b32 s{sNxt}, {F_STAGE}")
    e("s_waitcnt lgkmcnt(0)")
    for w in range(7):
        e(f"s_cmp_eq_u32 s{sWave}, {w}")
        e(f"s_cbranch_scc1 L_p1_F{w}")
    e("s_branch L_p1_F7")

    for typ in "QF":
        for w in range(8):
            p1_loop(typ, w)

    vG, vSlot, vCSl, vPw, vPh, vSa = vT, vT + 1, vT + 2, vT + 3, vT + 4, vT + 5
    vAt, vAq, vAv, vRk = 2, 3, 4, 5
    sNU = sA + 4
    lab("L_epi_Q3")
    e(f"s_mov_b32 s{sNU}, 3")
    e("s_branch L_epi_Q")
    lab("L_epi_Q4")
    e(f"s_mov_b32 s{sNU}, 4")
    lab("L_epi_Q")
    e(f"v_lshrrev_b32 v{vG}, 4, v{vLane}")
    e(f"v_and_b32 v{vSlot}, 15, v{vLane}")
    e(f"v_lshlrev_b32 v{vCSl}, 4, v{vG}")
    e(f"v_add_u32 v{vCSl}, {Q_MISC+QM_CS}, v{vCSl}")
    e(f"s_lshl_b32 s{sT}, s{sH0}, 6")
    e(f"v_add_u32 v{vT+6}, s{sT}, v{vCSl}")
    e(f"s_mov_b32 s{sT+2}, 0x00010001")
    e(f"s_mov_b32 s{sT+3}, 0x00010001")
    e(f"s_mov_b64 exec, s[{sT+2}:{sT+3}]")
    for j in range(4):
        e(f"s_cmp_le_u32 s{sNH}, {j}")
        e("s_cbranch_scc1 L_q_cs_done")
        e(f"ds_write_b128 v{vT+6}, {vr(vHACC+4*j,4)} offset:{64*j}")
    lab("L_q_cs_done")
    e("s_mov_b64 exec, -1")
    vST = vXF
    e(f"v_lshlrev_b32 v{vSa}, 3, v{vSlot}")
    e(f"v_add_u32 v{vSa}, {Q_MISC+QM_ST}, v{vSa}")
    e(f"s_lshl_b32 s{sT}, s{sRh}, 9")
    e(f"v_add_u32 v{vT+7}, s{sT}, v{vSa}")
    for i in range(4):
        e(f"ds_read_b32 v{vST+i}, v{vT+7} offset:{128*(i+1)}")
    e(f"ds_read_b32 v{vST+4}, v{vSa}")
    e(f"v_mul_u32_u24 v{vPw}, 640, v{vG}")
    e(f"v_lshl_add_u32 v{vPw}, v{vSlot}, 3, v{vPw}")
    e(f"v_lshrrev_b32 v{vPh}, 3, v{vSlot}")
    e(f"v_mul_u32_u24 v{vPh}, {2560-64}, v{vPh}")
    e(f"s_mul_i32 s{sT}, s{sH0}, {PLANE}")
    e(f"s_add_u32 s{sT}, s{sT}, {Q_PL}")
    e(f"v_add3_u32 v{vPh}, v{vPh}, v{vPw}, s{sT}")
    e(f"s_and_b32 s{sT}, s{sWave}, 1")
    e(f"s_mul_i32 s{sT+2}, s{sT}, 320")
    e(f"s_mul_i32 s{sT}, s{sT}, 2560")
    e(f"s_lshr_b32 s{sT+1}, s{sWave}, 1")
    e(f"s_lshl_b32 s{sT+3}, s{sT+1}, 6")
    e(f"s_add_u32 s{sT+2}, s{sT+2}, s{sT+3}")
    e(f"s_add_u32 s{sT+2}, s{sT+2}, {Q_MISC+QM_RK}")
    e(f"s_lshl_b32 s{sT+1}, s{sT+1}, 7")
    e(f"s_add_u32 s{sT}, s{sT}, s{sT+1}")
    e(f"s_add_u32 s{sT}, s{sT}, {Q_PL}")
    e(f"v_add_u32 v{vAt}, s{sT}, v{vPw}")
    e(f"v_add_u32 v{vAq}, {10*PLANE+64}, v{vAt}")
    e(f"v_bfe_u32 v{vT+8}, v{vLane}, 2, 2")
    e(f"v_and_b32 v{vT+9}, 3, v{vLane}")
    e(f"v_lshl_add_u32 v{vT+10}, v{vT+9}, 2, v{vT+8}")
    e(f"v_mul_u32_u24 v{vAv}, 640, v{vG}")
    e(f"v_lshl_add_u32 v{vAv}, v{vT+10}, 3, v{vAv}")
    e(f"v_add_u32 v{vAv}, s{sT}, v{vAv}")
    e(f"v_lshlrev_b32 v{vRk}, 4, v{vT+8}")
    e(f"v_add_u32 v{vRk}, s{sT+2}, v{vRk}")
    e(f"s_mul_i32 s{sT}, s{sU0}, {PLANE}")
    e(f"s_lshl_b32 s{sT+1}, s{sRh}, 8")
    e(f"s_add_u32 s{sT}, s{sT}, s{sT+1}")
    e(f"s_add_u32 s{sT}, s{sT}, {Q_PL+64}")
    e(f"v_add_u32 v{vPw}, s{sT}, v{vPw}")
    e(f"s_lshl_b32 s{sT}, s{sU0}, 6")
    e(f"v_add_u32 v{vT+7}, s{sT}, v{vCSl}")
    e("s_waitcnt lgkmcnt(0)")
    e("s_barrier")
    stamp(5)
    vCS, vCSH = vWF, 136
    for u in range(4):
        e(f"ds_read_b128 {vr(vCS+4*u,4)}, v{vT+7} offset:{64*u}")
    for j in range(4):
        e(f"ds_read_b128 {vr(vCSH+4*j,4)}, v{vT+6} offset:{64*j}")

    def norm_unit(a, cs, nm, addr, off):
        for r in range(4):
            e(f"v_fmac_f32 v{a+r}, v{cs+r}, v{nm}")
        e(f"v_cvt_pk_bf16_f32 v{a}, v{a}, v{a+1}")
        e(f"v_cvt_pk_bf16_f32 v{a+1}, v{a+2}, v{a+3}")
        e(f"ds_write_b64 v{addr}, v[{a}:{a+1}] offset:{off}")

    for u in range(4):
        if u == 3:
            e(f"s_cmp_eq_u32 s{sNU}, 3")
            e("s_cbranch_scc1 L_q_skip3")
        if u == 0:
            e("s_waitcnt lgkmcnt(4)")
        for i in range(4):
            norm_unit(acc(u, i), vCS + 4 * u, vST + i, vPw, u * PLANE + (i & 1) * 2560 + (i >> 1) * 128)
    lab("L_q_skip3")
    e("s_waitcnt lgkmcnt(12)")
    for j in range(4):
        e(f"s_cmp_le_u32 s{sNH}, {j}")
        e("s_cbranch_scc1 L_q_halo_done")
        norm_unit(vHACC + 4 * j, vCSH + 4 * j, vST + 4, vPh, j * PLANE)
    lab("L_q_halo_done")
    vMk = 152
    vRK = 136
    vLg = 112
    vKf, vVf, vQf, vO, vPf, vOp = 32, 62, 92, 32, 104, 124
    BIG = 2.0 ** 100
    q4, gq, lo, hi = vT + 9, vT + 8, vT + 10, vT + 11
    e(f"v_lshlrev_b32 v{lo}, 2, v{gq}")
    e(f"s_lshr_b32 s{sT}, s{sWave}, 1")
    e(f"s_or_b32 s{sT}, s{sRB}, s{sT}")
    e(f"s_cmp_eq_u32 s{sT}, 0")
    e(f"s_cselect_b32 s{sT}, 8, 0")
    e(f"v_sub_u32 v{lo}, s{sT}, v{lo}")
    e(f"v_add_u32 v{hi}, 1, v{q4}")
    e(f"v_max_i32 v{lo}, v{lo}, v{hi}")
    e(f"v_cvt_f32_i32 v{lo}, v{lo}")
    e(f"v_cvt_f32_i32 v{hi}, v{q4}")
    e(f"v_mov_b32 v{vT+6}, {f32(-BIG)}")
    e(f"v_mov_b32 v{vT+7}, {f32(BIG)}")
    for pp in range(1, 8):
        e(f"v_fmaak_f32 v{vMk+pp}, v{lo}, v{vT+6}, {f32(pp*BIG)}")
        e(f"v_min_f32 v{vMk+pp}, 0, v{vMk+pp}")
    for pp in range(9, 12):
        e(f"v_fmaak_f32 v{vMk+pp}, v{hi}, v{vT+7}, {f32(-(pp-8)*BIG)}")
        e(f"v_min_f32 v{vMk+pp}, 0, v{vMk+pp}")
    e(f"v_lshl_add_u32 v{vT+6}, v{q4}, 2, v{vRk}")
    e(f"s_lshl_b32 s{sT}, s{sRB}, 3")
    e(f"s_add_u32 s{sT}, s{sT}, s{sWave}")
    e(f"s_mul_i32 s{sT}, s{sT}, 68")
    e(f"s_lshr_b32 s{sT+1}, s{sG}, 1")
    e(f"s_mul_i32 s{sT+1}, s{sT+1}, 5")
    e(f"s_add_u32 s{sT}, s{sT}, s{sT+1}")
    e(f"s_add_u32 s{sT}, s{sT}, 48")
    e(f"s_and_b32 s{sT+1}, s{sG}, 1")
    e(f"s_lshl_b32 s{sT+2}, s{sT+1}, 1")
    e(f"s_add_u32 s{sT+2}, s{sT+2}, s{sT}")
    e(f"s_lshl_b32 s{sT+2}, s{sT+2}, 10")
    e(f"s_add_u32 s{sT}, s{sT}, 4")
    e(f"s_lshl_b32 s{sT}, s{sT}, 10")
    e(f"s_lshl_b32 s{sT+1}, s{sT+1}, 9")
    e(f"s_add_u32 s{sT}, s{sT}, s{sT+1}")
    vOa, vOb = 6, 7
    e(f"v_lshlrev_b32 v{vOa}, 4, v{vLane}")
    e(f"v_lshrrev_b32 v{vOb}, 5, v{vLane}")
    e(f"v_lshlrev_b32 v{vOb}, 8, v{vOb}")
    e(f"v_lshl_add_u32 v{vOb}, v{vSlot}, 4, v{vOb}")
    e(f"v_bfe_u32 v{vT+7}, v{vLane}, 4, 1")
    e(f"v_lshl_add_u32 v{vOb}, v{vT+7}, 3, v{vOb}")
    e("s_waitcnt lgkmcnt(0)")
    for kb in range(3):
        e(f"ds_read_b128 {vr(vRK+4*kb,4)}, v{vRk} offset:{16*kb}")
    e(f"ds_read_b32 v{vT+7}, v{vT+6} offset:32")
    stamp(6)
    e("s_barrier")
    stamp(7)

    def qk_reads(t):
        e(f"ds_read_b64 {vr(vQf+2*t,2)}, v{vAq} offset:{t*PLANE}")
        for kb in range(3):
            e(f"ds_read_b64 {vr(vKf+2*(3*t+kb),2)}, v{vAt} offset:{t*PLANE+32*kb}")
    for t in range(2):
        qk_reads(t)
    for t in range(5):
        if t < 3:
            qk_reads(t + 2)
        e(f"s_waitcnt lgkmcnt({min(8, 4*(4-t))})")
        for kb in range(3):
            cin = "0" if t == 0 else vr(vLg + 4 * kb, 4)
            e(f"v_mfma_f32_4x4x4_16b_bf16 {vr(vLg+4*kb,4)}, {vr(vKf+2*(3*t+kb),2)}, {vr(vQf+2*t,2)}, {cin}")
    for kb in range(3):
        for t in range(5):
            e(f"ds_read_b64_tr_b16 {vr(vVf+2*(5*kb+t),2)}, v{vAv} offset:{(5+t)*PLANE+32*kb}")
    cexp = (20 ** -0.5) * 1.4426950408889634
    e(f"v_mul_f32 v{vT+7}, {f32(cexp)}, v{vT+7}")
    for pp in range(1, 12):
        if pp == 8:
            e(f"v_mul_f32 v{vLg+pp}, v{vLg+pp}, v{vRK+pp}")
        else:
            e(f"v_fma_f32 v{vLg+pp}, v{vLg+pp}, v{vRK+pp}, v{vMk+pp}")
    m = vT
    e(f"v_max3_f32 v{m}, v{vLg+1}, v{vLg+2}, v{vLg+3}")
    e(f"v_max3_f32 v{m+1}, v{vLg+4}, v{vLg+5}, v{vLg+6}")
    e(f"v_max3_f32 v{m+2}, v{vLg+7}, v{vLg+8}, v{vLg+9}")
    e(f"v_max3_f32 v{m}, v{m}, v{vLg+10}, v{vLg+11}")
    e(f"v_max3_f32 v{m}, v{m}, v{m+1}, v{m+2}")
    e(f"v_mul_f32 v{m}, v{m}, v{vT+7}")
    for pp in range(1, 12):
        e(f"v_fma_f32 v{vLg+pp}, v{vLg+pp}, v{vT+7}, -v{m}")
    for pp in range(1, 12):
        e(f"v_exp_f32 v{vLg+pp}, v{vLg+pp}")
    e(f"v_add_f32 v{m}, v{vLg+1}, v{vLg+2}")
    e(f"v_add_f32 v{m+1}, v{vLg+3}, v{vLg+4}")
    for pp in range(5, 11, 2):
        e(f"v_add_f32 v{m}, v{m}, v{vLg+pp}")
        e(f"v_add_f32 v{m+1}, v{m+1}, v{vLg+pp+1}")
    e(f"v_add_f32 v{m}, v{m}, v{vLg+11}")
    e(f"v_add_f32 v{m}, v{m}, v{m+1}")
    e(f"v_rcp_f32 v{m}, v{m}")
    e(f"v_mov_b32 v{vLg}, 0")
    for pp in range(1, 12):
        e(f"v_mul_f32 v{vLg+pp}, v{vLg+pp}, v{vRK+pp}")
    for j in range(6):
        e(f"v_cvt_pk_bf16_f32 v{vPf+j}, v{vLg+2*j}, v{vLg+2*j+1}")
    e("s_waitcnt lgkmcnt(0)")
    e("s_nop 0")
    for kb in range(3):
        for t in range(5):
            cin = "0" if kb == 0 else vr(vO + 4 * t, 4)
            e(f"v_mfma_f32_4x4x4_16b_bf16 {vr(vO+4*t,4)}, {vr(vVf+2*(5*kb+t),2)}, {vr(vPf+2*kb,2)}, {cin}")
    e("s_nop 1")
    for t in range(5):
        for r in range(4):
            e(f"v_mul_f32 v{vO+4*t+r}, v{vO+4*t+r}, v{m}")
        e(f"v_cvt_pk_bf16_f32 v{vOp+2*t}, v{vO+4*t}, v{vO+4*t+1}")
        e(f"v_cvt_pk_bf16_f32 v{vOp+2*t+1}, v{vO+4*t+2}, v{vO+4*t+3}")
    e(f"buffer_store_dwordx4 {vr(vOp,4)}, v{vOa}, s[{S_WS}:{S_WS+3}], s{sT+2} offen sc1")
    e(f"buffer_store_dwordx4 {vr(vOp+4,4)}, v{vOa}, s[{S_WS}:{S_WS+3}], s{sT+2} offen offset:1024 sc1")
    e(f"buffer_store_dwordx2 {vr(vOp+8,2)}, v{vOb}, s[{S_WS}:{S_WS+3}], s{sT} offen sc1")
    stamp(8)
    p2_compute("Q")

    lab("L_epi_F2")
    e(f"s_mov_b32 s{sNU}, 2")
    e("s_branch L_epi_F")
    lab("L_epi_F4")
    e(f"s_mov_b32 s{sNU}, 4")
    lab("L_epi_F")
    e(f"v_lshrrev_b32 v{vG}, 4, v{vLane}")
    e(f"v_and_b32 v{vSlot}, 15, v{vLane}")
    e(f"v_lshlrev_b32 v{vCSl}, 4, v{vG}")
    e(f"v_add_u32 v{vCSl}, {F_MISC+FM_CS}, v{vCSl}")
    e(f"s_lshl_b32 s{sT}, s{sH0}, 6")
    e(f"v_add_u32 v{vT+6}, s{sT}, v{vCSl}")
    e(f"s_mov_b32 s{sT+2}, 0x00010001")
    e(f"s_mov_b32 s{sT+3}, 0x00010001")
    e(f"s_mov_b64 exec, s[{sT+2}:{sT+3}]")
    e(f"ds_write_b128 v{vT+6}, {vr(vHACC,4)}")
    e(f"s_cmp_le_u32 s{sNH}, 1")
    e("s_cbranch_scc1 L_f_cs_done")
    e(f"ds_write_b128 v{vT+6}, {vr(vHACC+4,4)} offset:64")
    lab("L_f_cs_done")
    e("s_mov_b64 exec, -1")
    vST = 160
    e(f"v_lshlrev_b32 v{vSa}, 3, v{vSlot}")
    e(f"s_lshl_b32 s{sT}, s{sRh}, 9")
    e(f"s_add_u32 s{sT}, s{sT}, {F_MISC+FM_ST}")
    e(f"v_add_u32 v{vSa}, s{sT}, v{vSa}")
    for i in range(4):
        e(f"ds_read_b64 v[{vST+2*i}:{vST+2*i+1}], v{vSa} offset:{128*i}")
    e(f"s_lshl_b32 s{sT}, s{sU0}, 6")
    e(f"v_add_u32 v{vT+7}, s{sT}, v{vCSl}")
    vB1 = 128
    for u in range(4):
        e(f"ds_read_b128 {vr(vB1+4*u,4)}, v{vT+7} offset:{64*u+FM_B1-FM_CS}")
    e(f"s_lshl_b32 s{sT}, s{sRB}, 3")
    e(f"s_lshl_b32 s{sT+1}, s{sRh}, 2")
    e(f"s_add_u32 s{sT}, s{sT}, s{sT+1}")
    e(f"s_mul_i32 s{sT}, s{sT}, 68")
    e(f"s_mul_i32 s{sT+1}, s{sG}, 6")
    e(f"s_add_u32 s{sT}, s{sT}, s{sT+1}")
    e(f"s_lshr_b32 s{sT+1}, s{sU0}, 1")
    e(f"s_add_u32 s{sT}, s{sT}, s{sT+1}")
    e(f"s_lshl_b32 s{sT}, s{sT}, 10")
    for i in range(1, 4):
        e(f"s_add_u32 s{sT+i}, s{sT}, {i*68*1024}")
    e(f"v_lshlrev_b32 v{vPw}, 4, v{vLane}")
    e("s_waitcnt lgkmcnt(0)")
    e("s_barrier")
    stamp(5)
    for u in range(4):
        e(f"ds_read_b128 {vr(vCS+4*u,4)}, v{vT+7} offset:{64*u}")
    vPk = 144
    k = 0
    for pr in range(2):
        if pr == 1:
            e(f"s_cmp_eq_u32 s{sNU}, 2")
            e("s_cbranch_scc1 L_f_done")
        e(f"s_waitcnt lgkmcnt({2-2*pr})")
        for i in range(4):
            pk = vPk + 4 * (k & 3); k += 1
            nm, rs = vST + 2 * i, vST + 2 * i + 1
            for uu in range(2):
                u = 2 * pr + uu
                a = acc(u, i)
                for r in range(4):
                    e(f"v_fmac_f32 v{a+r}, v{vCS+4*u+r}, v{nm}")
                for r in range(4):
                    e(f"v_fma_f32 v{a+r}, v{a+r}, v{rs}, v{vB1+4*u+r}")
                for r in range(4):
                    e(f"v_max_f32 v{a+r}, 0, v{a+r}")
                for r in range(4):
                    e(f"v_mul_f32 v{a+r}, v{a+r}, v{a+r}")
                e(f"v_cvt_pk_bf16_f32 v{pk+2*uu}, v{a}, v{a+1}")
                e(f"v_cvt_pk_bf16_f32 v{pk+2*uu+1}, v{a+2}, v{a+3}")
            e(f"buffer_store_dwordx4 {vr(pk,4)}, v{vPw}, s[{S_WS}:{S_WS+3}], s{sT+i} offen offset:{1024*pr} sc1")
    lab("L_f_done")
    stamp(6)
    e("s_waitcnt vmcnt(0) lgkmcnt(0)")
    stamp(7)
    e("s_barrier")
    stamp(8)
    p2_compute("F")
    lab("L_end")
    e("s_endpgm")


def main():
    L.append("; Fused LN + [QKV|W1] GEMM + dilated local attention + [h|o]x[w2;wo] GEMM + gating, one persistent kernel")
    L.append(f"; @launch grid=(256,1,1) block=(768,1,1) lds={LDS_TOTAL}")
    L.append('.amdgcn_target "amdgcn-amd-amdhsa--gfx950"')
    L.append(".text")
    gen()
    L.append('.section .rodata,"a"')
    L.append(".p2align 6")
    L.append(f".amdhsa_kernel {NAME}_kernel")
    L.append(f"  .amdhsa_next_free_vgpr {NVGPR}")
    L.append("  .amdhsa_next_free_sgpr 102")
    L.append(f"  .amdhsa_accum_offset {NVGPR}")
    L.append("  .amdhsa_group_segment_fixed_size 0")
    L.append("  .amdhsa_kernarg_size 88")
    L.append("  .amdhsa_user_sgpr_count 2")
    L.append("  .amdhsa_user_sgpr_kernarg_segment_ptr 1")
    L.append("  .amdhsa_system_sgpr_workgroup_id_x 1")
    L.append(".end_amdhsa_kernel")
    out = sys.argv[1] if len(sys.argv) > 1 else OUT
    open(out, "w").write("\n".join(L) + "\n")
    print("wrote", out, len(L), "lines")


main()
```

```python
import sys
import os
import struct

NAME = "recurrent_scan__sliding_local_dilated__dense_activation_squared_relu__prompt"
OUT = f"cdna_kernels/{NAME}.s"
STAMP = os.environ.get("STAMP") in ("1", "2")
STAMP_RT = os.environ.get("STAMP") == "2"
STAMP_OFF = 16 << 20
L = []


DIAG = os.environ.get("DIAG", "")
ZONE = [""]


def e(s=""):
    if ZONE[0] == "p2c" and "nocomp2" in DIAG and (s.startswith("ds_read") or s.startswith("v_mfma")):
        return
    if ZONE[0] == "p2l" and "nodma2" in DIAG and s.startswith("buffer_load"):
        return
    if ZONE[0] == "p1c" and "nocomp1" in DIAG and (s.startswith("ds_read") or s.startswith("v_mfma")):
        return
    if ZONE[0] == "p1l" and "nodma1" in DIAG and s.startswith("buffer_load"):
        return
    L.append("    " + s)


def lab(s):
    L.append(s + ":")


def vr(a, n=1):
    return f"v{a}" if n == 1 else f"v[{a}:{a+n-1}]"


def f32(x):
    return hex(struct.unpack("<I", struct.pack("<f", x))[0])


A2_OFF = 0
A2_SIZE = 128 * 68 * 1024
B2N_OFF = A2_SIZE
B2W_OFF = B2N_OFF + 4 * 68 * 4096
ST_OFF = B2W_OFF + 4 * 68 * 6144
FL_OFF = ST_OFF + 2048 * 16
NONCE_OFF = FL_OFF + 256 * 128
WS_USED = NONCE_OFF + 128 if not STAMP else (32 << 20)

Q_P, Q_GP = 480, 3968
Q_XB = 8 * Q_GP
Q_STAGE = Q_XB + 9 * 2048
F_P, F_GP = 416, 3456
F_XB = 8 * F_GP
F_STAGE = F_XB + 8 * 2048
PLANE = 5120
Q_PL = Q_STAGE
Q_MISC = 3 * Q_STAGE
QM_ST, QM_CS, QM_RK = 0, 1152, 2112
Q_X2 = 153600
Q_B2 = Q_X2 + 8192
F_JOB = 3 * F_STAGE
F_MISC = 158720
FM_ST, FM_CS, FM_B1 = 0, 1024, 1792
F_X2 = 143360
F_B2 = F_X2 + 12288
LDS_TOTAL = 162048
assert Q_B2 + 256 <= LDS_TOTAL and F_MISC + FM_B1 + 768 <= LDS_TOTAL and F_B2 + 384 <= F_MISC
assert F_JOB + 2 * 4096 + 3 * 6144 <= F_MISC and Q_MISC + QM_RK + 640 <= Q_X2
P2 = {"Q": dict(n=4, slot=16384, nslot=9, first=8, X=Q_X2, B2=Q_B2, boff=B2N_OFF),
      "F": dict(n=6, slot=20480, nslot=7, first=3, X=F_X2, B2=F_B2, boff=B2W_OFF)}

S_X, S_W, S_WS, S_R, S_DBG = 8, 12, 16, 20, 24
sWave, sS, sG, sRB = 40, 41, 42, 43
sCur, sNxt, sKW, sKX, sIt = 44, 45, 46, 47, 48
sWoff, sXoff, sHoff = 49, 50, 51
sMaskW, sMaskH = 52, 54
sT = 56
sA = 70
sRh, sU0, sH0, sNH = 70, 71, 72, 73
sRet = 96
sNo = 30
sNU = 74
sJ = 75
sSt = 80

vLane = 1
vX0, vX1, vH0 = 2, 3, 4
vWd = 6
vWl, vXl0, vXl1, vWa, vXa = 10, 11, 12, 13, 14
vT = 16
vOnes = 28
vACC = 32
vHACC = 96
vWF = 112
vXF = 128
NVGPR = 168
qAt, qAq, qAv, qRk, qOa, qOb, qPw, qPh = 2, 3, 4, 5, 6, 7, 8, 9
qCSu, qCSh, qSa, qSm, qRq = 15, 16, 17, 18, 19


def qMk(p):
    return 20 + (p - 1 if p < 8 else p - 2)


TOUCH = os.environ.get("TOUCH", "0") == "1"
CODEPF = os.environ.get("CODEPF", "1") == "1"
BPF = os.environ.get("BPF", "0") == "1"
TOUCH2 = os.environ.get("TOUCH2", "1") == "1"
ROT = os.environ.get("ROT", "0") == "1"
DBGOUT = os.environ.get("DBGOUT", "0") == "1"
TSH = int(os.environ.get("TSH", "0"))


def acc(u, i):
    return vACC + (u * 4 + i) * 4


def wf(u):
    return vWF + 4 * u


def xf(b, i):
    return vXF + (b * 5 + i) * 4


def srd(d, base, nrec):
    e(f"s_mov_b32 s{d}, s{base}")
    e(f"s_and_b32 s{d+1}, s{base+1}, 0xffff")
    e(f"s_mov_b32 s{d+2}, {nrec}")
    e(f"s_mov_b32 s{d+3}, 0x00020000")


def nonce_load():
    e(f"s_add_u32 s{sNo}, s68, {NONCE_OFF}")
    e(f"s_addc_u32 s{sNo+1}, s69, 0")
    e(f"s_load_dwordx2 s[{sNo}:{sNo+1}], s[{sNo}:{sNo+1}], 0")


def nonce_fix():
    e(f"s_add_u32 s{sNo}, s{sNo}, 1")
    e(f"s_addc_u32 s{sNo+1}, s{sNo+1}, 0")


def stamp(i, real=False):
    if STAMP:
        e(f"{'s_memrealtime' if (real or STAMP_RT) else 's_memtime'} s[100:101]")
        e("s_waitcnt lgkmcnt(0)")
        e(f"s_mov_b32 s{sSt+i}, s100")


def stamp_flush():
    if STAMP:
        e("s_waitcnt vmcnt(0)")
        stamp(13)
        stamp(15, real=True)
        for i in range(16):
            e(f"v_mov_b32 v{32+i}, s{sSt+i}")
        e(f"s_mul_i32 s{sT}, s2, 12")
        e(f"s_add_u32 s{sT}, s{sT}, s{sWave}")
        e(f"s_lshl_b32 s{sT}, s{sT}, 6")
        e(f"s_add_u32 s{sT}, s{sT}, {STAMP_OFF}")
        e("v_mov_b32 v48, 0")
        e("s_mov_b64 exec, 1")
        for i in range(4):
            e(f"buffer_store_dwordx4 v[{32+4*i}:{35+4*i}], v48, s[{S_WS}:{S_WS+3}], s{sT} offen offset:{16*i}")


QCFG = [(0, 0, 4, 0, 4), (0, 4, 4, 0, 4), (0, 8, 4, 0, 2), (1, 4, 4, 0, 0),
        (0, 12, 3, 0, 2), (1, 12, 3, 2, 1), (1, 0, 4, 0, 0), (1, 8, 4, 2, 2)]
FCFG = [(0, 0, 4, 0, 2), (0, 6, 4, 0, 2), (1, 0, 4, 2, 2), (1, 6, 4, 2, 2),
        (0, 4, 2, 0, 1), (0, 10, 2, 0, 1), (1, 4, 2, 1, 1), (1, 10, 2, 1, 1)]


def p1_dma(typ):
    P2_ = 960 if typ == "Q" else 832
    GP = Q_GP if typ == "Q" else F_GP
    RP = 3840 if typ == "Q" else 3072
    e(f"s_add_u32 m0, s{sCur}, s{sXoff}")
    e(f"s_add_u32 s{sT}, s{sKX}, 1280")
    e(f"buffer_load_dwordx4 v{vX0}, s[{S_X}:{S_X+3}], s{sKX} offen lds")
    e(f"buffer_load_dwordx4 v{vX1}, s[{S_X}:{S_X+3}], s{sKX} offen offset:1024 lds")
    e(f"s_add_u32 m0, m0, 2048")
    e("s_nop 0")
    e(f"buffer_load_dwordx4 v{vX0}, s[{S_X}:{S_X+3}], s{sT} offen lds")
    e(f"buffer_load_dwordx4 v{vX1}, s[{S_X}:{S_X+3}], s{sT} offen offset:1024 lds")
    if typ == "Q":
        e(f"s_add_u32 m0, s{sCur}, s{sHoff}")
        e(f"s_mov_b64 exec, s[{sMaskH}:{sMaskH+1}]")
        e(f"buffer_load_dwordx4 v{vH0}, s[{S_X}:{S_X+3}], s{sKX} offen lds")
    e(f"s_add_u32 m0, s{sCur}, s{sWoff}")
    e(f"s_mov_b64 exec, s[{sMaskW}:{sMaskW+1}]")
    for t in range(4):
        e(f"buffer_load_dwordx4 v{vWd+t}, s[{S_W}:{S_W+3}], s{sKW} offen offset:{P2_*t} lds")
    e(f"s_add_u32 m0, m0, {4*GP}")
    e(f"s_add_u32 s{sT}, s{sKW}, {32*RP}")
    for t in range(4):
        e(f"buffer_load_dwordx4 v{vWd+t}, s[{S_W}:{S_W+3}], s{sT} offen offset:{P2_*t} lds")
    e("s_mov_b64 exec, -1")
    e(f"s_add_u32 s{sKW}, s{sKW}, {64*RP}")
    e(f"s_add_u32 s{sKX}, s{sKX}, 128")
    STG = Q_STAGE if typ == "Q" else F_STAGE
    e(f"s_add_u32 s{sCur}, s{sCur}, {STG}")
    e(f"s_cmp_eq_u32 s{sCur}, {3*STG}")
    e(f"s_cselect_b32 s{sCur}, 0, s{sCur}")


def p1_loop(typ, w):
    rh, u0, nu, h0, nh = (QCFG if typ == "Q" else FCFG)[w]
    STG = Q_STAGE if typ == "Q" else F_STAGE
    P, GP, XB = (Q_P, Q_GP, Q_XB) if typ == "Q" else (F_P, F_GP, F_XB)
    tag = f"{typ}{w}"
    usehx = typ == "Q" and nh > 0
    tasks = typ == "F" and w >= 4
    tlast = 8

    def xreads(b):
        o = []
        for i in range(4):
            off = XB + 2048 * (4 * rh + i + (1 if typ == "Q" else 0))
            o.append(f"ds_read_b128 {vr(xf(b,i),4)}, v{vXa} offset:{off}")
        if usehx:
            o.append(f"ds_read_b128 {vr(xf(b,4),4)}, v{vXa} offset:{XB}")
        return o

    def wreads(u, ks):
        U = u0 + u
        col = (U // 5) * 160 + 8 * (U % 5) if typ == "Q" else 32 * U
        return [f"ds_read_b64_tr_b16 {vr(wf(u)+2*h,2)}, v{vWa} offset:{ks*4*GP+h*4*P+col}" for h in range(2)]

    def mfmas(u, b):
        o = [f"v_mfma_f32_16x16x32_bf16 {vr(acc(u,i),4)}, {vr(wf(u),4)}, {vr(xf(b,i),4)}, {vr(acc(u,i),4)}" for i in range(4)]
        if h0 <= u < h0 + nh:
            a = vHACC + 4 * (u - h0)
            bsrc = xf(b, 4) if typ == "Q" else vOnes
            o.append(f"v_mfma_f32_16x16x32_bf16 {vr(a,4)}, {vr(wf(u),4)}, {vr(bsrc,4)}, {vr(a,4)}")
        return o

    lab(f"L_p1_{tag}")
    if TOUCH2 and w < (5 if typ == "Q" else 4):
        e(f"v_lshlrev_b32 v{vWF}, 7, v{vLane}")
        if w < 2:
            srd(S_R, 4, 2048 * 1280)
            e(f"s_lshl_b32 s{sT}, s{sRB}, 4")
            e(f"s_add_u32 s{sT}, s{sT}, s{sG}")
            if typ == "F":
                e(f"s_add_u32 s{sT}, s{sT}, 8")
            e(f"s_mul_i32 s{sT}, s{sT}, 10240")
            e(f"s_add_u32 s{sT}, s{sT}, {5120*w}")
            nl = 40
        else:
            RP = 3840 if typ == "Q" else 3072
            srd(S_R, 6 if typ == "Q" else 32, 640 * RP)
            e(f"s_lshl_b32 s{sT}, s{sRB}, 3")
            e(f"s_add_u32 s{sT}, s{sT}, s{sG}")
            e(f"s_mul_i32 s{sT}, s{sT}, {5*RP}")
            nl = 50 if typ == "Q" else 60
            e(f"s_add_u32 s{sT}, s{sT}, {nl*128*(w-2)}")
        e(f"s_mov_b32 s{sT+2}, -1")
        e(f"s_mov_b32 s{sT+3}, {hex((1 << (nl - 32)) - 1)}")
        e(f"s_mov_b64 exec, s[{sT+2}:{sT+3}]")
        e(f"buffer_load_dword v0, v{vWF}, s[{S_R}:{S_R+3}], s{sT} offen")
        e("s_mov_b64 exec, -1")
    stamp(2)
    e("s_barrier")
    stamp(3)
    for x in xreads(0):
        e(x)
    for u in range(nu):
        for x in wreads(u, 0):
            e(x)
    e(f"v_mov_b32 v{vXa}, v{vXl1}")
    e("s_waitcnt lgkmcnt(0)")
    lab(f"L_p1_{tag}_loop")
    body = []
    NB = 1
    for ph in range(2):
        pend = []
        if ph == 0:
            pend += [("l", x, ("x", 1)) for x in xreads(1)]
        for u in range(nu):
            if ph == 1 and u == NB:
                body.append(("o", f"v_add_u32 v{vXa}, s{sNxt}, v{vXl0}"))
                body.append(("o", f"v_add_u32 v{vWa}, s{sNxt}, v{vWl}"))
                if tasks:
                    body.append(("o", f"s_cmp_gt_u32 s{sIt}, {tlast}"))
                    body.append(("o", f"s_cbranch_scc1 L_p1_{tag}_nt"))
                    body.append(("o", f"s_call_b64 s[{sRet}:{sRet+1}], {'L_task' if typ == 'F' else 'L_syncQ'}"))
                    body.append(("lab", f"L_p1_{tag}_nt"))
                    body.append(("w0", "s_waitcnt lgkmcnt(0)"))
                else:
                    body.append(("w0", "s_waitcnt lgkmcnt(0)"))
                body.append(("o", "s_barrier"))
                pend = [("l", x, ("x", 0)) for x in xreads(0)] + pend
            ms = mfmas(u, ph)
            rem_after = sum(len(mfmas(uu, ph)) for uu in range(u + 1, nu))
            for mi, m in enumerate(ms):
                body.append(("m", m, [("w", u, ph), ("x", ph)] if mi == 0 else []))
                if mi == len(ms) - 1:
                    pend += [("l", x, ("w", u, 1 - ph)) for x in wreads(u, 1 - ph)]
                if not (ph == 1 and u < NB):
                    left = len(ms) - 1 - mi + rem_after + 1
                    k = 1 if len(pend) <= left else 2
                    while pend and k > 0:
                        body.append(pend.pop(0)); k -= 1
        while pend:
            body.append(pend.pop(0))
        if ph == 1:
            body.append(("o", f"v_add_u32 v{vXa}, s{sNxt}, v{vXl1}"))
            body.append(("o", f"s_add_u32 s{sNxt}, s{sNxt}, {STG}"))
            body.append(("o", f"s_cmp_eq_u32 s{sNxt}, {3*STG}"))
            body.append(("o", f"s_cselect_b32 s{sNxt}, 0, s{sNxt}"))
            body.append(("o", f"s_add_u32 s{sIt}, s{sIt}, 1"))
    n = len(body)
    waits = {}
    covered, ops = -1, []
    for pos, it in enumerate(body + body):
        if it[0] == "l":
            ops.append(it[2])
        elif it[0] == "w0":
            covered = len(ops) - 1
        elif it[0] == "m" and it[2]:
            need = -1
            for tg in it[2]:
                idx = [i for i, t in enumerate(ops) if t == tg]
                if idx:
                    need = max(need, idx[-1])
            if need > covered:
                cnt = min(13, len(ops) - 1 - need)
                covered = len(ops) - 1 - cnt
                if pos >= n:
                    waits[pos - n] = min(cnt, waits.get(pos - n, 99))
                else:
                    waits[pos] = cnt
    ops, covered = [], -1
    for pos, it in enumerate(body * 3):
        p0 = pos % n
        if p0 in waits:
            covered = max(covered, len(ops) - 1 - waits[p0])
        if it[0] == "l":
            ops.append(it[2])
        elif it[0] == "w0":
            covered = len(ops) - 1
        elif it[0] == "m" and it[2]:
            for tg in it[2]:
                idx = [i for i, t in enumerate(ops) if t == tg]
                assert not idx or idx[-1] <= covered, (tag, pos, tg)
    ZONE[0] = "p1c"
    for pos, it in enumerate(body):
        if pos in waits:
            e(f"s_waitcnt lgkmcnt({waits[pos]})")
        if it[0] == "lab":
            lab(it[1])
        else:
            e(it[1])
    ZONE[0] = ""
    e(f"s_cmp_lt_u32 s{sIt}, 10")
    e(f"s_cbranch_scc1 L_p1_{tag}_loop")
    e("s_waitcnt lgkmcnt(0)")
    stamp(4)
    e(f"s_branch L_epi_{typ}")


_spin = [0]


def spin_check(vreg, want_s, reload_fn, wide=True):
    k = _spin[0]; _spin[0] += 1
    regs = vreg if isinstance(vreg, list) else [vreg]
    e(f"s_mov_b32 s{sT+7}, 0")
    lab(f"L_spin{k}")
    for i, r in enumerate(regs):
        dst = "vcc" if i == 0 else f"s[{sT+4}:{sT+5}]"
        if wide:
            e(f"v_cmp_ne_u64 {dst}, s[{want_s}:{want_s+1}], v[{r}:{r+1}]")
        else:
            e(f"v_cmp_ne_u32 {dst}, s{want_s}, v{r}")
        if i:
            e("s_nop 1")
            e(f"s_or_b64 vcc, vcc, s[{sT+4}:{sT+5}]")
    e("s_nop 1")
    e(f"s_cmp_eq_u64 vcc, 0")
    e(f"s_cbranch_scc1 L_spin{k}_ok")
    e(f"s_add_u32 s{sT+7}, s{sT+7}, 1")
    e(f"s_cmp_gt_u32 s{sT+7}, 0x40000")
    e(f"s_cbranch_scc1 L_spin{k}_ok")
    e("s_sleep 2")
    reload_fn()
    e("s_waitcnt vmcnt(0)")
    e(f"s_branch L_spin{k}")
    lab(f"L_spin{k}_ok")


def loader(typ):
    N = 13 if typ == "Q" else 12
    p = P2[typ]
    n, SLOT, NSLOT = p["n"], p["slot"], p["nslot"]
    NBq = n // 2
    N2 = 2 + NBq
    vP, vFa, vL16, vSa = vT + 8, vT + 9, vT + 10, vT + 11
    vE1, vGl, vLs, vRs, vD = 32, 33, 34, 35, 36
    vP = 40
    sSrcA, sSrcB, sDst, sMA, sMB, sOne, sFl = sA, sA + 1, sA + 2, sA + 3, sA + 4, sA + 5, sA + 6
    e(f"s_mov_b32 s{sCur}, 0")
    nonce_load()
    p1_dma(typ)
    p1_dma(typ)
    srd(S_WS, 68, WS_USED)
    e(f"s_waitcnt vmcnt({N}) lgkmcnt(0)")
    e("s_barrier")
    stamp(1)
    p1_dma(typ)
    e(f"v_lshlrev_b32 v{vL16}, 4, v{vLane}")
    e(f"v_lshlrev_b32 v{vFa}, 7, v{vLane}")
    e(f"v_lshlrev_b32 v{vSa}, 2, v{vLane}")
    nonce_fix()
    e(f"v_lshrrev_b32 v{vE1}, 2, v{vLane}")
    e(f"v_lshlrev_b32 v{vE1}, 4, v{vE1}")
    e(f"v_bfe_u32 v{vT}, v{vLane}, 1, 1")
    e(f"v_lshl_add_u32 v{vE1}, v{vT}, 2, v{vE1}")
    e(f"v_and_b32 v{vT}, 1, v{vLane}")
    e(f"v_add_u32 v{vE1}, v{vE1}, v{vT}")
    e(f"s_and_b32 s{sT}, s2, 1")
    e(f"s_lshl_b32 s{sT}, s{sT}, 1")
    e(f"s_add_u32 s{sT}, s{sT}, 8")
    e(f"v_add_lshl_u32 v{vE1}, v{vE1}, s{sT}, 7")
    per = 36 if typ == "Q" else 32
    t0, t1, t2, t3 = vT, vT + 1, vT + 2, vT + 3
    e(f"s_mul_i32 s{sT}, s{sS}, {per}")
    if typ == "Q":
        e(f"s_sub_u32 s{sT}, s{sT}, 16")
    e(f"v_add_u32 v{t0}, s{sT}, v{vLane}")
    e(f"s_lshl_b32 s{sT}, s{sRB}, 7")
    e(f"v_add_u32 v{t1}, s{sT}, v{t0}")
    e(f"v_max_i32 v{t1}, 0, v{t1}")
    e(f"v_lshlrev_b32 v{vGl}, 4, v{t1}")
    e(f"v_ashrrev_i32 v{t1}, 5, v{t0}")
    e(f"v_and_b32 v{t2}, 1, v{t0}")
    e(f"v_lshl_add_u32 v{t1}, v{t1}, 1, v{t2}")
    e(f"v_bfe_u32 v{t3}, v{t0}, 1, 4")
    e(f"v_lshl_add_u32 v{t1}, v{t1}, 4, v{t3}")
    if typ == "Q":
        e(f"v_add_u32 v{t1}, 16, v{t1}")
        e(f"v_and_b32 v{t3}, 7, v{t3}")
        e(f"v_cmp_gt_i32 vcc, 0, v{t0}")
        e(f"v_lshl_add_u32 v{t3}, v{t2}, 3, v{t3}")
        e("s_nop 0")
        e(f"v_cndmask_b32 v{t1}, v{t1}, v{t3}, vcc")
    e(f"v_lshlrev_b32 v{vLs}, 3, v{t1}")
    e(f"v_add_u32 v{vLs}, {(Q_MISC+QM_ST) if typ == 'Q' else (F_MISC+FM_ST)}, v{vLs}")
    if typ == "Q":
        e(f"v_add_u32 v{t1}, 16, v{t0}")
        e(f"v_lshrrev_b32 v{t1}, 1, v{t1}")
        e(f"v_mul_u32_u24 v{t2}, 320, v{t2}")
        e(f"v_lshl_add_u32 v{vRs}, v{t1}, 2, v{t2}")
        e(f"v_add_u32 v{vRs}, {Q_MISC+QM_RK}, v{vRs}")
    e(f"s_bfe_u32 s{sT}, s2, 0x10001")
    e(f"s_lshl_b32 s{sT+1}, s{sRB}, 1")
    e(f"s_add_u32 s{sT}, s{sT}, s{sT+1}")
    e(f"s_lshl_b32 s{sFl}, s{sRB}, 11")
    e(f"s_add_u32 s{sFl}, s{sFl}, {FL_OFF}")
    e(f"s_lshl_b32 s{sSrcA}, s{sT}, 2")
    e(f"s_add_u32 s{sSrcA}, s{sSrcA}, s{sS}")
    e(f"s_mul_i32 s{sSrcA}, s{sSrcA}, {68*1024}")
    e(f"s_and_b32 s{sT}, s2, 1")
    e(f"s_lshl_b32 s{sT}, s{sT}, 1")
    e(f"s_bfe_u32 s{sT+1}, s2, 0x10004")
    e(f"s_add_u32 s{sT}, s{sT}, s{sT+1}")
    e(f"s_mul_i32 s{sSrcB}, s{sT}, {68*n*1024}")
    e(f"s_mul_i32 s{sMB}, s{sS}, {NBq*1024}")
    e(f"s_add_u32 s{sSrcB}, s{sSrcB}, s{sMB}")
    e(f"s_add_u32 s{sSrcB}, s{sSrcB}, {p['boff']}")
    e(f"s_lshl_b32 s{sMA}, s{sS}, 11")
    e(f"s_add_u32 s{sMA}, s{sMA}, {2*n*1024}")
    e(f"s_mov_b32 s{sOne}, 1")
    e(f"s_mov_b32 s{sIt}, 0")
    lab(f"L_ld{typ}_loop")
    e(f"s_waitcnt vmcnt({N})")
    e("s_barrier")
    if STAMP:
        for it_, ix in ((0, 2), (2, 3), (5, 4), (6, 6)):
            e(f"s_cmp_lg_u32 s{sIt}, {it_}")
            e(f"s_cbranch_scc1 L_ld{typ}_st{it_}")
            stamp(ix)
            lab(f"L_ld{typ}_st{it_}")
    ZONE[0] = "p1l"
    p1_dma(typ)
    ZONE[0] = ""
    e(f"s_add_u32 s{sIt}, s{sIt}, 1")
    e(f"s_cmp_lt_u32 s{sIt}, 7")
    e(f"s_cbranch_scc1 L_ld{typ}_loop")
    e(f"s_waitcnt vmcnt({N})")
    e("s_barrier")
    stamp(7)

    def ld_stats():
        e(f"s_mov_b32 s{sT}, {ST_OFF}")
        e(f"s_mov_b32 s{sT+2}, -1")
        e(f"s_mov_b32 s{sT+3}, {0xf if typ == 'Q' else 0}")
        e(f"s_mov_b64 exec, s[{sT+2}:{sT+3}]")
        e(f"buffer_load_dwordx4 {vr(vD,4)}, v{vGl}, s[{S_WS}:{S_WS+3}], s{sT} offen sc1")
    ld_stats()
    e("s_waitcnt vmcnt(1)")
    e("s_barrier")
    stamp(10)
    e("s_waitcnt vmcnt(0)")
    spin_check(vD + 2, sNo, ld_stats)
    e(f"ds_write_b64 v{vLs}, v[{vD}:{vD+1}]")
    if typ == "Q":
        e(f"ds_write_b32 v{vRs}, v{vD+1}")
    e("s_mov_b64 exec, -1")
    stamp(9)

    def ld_bflags():
        e(f"s_mov_b32 s{sT}, {FL_OFF}")
        e(f"buffer_load_dwordx2 v[{vP}:{vP+1}], v{vE1}, s[{S_WS}:{S_WS+3}], s{sT} offen offset:8 sc1")
    e("s_waitcnt lgkmcnt(0)")

    sEndA, sEndB = sKW, sWoff

    def wrap(src, end, stride):
        e(f"s_cmp_eq_u32 s{src}, s{end}")
        e(f"s_cselect_b32 s{sT+4}, s{end+1}, s{src}")
        e(f"s_cselect_b32 s{end+1}, s{end}, s{end+1}")
        e(f"s_cselect_b32 s{end}, s{sRotA if src == sSrcA else sRotB}, s{end}")
        e(f"s_mov_b32 s{src}, s{sT+4}")
    sRotA, sRotB = sHoff, sMaskH
    if ROT:
        e(f"s_bfe_u32 s{sT}, s2, 0x20003")
        e(f"s_mul_i32 s{sT}, s{sT}, 6")
        for src, end, rot, stride in ((sSrcA, sEndA, sRotA, 2048), (sSrcB, sEndB, sRotB, 2 * n * 1024)):
            e(f"s_mov_b32 s{end+1}, s{src}")
            e(f"s_add_u32 s{end}, s{src}, {24*stride}")
            e(f"s_mul_i32 s{sT+1}, s{sT}, {stride}")
            e(f"s_add_u32 s{src}, s{src}, s{sT+1}")
            e(f"s_mov_b32 s{rot}, s{src}")
        e(f"s_cmp_eq_u32 s{sT}, 0")
        e(f"s_cselect_b32 s{sEndA}, -1, s{sEndA}")
        e(f"s_cselect_b32 s{sEndB}, -1, s{sEndB}")

    def dmaB():
        e(f"s_add_u32 m0, s{sDst}, s{sMB}")
        e("s_nop 0")
        for i in range(NBq):
            e(f"buffer_load_dwordx4 v{vL16}, s[{S_WS}:{S_WS+3}], s{sSrcB} offen offset:{1024*i} sc1 lds")
        e(f"s_add_u32 s{sSrcB}, s{sSrcB}, {2*n*1024}")
        if ROT:
            wrap(sSrcB, sEndB, 2 * n * 1024)

    def dmaA():
        e(f"s_add_u32 m0, s{sDst}, s{sMA}")
        e("s_nop 0")
        for i in range(2):
            e(f"buffer_load_dwordx4 v{vL16}, s[{S_WS}:{S_WS+3}], s{sSrcA} offen offset:{1024*i} sc1 lds")
        e(f"s_add_u32 s{sSrcA}, s{sSrcA}, 2048")
        if ROT:
            wrap(sSrcA, sEndA, 2048)

    def adv():
        e(f"s_add_u32 s{sDst}, s{sDst}, {SLOT}")
        e(f"s_cmp_eq_u32 s{sDst}, {NSLOT*SLOT}")
        e(f"s_cselect_b32 s{sDst}, 0, s{sDst}")

    def stage():
        ZONE[0] = "p2l"
        dmaB(); dmaA(); adv()
        ZONE[0] = ""

    def slot_of(k):
        return ((p["first"] + k) % NSLOT) * SLOT

    def load_flags(off):
        def f():
            e("s_mov_b64 exec, 0xff")
            e(f"buffer_load_dwordx2 v[{vP+2}:{vP+3}], v{vFa}, s[{S_WS}:{S_WS+3}], s{sFl} offen offset:{off} sc1")
        return f

    def own_flag():
        e(f"s_lshl_b32 s{sT}, s{sRB}, 4")
        e(f"s_add_u32 s{sT}, s{sT}, s{sG}")
        e(f"s_lshl_b32 s{sT}, s{sT}, 7")
        e(f"s_add_u32 s{sT}, s{sT}, {FL_OFF + (1024 if typ == 'F' else 0)}")
        e(f"s_cmp_eq_u32 s{sS}, 0")
        e(f"s_cselect_b32 s{sT}, s{sT}, 0x7f000000")
        e(f"v_mov_b32 v{vT}, s{sNo}")
        e(f"v_mov_b32 v{vT+1}, s{sNo+1}")
        e(f"v_mov_b32 v{vT+2}, 0")
        e("s_mov_b64 exec, 1")
        e(f"buffer_store_dwordx2 v[{vT}:{vT+1}], v{vT+2}, s[{S_WS}:{S_WS+3}], s{sT} offen sc1")
        e("s_mov_b64 exec, -1")

    PRE = 4
    e("s_barrier")
    stamp(11)
    e("s_barrier")
    ld_bflags()
    if typ == "Q":
        load_flags(1024)()
        e("s_mov_b64 exec, -1")
    e("s_barrier")
    if typ == "F":
        own_flag()
    e("s_waitcnt vmcnt(0)")
    spin_check(vP, sNo, ld_bflags)
    stamp(8)
    if BPF:
        nl = 17 * n
        e(f"s_lshr_b32 s{sT}, s2, 5")
        e(f"s_lshl_b32 s{sT}, s{sT}, 2")
        e(f"s_add_u32 s{sT}, s{sT}, s{sS}")
        e(f"s_mul_i32 s{sT}, s{sT}, {nl*128}")
        e(f"s_add_u32 s{sT}, s{sT}, s{sEndB+1 if ROT else sSrcB}")
        e(f"s_sub_u32 s{sT}, s{sT}, s{sMB}")
        e(f"s_add_u32 s{sT+1}, s{sT}, 8192")
    for k in range(PRE):
        e(f"s_mov_b32 s{sDst}, {slot_of(k)}")
        dmaB()
    if BPF:
        e(f"buffer_load_dword v{vD}, v{vFa}, s[{S_WS}:{S_WS+3}], s{sT} offen sc1")
        rem = nl - 64
        e(f"s_mov_b32 s{sT+2}, {hex((1 << min(rem, 32)) - 1)}")
        e(f"s_mov_b32 s{sT+3}, {hex((1 << max(rem - 32, 0)) - 1)}")
        e(f"s_mov_b64 exec, s[{sT+2}:{sT+3}]")
        e(f"buffer_load_dword v{vD}, v{vFa}, s[{S_WS}:{S_WS+3}], s{sT+1} offen sc1")
        e("s_mov_b64 exec, -1")
    if typ == "F":
        load_flags(1024)()
        e("s_waitcnt vmcnt(0)")
    e("s_mov_b64 exec, 0xff")
    spin_check(vP + 2, sNo, load_flags(1024))
    e("s_mov_b64 exec, -1")
    stamp(5)
    for k in range(PRE):
        e(f"s_mov_b32 s{sDst}, {slot_of(k)}")
        dmaA()
    e(f"s_mov_b32 s{sDst}, {slot_of(PRE)}")
    issued = PRE
    q = [2] * PRE
    T = 0

    def allowed(T):
        return sum(q[2 * T + 2:])
    while issued < 2 * T - 2 + NSLOT or T < 2:
        e(f"s_waitcnt vmcnt({allowed(T)})")
        e("s_barrier")
        k = 0
        while issued <= 2 * T - 1 + NSLOT and k < 4:
            stage(); q.append(N2); issued += 1; k += 1
        T += 1
    assert issued == 2 * T - 2 + NSLOT, (issued, T)
    INFL = NSLOT - 4
    TEND = (34 - NSLOT + 1) // 2
    e(f"s_mov_b32 s{sIt}, {T}")
    lab(f"L_ld{typ}_p2b")
    e(f"s_waitcnt vmcnt({INFL*N2})")
    e("s_barrier")
    stage()
    stage()
    e(f"s_add_u32 s{sIt}, s{sIt}, 1")
    e(f"s_cmp_lt_u32 s{sIt}, {TEND}")
    e(f"s_cbranch_scc1 L_ld{typ}_p2b")
    issued = 2 * TEND - 2 + NSLOT
    assert issued == 33
    e(f"s_waitcnt vmcnt({INFL*N2})")
    e("s_barrier")
    stage()
    nch = 2 * n
    rows_per = 64 // nch
    if typ == "F":
        rows_per = 4
    nin = 16 // rows_per
    srd(S_R, 38, 1280)
    if typ == "Q":
        e(f"v_lshrrev_b32 v{vT}, 3, v{vLane}")
        e(f"v_and_b32 v{vT+1}, 7, v{vLane}")
    else:
        e(f"v_mul_u32_u24 v{vT}, 43, v{vLane}")
        e(f"v_lshrrev_b32 v{vT}, 9, v{vT}")
        e(f"v_mul_u32_u24 v{vT+1}, 12, v{vT}")
        e(f"v_sub_u32 v{vT+1}, v{vLane}, v{vT+1}")
    e(f"v_mul_u32_u24 v{vT}, 2560, v{vT}")
    e(f"v_lshl_add_u32 v{vT}, v{vT+1}, 4, v{vT}")
    p2_rowcol(typ, sT, sT + 1)
    e(f"s_mul_i32 s{sT+2}, s{sS}, {16*nch*16}")
    e(f"s_add_u32 m0, s{sT+2}, {p['X']}")
    if typ == "F":
        e(f"s_mov_b32 s{sT+2}, -1")
        e(f"s_mov_b32 s{sT+3}, 0xffff")
        e(f"s_mov_b64 exec, s[{sT+2}:{sT+3}]")
    for i in range(nin):
        lo = rows_per * nch * 16 * i
        e(f"s_add_u32 s{sT+4}, s{sT}, {i*rows_per*2560-lo}")
        e(f"buffer_load_dwordx4 v{vT}, s[{S_X}:{S_X+3}], s{sT+4} offen offset:{lo} lds")
    e("s_mov_b64 exec, -1")
    e(f"buffer_load_dword v{vT+2}, v{vSa}, s[{S_R}:{S_R+3}], s{sT+1} offen")
    e(f"v_lshlrev_b32 v{vT}, 3, v{vLane}")
    e(f"v_add_u32 v{vT}, {p['B2']}, v{vT}")
    nx = nin + 1
    for tt in range(TEND + 1, 17):
        rem = 33 - (2 * tt + 1)
        if rem > 0:
            e(f"s_waitcnt vmcnt({rem*N2+nx})")
        else:
            e("s_waitcnt vmcnt(0)")
            e(f"v_lshlrev_b32 v{vT+4}, 16, v{vT+2}")
            e(f"v_and_b32 v{vT+5}, 0xffff0000, v{vT+2}")
            e(f"s_mov_b32 s{sT+2}, -1")
            e(f"s_mov_b32 s{sT+3}, {0 if typ == 'Q' else 0xffff}")
            e(f"s_mov_b64 exec, s[{sT+2}:{sT+3}]")
            e(f"ds_write_b64 v{vT}, v[{vT+4}:{vT+5}]")
            e("s_waitcnt lgkmcnt(0)")
        e("s_barrier")
    e("s_mov_b64 exec, -1")
    if typ == "Q":
        e(f"s_or_b32 s{sT}, s2, s{sS}")
        e(f"s_cmp_lg_u32 s{sT}, 0")
        e("s_cbranch_scc1 L_ldQ_fin")
        srd(S_DBG, 66, 256)

        def ld_dbg():
            e(f"buffer_load_dword v{vP}, v{vSa}, s[{S_DBG}:{S_DBG+3}], 0 offen sc1")
        e("s_mov_b64 exec, 0xffff")
        ld_dbg()
        e(f"s_mov_b32 s{sT+6}, 1")
        e("s_waitcnt vmcnt(0)")
        spin_check(vP, sT + 6, ld_dbg, wide=False)
        e(f"v_mov_b32 v{vT}, s{sNo}")
        e(f"v_mov_b32 v{vT+1}, s{sNo+1}")
        e(f"v_mov_b32 v{vT+2}, 0")
        e(f"s_mov_b32 s{sT}, {NONCE_OFF}")
        e("s_mov_b64 exec, 1")
        e(f"buffer_store_dwordx2 v[{vT}:{vT+1}], v{vT+2}, s[{S_WS}:{S_WS+3}], s{sT} offen sc1")
        e("s_mov_b64 exec, -1")
        if DBGOUT:
            stamp(13)
            stamp(15, real=True)
            for i in range(16):
                base = sSt + (14 if i >= 14 else 0)
                e(f"s_sub_u32 s{sT}, s{sSt+i}, s{base}")
                e(f"v_mov_b32 v{48+i}, s{sT}")
            e("v_mov_b32 v64, 0")
            e("s_mov_b64 exec, 1")
            for i in range(4):
                e(f"buffer_store_dwordx4 v[{48+4*i}:{51+4*i}], v64, s[{S_DBG}:{S_DBG+3}], 0 offen offset:{16*i}")
            e("s_mov_b64 exec, -1")
        lab("L_ldQ_fin")
    stamp_flush()
    e("s_endpgm")


def p2_rowcol(typ, sd, sc):
    e(f"s_bfe_u32 s{sd}, s2, 0x10001")
    e(f"s_lshl_b32 s{sc}, s{sRB}, 1")
    e(f"s_add_u32 s{sd}, s{sd}, s{sc}")
    e(f"s_lshl_b32 s{sd}, s{sd}, 6")
    e(f"s_lshr_b32 s{sc}, s{sS}, 1")
    e(f"s_lshl_b32 s{sc}, s{sc}, 5")
    e(f"s_add_u32 s{sd}, s{sd}, s{sc}")
    e(f"s_and_b32 s{sc}, s{sS}, 1")
    e(f"s_add_u32 s{sd}, s{sd}, s{sc}")
    e(f"s_mul_i32 s{sd}, s{sd}, 1280")
    e(f"s_and_b32 s{sc}, s2, 1")
    e(f"s_lshl_b32 s{sc}, s{sc}, 1")
    e(f"s_bfe_u32 s{sd+2}, s2, 0x10004")
    e(f"s_add_u32 s{sc}, s{sc}, s{sd+2}")
    e(f"s_mul_i32 s{sc}, s{sc}, 320")
    if typ == "F":
        e(f"s_add_u32 s{sc}, s{sc}, 128")
    e(f"s_add_u32 s{sd}, s{sd}, s{sc}")


def p2_compute(typ):
    p = P2[typ]
    n, SLOT, NSLOT = p["n"], p["slot"], p["nslot"]
    nu = n // 2
    vAl, vBl, vAa, vBa = 10, 11, 12, 13
    vF, vS = 32, 44
    vFr = 64
    sHf = sA

    def fr(st, ks, i):
        return vFr + ((st * 2 + ks) * (1 + nu) + i) * 4
    lab(f"L_p2_{typ}")
    e(f"s_lshr_b32 s{sHf}, s{sWave}, 2")
    e(f"v_lshlrev_b32 v{vBl}, 4, v{vLane}")
    e(f"s_lshl_b32 s{sT}, s{sS}, 11")
    e(f"s_add_u32 s{sT}, s{sT}, {2*n*1024}")
    e(f"v_add_u32 v{vAl}, s{sT}, v{vBl}")
    e(f"s_mul_i32 s{sT}, s{sHf}, {nu*1024}")
    e(f"v_add_u32 v{vBl}, s{sT}, v{vBl}")
    for r in range(4 * nu):
        e(f"v_mov_b32 v{vF+r}, 0")
        e(f"v_mov_b32 v{vS+r}, 0")
    for r in range(2 * (1 + nu) * 4):
        e(f"v_mov_b32 v{fr(1,0,0)+r}, 0")
    e(f"s_mov_b32 s{sCur}, {p['first']*SLOT}")
    e(f"s_mov_b32 s{sIt}, 0")
    e(f"v_lshlrev_b32 v15, 7, v{vLane}")
    e(f"s_lshl_b32 s{sJ}, s{sRB}, 11")
    e(f"s_add_u32 s{sJ}, s{sJ}, {FL_OFF}")
    stamp(9)

    def half(st, accprev, first_wait=False):
        e(f"v_add_u32 v{vAa}, s{sCur}, v{vAl}")
        e(f"v_add_u32 v{vBa}, s{sCur}, v{vBl}")
        e("s_waitcnt lgkmcnt(0)")
        if st == 0:
            e("s_barrier")
        rds = []
        for ks in range(2):
            rds.append(f"ds_read_b128 {vr(fr(st,ks,0),4)}, v{vAa} offset:{1024*ks}")
            for i in range(nu):
                rds.append(f"ds_read_b128 {vr(fr(st,ks,1+i),4)}, v{vBa} offset:{(ks*n+i)*1024}")
        ms = []
        for ks in range(2):
            for i in range(nu):
                a = accprev + 4 * i
                ms.append(f"v_mfma_f32_16x16x32_bf16 {vr(a,4)}, {vr(fr(1-st,ks,1+i),4)}, {vr(fr(1-st,ks,0),4)}, {vr(a,4)}")
        sal = [f"s_add_u32 s{sCur}, s{sCur}, {SLOT}", f"s_cmp_eq_u32 s{sCur}, {NSLOT*SLOT}", f"s_cselect_b32 s{sCur}, 0, s{sCur}"]
        ZONE[0] = "p2c"
        e(rds.pop(0)); e(rds.pop(0))
        for m in ms:
            e(m)
            if rds:
                e(rds.pop(0))
            if rds and len(rds) > len(ms) - ms.index(m) - 1:
                e(rds.pop(0))
        for x in rds + sal:
            e(x)
        ZONE[0] = ""

    lab(f"L_p2_{typ}_h")
    LOOK = NSLOT - 1
    ICHK = (24 - NSLOT + 1) // 2
    vPo, vFo = 8, 15

    def ld_o():
        e("s_mov_b64 exec, 0xff")
        e(f"buffer_load_dwordx2 v[{vPo}:{vPo+1}], v{vFo}, s[{S_WS}:{S_WS+3}], s{sJ} offen sc1")
    e(f"s_cmp_lg_u32 s{sIt}, 1")
    e(f"s_cbranch_scc1 L_p2_{typ}_n1")
    e("s_waitcnt vmcnt(0)")
    lab(f"L_p2_{typ}_n1")
    e(f"s_cmp_lg_u32 s{sWave}, 0")
    e(f"s_cbranch_scc1 L_p2_{typ}_nv")
    if typ == "Q":
        e(f"s_cmp_lg_u32 s{sIt}, 2")
        e(f"s_cbranch_scc1 L_p2_{typ}_n2")
        e(f"s_lshl_b32 s{sT}, s{sG}, 7")
        e(f"s_add_u32 s{sT}, s{sT}, s{sJ}")
        e(f"v_mov_b32 v{vT}, s{sNo}")
        e(f"v_mov_b32 v{vT+1}, s{sNo+1}")
        e(f"v_mov_b32 v{vT+2}, 0")
        e("s_mov_b64 exec, 1")
        e(f"buffer_store_dwordx2 v[{vT}:{vT+1}], v{vT+2}, s[{S_WS}:{S_WS+3}], s{sT} offen sc1")
        e("s_mov_b64 exec, -1")
        lab(f"L_p2_{typ}_n2")
    e(f"s_cmp_lg_u32 s{sIt}, {ICHK-2}")
    e(f"s_cbranch_scc1 L_p2_{typ}_n3")
    ld_o()
    e("s_mov_b64 exec, -1")
    lab(f"L_p2_{typ}_n3")
    e(f"s_cmp_lg_u32 s{sIt}, {ICHK}")
    e(f"s_cbranch_scc1 L_p2_{typ}_nv")
    e("s_waitcnt vmcnt(0)")
    e("s_mov_b64 exec, 0xff")
    spin_check(vPo, sNo, ld_o)
    if typ == "Q":
        srd(S_DBG, 66, 256)
        e(f"s_lshl_b32 s{sT}, s{sRB}, 2")
        e(f"s_cmp_eq_u32 s{sG}, 0")
        e(f"s_cselect_b32 s{sT}, s{sT}, 0x1000")
        e(f"v_mov_b32 v{vT}, 1")
        e(f"v_mov_b32 v{vT+1}, 0")
        e("s_mov_b64 exec, 1")
        e(f"buffer_store_dword v{vT}, v{vT+1}, s[{S_DBG}:{S_DBG+3}], s{sT} offen sc1")
    e("s_mov_b64 exec, -1")
    lab(f"L_p2_{typ}_nv")
    half(0, vF)
    if STAMP:
        e(f"s_cmp_lg_u32 s{sIt}, 0")
        e(f"s_cbranch_scc1 L_p2_{typ}_ns")
        stamp(10)
        lab(f"L_p2_{typ}_ns")
    half(1, vF)
    e(f"s_add_u32 s{sIt}, s{sIt}, 1")
    e(f"s_cmp_lt_u32 s{sIt}, 12")
    e(f"s_cbranch_scc1 L_p2_{typ}_h")
    half(0, vF)
    half(1, vS)
    lab(f"L_p2_{typ}_o")
    half(0, vS)
    half(1, vS)
    e(f"s_add_u32 s{sIt}, s{sIt}, 1")
    e(f"s_cmp_lt_u32 s{sIt}, 16")
    e(f"s_cbranch_scc1 L_p2_{typ}_o")
    nel = 4 * nu
    vG, vSl = vT, vT + 1
    vBb, vXx, vE, vXf = fr(0, 0, 0), fr(0, 0, 0) + 12, 128, 144
    e(f"v_lshrrev_b32 v{vG}, 4, v{vLane}")
    e(f"v_and_b32 v{vSl}, 15, v{vLane}")
    e(f"v_mul_u32_u24 v{vT+2}, {16*n}, v{vG}")
    e(f"s_mul_i32 s{sT}, s{sHf}, {8*n}")
    e(f"s_add_u32 s{sT}, s{sT}, {p['B2']}")
    e(f"v_add_u32 v{vT+2}, s{sT}, v{vT+2}")
    e(f"v_mul_u32_u24 v{vT+3}, {32*n}, v{vSl}")
    e(f"v_mul_u32_u24 v{vT+4}, {8*n}, v{vG}")
    e(f"s_mul_i32 s{sT}, s{sS}, {16*32*n}")
    e(f"s_mul_i32 s{sT+1}, s{sHf}, {4*n}")
    e(f"s_add_u32 s{sT}, s{sT}, s{sT+1}")
    e(f"s_add_u32 s{sT}, s{sT}, {p['X']}")
    e(f"v_add3_u32 v{vT+3}, v{vT+3}, v{vT+4}, s{sT}")
    e(f"v_mul_u32_u24 v{vT+5}, 2560, v{vSl}")
    e(f"v_add3_u32 v{vT+5}, v{vT+5}, v{vT+4}, s{sT+1}")
    e("s_waitcnt lgkmcnt(0)")
    for i in range(nu):
        e(f"ds_read_b128 {vr(vBb+4*i,4)}, v{vT+2} offset:{16*i}")
    for i in range(nu):
        e(f"ds_read_b64 {vr(vXx+2*i,2)}, v{vT+3} offset:{8*i}")
    for ks in range(2):
        for i in range(nu):
            a = vS + 4 * i
            e(f"v_mfma_f32_16x16x32_bf16 {vr(a,4)}, {vr(fr(1,ks,1+i),4)}, {vr(fr(1,ks,0),4)}, {vr(a,4)}")
    stamp(11)
    p2_rowcol(typ, sT, sT + 1)
    srd(S_R, 64, 2048 * 1280)
    e(f"s_mov_b32 s{sT+1}, {f32(-1.4426950408889634)}")
    e("s_waitcnt lgkmcnt(0)")
    for r in range(nel):
        e(f"v_add_f32 v{vF+r}, v{vF+r}, v{vBb+r}")
    for r in range(nel):
        e(f"v_mul_f32 v{vE+r}, s{sT+1}, v{vF+r}")
    for r in range(nel):
        e(f"v_exp_f32 v{vE+r}, v{vE+r}")
    for d in range(nel // 2):
        e(f"v_lshlrev_b32 v{vXf+2*d}, 16, v{vXx+d}")
        e(f"v_and_b32 v{vXf+2*d+1}, 0xffff0000, v{vXx+d}")
    for r in range(nel):
        e(f"v_add_f32 v{vE+r}, 1.0, v{vE+r}")
    for r in range(nel):
        e(f"v_rcp_f32 v{vE+r}, v{vE+r}")
    for r in range(nel):
        e(f"v_mul_f32 v{vF+r}, v{vF+r}, v{vS+r}")
    for r in range(nel):
        e(f"v_fmac_f32 v{vXf+r}, v{vF+r}, v{vE+r}")
    for d in range(nel // 2):
        e(f"v_cvt_pk_bf16_f32 v{vBb+d}, v{vXf+2*d}, v{vXf+2*d+1}")
    e(f"buffer_store_dwordx4 {vr(vBb,4)}, v{vT+5}, s[{S_R}:{S_R+3}], s{sT} offen")
    if typ == "F":
        e(f"buffer_store_dwordx2 {vr(vBb+4,2)}, v{vT+5}, s[{S_R}:{S_R+3}], s{sT} offen offset:16")
    stamp(12)
    stamp_flush()
    e("s_endpgm")


def wave_sum(v, t):
    for ctl in ("quad_perm:[1,0,3,2]", "quad_perm:[2,3,0,1]", "row_half_mirror", "row_mirror"):
        e("s_nop 1")
        e(f"v_add_f32_dpp v{v}, v{v}, v{v} {ctl} row_mask:0xf bank_mask:0xf")
    for sw in ("v_permlane16_swap_b32", "v_permlane32_swap_b32"):
        e(f"v_mov_b32 v{t}, v{v}")
        e("s_nop 1")
        e(f"{sw} v{v}, v{t}")
        e("s_nop 0")
        e(f"v_add_f32 v{v}, v{v}, v{t}")


def wave_sum2(a, b, ta, tb):
    for ctl in ("quad_perm:[1,0,3,2]", "quad_perm:[2,3,0,1]", "row_half_mirror", "row_mirror"):
        e("s_nop 0")
        e(f"v_add_f32_dpp v{a}, v{a}, v{a} {ctl} row_mask:0xf bank_mask:0xf")
        e(f"v_add_f32_dpp v{b}, v{b}, v{b} {ctl} row_mask:0xf bank_mask:0xf")
    for sw in ("v_permlane16_swap_b32", "v_permlane32_swap_b32"):
        e(f"v_mov_b32 v{ta}, v{a}")
        e(f"v_mov_b32 v{tb}, v{b}")
        e("s_nop 1")
        e(f"{sw} v{a}, v{ta}")
        e(f"{sw} v{b}, v{tb}")
        e("s_nop 0")
        e(f"v_add_f32 v{a}, v{a}, v{ta}")
        e(f"v_add_f32 v{b}, v{b}, v{tb}")


def cfg_lookup(cfg):
    def tab(f):
        return hex(sum((f(c) & 15) << (4 * i) for i, c in enumerate(cfg)))
    e(f"s_lshl_b32 s{sT}, s{sWave}, 2")
    for dst, f in ((sRh, lambda c: c[0]), (sU0, lambda c: c[1]), (sH0, lambda c: c[1] + c[3]), (sNH, lambda c: c[4]), (sNU, lambda c: c[2])):
        e(f"s_lshr_b32 s{dst}, {tab(f)}, s{sT}")
        e(f"s_and_b32 s{dst}, s{dst}, 15")


def gen():
    K = NAME + "_kernel"
    L.append(f".globl {K}")
    L.append(".p2align 8")
    L.append(f".type {K},@function")
    lab(K)
    e("s_cmp_ge_u32 s2, 256")
    e("s_cbranch_scc1 L_end")
    stamp(0)
    stamp(14, real=True)
    e("s_load_dwordx4 s[4:7], s[0:1], 0")
    e("s_load_dwordx8 s[32:39], s[0:1], 32")
    e("s_load_dwordx2 s[28:29], s[0:1], 16")
    e("s_load_dwordx4 s[64:67], s[0:1], 64")
    e("s_load_dwordx2 s[68:69], s[0:1], 80")
    e(f"v_lshrrev_b32 v{vT}, 6, v0")
    e(f"v_and_b32 v{vLane}, 63, v0")
    e(f"v_readfirstlane_b32 s{sWave}, v{vT}")
    e(f"s_and_b32 s{sT}, s2, 3")
    e(f"s_lshl_b32 s{sT}, s{sT}, 1")
    e(f"s_bfe_u32 s{sG}, s2, 0x10004")
    e(f"s_add_u32 s{sG}, s{sG}, s{sT}")
    e(f"s_bfe_u32 s{sT}, s2, 0x10002")
    e(f"s_lshl_b32 s{sT}, s{sT}, 3")
    e(f"s_lshr_b32 s{sRB}, s2, 5")
    e(f"s_add_u32 s{sRB}, s{sRB}, s{sT}")
    e(f"s_and_b32 s{sS}, s{sWave}, 3")
    e(f"v_lshrrev_b32 v{vT}, 4, v{vLane}")
    e(f"s_cmp_lt_u32 s{sWave}, 8")
    e("s_cbranch_scc1 L_compute")

    e(f"v_and_b32 v{vT+1}, 7, v{vLane}")
    e(f"v_xor_b32 v{vT+5}, v{vT+1}, v{vT}")
    e(f"v_lshlrev_b32 v{vT+5}, 4, v{vT+5}")
    e(f"v_lshrrev_b32 v{vT+2}, 3, v{vLane}")
    e(f"v_mul_u32_u24 v{vT+2}, 2560, v{vT+2}")
    e(f"v_add_u32 v{vT+3}, v{vT+2}, v{vT+5}")
    e(f"v_xor_b32 v{vT+5}, 64, v{vT+5}")
    e(f"v_add_u32 v{vT+4}, v{vT+2}, v{vT+5}")
    e(f"s_lshl_b32 s{sT}, s{sRB}, 7")
    e(f"s_lshl_b32 s{sT+1}, s{sS}, 5")
    e(f"s_add_u32 s{sT+1}, s{sT+1}, s{sT}")
    e(f"s_mul_i32 s{sT+1}, s{sT+1}, 1280")
    e(f"v_add_u32 v{vX0}, s{sT+1}, v{vT+3}")
    e(f"s_add_u32 s{sT+1}, s{sT+1}, {16*1280-1024}")
    e(f"v_add_u32 v{vX1}, s{sT+1}, v{vT+4}")
    e(f"s_mov_b32 s{sKW}, 0")
    e(f"s_mov_b32 s{sKX}, 0")
    e("s_bitcmp1_b32 s2, 3")
    e("s_cbranch_scc1 L_ldF")
    e(f"s_lshl_b32 s{sT+1}, s{sS}, 1")
    e(f"v_add_u32 v{vT+3}, s{sT+1}, v{vT}")
    e(f"v_xor_b32 v{vT+3}, v{vT+3}, v{vT+1}")
    e(f"v_and_b32 v{vT+3}, 7, v{vT+3}")
    e(f"v_lshl_add_u32 v{vT+3}, v{vT+3}, 4, v{vT+2}")
    e(f"s_and_b32 s{sT+1}, s{sS}, 1")
    e(f"s_lshl_b32 s{sT+1}, s{sT+1}, 3")
    e(f"s_lshr_b32 s{sT+2}, s{sS}, 1")
    e(f"s_add_u32 s{sT+1}, s{sT+1}, s{sT+2}")
    e(f"s_add_u32 s{sT+1}, s{sT+1}, s{sT}")
    e(f"s_sub_u32 s{sT+1}, s{sT+1}, 16")
    e(f"s_mul_i32 s{sT+1}, s{sT+1}, 1280")
    e(f"v_add_u32 v{vH0}, s{sT+1}, v{vT+3}")
    e(f"s_lshl_b32 s{sHoff}, s{sS}, 9")
    e(f"s_add_u32 s{sHoff}, s{sHoff}, {Q_XB}")
    e(f"s_cmp_eq_u32 s{sS}, 0")
    e(f"s_cselect_b32 s{sMaskH}, 0xffffff00, -1")
    e(f"s_mov_b32 s{sMaskH+1}, 0")
    e(f"v_cmp_le_u32 vcc, 30, v{vLane}")
    e(f"v_mov_b32 v{vT+3}, 0")
    e(f"v_mov_b32 v{vT+4}, 30")
    e(f"v_cndmask_b32 v{vT+3}, v{vT+3}, v{vT+4}, vcc")
    e(f"v_sub_u32 v{vT+4}, v{vLane}, v{vT+3}")
    e(f"v_mul_u32_u24 v{vT+3}, 128, v{vT+3}")
    e(f"v_mul_u32_u24 v{vT+5}, 26, v{vT+4}")
    e(f"v_lshrrev_b32 v{vT+5}, 8, v{vT+5}")
    e(f"v_mul_u32_u24 v{vT+6}, 10, v{vT+5}")
    e(f"v_sub_u32 v{vT+4}, v{vT+4}, v{vT+6}")
    e(f"v_lshl_add_u32 v{vT+3}, v{vT+4}, 4, v{vT+3}")
    e(f"v_add_u32 v{vT+5}, 1, v{vT+5}")
    e(f"v_cmp_le_u32 vcc, 3, v{vT+5}")
    e(f"v_mov_b32 v{vT+6}, 0")
    e(f"s_mul_i32 s{sT}, s{sS}, {8*3840}")
    e(f"v_cndmask_b32 v{vT+5}, v{vT+5}, v{vT+6}, vcc")
    e(f"v_mul_u32_u24 v{vT+5}, 1280, v{vT+5}")
    e(f"v_add_u32 v{vT+3}, v{vT+3}, v{vT+5}")
    e(f"s_mul_i32 s{sT+1}, s{sG}, 160")
    e(f"s_add_u32 s{sT}, s{sT}, s{sT+1}")
    e(f"v_add_u32 v{vWd}, s{sT}, v{vT+3}")
    for t in range(1, 4):
        e(f"v_add_u32 v{vWd+t}, {6720*t}, v{vWd}")
    e(f"s_mul_i32 s{sWoff}, s{sS}, {Q_GP}")
    e(f"s_lshl_b32 s{sXoff}, s{sS}, 12")
    e(f"s_add_u32 s{sXoff}, s{sXoff}, {Q_XB+2048}")
    e(f"s_mov_b32 s{sMaskW}, -1")
    e(f"s_mov_b32 s{sMaskW+1}, 0x0fffffff")
    e("s_waitcnt lgkmcnt(0)")
    srd(S_X, 4, 2048 * 1280)
    srd(S_W, 6, 640 * 3840)
    loader("Q")
    lab("L_ldF")
    e(f"v_cmp_le_u32 vcc, 26, v{vLane}")
    e(f"v_mov_b32 v{vT+3}, 0")
    e(f"v_mov_b32 v{vT+4}, {3072-26*16}")
    e(f"v_cndmask_b32 v{vT+3}, v{vT+3}, v{vT+4}, vcc")
    e(f"v_lshl_add_u32 v{vT+3}, v{vLane}, 4, v{vT+3}")
    e(f"s_mul_i32 s{sT}, s{sS}, {8*3072}")
    e(f"s_mul_i32 s{sT+1}, s{sG}, 384")
    e(f"s_add_u32 s{sT}, s{sT}, s{sT+1}")
    e(f"v_add_u32 v{vWd}, s{sT}, v{vT+3}")
    for t in range(1, 4):
        e(f"v_add_u32 v{vWd+t}, {5312*t}, v{vWd}")
    e(f"s_mul_i32 s{sWoff}, s{sS}, {F_GP}")
    e(f"s_lshl_b32 s{sXoff}, s{sS}, 12")
    e(f"s_add_u32 s{sXoff}, s{sXoff}, {F_XB}")
    e(f"s_mov_b32 s{sMaskW}, 0xfcffffff")
    e(f"s_mov_b32 s{sMaskW+1}, 0x0003ffff")
    e("s_waitcnt lgkmcnt(0)")
    srd(S_X, 4, 2048 * 1280)
    srd(S_W, 32, 640 * 3072)
    loader("F")

    lab("L_compute")
    if CODEPF:
        e(f"s_getpc_b64 s[{sT}:{sT+1}]")
        lab("L_pc")
        e(f"s_sub_u32 s{sT}, s{sT}, L_pc-{K}")
        e(f"s_subb_u32 s{sT+1}, s{sT+1}, 0")
        e(f"v_lshlrev_b32 v{vT+1}, 7, v0")
        e(f"v_min_u32 v{vT+1}, L_end-{K}, v{vT+1}")
        e(f"s_bfe_u32 s{sT+2}, s2, 0x20004")
        e(f"s_cmp_lg_u32 s{sT+2}, 0")
        e("s_cbranch_scc1 L_nopf")
        e(f"s_cmp_gt_u32 s{sWave}, 4")
        e("s_cbranch_scc1 L_nopf")
        e(f"global_load_dword v0, v{vT+1}, s[{sT}:{sT+1}]")
        lab("L_nopf")
    e(f"v_and_b32 v{vT+1}, 15, v{vLane}")
    e(f"v_lshrrev_b32 v{vT+2}, 1, v{vT+1}")
    e(f"v_xor_b32 v{vT+2}, v{vT+2}, v{vT}")
    e(f"v_lshlrev_b32 v{vT+2}, 4, v{vT+2}")
    e(f"v_lshl_add_u32 v{vXl0}, v{vT+1}, 7, v{vT+2}")
    e(f"v_xor_b32 v{vXl1}, 64, v{vXl0}")
    e(f"v_mov_b32 v{vXa}, v{vXl0}")
    e(f"v_bfe_u32 v{vT+1}, v{vLane}, 2, 2")
    e(f"v_and_b32 v{vT+2}, 3, v{vLane}")
    e(f"s_mov_b32 s{sIt}, 0")
    e("s_waitcnt lgkmcnt(0)")
    stamp(1)
    nonce_load()
    srd(S_WS, 68, WS_USED)
    e("s_bitcmp1_b32 s2, 3")
    e("s_cbranch_scc1 L_F")
    e(f"v_mul_u32_u24 v{vWl}, {Q_GP}, v{vT}")
    e(f"v_mul_u32_u24 v{vT+3}, {Q_P}, v{vT+1}")
    e(f"v_add_u32 v{vWl}, v{vWl}, v{vT+3}")
    e(f"v_mul_u32_u24 v{vT+3}, 40, v{vT+2}")
    e(f"v_add_u32 v{vWl}, v{vWl}, v{vT+3}")
    e(f"v_mov_b32 v{vWa}, v{vWl}")
    e(f"v_and_b32 v{vT+3}, 31, v{vLane}")
    e(f"v_lshlrev_b32 v{vT+3}, 2, v{vT+3}")
    e(f"v_mov_b32 v{vT+4}, 0x3f803f80")
    e(f"ds_write_b32 v{vT+3}, v{vT+4} offset:{Q_XB}")
    e(f"v_add_u32 v{vT+3}, {Q_STAGE}, v{vT+3}")
    e(f"ds_write_b32 v{vT+3}, v{vT+4} offset:{Q_XB}")
    e(f"v_add_u32 v{vT+3}, {Q_STAGE}, v{vT+3}")
    e(f"ds_write_b32 v{vT+3}, v{vT+4} offset:{Q_XB}")
    for r in range(vACC, vHACC + 16):
        e(f"v_mov_b32 v{r}, 0")
    e(f"s_mov_b32 s{sNxt}, {Q_STAGE}")
    cfg_lookup(QCFG)
    tG, tS, tR, tC, t0, t1 = 112, 113, 114, 115, 116, 117
    e(f"v_mov_b32 v{tG}, v{vT}")
    e(f"v_mov_b32 v{tR}, v{vT+1}")
    e(f"v_mov_b32 v{tC}, v{vT+2}")
    e(f"v_and_b32 v{tS}, 15, v{vLane}")
    e(f"v_lshlrev_b32 v{t0}, 4, v{tG}")
    e(f"s_lshl_b32 s{sT}, s{sH0}, 6")
    e(f"s_add_u32 s{sT}, s{sT}, {Q_MISC+QM_CS}")
    e(f"v_add_u32 v{qCSh}, s{sT}, v{t0}")
    e(f"s_lshl_b32 s{sT}, s{sU0}, 6")
    e(f"s_add_u32 s{sT}, s{sT}, {Q_MISC+QM_CS}")
    e(f"v_add_u32 v{qCSu}, s{sT}, v{t0}")
    e(f"v_lshlrev_b32 v{qSa}, 3, v{tS}")
    e(f"v_add_u32 v{qSa}, {Q_MISC+QM_ST}, v{qSa}")
    e(f"s_lshl_b32 s{sT}, s{sRh}, 9")
    e(f"v_add_u32 v{qSm}, s{sT}, v{qSa}")
    e(f"v_mul_u32_u24 v{t0}, 640, v{tG}")
    e(f"v_lshl_add_u32 v{t0}, v{tS}, 3, v{t0}")
    e(f"v_lshrrev_b32 v{qPh}, 3, v{tS}")
    e(f"v_mul_u32_u24 v{qPh}, {2560-64}, v{qPh}")
    e(f"s_mul_i32 s{sT}, s{sH0}, {PLANE}")
    e(f"s_add_u32 s{sT}, s{sT}, {Q_PL}")
    e(f"v_add3_u32 v{qPh}, v{qPh}, v{t0}, s{sT}")
    e(f"s_and_b32 s{sT}, s{sWave}, 1")
    e(f"s_mul_i32 s{sT+2}, s{sT}, 320")
    e(f"s_mul_i32 s{sT}, s{sT}, 2560")
    e(f"s_lshr_b32 s{sT+1}, s{sWave}, 1")
    e(f"s_lshl_b32 s{sT+3}, s{sT+1}, 6")
    e(f"s_add_u32 s{sT+2}, s{sT+2}, s{sT+3}")
    e(f"s_add_u32 s{sT+2}, s{sT+2}, {Q_MISC+QM_RK}")
    e(f"s_lshl_b32 s{sT+1}, s{sT+1}, 7")
    e(f"s_add_u32 s{sT}, s{sT}, s{sT+1}")
    e(f"s_add_u32 s{sT}, s{sT}, {Q_PL}")
    e(f"v_add_u32 v{qAt}, s{sT}, v{t0}")
    e(f"v_add_u32 v{qAq}, {10*PLANE+64}, v{qAt}")
    e(f"v_lshl_add_u32 v{t1}, v{tC}, 2, v{tR}")
    e(f"v_mul_u32_u24 v{qAv}, 640, v{tG}")
    e(f"v_lshl_add_u32 v{qAv}, v{t1}, 3, v{qAv}")
    e(f"v_add_u32 v{qAv}, s{sT}, v{qAv}")
    e(f"v_lshlrev_b32 v{qRk}, 4, v{tR}")
    e(f"v_add_u32 v{qRk}, s{sT+2}, v{qRk}")
    e(f"v_lshl_add_u32 v{qRq}, v{tC}, 2, v{qRk}")
    e(f"s_mul_i32 s{sT}, s{sU0}, {PLANE}")
    e(f"s_lshl_b32 s{sT+1}, s{sRh}, 8")
    e(f"s_add_u32 s{sT}, s{sT}, s{sT+1}")
    e(f"s_add_u32 s{sT}, s{sT}, {Q_PL+64}")
    e(f"v_add_u32 v{qPw}, s{sT}, v{t0}")
    e(f"v_lshlrev_b32 v{qOa}, 4, v{vLane}")
    e(f"v_lshrrev_b32 v{qOb}, 5, v{vLane}")
    e(f"v_lshlrev_b32 v{qOb}, 8, v{qOb}")
    e(f"v_lshl_add_u32 v{qOb}, v{tS}, 4, v{qOb}")
    e(f"v_bfe_u32 v{t1}, v{vLane}, 4, 1")
    e(f"v_lshl_add_u32 v{qOb}, v{t1}, 3, v{qOb}")
    BIG = 2.0 ** 100
    lo, hi = t0, t1
    e(f"v_lshlrev_b32 v{lo}, 2, v{tR}")
    e(f"s_lshr_b32 s{sT}, s{sWave}, 1")
    e(f"s_or_b32 s{sT}, s{sRB}, s{sT}")
    e(f"s_cmp_eq_u32 s{sT}, 0")
    e(f"s_cselect_b32 s{sT}, 8, 0")
    e(f"v_sub_u32 v{lo}, s{sT}, v{lo}")
    e(f"v_add_u32 v{hi}, 1, v{tC}")
    e(f"v_max_i32 v{lo}, v{lo}, v{hi}")
    e(f"v_cvt_f32_i32 v{lo}, v{lo}")
    e(f"v_cvt_f32_i32 v{hi}, v{tC}")
    e(f"v_mov_b32 v{tG}, {f32(-BIG)}")
    e(f"v_mov_b32 v{tS}, {f32(BIG)}")
    for pp in range(1, 8):
        e(f"v_fmaak_f32 v{qMk(pp)}, v{lo}, v{tG}, {f32(pp*BIG)}")
        e(f"v_min_f32 v{qMk(pp)}, 0, v{qMk(pp)}")
    for pp in range(9, 12):
        e(f"v_fmaak_f32 v{qMk(pp)}, v{hi}, v{tS}, {f32(-(pp-8)*BIG)}")
        e(f"v_min_f32 v{qMk(pp)}, 0, v{qMk(pp)}")
    e(f"s_lshl_b32 s{sT}, s{sRB}, 3")
    e(f"s_add_u32 s{sT}, s{sT}, s{sWave}")
    e(f"s_mul_i32 s{sT}, s{sT}, 68")
    e(f"s_lshr_b32 s{sT+1}, s{sG}, 1")
    e(f"s_mul_i32 s{sT+1}, s{sT+1}, 5")
    e(f"s_add_u32 s{sT}, s{sT}, s{sT+1}")
    e(f"s_add_u32 s{sT}, s{sT}, 48")
    e(f"s_and_b32 s{sT+1}, s{sG}, 1")
    e(f"s_lshl_b32 s{sJ}, s{sT+1}, 1")
    e(f"s_add_u32 s{sJ}, s{sJ}, s{sT}")
    e(f"s_lshl_b32 s{sJ}, s{sJ}, 10")
    e(f"s_add_u32 s{sT}, s{sT}, 4")
    e(f"s_lshl_b32 s{sT}, s{sT}, 10")
    e(f"s_lshl_b32 s{sT+1}, s{sT+1}, 9")
    e(f"s_add_u32 s{sJ+1}, s{sT}, s{sT+1}")
    e(f"s_mov_b32 s{sMaskW}, 0x00010001")
    e(f"s_mov_b32 s{sMaskW+1}, 0x00010001")
    e("s_waitcnt lgkmcnt(0)")
    nonce_fix()
    for w in range(7):
        e(f"s_cmp_eq_u32 s{sWave}, {w}")
        e(f"s_cbranch_scc1 L_p1_Q{w}")
    e("s_branch L_p1_Q7")

    lab("L_F")
    e(f"v_mul_u32_u24 v{vWl}, {F_GP}, v{vT}")
    e(f"v_mul_u32_u24 v{vT+3}, {F_P}, v{vT+1}")
    e(f"v_add_u32 v{vWl}, v{vWl}, v{vT+3}")
    e(f"v_lshl_add_u32 v{vWl}, v{vT+2}, 3, v{vWl}")
    e(f"v_mov_b32 v{vWa}, v{vWl}")
    srd(S_X, 4, 2048 * 1280)
    fL16, fTr, fCSu, fCSh, fSm = 2, 3, 4, 5, 6
    e(f"v_lshlrev_b32 v{fL16}, 4, v{vLane}")
    cfg_lookup(FCFG)
    e(f"v_lshlrev_b32 v{vT+3}, 4, v{vT}")
    e(f"s_lshl_b32 s{sT}, s{sH0}, 6")
    e(f"s_add_u32 s{sT}, s{sT}, {F_MISC+FM_CS}")
    e(f"v_add_u32 v{fCSh}, s{sT}, v{vT+3}")
    e(f"s_lshl_b32 s{sT}, s{sU0}, 6")
    e(f"s_add_u32 s{sT}, s{sT}, {F_MISC+FM_CS}")
    e(f"v_add_u32 v{fCSu}, s{sT}, v{vT+3}")
    e(f"v_and_b32 v{fSm}, 15, v{vLane}")
    e(f"v_lshlrev_b32 v{fSm}, 3, v{fSm}")
    e(f"s_lshl_b32 s{sT}, s{sRh}, 9")
    e(f"s_add_u32 s{sT}, s{sT}, {F_MISC+FM_ST}")
    e(f"v_add_u32 v{fSm}, s{sT}, v{fSm}")
    e(f"s_mov_b32 s{sMaskW}, 0x00010001")
    e(f"s_mov_b32 s{sMaskW+1}, 0x00010001")
    sRow, sF = sKW, sKX
    e(f"s_lshl_b32 s{sRow}, s{sRB}, 7")
    e(f"s_bfe_u32 s{sT}, s2, 0x10004")
    e(f"s_lshl_b32 s{sT}, s{sT}, 6")
    e(f"s_add_u32 s{sRow}, s{sRow}, s{sT}")
    e(f"s_lshr_b32 s{sF}, s2, 4")
    e(f"s_cmp_ge_u32 s{sWave}, 4")
    e("s_cbranch_scc1 L_F_helper")
    if TOUCH:
        e(f"v_mul_u32_u24 v{vT+3}, 26, v{vLane}")
        e(f"v_lshrrev_b32 v{vT+3}, 8, v{vT+3}")
        e(f"v_mul_u32_u24 v{vT+4}, 10, v{vT+3}")
        e(f"v_sub_u32 v{vT+4}, v{vLane}, v{vT+4}")
        e(f"v_lshlrev_b32 v{vT+4}, 7, v{vT+4}")
        e(f"s_and_b32 s{sT}, s2, 3")
        e(f"s_lshl_b32 s{sT}, s{sT}, 4")
        e(f"s_mul_i32 s{sT+4}, s{sRow}, 1280")
        e(f"s_mov_b32 s{sT+6}, -1")
        e(f"s_mov_b32 s{sT+7}, 0x0fffffff")
        for i in range(2):
            e(f"s_mul_i32 s{sT+2}, s{sWave}, 12")
            e(f"s_add_u32 s{sT+2}, s{sT+2}, {6*i}")
            e(f"v_add_u32 v{vT+5}, s{sT+2}, v{vT+3}")
            e(f"v_cmp_le_u32 vcc, s{sT}, v{vT+5}")
            e(f"v_add_u32 v{vT+6}, 16, v{vT+5}")
            e("s_nop 0")
            e(f"v_cndmask_b32 v{vT+5}, v{vT+5}, v{vT+6}, vcc")
            e(f"v_mul_u32_u24 v{vT+5}, 1280, v{vT+5}")
            e(f"v_add_u32 v{vT+7+i}, v{vT+5}, v{vT+4}")
        e(f"v_mul_u32_u24 v{vT+3}, 57, v{vLane}")
        e(f"v_lshrrev_b32 v{vT+3}, 9, v{vT+3}")
        e(f"v_mul_u32_u24 v{vT+4}, 9, v{vT+3}")
        e(f"v_sub_u32 v{vT+4}, v{vLane}, v{vT+4}")
        e(f"v_mul_u32_u24 v{vT+5}, 86, v{vT+4}")
        e(f"v_lshrrev_b32 v{vT+5}, 8, v{vT+5}")
        e(f"v_mul_u32_u24 v{vT+3}, 3840, v{vT+3}")
        e(f"v_lshl_add_u32 v{vT+3}, v{vT+4}, 7, v{vT+3}")
        e(f"v_mul_u32_u24 v{vT+5}, {1280-384}, v{vT+5}")
        e(f"v_add_u32 v{vT+3}, v{vT+3}, v{vT+5}")
        e(f"v_mul_u32_u24 v{vT+4}, 43, v{vLane}")
        e(f"v_lshrrev_b32 v{vT+4}, 8, v{vT+4}")
        e(f"v_mul_u32_u24 v{vT+4}, {3072-768}, v{vT+4}")
        e(f"v_lshl_add_u32 v{vT+4}, v{vLane}, 7, v{vT+4}")
        e(f"s_mul_i32 s{sT}, s{sF}, 40")
        e(f"s_mul_i32 s{sT+1}, s{sWave}, 10")
        e(f"s_add_u32 s{sT}, s{sT}, s{sT+1}")
        e(f"s_and_b32 s{sT+1}, s2, 3")
        e(f"s_mul_i32 s{sT+2}, s{sT+1}, 320")
        e(f"s_and_b32 s{sT+2}, s{sT+2}, 0xffffff80")
        e(f"s_mul_i32 s{sT+3}, s{sT}, 3840")
        e(f"s_add_u32 s{sT+2}, s{sT+2}, s{sT+3}")
        e(f"s_add_u32 s{sT+3}, s{sT+2}, {5*3840}")
        e(f"s_mul_i32 s{sT+1}, s{sT+1}, 768")
        e(f"s_mul_i32 s{sT}, s{sT}, 3072")
        e(f"s_add_u32 s{sT}, s{sT}, s{sT+1}")
        srd(S_W, 6, 640 * 3840)
        srd(S_R, 32, 640 * 3072)
        e(f"s_mov_b64 exec, s[{sT+6}:{sT+7}]")
        e(f"buffer_load_dword v{vT+10}, v{vT+4}, s[{S_R}:{S_R+3}], s{sT} offen")
        e(f"buffer_load_dword v{vT+10}, v{vT+7}, s[{S_X}:{S_X+3}], s{sT+4} offen")
        e(f"buffer_load_dword v{vT+10}, v{vT+8}, s[{S_X}:{S_X+3}], s{sT+4} offen")
        e(f"s_mov_b32 s{sT+7}, 0x1fff")
        e(f"s_mov_b64 exec, s[{sT+6}:{sT+7}]")
        e(f"buffer_load_dword v{vT+10}, v{vT+3}, s[{S_W}:{S_W+3}], s{sT+2} offen")
        e(f"buffer_load_dword v{vT+10}, v{vT+3}, s[{S_W}:{S_W+3}], s{sT+3} offen")
        e("s_mov_b64 exec, -1")
    for r in range(vACC + 32, vACC + 64):
        e(f"v_mov_b32 v{r}, 0")
    lab("L_F_go")
    for r in list(range(vACC, vACC + 32)) + list(range(vHACC, vHACC + 8)):
        e(f"v_mov_b32 v{r}, 0")
    for r in range(4):
        e(f"v_mov_b32 v{vOnes+r}, 0x3f803f80")
    e(f"s_mov_b32 s{sNxt}, {F_STAGE}")
    e("s_waitcnt lgkmcnt(0)")
    nonce_fix()
    for w in range(7):
        e(f"s_cmp_eq_u32 s{sWave}, {w}")
        e(f"s_cbranch_scc1 L_p1_F{w}")
    e("s_branch L_p1_F7")

    lab("L_F_helper")
    sStD, sD1, sD2, sJb1, sNJ = sJ, sJ + 1, sJ + 2, sJ + 3, sJ + 4
    vR = 64
    JV1 = [77, 78, 79, 85, 86, 87]
    JV2 = [93, 94, 95, 69, 9, 15]
    for r_ in JV1 + JV2:
        e(f"v_mov_b32 v{r_}, 0")
    srd(S_W, 36, 1536 * 1280)
    e(f"s_and_b32 s{sT}, s2, 3")
    e(f"s_lshl_b32 s{sT}, s{sT}, 4")
    e(f"s_lshl_b32 s{sT+1}, s{sS}, 2")
    e(f"s_add_u32 s{sT+1}, s{sT+1}, s{sT}")
    e(f"s_add_u32 s{sT+1}, s{sT+1}, s{sRow}")
    e(f"s_mul_i32 s{sRow}, s{sT+1}, 1280")
    e(f"s_lshl_b32 s{sStD}, s{sT+1}, 4")
    e(f"s_add_u32 s{sStD}, s{sStD}, {ST_OFF}")
    srd(S_DBG, 34, 3072)
    sKS, sPair, sBase, sJa, sJb, sP, sTt = sWoff, sXoff, sHoff, sMaskH, sMaskH + 1, sCur, 98
    e(f"s_bfe_u32 s{sKS}, s2, 0x20001")
    e(f"s_mul_i32 s{sKS}, s{sKS}, 17")
    e(f"s_add_u32 s{sKS}, s{sKS}, s{sF}")
    e(f"s_and_b32 s{sPair}, s2, 1")
    e(f"s_lshl_b32 s{sPair}, s{sPair}, 1")
    e(f"s_lshr_b32 s{sP}, s{sS}, 1")
    e(f"s_add_u32 s{sPair}, s{sPair}, s{sP}")
    e(f"s_mul_i32 s{sJb1}, s{sP}, 10240")
    e(f"s_and_b32 s{sTt}, s{sS}, 1")
    e(f"s_lshl_b32 s{sTt}, s{sTt}, 12")
    e(f"s_add_u32 s{sJb1}, s{sJb1}, s{sTt}")
    e(f"s_add_u32 s{sJb1}, s{sJb1}, {F_JOB}")
    e(f"s_cmp_eq_u32 s{sF}, s{sS}")
    e(f"s_cselect_b32 s{sNJ}, 2, 1")
    e(f"s_mov_b32 s99, 0")
    lab("L_F_jobissue")
    e(f"s_sub_u32 s{sT}, s{sKS}, 48")
    e(f"s_mul_i32 s{sP}, s{sT}, 52")
    e(f"s_lshr_b32 s{sP}, s{sP}, 8")
    e(f"s_mul_i32 s{sTt}, s{sP}, 5")
    e(f"s_sub_u32 s{sTt}, s{sT}, s{sTt}")
    e(f"s_mul_i32 s{sP}, s{sP}, 160")
    e(f"s_lshr_b32 s{sBase}, s{sTt}, 1")
    e(f"s_mul_i32 s{sBase}, s{sBase}, 80")
    e(f"s_and_b32 s{sJa}, s{sTt}, 1")
    e(f"s_lshl_b32 s{sJa}, s{sJa}, 3")
    e(f"s_add_u32 s{sBase}, s{sBase}, s{sJa}")
    e(f"s_cmp_eq_u32 s{sTt}, 4")
    e(f"s_cselect_b32 s{sBase}, 16, s{sBase}")
    e(f"s_cselect_b32 s{sJa}, 40, 20")
    e(f"s_cselect_b32 s{sJb}, 20, 4")
    e(f"s_add_u32 s{sBase}, s{sBase}, s{sP}")
    e(f"s_lshl_b32 s{sP}, s{sKS}, 5")
    e(f"s_mov_b32 s{S_R+2}, {640*1280}")
    e(f"s_cmp_ge_u32 s{sKS}, 48")
    e(f"s_cselect_b32 s{sBase}, s{sBase}, s{sP}")
    e(f"s_cselect_b32 s{sJa}, s{sJa}, 4")
    e(f"s_cselect_b32 s{sJb}, s{sJb}, 16")
    e(f"s_cselect_b32 s{S_R}, s28, s36")
    e(f"s_cselect_b32 s{S_R+1}, s29, s37")
    e(f"s_cselect_b32 s{S_R+2}, s{S_R+2}, {1536*1280}")
    e(f"s_and_b32 s{S_R+1}, s{S_R+1}, 0xffff")
    e(f"s_mov_b32 s{S_R+3}, 0x00020000")
    e(f"s_mul_i32 s{sBase}, s{sBase}, 1280")
    e(f"s_mul_i32 s{sP}, s{sPair}, 320")
    e(f"s_add_u32 s{sBase}, s{sBase}, s{sP}")
    e(f"s_mul_i32 s{sJa}, s{sJa}, 1280")
    e(f"s_mul_i32 s{sJb}, s{sJb}, 1280")
    e(f"s_mul_i32 s{sD2}, s{sPair}, 68")
    e(f"s_add_u32 s{sD2}, s{sD2}, s{sKS}")
    e(f"s_bitcmp1_b32 s{sS}, 0")
    e("s_cbranch_scc1 L_F_jobW_i")
    for part, nch in ((0, 8), (1, 12)):
        if part == 1:
            lab("L_F_jobW_i")
        for i in range(nch // 2):
            q, rho, t1 = vT + 3, vT + 4, vT + 5
            e(f"v_add_u32 v{q}, {64*i}, v{vLane}")
            if nch == 8:
                e(f"v_lshrrev_b32 v{rho}, 3, v{q}")
                e(f"v_and_b32 v{q}, 7, v{q}")
            else:
                e(f"v_mul_u32_u24 v{rho}, 171, v{q}")
                e(f"v_lshrrev_b32 v{rho}, 11, v{rho}")
                e(f"v_mul_u32_u24 v{t1}, 12, v{rho}")
                e(f"v_sub_u32 v{q}, v{q}, v{t1}")
            e(f"v_and_b32 v{t1}, 3, v{rho}")
            e(f"v_mul_u32_u24 v{t1}, 1280, v{t1}")
            e(f"v_lshl_add_u32 v{q}, v{q}, 4, v{t1}")
            e(f"v_bfe_u32 v{t1}, v{rho}, 2, 2")
            e(f"v_mad_u32_u24 v{q}, v{t1}, s{sJa}, v{q}")
            e(f"v_lshrrev_b32 v{t1}, 4, v{rho}")
            e(f"v_mad_u32_u24 v{q}, v{t1}, s{sJb}, v{q}")
            if part == 1:
                e(f"v_add_u32 v{q}, 128, v{q}")
            e(f"v_add_u32 v{JV2[i]}, s{sBase}, v{q}")
        n = nch // 2
        e(f"s_mul_i32 s{sD2}, s{sD2}, {n*1024}")
        e(f"s_add_u32 s{sD2}, s{sD2}, {B2N_OFF if part == 0 else B2W_OFF}")
        e(f"v_lshrrev_b32 v{fTr}, 2, v{vLane}")
        e(f"v_mul_u32_u24 v{fTr}, {32*n}, v{fTr}")
        e(f"v_mul_u32_u24 v{vT+4}, {8*n}, v{vT+2}")
        e(f"v_add_u32 v{fTr}, v{fTr}, v{vT+4}")
        if part == 0:
            e("s_branch L_F_jobnext")
    lab("L_F_jobnext")
    e(f"s_add_u32 s99, s99, 1")
    e(f"s_cmp_ge_u32 s99, 2")
    e("s_cbranch_scc1 L_F_jobs_done")
    e(f"s_mov_b32 s{sD1}, s{sD2}")
    for i_ in range(6):
        e(f"v_mov_b32 v{JV1[i_]}, v{JV2[i_]}")
    for i_ in range(3):
        e(f"s_mov_b32 s{S_W+i_}, s{S_R+i_}")
    e(f"s_mov_b32 s{S_W+3}, 0x00020000")
    e(f"s_cmp_eq_u32 s{sNJ}, 1")
    e("s_cbranch_scc1 L_F_jobs_done")
    e(f"s_sub_u32 s{sKS}, s{sKS}, s{sF}")
    e(f"s_add_u32 s{sKS}, s{sKS}, 16")
    e("s_branch L_F_jobissue")
    lab("L_F_jobs_done")
    e("s_setprio 1")
    e("s_branch L_F_go")

    lab("L_task_rows")
    e(f"v_lshlrev_b32 v{vT+9}, 2, v{vLane}")
    e(f"s_add_u32 s{sT+3}, s{sRow}, 2560")
    for r in range(4):
        so = sRow if r < 2 else sT + 3
        e(f"buffer_load_dwordx4 {vr(vR+8*r,4)}, v{fL16}, s[{S_X}:{S_X+3}], s{so} offen offset:{1280*(r&1)}")
        e(f"buffer_load_dword v{vR+8*r+4}, v{vT+9}, s[{S_X}:{S_X+3}], s{so} offen offset:{1280*(r&1)+1024}")
    e(f"s_mul_i32 s{sT+4}, s{sG}, 384")
    e(f"v_lshlrev_b32 v{vT+3}, 3, v{vLane}")
    e(f"buffer_load_dwordx2 v[70:71], v{vT+3}, s[{S_DBG}:{S_DBG+3}], s{sT+4} offen")
    e(f"s_setpc_b64 s[{sRet}:{sRet+1}]")
    lab("L_task_jdma")
    for jn, (JV, SR) in enumerate(((JV1, S_W), (JV2, S_R))):
        if jn == 0:
            e(f"s_mov_b32 m0, s{sJb1}")
        else:
            e(f"s_cmp_eq_u32 s{sNJ}, 1")
            e("s_cbranch_scc1 L_task_ret")
            e(f"s_mov_b32 m0, {F_JOB+20480}")
        for i in range(6):
            if i == 4:
                e(f"s_bitcmp0_b32 s{sS}, 0")
                e(f"s_cbranch_scc1 L_task_jd{jn}")
            e("s_nop 0")
            e(f"buffer_load_dwordx4 v{JV[i]}, s[{SR}:{SR+3}], 0 offen lds")
            e(f"s_add_u32 m0, m0, 1024")
        lab(f"L_task_jd{jn}")
    e(f"s_setpc_b64 s[{sRet}:{sRet+1}]")
    lab("L_task")
    for it_, tgt in ((0, "L_task_rows"), (1, "L_task_jdma"), (2, "L_task_0"), (3, "L_task_st1"), (4, "L_task_3"), (5, "L_task_j2"), (8, "L_task_6")):
        e(f"s_cmp_eq_u32 s{sIt}, {it_}")
        e(f"s_cbranch_scc1 {tgt}")
    e(f"s_cmp_lg_u32 s{sIt}, 7")
    e("s_cbranch_scc1 L_task_ret")
    e("s_waitcnt vmcnt(0)")
    e(f"s_setpc_b64 s[{sRet}:{sRet+1}]")
    lab("L_task_3")
    e("s_waitcnt vmcnt(4)")
    e(f"v_add_u32 v24, s{sJb1}, v{fTr}")
    e(f"s_mov_b32 s{sT}, s{sD1}")
    lab("L_task_job")
    e(f"s_add_u32 s{sT+1}, s{sT}, 4096")
    e(f"s_bitcmp1_b32 s{sS}, 0")
    e("s_cbranch_scc1 L_task_jobW")
    sets = [104, 120, 16]
    for part, n in ((0, 4), (1, 6)):
        if part == 1:
            lab("L_task_jobW")
        pitch = 32 * n
        e("s_waitcnt lgkmcnt(0)")
        for U in range(n):
            rg = sets[U >> 1] + 4 * (U & 1)
            for h in range(2):
                e(f"ds_read_b64_tr_b16 {vr(rg+2*h,2)}, v24 offset:{8*U+16*pitch*h}")
        for U in range(n):
            rg = sets[U >> 1] + 4 * (U & 1)
            e(f"s_waitcnt lgkmcnt({2*(n-1-U)})")
            e(f"buffer_store_dwordx4 {vr(rg,4)}, v{fL16}, s[{S_WS}:{S_WS+3}], s{sT + (U >> 2)} offen offset:{1024*(U&3)} sc1")
        e(f"s_setpc_b64 s[{sRet}:{sRet+1}]")
    lab("L_task_6")
    e(f"s_cmp_lg_u32 s{sWave}, 4")
    e("s_cbranch_scc1 L_task_ret")
    e(f"s_lshl_b32 s{sT}, s{sRB}, 4")
    e(f"s_add_u32 s{sT}, s{sT}, s{sG}")
    e(f"s_lshl_b32 s{sT}, s{sT}, 7")
    e(f"s_add_u32 s{sT}, s{sT}, {FL_OFF+1024}")
    e(f"v_mov_b32 v24, s{sNo}")
    e(f"v_mov_b32 v25, s{sNo+1}")
    e(f"v_mov_b32 v26, 0")
    e("s_mov_b64 exec, 1")
    e(f"buffer_store_dwordx2 v[24:25], v26, s[{S_WS}:{S_WS+3}], s{sT} offen offset:8 sc1")
    e("s_mov_b64 exec, -1")
    e(f"s_setpc_b64 s[{sRet}:{sRet+1}]")
    lab("L_task_j2")
    e(f"s_cmp_eq_u32 s{sNJ}, 1")
    e("s_cbranch_scc1 L_task_ret")
    e(f"v_add_u32 v24, {F_JOB+20480}, v{fTr}")
    e(f"s_mov_b32 s{sT}, s{sD2}")
    e("s_branch L_task_job")
    U0 = list(range(104, 112)) + [26, 27]
    U1 = list(range(120, 128)) + [7, 8]
    lab("L_task_0")
    e("s_waitcnt vmcnt(4)")
    e(f"v_lshlrev_b32 v16, 16, v70")
    e(f"v_and_b32 v17, 0xffff0000, v70")
    e(f"v_lshlrev_b32 v18, 16, v71")
    e(f"v_and_b32 v19, 0xffff0000, v71")
    e(f"v_add_u32 v20, {F_MISC+FM_B1}, v{fL16}")
    e(f"s_mov_b32 s{sT+2}, -1")
    e(f"s_mov_b32 s{sT+3}, 0xffff")
    e(f"s_mov_b64 exec, s[{sT+2}:{sT+3}]")
    e(f"ds_write_b128 v20, v[16:19]")
    e("s_mov_b64 exec, -1")
    for half_ in range(2):
        lab(f"L_task_st{half_}")
        UU = [U0, U1]
        for r in range(2):
            src = vR + 8 * (2 * half_ + r)
            for d in range(5):
                e(f"v_lshlrev_b32 v{UU[r][2*d]}, 16, v{src+d}")
                e(f"v_and_b32 v{UU[r][2*d+1]}, 0xffff0000, v{src+d}")
        vM = 16
        vOut = [144, 164]
        for r in range(2):
            e(f"v_add_f32 v{vM+r}, v{UU[r][0]}, v{UU[r][1]}")
        for k in range(2, 10):
            for r in range(2):
                e(f"v_add_f32 v{vM+r}, v{vM+r}, v{UU[r][k]}")
        wave_sum2(vM, vM + 1, vM + 4, vM + 5)
        for r in range(2):
            e(f"v_mul_f32 v{vOut[r]}, {f32(-1.0/640)}, v{vM+r}")
        for k in range(10):
            for r in range(2):
                e(f"v_add_f32 v{UU[r][k]}, v{UU[r][k]}, v{vOut[r]}")
        for r in range(2):
            e(f"v_mul_f32 v{vM+2+r}, v{UU[r][0]}, v{UU[r][0]}")
        for k in range(1, 10):
            for r in range(2):
                e(f"v_fmac_f32 v{vM+2+r}, v{UU[r][k]}, v{UU[r][k]}")
        wave_sum2(vM + 2, vM + 3, vM + 4, vM + 5)
        for r in range(2):
            e(f"v_mov_b32 v{vM+4+r}, {f32(1e-5)}")
            e(f"v_fmac_f32 v{vM+4+r}, {f32(1.0/640)}, v{vM+2+r}")
            e(f"v_rsq_f32 v{vOut[r]+1}, v{vM+4+r}")
            e(f"v_mov_b32 v{vOut[r]+2}, s{sNo}")
            e(f"v_mov_b32 v{vOut[r]+3}, s{sNo+1}")
        e(f"v_mov_b32 v{vM}, 0")
        e("s_mov_b64 exec, 1")
        for r in range(2):
            e(f"buffer_store_dwordx4 {vr(vOut[r],4)}, v{vM}, s[{S_WS}:{S_WS+3}], s{sStD} offen offset:{32*half_+16*r} sc1")
        e("s_mov_b64 exec, -1")
        e(f"s_setpc_b64 s[{sRet}:{sRet+1}]")
    lab("L_task_ret")
    e(f"s_setpc_b64 s[{sRet}:{sRet+1}]")

    for typ in "QF":
        for w in range(8):
            p1_loop(typ, w)

    lab("L_epi_Q")
    vST = vXF
    for i in range(4):
        e(f"ds_read_b32 v{vST+i}, v{qSm} offset:{128*(i+1)}")
    e(f"ds_read_b32 v{vST+4}, v{qSa}")
    e(f"s_mov_b64 exec, s[{sMaskW}:{sMaskW+1}]")
    e("s_nop 1")
    for j in range(4):
        e(f"s_cmp_le_u32 s{sNH}, {j}")
        e("s_cbranch_scc1 L_q_cs_done")
        e(f"ds_write_b128 v{qCSh}, {vr(vHACC+4*j,4)} offset:{64*j}")
    lab("L_q_cs_done")
    e("s_mov_b64 exec, -1")
    e("s_waitcnt lgkmcnt(0)")
    e("s_barrier")
    stamp(5)
    vCS, vCSH = vWF, 136
    for u in range(4):
        e(f"ds_read_b128 {vr(vCS+4*u,4)}, v{qCSu} offset:{64*u}")
    for j in range(4):
        e(f"ds_read_b128 {vr(vCSH+4*j,4)}, v{qCSh} offset:{64*j}")
    vRK = 152
    for kb in range(3):
        e(f"ds_read_b128 {vr(vRK+4*kb,4)}, v{qRk} offset:{16*kb}")
    e(f"ds_read_b32 v164, v{qRq} offset:32")

    def norm_unit(a, cs, nm, addr, off):
        for r in range(4):
            e(f"v_fmac_f32 v{a+r}, v{cs+r}, v{nm}")
        e(f"v_cvt_pk_bf16_f32 v{a}, v{a}, v{a+1}")
        e(f"v_cvt_pk_bf16_f32 v{a+1}, v{a+2}, v{a+3}")
        e(f"ds_write_b64 v{addr}, v[{a}:{a+1}] offset:{off}")

    for u in range(4):
        if u == 3:
            e(f"s_cmp_eq_u32 s{sNU}, 3")
            e("s_cbranch_scc1 L_q_skip3")
        if u == 0:
            e("s_waitcnt lgkmcnt(11)")
        if u == 1:
            e("s_waitcnt lgkmcnt(12)")
        for i in range(4):
            norm_unit(acc(u, i), vCS + 4 * u, vST + i, qPw, u * PLANE + (i & 1) * 2560 + (i >> 1) * 128)
    lab("L_q_skip3")
    e("s_waitcnt lgkmcnt(12)")
    for j in range(4):
        e(f"s_cmp_le_u32 s{sNH}, {j}")
        e("s_cbranch_scc1 L_q_halo_done")
        norm_unit(vHACC + 4 * j, vCSH + 4 * j, vST + 4, qPh, j * PLANE)
    lab("L_q_halo_done")
    vLg = 112
    vKf, vVf, vQf, vO, vPf, vOp = 32, 62, 92, 32, 104, 124
    vAt, vAq, vAv = qAt, qAq, qAv
    cexp = (20 ** -0.5) * 1.4426950408889634
    e(f"v_mul_f32 v164, {f32(cexp)}, v164")
    e("s_waitcnt lgkmcnt(0)")
    stamp(6)
    e("s_barrier")
    stamp(7)

    def qk_reads(t):
        e(f"ds_read_b64 {vr(vQf+2*t,2)}, v{vAq} offset:{t*PLANE}")
        for kb in range(3):
            e(f"ds_read_b64 {vr(vKf+2*(3*t+kb),2)}, v{vAt} offset:{t*PLANE+32*kb}")
    for t in range(2):
        qk_reads(t)
    for t in range(5):
        if t < 3:
            qk_reads(t + 2)
        e(f"s_waitcnt lgkmcnt({min(8, 4*(4-t))})")
        for kb in range(3):
            cin = "0" if t == 0 else vr(vLg + 4 * kb, 4)
            e(f"v_mfma_f32_4x4x4_16b_bf16 {vr(vLg+4*kb,4)}, {vr(vKf+2*(3*t+kb),2)}, {vr(vQf+2*t,2)}, {cin}")
    for kb in range(3):
        for t in range(5):
            e(f"ds_read_b64_tr_b16 {vr(vVf+2*(5*kb+t),2)}, v{vAv} offset:{(5+t)*PLANE+32*kb}")
    for pp in range(1, 12):
        if pp == 8:
            e(f"v_mul_f32 v{vLg+pp}, v{vLg+pp}, v{vRK+pp}")
        else:
            e(f"v_fma_f32 v{vLg+pp}, v{vLg+pp}, v{vRK+pp}, v{qMk(pp)}")
    m = 136
    e(f"v_max3_f32 v{m}, v{vLg+1}, v{vLg+2}, v{vLg+3}")
    e(f"v_max3_f32 v{m+1}, v{vLg+4}, v{vLg+5}, v{vLg+6}")
    e(f"v_max3_f32 v{m+2}, v{vLg+7}, v{vLg+8}, v{vLg+9}")
    e(f"v_max3_f32 v{m}, v{m}, v{vLg+10}, v{vLg+11}")
    e(f"v_max3_f32 v{m}, v{m}, v{m+1}, v{m+2}")
    e(f"v_mul_f32 v{m}, v{m}, v164")
    for pp in range(1, 12):
        e(f"v_fma_f32 v{vLg+pp}, v{vLg+pp}, v164, -v{m}")
    for pp in range(1, 12):
        e(f"v_exp_f32 v{vLg+pp}, v{vLg+pp}")
    e(f"v_add_f32 v{m}, v{vLg+1}, v{vLg+2}")
    e(f"v_add_f32 v{m+1}, v{vLg+3}, v{vLg+4}")
    for pp in range(5, 11, 2):
        e(f"v_add_f32 v{m}, v{m}, v{vLg+pp}")
        e(f"v_add_f32 v{m+1}, v{m+1}, v{vLg+pp+1}")
    e(f"v_add_f32 v{m}, v{m}, v{vLg+11}")
    e(f"v_add_f32 v{m}, v{m}, v{m+1}")
    e(f"v_rcp_f32 v{m}, v{m}")
    e(f"v_mov_b32 v{vLg}, 0")
    for pp in range(1, 12):
        e(f"v_mul_f32 v{vLg+pp}, v{vLg+pp}, v{vRK+pp}")
    for j in range(6):
        e(f"v_cvt_pk_bf16_f32 v{vPf+j}, v{vLg+2*j}, v{vLg+2*j+1}")
    e("s_waitcnt lgkmcnt(0)")
    e("s_nop 0")
    for kb in range(3):
        for t in range(5):
            cin = "0" if kb == 0 else vr(vO + 4 * t, 4)
            e(f"v_mfma_f32_4x4x4_16b_bf16 {vr(vO+4*t,4)}, {vr(vVf+2*(5*kb+t),2)}, {vr(vPf+2*kb,2)}, {cin}")
    e("s_nop 1")
    for t in range(5):
        for r in range(4):
            e(f"v_mul_f32 v{vO+4*t+r}, v{vO+4*t+r}, v{m}")
        e(f"v_cvt_pk_bf16_f32 v{vOp+2*t}, v{vO+4*t}, v{vO+4*t+1}")
        e(f"v_cvt_pk_bf16_f32 v{vOp+2*t+1}, v{vO+4*t+2}, v{vO+4*t+3}")
    e(f"buffer_store_dwordx4 {vr(vOp,4)}, v{qOa}, s[{S_WS}:{S_WS+3}], s{sJ} offen sc1")
    e(f"buffer_store_dwordx4 {vr(vOp+4,4)}, v{qOa}, s[{S_WS}:{S_WS+3}], s{sJ} offen offset:1024 sc1")
    e(f"buffer_store_dwordx2 {vr(vOp+8,2)}, v{qOb}, s[{S_WS}:{S_WS+3}], s{sJ+1} offen sc1")
    stamp(8)
    p2_compute("Q")

    lab("L_epi_F")
    e("s_setprio 0")
    vST = 160
    vB1 = 128
    for i in range(4):
        e(f"ds_read_b64 v[{vST+2*i}:{vST+2*i+1}], v{fSm} offset:{128*i}")
    for u in range(4):
        e(f"ds_read_b128 {vr(vB1+4*u,4)}, v{fCSu} offset:{64*u+FM_B1-FM_CS}")
    e(f"s_mov_b64 exec, s[{sMaskW}:{sMaskW+1}]")
    e(f"ds_write_b128 v{fCSh}, {vr(vHACC,4)}")
    e(f"s_cmp_le_u32 s{sNH}, 1")
    e("s_cbranch_scc1 L_f_cs_done")
    e(f"ds_write_b128 v{fCSh}, {vr(vHACC+4,4)} offset:64")
    lab("L_f_cs_done")
    e("s_mov_b64 exec, -1")
    e(f"s_lshl_b32 s{sT}, s{sRB}, 3")
    e(f"s_lshl_b32 s{sT+1}, s{sRh}, 2")
    e(f"s_add_u32 s{sT}, s{sT}, s{sT+1}")
    e(f"s_mul_i32 s{sT}, s{sT}, 68")
    e(f"s_mul_i32 s{sT+1}, s{sG}, 6")
    e(f"s_add_u32 s{sT}, s{sT}, s{sT+1}")
    e(f"s_lshr_b32 s{sT+1}, s{sU0}, 1")
    e(f"s_add_u32 s{sT}, s{sT}, s{sT+1}")
    e(f"s_lshl_b32 s{sT}, s{sT}, 10")
    for i in range(1, 4):
        e(f"s_add_u32 s{sT+i}, s{sT}, {i*68*1024}")
    vPw = fL16
    e("s_waitcnt lgkmcnt(0)")
    e("s_barrier")
    stamp(5)
    for u in range(4):
        e(f"ds_read_b128 {vr(vCS+4*u,4)}, v{fCSu} offset:{64*u}")
    vPk = 144
    k = 0
    for pr in range(2):
        if pr == 1:
            e(f"s_cmp_eq_u32 s{sNU}, 2")
            e("s_cbranch_scc1 L_f_done")
        e(f"s_waitcnt lgkmcnt({2-2*pr})")
        for i in range(4):
            pk = vPk + 4 * (k & 3); k += 1
            nm, rs = vST + 2 * i, vST + 2 * i + 1
            for uu in range(2):
                u = 2 * pr + uu
                a = acc(u, i)
                for r in range(4):
                    e(f"v_fmac_f32 v{a+r}, v{vCS+4*u+r}, v{nm}")
                for r in range(4):
                    e(f"v_fma_f32 v{a+r}, v{a+r}, v{rs}, v{vB1+4*u+r}")
                for r in range(4):
                    e(f"v_max_f32 v{a+r}, 0, v{a+r}")
                for r in range(4):
                    e(f"v_mul_f32 v{a+r}, v{a+r}, v{a+r}")
                e(f"v_cvt_pk_bf16_f32 v{pk+2*uu}, v{a}, v{a+1}")
                e(f"v_cvt_pk_bf16_f32 v{pk+2*uu+1}, v{a+2}, v{a+3}")
            e(f"buffer_store_dwordx4 {vr(pk,4)}, v{vPw}, s[{S_WS}:{S_WS+3}], s{sT+i} offen offset:{1024*pr} sc1")
    lab("L_f_done")
    stamp(6)
    e("s_waitcnt vmcnt(0) lgkmcnt(0)")
    stamp(7)
    e("s_barrier")
    stamp(8)
    p2_compute("F")
    lab("L_end")
    e("s_endpgm")


def main():
    L.append("; Fused LN + [QKV|W1] GEMM + dilated local attention + [h|o]x[w2;wo] GEMM + gating, one persistent kernel")
    L.append(f"; @launch grid=(256,1,1) block=(768,1,1) lds={LDS_TOTAL}")
    L.append('.amdgcn_target "amdgcn-amd-amdhsa--gfx950"')
    L.append(".text")
    gen()
    L.append('.section .rodata,"a"')
    L.append(".p2align 6")
    L.append(f".amdhsa_kernel {NAME}_kernel")
    L.append(f"  .amdhsa_next_free_vgpr {NVGPR}")
    L.append("  .amdhsa_next_free_sgpr 102")
    L.append(f"  .amdhsa_accum_offset {NVGPR}")
    L.append("  .amdhsa_group_segment_fixed_size 0")
    L.append("  .amdhsa_kernarg_size 88")
    L.append("  .amdhsa_user_sgpr_count 2")
    L.append("  .amdhsa_user_sgpr_kernarg_segment_ptr 1")
    L.append("  .amdhsa_system_sgpr_workgroup_id_x 1")
    L.append(".end_amdhsa_kernel")
    out = sys.argv[1] if len(sys.argv) > 1 else OUT
    open(out, "w").write("\n".join(L) + "\n")
    print("wrote", out, len(L), "lines")


main()
```

```python
import sys
import os
import struct

NAME = "recurrent_scan__sliding_local_dilated__dense_activation_squared_relu__prompt"
OUT = f"cdna_kernels/{NAME}.s"
STAMP = os.environ.get("STAMP") in ("1", "2")
STAMP_RT = os.environ.get("STAMP") == "2"
STAMP_OFF = 16 << 20
L = []


DIAG = os.environ.get("DIAG", "")
ZONE = [""]


def e(s=""):
    if ZONE[0] == "p2c" and "nocomp2" in DIAG and (s.startswith("ds_read") or s.startswith("v_mfma")):
        return
    if ZONE[0] == "p2l" and "nodma2" in DIAG and s.startswith("buffer_load"):
        return
    if ZONE[0] == "p1c" and "nocomp1" in DIAG and (s.startswith("ds_read") or s.startswith("v_mfma")):
        return
    if ZONE[0] == "p1l" and "nodma1" in DIAG and s.startswith("buffer_load"):
        return
    L.append("    " + s)


def lab(s):
    L.append(s + ":")


def vr(a, n=1):
    return f"v{a}" if n == 1 else f"v[{a}:{a+n-1}]"


def f32(x):
    return hex(struct.unpack("<I", struct.pack("<f", x))[0])


A2_OFF = 0
A2_SIZE = 128 * 68 * 1024
B2N_OFF = A2_SIZE
B2W_OFF = B2N_OFF + 4 * 68 * 4096
ST_OFF = B2W_OFF + 4 * 68 * 6144
FL_OFF = ST_OFF + 2048 * 16
NONCE_OFF = FL_OFF + 256 * 128
WS_USED = NONCE_OFF + 128 if not STAMP else (32 << 20)

Q_P, Q_GP = 480, 3968
Q_XB = 8 * Q_GP
Q_STAGE = Q_XB + 9 * 2048
F_P, F_GP = 416, 3456
F_XB = 8 * F_GP
F_STAGE = F_XB + 8 * 2048
PLANE = 5120
Q_PL = Q_STAGE
Q_MISC = 3 * Q_STAGE
QM_ST, QM_CS, QM_RK = 0, 1152, 2112
Q_X2 = 153600
Q_B2 = Q_X2 + 8192
F_JOB = 3 * F_STAGE
F_MISC = 158720
FM_ST, FM_CS, FM_B1 = 0, 1024, 1792
F_X2 = 143360
F_B2 = F_X2 + 12288
LDS_TOTAL = 162048
assert Q_B2 + 256 <= LDS_TOTAL and F_MISC + FM_B1 + 768 <= LDS_TOTAL and F_B2 + 384 <= F_MISC
assert F_JOB + 2 * 4096 + 3 * 6144 <= F_MISC and Q_MISC + QM_RK + 640 <= Q_X2
P2 = {"Q": dict(n=4, slot=16384, nslot=9, first=8, X=Q_X2, B2=Q_B2, boff=B2N_OFF),
      "F": dict(n=6, slot=20480, nslot=7, first=3, X=F_X2, B2=F_B2, boff=B2W_OFF)}

S_X, S_W, S_WS, S_R, S_DBG = 8, 12, 16, 20, 24
sWave, sS, sG, sRB = 40, 41, 42, 43
sCur, sNxt, sKW, sKX, sIt = 44, 45, 46, 47, 48
sWoff, sXoff, sHoff = 49, 50, 51
sMaskW, sMaskH = 52, 54
sT = 56
sA = 70
sRh, sU0, sH0, sNH = 70, 71, 72, 73
sRet = 96
sNo = 30
sNU = 74
sJ = 75
sSt = 80

vLane = 1
vX0, vX1, vH0 = 2, 3, 4
vWd = 6
vWl, vXl0, vXl1, vWa, vXa = 10, 11, 12, 13, 14
vT = 16
vOnes = 28
vACC = 32
vHACC = 96
vWF = 112
vXF = 128
NVGPR = 168
qAt, qAq, qAv, qRk, qOa, qOb, qPw, qPh = 2, 3, 4, 5, 6, 7, 8, 9
qCSu, qCSh, qSa, qSm, qRq = 15, 16, 17, 18, 19


def qMk(p):
    return 20 + (p - 1 if p < 8 else p - 2)


TOUCH = os.environ.get("TOUCH", "0") == "1"
CODEPF = os.environ.get("CODEPF", "1") == "1"
BPF = os.environ.get("BPF", "0") == "1"
TOUCH2 = os.environ.get("TOUCH2", "1") == "1"
ROT = os.environ.get("ROT", "0") == "1"
DBGOUT = os.environ.get("DBGOUT", "0") == "1"
TSH = int(os.environ.get("TSH", "0"))


def acc(u, i):
    return vACC + (u * 4 + i) * 4


def wf(u):
    return vWF + 4 * u


def xf(b, i):
    return vXF + (b * 5 + i) * 4


def srd(d, base, nrec):
    e(f"s_mov_b32 s{d}, s{base}")
    e(f"s_and_b32 s{d+1}, s{base+1}, 0xffff")
    e(f"s_mov_b32 s{d+2}, {nrec}")
    e(f"s_mov_b32 s{d+3}, 0x00020000")


def nonce_load():
    e(f"s_add_u32 s{sNo}, s68, {NONCE_OFF}")
    e(f"s_addc_u32 s{sNo+1}, s69, 0")
    e(f"s_load_dwordx2 s[{sNo}:{sNo+1}], s[{sNo}:{sNo+1}], 0")


def nonce_fix():
    e(f"s_add_u32 s{sNo}, s{sNo}, 1")
    e(f"s_addc_u32 s{sNo+1}, s{sNo+1}, 0")


def stamp(i, real=False):
    if STAMP:
        e(f"{'s_memrealtime' if (real or STAMP_RT) else 's_memtime'} s[100:101]")
        e("s_waitcnt lgkmcnt(0)")
        e(f"s_mov_b32 s{sSt+i}, s100")


def stamp_flush():
    if STAMP:
        e("s_waitcnt vmcnt(0)")
        stamp(13)
        stamp(15, real=True)
        for i in range(16):
            e(f"v_mov_b32 v{32+i}, s{sSt+i}")
        e(f"s_mul_i32 s{sT}, s2, 12")
        e(f"s_add_u32 s{sT}, s{sT}, s{sWave}")
        e(f"s_lshl_b32 s{sT}, s{sT}, 6")
        e(f"s_add_u32 s{sT}, s{sT}, {STAMP_OFF}")
        e("v_mov_b32 v48, 0")
        e("s_mov_b64 exec, 1")
        for i in range(4):
            e(f"buffer_store_dwordx4 v[{32+4*i}:{35+4*i}], v48, s[{S_WS}:{S_WS+3}], s{sT} offen offset:{16*i}")


QCFG = [(0, 0, 4, 0, 4), (0, 4, 4, 0, 4), (0, 8, 4, 0, 2), (1, 4, 4, 0, 0),
        (0, 12, 3, 0, 2), (1, 12, 3, 2, 1), (1, 0, 4, 0, 0), (1, 8, 4, 2, 2)]
FCFG = [(0, 0, 4, 0, 2), (0, 6, 4, 0, 2), (1, 0, 4, 2, 2), (1, 6, 4, 2, 2),
        (0, 4, 2, 0, 1), (0, 10, 2, 0, 1), (1, 4, 2, 1, 1), (1, 10, 2, 1, 1)]


def p1_dma(typ):
    P2_ = 960 if typ == "Q" else 832
    GP = Q_GP if typ == "Q" else F_GP
    RP = 3840 if typ == "Q" else 3072
    e(f"s_add_u32 m0, s{sCur}, s{sXoff}")
    e(f"s_add_u32 s{sT}, s{sKX}, 1280")
    e(f"buffer_load_dwordx4 v{vX0}, s[{S_X}:{S_X+3}], s{sKX} offen lds")
    e(f"buffer_load_dwordx4 v{vX1}, s[{S_X}:{S_X+3}], s{sKX} offen offset:1024 lds")
    e(f"s_add_u32 m0, m0, 2048")
    e("s_nop 0")
    e(f"buffer_load_dwordx4 v{vX0}, s[{S_X}:{S_X+3}], s{sT} offen lds")
    e(f"buffer_load_dwordx4 v{vX1}, s[{S_X}:{S_X+3}], s{sT} offen offset:1024 lds")
    if typ == "Q":
        e(f"s_add_u32 m0, s{sCur}, s{sHoff}")
        e(f"s_mov_b64 exec, s[{sMaskH}:{sMaskH+1}]")
        e(f"buffer_load_dwordx4 v{vH0}, s[{S_X}:{S_X+3}], s{sKX} offen lds")
    e(f"s_add_u32 m0, s{sCur}, s{sWoff}")
    e(f"s_mov_b64 exec, s[{sMaskW}:{sMaskW+1}]")
    for t in range(4):
        e(f"buffer_load_dwordx4 v{vWd+t}, s[{S_W}:{S_W+3}], s{sKW} offen offset:{P2_*t} lds")
    e(f"s_add_u32 m0, m0, {4*GP}")
    e(f"s_add_u32 s{sT}, s{sKW}, {32*RP}")
    for t in range(4):
        e(f"buffer_load_dwordx4 v{vWd+t}, s[{S_W}:{S_W+3}], s{sT} offen offset:{P2_*t} lds")
    e("s_mov_b64 exec, -1")
    e(f"s_add_u32 s{sKW}, s{sKW}, {64*RP}")
    e(f"s_add_u32 s{sKX}, s{sKX}, 128")
    STG = Q_STAGE if typ == "Q" else F_STAGE
    e(f"s_add_u32 s{sCur}, s{sCur}, {STG}")
    e(f"s_cmp_eq_u32 s{sCur}, {3*STG}")
    e(f"s_cselect_b32 s{sCur}, 0, s{sCur}")


def p1_loop(typ, w):
    rh, u0, nu, h0, nh = (QCFG if typ == "Q" else FCFG)[w]
    STG = Q_STAGE if typ == "Q" else F_STAGE
    P, GP, XB = (Q_P, Q_GP, Q_XB) if typ == "Q" else (F_P, F_GP, F_XB)
    tag = f"{typ}{w}"
    usehx = typ == "Q" and nh > 0
    tasks = typ == "F" and w >= 4
    tlast = 6

    def xreads(b):
        o = []
        for i in range(4):
            off = XB + 2048 * (4 * rh + i + (1 if typ == "Q" else 0))
            o.append(f"ds_read_b128 {vr(xf(b,i),4)}, v{vXa} offset:{off}")
        if usehx:
            o.append(f"ds_read_b128 {vr(xf(b,4),4)}, v{vXa} offset:{XB}")
        return o

    def wreads(u, ks):
        U = u0 + u
        col = (U // 5) * 160 + 8 * (U % 5) if typ == "Q" else 32 * U
        return [f"ds_read_b64_tr_b16 {vr(wf(u)+2*h,2)}, v{vWa} offset:{ks*4*GP+h*4*P+col}" for h in range(2)]

    def mfmas(u, b):
        o = [f"v_mfma_f32_16x16x32_bf16 {vr(acc(u,i),4)}, {vr(wf(u),4)}, {vr(xf(b,i),4)}, {vr(acc(u,i),4)}" for i in range(4)]
        if h0 <= u < h0 + nh:
            a = vHACC + 4 * (u - h0)
            bsrc = xf(b, 4) if typ == "Q" else vOnes
            o.append(f"v_mfma_f32_16x16x32_bf16 {vr(a,4)}, {vr(wf(u),4)}, {vr(bsrc,4)}, {vr(a,4)}")
        return o

    lab(f"L_p1_{tag}")
    stamp(2)
    e("s_barrier")
    stamp(3)
    for x in xreads(0):
        e(x)
    for u in range(nu):
        for x in wreads(u, 0):
            e(x)
    e(f"v_mov_b32 v{vXa}, v{vXl1}")
    e("s_waitcnt lgkmcnt(0)")
    lab(f"L_p1_{tag}_loop")
    body = []
    NB = 1
    for ph in range(2):
        pend = []
        if ph == 0:
            pend += [("l", x, ("x", 1)) for x in xreads(1)]
        for u in range(nu):
            if ph == 1 and u == NB:
                body.append(("o", f"v_add_u32 v{vXa}, s{sNxt}, v{vXl0}"))
                body.append(("o", f"v_add_u32 v{vWa}, s{sNxt}, v{vWl}"))
                if tasks:
                    body.append(("o", f"s_cmp_gt_u32 s{sIt}, {tlast}"))
                    body.append(("o", f"s_cbranch_scc1 L_p1_{tag}_nt"))
                    body.append(("o", f"s_call_b64 s[{sRet}:{sRet+1}], {'L_task' if typ == 'F' else 'L_syncQ'}"))
                    body.append(("lab", f"L_p1_{tag}_nt"))
                    body.append(("w0", "s_waitcnt lgkmcnt(0)"))
                else:
                    body.append(("w0", "s_waitcnt lgkmcnt(0)"))
                body.append(("o", "s_barrier"))
                pend = [("l", x, ("x", 0)) for x in xreads(0)] + pend
            ms = mfmas(u, ph)
            rem_after = sum(len(mfmas(uu, ph)) for uu in range(u + 1, nu))
            for mi, m in enumerate(ms):
                body.append(("m", m, [("w", u, ph), ("x", ph)] if mi == 0 else []))
                if mi == len(ms) - 1:
                    pend += [("l", x, ("w", u, 1 - ph)) for x in wreads(u, 1 - ph)]
                if not (ph == 1 and u < NB):
                    left = len(ms) - 1 - mi + rem_after + 1
                    k = 1 if len(pend) <= left else 2
                    while pend and k > 0:
                        body.append(pend.pop(0)); k -= 1
        while pend:
            body.append(pend.pop(0))
        if ph == 1:
            body.append(("o", f"v_add_u32 v{vXa}, s{sNxt}, v{vXl1}"))
            body.append(("o", f"s_add_u32 s{sNxt}, s{sNxt}, {STG}"))
            body.append(("o", f"s_cmp_eq_u32 s{sNxt}, {3*STG}"))
            body.append(("o", f"s_cselect_b32 s{sNxt}, 0, s{sNxt}"))
            body.append(("o", f"s_add_u32 s{sIt}, s{sIt}, 1"))
    n = len(body)
    waits = {}
    covered, ops = -1, []
    for pos, it in enumerate(body + body):
        if it[0] == "l":
            ops.append(it[2])
        elif it[0] == "w0":
            covered = len(ops) - 1
        elif it[0] == "m" and it[2]:
            need = -1
            for tg in it[2]:
                idx = [i for i, t in enumerate(ops) if t == tg]
                if idx:
                    need = max(need, idx[-1])
            if need > covered:
                cnt = min(13, len(ops) - 1 - need)
                covered = len(ops) - 1 - cnt
                if pos >= n:
                    waits[pos - n] = min(cnt, waits.get(pos - n, 99))
                else:
                    waits[pos] = cnt
    ops, covered = [], -1
    for pos, it in enumerate(body * 3):
        p0 = pos % n
        if p0 in waits:
            covered = max(covered, len(ops) - 1 - waits[p0])
        if it[0] == "l":
            ops.append(it[2])
        elif it[0] == "w0":
            covered = len(ops) - 1
        elif it[0] == "m" and it[2]:
            for tg in it[2]:
                idx = [i for i, t in enumerate(ops) if t == tg]
                assert not idx or idx[-1] <= covered, (tag, pos, tg)
    ZONE[0] = "p1c"
    for pos, it in enumerate(body):
        if pos in waits:
            e(f"s_waitcnt lgkmcnt({waits[pos]})")
        if it[0] == "lab":
            lab(it[1])
        else:
            e(it[1])
    ZONE[0] = ""
    e(f"s_cmp_lt_u32 s{sIt}, 10")
    e(f"s_cbranch_scc1 L_p1_{tag}_loop")
    e("s_waitcnt lgkmcnt(0)")
    stamp(4)
    e(f"s_branch L_epi_{typ}")


_spin = [0]


def spin_check(vreg, want_s, reload_fn, wide=True):
    k = _spin[0]; _spin[0] += 1
    regs = vreg if isinstance(vreg, list) else [vreg]
    e(f"s_mov_b32 s{sT+7}, 0")
    lab(f"L_spin{k}")
    for i, r in enumerate(regs):
        dst = "vcc" if i == 0 else f"s[{sT+4}:{sT+5}]"
        if wide:
            e(f"v_cmp_ne_u64 {dst}, s[{want_s}:{want_s+1}], v[{r}:{r+1}]")
        else:
            e(f"v_cmp_ne_u32 {dst}, s{want_s}, v{r}")
        if i:
            e("s_nop 1")
            e(f"s_or_b64 vcc, vcc, s[{sT+4}:{sT+5}]")
    e("s_nop 1")
    e(f"s_cmp_eq_u64 vcc, 0")
    e(f"s_cbranch_scc1 L_spin{k}_ok")
    e(f"s_add_u32 s{sT+7}, s{sT+7}, 1")
    e(f"s_cmp_gt_u32 s{sT+7}, 0x40000")
    e(f"s_cbranch_scc1 L_spin{k}_ok")
    e("s_sleep 2")
    reload_fn()
    e("s_waitcnt vmcnt(0)")
    e(f"s_branch L_spin{k}")
    lab(f"L_spin{k}_ok")


def loader(typ):
    N = 13 if typ == "Q" else 12
    p = P2[typ]
    n, SLOT, NSLOT = p["n"], p["slot"], p["nslot"]
    NBq = n // 2
    N2 = 2 + NBq
    vP, vFa, vL16, vSa = vT + 8, vT + 9, vT + 10, vT + 11
    vE1, vGl, vLs, vRs, vD = 32, 33, 34, 35, 36
    vP = 40
    sSrcA, sSrcB, sDst, sMA, sMB, sOne, sFl = sA, sA + 1, sA + 2, sA + 3, sA + 4, sA + 5, sA + 6
    e(f"s_mov_b32 s{sCur}, 0")
    nonce_load()
    p1_dma(typ)
    p1_dma(typ)
    srd(S_WS, 68, WS_USED)
    e(f"s_waitcnt vmcnt({N}) lgkmcnt(0)")
    e("s_barrier")
    stamp(1)
    p1_dma(typ)
    e(f"v_lshlrev_b32 v{vL16}, 4, v{vLane}")
    e(f"v_lshlrev_b32 v{vFa}, 7, v{vLane}")
    e(f"v_lshlrev_b32 v{vSa}, 2, v{vLane}")
    nonce_fix()
    e(f"v_lshrrev_b32 v{vE1}, 2, v{vLane}")
    e(f"v_lshlrev_b32 v{vE1}, 4, v{vE1}")
    e(f"v_bfe_u32 v{vT}, v{vLane}, 1, 1")
    e(f"v_lshl_add_u32 v{vE1}, v{vT}, 2, v{vE1}")
    e(f"v_and_b32 v{vT}, 1, v{vLane}")
    e(f"v_add_u32 v{vE1}, v{vE1}, v{vT}")
    e(f"s_and_b32 s{sT}, s2, 1")
    e(f"s_lshl_b32 s{sT}, s{sT}, 1")
    e(f"s_add_u32 s{sT}, s{sT}, 8")
    e(f"v_add_lshl_u32 v{vE1}, v{vE1}, s{sT}, 7")
    per = 36 if typ == "Q" else 32
    t0, t1, t2, t3 = vT, vT + 1, vT + 2, vT + 3
    e(f"s_mul_i32 s{sT}, s{sS}, {per}")
    if typ == "Q":
        e(f"s_sub_u32 s{sT}, s{sT}, 16")
    e(f"v_add_u32 v{t0}, s{sT}, v{vLane}")
    e(f"s_lshl_b32 s{sT}, s{sRB}, 7")
    e(f"v_add_u32 v{t1}, s{sT}, v{t0}")
    e(f"v_max_i32 v{t1}, 0, v{t1}")
    e(f"v_lshlrev_b32 v{vGl}, 4, v{t1}")
    e(f"v_ashrrev_i32 v{t1}, 5, v{t0}")
    e(f"v_and_b32 v{t2}, 1, v{t0}")
    e(f"v_lshl_add_u32 v{t1}, v{t1}, 1, v{t2}")
    e(f"v_bfe_u32 v{t3}, v{t0}, 1, 4")
    e(f"v_lshl_add_u32 v{t1}, v{t1}, 4, v{t3}")
    if typ == "Q":
        e(f"v_add_u32 v{t1}, 16, v{t1}")
        e(f"v_and_b32 v{t3}, 7, v{t3}")
        e(f"v_cmp_gt_i32 vcc, 0, v{t0}")
        e(f"v_lshl_add_u32 v{t3}, v{t2}, 3, v{t3}")
        e("s_nop 0")
        e(f"v_cndmask_b32 v{t1}, v{t1}, v{t3}, vcc")
    e(f"v_lshlrev_b32 v{vLs}, 3, v{t1}")
    e(f"v_add_u32 v{vLs}, {(Q_MISC+QM_ST) if typ == 'Q' else (F_MISC+FM_ST)}, v{vLs}")
    if typ == "Q":
        e(f"v_add_u32 v{t1}, 16, v{t0}")
        e(f"v_lshrrev_b32 v{t1}, 1, v{t1}")
        e(f"v_mul_u32_u24 v{t2}, 320, v{t2}")
        e(f"v_lshl_add_u32 v{vRs}, v{t1}, 2, v{t2}")
        e(f"v_add_u32 v{vRs}, {Q_MISC+QM_RK}, v{vRs}")
    e(f"s_bfe_u32 s{sT}, s2, 0x10001")
    e(f"s_lshl_b32 s{sT+1}, s{sRB}, 1")
    e(f"s_add_u32 s{sT}, s{sT}, s{sT+1}")
    e(f"s_lshl_b32 s{sFl}, s{sRB}, 11")
    e(f"s_add_u32 s{sFl}, s{sFl}, {FL_OFF}")
    e(f"s_lshl_b32 s{sSrcA}, s{sT}, 2")
    e(f"s_add_u32 s{sSrcA}, s{sSrcA}, s{sS}")
    e(f"s_mul_i32 s{sSrcA}, s{sSrcA}, {68*1024}")
    e(f"s_and_b32 s{sT}, s2, 1")
    e(f"s_lshl_b32 s{sT}, s{sT}, 1")
    e(f"s_bfe_u32 s{sT+1}, s2, 0x10004")
    e(f"s_add_u32 s{sT}, s{sT}, s{sT+1}")
    e(f"s_mul_i32 s{sSrcB}, s{sT}, {68*n*1024}")
    e(f"s_mul_i32 s{sMB}, s{sS}, {NBq*1024}")
    e(f"s_add_u32 s{sSrcB}, s{sSrcB}, s{sMB}")
    e(f"s_add_u32 s{sSrcB}, s{sSrcB}, {p['boff']}")
    e(f"s_lshl_b32 s{sMA}, s{sS}, 11")
    e(f"s_add_u32 s{sMA}, s{sMA}, {2*n*1024}")
    e(f"s_mov_b32 s{sOne}, 1")
    e(f"s_mov_b32 s{sIt}, 0")
    lab(f"L_ld{typ}_loop")
    e(f"s_waitcnt vmcnt({N})")
    e("s_barrier")
    if STAMP:
        for it_, ix in ((0, 2), (2, 3), (5, 4), (6, 6)):
            e(f"s_cmp_lg_u32 s{sIt}, {it_}")
            e(f"s_cbranch_scc1 L_ld{typ}_st{it_}")
            stamp(ix)
            lab(f"L_ld{typ}_st{it_}")
    ZONE[0] = "p1l"
    p1_dma(typ)
    ZONE[0] = ""
    e(f"s_add_u32 s{sIt}, s{sIt}, 1")
    e(f"s_cmp_lt_u32 s{sIt}, 7")
    e(f"s_cbranch_scc1 L_ld{typ}_loop")
    e(f"s_waitcnt vmcnt({N})")
    e("s_barrier")
    stamp(7)

    def ld_stats():
        e(f"s_mov_b32 s{sT}, {ST_OFF}")
        e(f"s_mov_b32 s{sT+2}, -1")
        e(f"s_mov_b32 s{sT+3}, {0xf if typ == 'Q' else 0}")
        e(f"s_mov_b64 exec, s[{sT+2}:{sT+3}]")
        e(f"buffer_load_dwordx4 {vr(vD,4)}, v{vGl}, s[{S_WS}:{S_WS+3}], s{sT} offen sc1")
    ld_stats()
    e("s_waitcnt vmcnt(1)")
    e("s_barrier")
    stamp(10)
    e("s_waitcnt vmcnt(0)")
    spin_check(vD + 2, sNo, ld_stats)
    e(f"ds_write_b64 v{vLs}, v[{vD}:{vD+1}]")
    if typ == "Q":
        e(f"ds_write_b32 v{vRs}, v{vD+1}")
    e("s_mov_b64 exec, -1")
    stamp(9)

    def ld_bflags():
        e(f"s_mov_b32 s{sT}, {FL_OFF}")
        e(f"buffer_load_dwordx2 v[{vP}:{vP+1}], v{vE1}, s[{S_WS}:{S_WS+3}], s{sT} offen offset:8 sc1")
    e("s_waitcnt lgkmcnt(0)")

    sEndA, sEndB = sKW, sWoff

    def wrap(src, end, stride):
        e(f"s_cmp_eq_u32 s{src}, s{end}")
        e(f"s_cselect_b32 s{sT+4}, s{end+1}, s{src}")
        e(f"s_cselect_b32 s{end+1}, s{end}, s{end+1}")
        e(f"s_cselect_b32 s{end}, s{sRotA if src == sSrcA else sRotB}, s{end}")
        e(f"s_mov_b32 s{src}, s{sT+4}")
    sRotA, sRotB = sHoff, sMaskH
    if ROT:
        e(f"s_bfe_u32 s{sT}, s2, 0x20003")
        e(f"s_mul_i32 s{sT}, s{sT}, 6")
        for src, end, rot, stride in ((sSrcA, sEndA, sRotA, 2048), (sSrcB, sEndB, sRotB, 2 * n * 1024)):
            e(f"s_mov_b32 s{end+1}, s{src}")
            e(f"s_add_u32 s{end}, s{src}, {24*stride}")
            e(f"s_mul_i32 s{sT+1}, s{sT}, {stride}")
            e(f"s_add_u32 s{src}, s{src}, s{sT+1}")
            e(f"s_mov_b32 s{rot}, s{src}")
        e(f"s_cmp_eq_u32 s{sT}, 0")
        e(f"s_cselect_b32 s{sEndA}, -1, s{sEndA}")
        e(f"s_cselect_b32 s{sEndB}, -1, s{sEndB}")

    def dmaB():
        e(f"s_add_u32 m0, s{sDst}, s{sMB}")
        e("s_nop 0")
        for i in range(NBq):
            e(f"buffer_load_dwordx4 v{vL16}, s[{S_WS}:{S_WS+3}], s{sSrcB} offen offset:{1024*i} sc1 lds")
        e(f"s_add_u32 s{sSrcB}, s{sSrcB}, {2*n*1024}")
        if ROT:
            wrap(sSrcB, sEndB, 2 * n * 1024)

    def dmaA():
        e(f"s_add_u32 m0, s{sDst}, s{sMA}")
        e("s_nop 0")
        for i in range(2):
            e(f"buffer_load_dwordx4 v{vL16}, s[{S_WS}:{S_WS+3}], s{sSrcA} offen offset:{1024*i} sc1 lds")
        e(f"s_add_u32 s{sSrcA}, s{sSrcA}, 2048")
        if ROT:
            wrap(sSrcA, sEndA, 2048)

    def adv():
        e(f"s_add_u32 s{sDst}, s{sDst}, {SLOT}")
        e(f"s_cmp_eq_u32 s{sDst}, {NSLOT*SLOT}")
        e(f"s_cselect_b32 s{sDst}, 0, s{sDst}")

    def stage():
        ZONE[0] = "p2l"
        dmaB(); dmaA(); adv()
        ZONE[0] = ""

    def slot_of(k):
        return ((p["first"] + k) % NSLOT) * SLOT

    def load_flags(off):
        def f():
            e("s_mov_b64 exec, 0xff")
            e(f"buffer_load_dwordx2 v[{vP+2}:{vP+3}], v{vFa}, s[{S_WS}:{S_WS+3}], s{sFl} offen offset:{off} sc1")
        return f

    def own_flag():
        e(f"s_lshl_b32 s{sT}, s{sRB}, 4")
        e(f"s_add_u32 s{sT}, s{sT}, s{sG}")
        e(f"s_lshl_b32 s{sT}, s{sT}, 7")
        e(f"s_add_u32 s{sT}, s{sT}, {FL_OFF + (1024 if typ == 'F' else 0)}")
        e(f"s_cmp_eq_u32 s{sS}, 0")
        e(f"s_cselect_b32 s{sT}, s{sT}, 0x7f000000")
        e(f"v_mov_b32 v{vT}, s{sNo}")
        e(f"v_mov_b32 v{vT+1}, s{sNo+1}")
        e(f"v_mov_b32 v{vT+2}, 0")
        e("s_mov_b64 exec, 1")
        e(f"buffer_store_dwordx2 v[{vT}:{vT+1}], v{vT+2}, s[{S_WS}:{S_WS+3}], s{sT} offen sc1")
        e("s_mov_b64 exec, -1")

    PRE = 4
    ld_bflags()
    e("s_barrier")
    stamp(11)
    e("s_barrier")
    e("s_waitcnt vmcnt(0)")
    spin_check(vP, sNo, ld_bflags)
    stamp(8)
    if BPF:
        nl = 17 * n
        e(f"s_lshr_b32 s{sT}, s2, 5")
        e(f"s_lshl_b32 s{sT}, s{sT}, 2")
        e(f"s_add_u32 s{sT}, s{sT}, s{sS}")
        e(f"s_mul_i32 s{sT}, s{sT}, {nl*128}")
        e(f"s_add_u32 s{sT}, s{sT}, s{sEndB+1 if ROT else sSrcB}")
        e(f"s_sub_u32 s{sT}, s{sT}, s{sMB}")
        e(f"s_add_u32 s{sT+1}, s{sT}, 8192")
    for k in range(PRE):
        e(f"s_mov_b32 s{sDst}, {slot_of(k)}")
        dmaB()
    if BPF:
        e(f"buffer_load_dword v{vD}, v{vFa}, s[{S_WS}:{S_WS+3}], s{sT} offen sc1")
        rem = nl - 64
        e(f"s_mov_b32 s{sT+2}, {hex((1 << min(rem, 32)) - 1)}")
        e(f"s_mov_b32 s{sT+3}, {hex((1 << max(rem - 32, 0)) - 1)}")
        e(f"s_mov_b64 exec, s[{sT+2}:{sT+3}]")
        e(f"buffer_load_dword v{vD}, v{vFa}, s[{S_WS}:{S_WS+3}], s{sT+1} offen sc1")
        e("s_mov_b64 exec, -1")
    if typ == "Q":
        load_flags(1024)()
        e("s_mov_b64 exec, -1")
    e("s_barrier")
    if typ == "F":
        own_flag()
    if typ == "Q":
        e("s_waitcnt vmcnt(0)")
    if typ == "F":
        load_flags(1024)()
        e("s_waitcnt vmcnt(0)")
    e("s_mov_b64 exec, 0xff")
    spin_check(vP + 2, sNo, load_flags(1024))
    e("s_mov_b64 exec, -1")
    stamp(5)
    for k in range(PRE):
        e(f"s_mov_b32 s{sDst}, {slot_of(k)}")
        dmaA()
    e(f"s_mov_b32 s{sDst}, {slot_of(PRE)}")
    issued = PRE
    q = [2] * PRE
    T = 0

    def allowed(T):
        return sum(q[2 * T + 2:])
    while issued < 2 * T - 2 + NSLOT or T < 2:
        e(f"s_waitcnt vmcnt({allowed(T)})")
        e("s_barrier")
        k = 0
        while issued <= 2 * T - 1 + NSLOT and k < 4:
            stage(); q.append(N2); issued += 1; k += 1
        T += 1
    assert issued == 2 * T - 2 + NSLOT, (issued, T)
    INFL = NSLOT - 4
    TEND = (34 - NSLOT + 1) // 2
    e(f"s_mov_b32 s{sIt}, {T}")
    lab(f"L_ld{typ}_p2b")
    e(f"s_waitcnt vmcnt({INFL*N2})")
    e("s_barrier")
    stage()
    stage()
    e(f"s_add_u32 s{sIt}, s{sIt}, 1")
    e(f"s_cmp_lt_u32 s{sIt}, {TEND}")
    e(f"s_cbranch_scc1 L_ld{typ}_p2b")
    issued = 2 * TEND - 2 + NSLOT
    assert issued == 33
    e(f"s_waitcnt vmcnt({INFL*N2})")
    e("s_barrier")
    stage()
    nch = 2 * n
    rows_per = 64 // nch
    if typ == "F":
        rows_per = 4
    nin = 16 // rows_per
    srd(S_R, 38, 1280)
    if typ == "Q":
        e(f"v_lshrrev_b32 v{vT}, 3, v{vLane}")
        e(f"v_and_b32 v{vT+1}, 7, v{vLane}")
    else:
        e(f"v_mul_u32_u24 v{vT}, 43, v{vLane}")
        e(f"v_lshrrev_b32 v{vT}, 9, v{vT}")
        e(f"v_mul_u32_u24 v{vT+1}, 12, v{vT}")
        e(f"v_sub_u32 v{vT+1}, v{vLane}, v{vT+1}")
    e(f"v_mul_u32_u24 v{vT}, 2560, v{vT}")
    e(f"v_lshl_add_u32 v{vT}, v{vT+1}, 4, v{vT}")
    p2_rowcol(typ, sT, sT + 1)
    e(f"s_mul_i32 s{sT+2}, s{sS}, {16*nch*16}")
    e(f"s_add_u32 m0, s{sT+2}, {p['X']}")
    if typ == "F":
        e(f"s_mov_b32 s{sT+2}, -1")
        e(f"s_mov_b32 s{sT+3}, 0xffff")
        e(f"s_mov_b64 exec, s[{sT+2}:{sT+3}]")
    for i in range(nin):
        lo = rows_per * nch * 16 * i
        e(f"s_add_u32 s{sT+4}, s{sT}, {i*rows_per*2560-lo}")
        e(f"buffer_load_dwordx4 v{vT}, s[{S_X}:{S_X+3}], s{sT+4} offen offset:{lo} lds")
    e("s_mov_b64 exec, -1")
    e(f"buffer_load_dword v{vT+2}, v{vSa}, s[{S_R}:{S_R+3}], s{sT+1} offen")
    e(f"v_lshlrev_b32 v{vT}, 3, v{vLane}")
    e(f"v_add_u32 v{vT}, {p['B2']}, v{vT}")
    nx = nin + 1
    for tt in range(TEND + 1, 17):
        rem = 33 - (2 * tt + 1)
        if rem > 0:
            e(f"s_waitcnt vmcnt({rem*N2+nx})")
        else:
            e("s_waitcnt vmcnt(0)")
            e(f"v_lshlrev_b32 v{vT+4}, 16, v{vT+2}")
            e(f"v_and_b32 v{vT+5}, 0xffff0000, v{vT+2}")
            e(f"s_mov_b32 s{sT+2}, -1")
            e(f"s_mov_b32 s{sT+3}, {0 if typ == 'Q' else 0xffff}")
            e(f"s_mov_b64 exec, s[{sT+2}:{sT+3}]")
            e(f"ds_write_b64 v{vT}, v[{vT+4}:{vT+5}]")
            e("s_waitcnt lgkmcnt(0)")
        e("s_barrier")
    e("s_mov_b64 exec, -1")
    if typ == "Q":
        e(f"s_or_b32 s{sT}, s2, s{sS}")
        e(f"s_cmp_lg_u32 s{sT}, 0")
        e("s_cbranch_scc1 L_ldQ_fin")
        srd(S_DBG, 66, 256)

        def ld_dbg():
            e(f"buffer_load_dword v{vP}, v{vSa}, s[{S_DBG}:{S_DBG+3}], 0 offen sc1")
        e("s_mov_b64 exec, 0xffff")
        ld_dbg()
        e(f"s_mov_b32 s{sT+6}, 1")
        e("s_waitcnt vmcnt(0)")
        spin_check(vP, sT + 6, ld_dbg, wide=False)
        e(f"v_mov_b32 v{vT}, s{sNo}")
        e(f"v_mov_b32 v{vT+1}, s{sNo+1}")
        e(f"v_mov_b32 v{vT+2}, 0")
        e(f"s_mov_b32 s{sT}, {NONCE_OFF}")
        e("s_mov_b64 exec, 1")
        e(f"buffer_store_dwordx2 v[{vT}:{vT+1}], v{vT+2}, s[{S_WS}:{S_WS+3}], s{sT} offen sc1")
        e("s_mov_b64 exec, -1")
        if DBGOUT:
            stamp(13)
            stamp(15, real=True)
            for i in range(16):
                base = sSt + (14 if i >= 14 else 0)
                e(f"s_sub_u32 s{sT}, s{sSt+i}, s{base}")
                e(f"v_mov_b32 v{48+i}, s{sT}")
            e("v_mov_b32 v64, 0")
            e("s_mov_b64 exec, 1")
            for i in range(4):
                e(f"buffer_store_dwordx4 v[{48+4*i}:{51+4*i}], v64, s[{S_DBG}:{S_DBG+3}], 0 offen offset:{16*i}")
            e("s_mov_b64 exec, -1")
        lab("L_ldQ_fin")
    stamp_flush()
    e("s_endpgm")


def p2_rowcol(typ, sd, sc):
    e(f"s_bfe_u32 s{sd}, s2, 0x10001")
    e(f"s_lshl_b32 s{sc}, s{sRB}, 1")
    e(f"s_add_u32 s{sd}, s{sd}, s{sc}")
    e(f"s_lshl_b32 s{sd}, s{sd}, 6")
    e(f"s_lshr_b32 s{sc}, s{sS}, 1")
    e(f"s_lshl_b32 s{sc}, s{sc}, 5")
    e(f"s_add_u32 s{sd}, s{sd}, s{sc}")
    e(f"s_and_b32 s{sc}, s{sS}, 1")
    e(f"s_add_u32 s{sd}, s{sd}, s{sc}")
    e(f"s_mul_i32 s{sd}, s{sd}, 1280")
    e(f"s_and_b32 s{sc}, s2, 1")
    e(f"s_lshl_b32 s{sc}, s{sc}, 1")
    e(f"s_bfe_u32 s{sd+2}, s2, 0x10004")
    e(f"s_add_u32 s{sc}, s{sc}, s{sd+2}")
    e(f"s_mul_i32 s{sc}, s{sc}, 320")
    if typ == "F":
        e(f"s_add_u32 s{sc}, s{sc}, 128")
    e(f"s_add_u32 s{sd}, s{sd}, s{sc}")


def p2_compute(typ):
    p = P2[typ]
    n, SLOT, NSLOT = p["n"], p["slot"], p["nslot"]
    nu = n // 2
    vAl, vBl, vAa, vBa = 10, 11, 12, 13
    vF, vS = 32, 44
    vFr = 64
    sHf = sA

    def fr(st, ks, i):
        return vFr + ((st * 2 + ks) * (1 + nu) + i) * 4
    lab(f"L_p2_{typ}")
    e(f"s_lshr_b32 s{sHf}, s{sWave}, 2")
    e(f"v_lshlrev_b32 v{vBl}, 4, v{vLane}")
    e(f"s_lshl_b32 s{sT}, s{sS}, 11")
    e(f"s_add_u32 s{sT}, s{sT}, {2*n*1024}")
    e(f"v_add_u32 v{vAl}, s{sT}, v{vBl}")
    e(f"s_mul_i32 s{sT}, s{sHf}, {nu*1024}")
    e(f"v_add_u32 v{vBl}, s{sT}, v{vBl}")
    for r in range(4 * nu):
        e(f"v_mov_b32 v{vF+r}, 0")
        e(f"v_mov_b32 v{vS+r}, 0")
    for r in range(2 * (1 + nu) * 4):
        e(f"v_mov_b32 v{fr(1,0,0)+r}, 0")
    e(f"s_mov_b32 s{sCur}, {p['first']*SLOT}")
    e(f"s_mov_b32 s{sIt}, 0")
    e(f"v_lshlrev_b32 v15, 7, v{vLane}")
    e(f"s_lshl_b32 s{sJ}, s{sRB}, 11")
    e(f"s_add_u32 s{sJ}, s{sJ}, {FL_OFF}")
    stamp(9)

    def half(st, accprev, first_wait=False):
        e(f"v_add_u32 v{vAa}, s{sCur}, v{vAl}")
        e(f"v_add_u32 v{vBa}, s{sCur}, v{vBl}")
        e("s_waitcnt lgkmcnt(0)")
        if st == 0:
            e("s_barrier")
        rds = []
        for ks in range(2):
            rds.append(f"ds_read_b128 {vr(fr(st,ks,0),4)}, v{vAa} offset:{1024*ks}")
            for i in range(nu):
                rds.append(f"ds_read_b128 {vr(fr(st,ks,1+i),4)}, v{vBa} offset:{(ks*n+i)*1024}")
        ms = []
        for ks in range(2):
            for i in range(nu):
                a = accprev + 4 * i
                ms.append(f"v_mfma_f32_16x16x32_bf16 {vr(a,4)}, {vr(fr(1-st,ks,1+i),4)}, {vr(fr(1-st,ks,0),4)}, {vr(a,4)}")
        sal = [f"s_add_u32 s{sCur}, s{sCur}, {SLOT}", f"s_cmp_eq_u32 s{sCur}, {NSLOT*SLOT}", f"s_cselect_b32 s{sCur}, 0, s{sCur}"]
        ZONE[0] = "p2c"
        e(rds.pop(0)); e(rds.pop(0))
        for m in ms:
            e(m)
            if rds:
                e(rds.pop(0))
            if rds and len(rds) > len(ms) - ms.index(m) - 1:
                e(rds.pop(0))
        for x in rds + sal:
            e(x)
        ZONE[0] = ""

    lab(f"L_p2_{typ}_h")
    LOOK = NSLOT - 1
    ICHK = (24 - NSLOT + 1) // 2
    vPo, vFo = 8, 15

    def ld_o():
        e("s_mov_b64 exec, 0xff")
        e(f"buffer_load_dwordx2 v[{vPo}:{vPo+1}], v{vFo}, s[{S_WS}:{S_WS+3}], s{sJ} offen sc1")
    e(f"s_cmp_lg_u32 s{sIt}, 1")
    e(f"s_cbranch_scc1 L_p2_{typ}_n1")
    e("s_waitcnt vmcnt(0)")
    lab(f"L_p2_{typ}_n1")
    e(f"s_cmp_lg_u32 s{sWave}, 0")
    e(f"s_cbranch_scc1 L_p2_{typ}_nv")
    if typ == "Q":
        e(f"s_cmp_lg_u32 s{sIt}, 2")
        e(f"s_cbranch_scc1 L_p2_{typ}_n2")
        e(f"s_lshl_b32 s{sT}, s{sG}, 7")
        e(f"s_add_u32 s{sT}, s{sT}, s{sJ}")
        e(f"v_mov_b32 v{vT}, s{sNo}")
        e(f"v_mov_b32 v{vT+1}, s{sNo+1}")
        e(f"v_mov_b32 v{vT+2}, 0")
        e("s_mov_b64 exec, 1")
        e(f"buffer_store_dwordx2 v[{vT}:{vT+1}], v{vT+2}, s[{S_WS}:{S_WS+3}], s{sT} offen sc1")
        e("s_mov_b64 exec, -1")
        lab(f"L_p2_{typ}_n2")
    e(f"s_cmp_lg_u32 s{sIt}, {ICHK-2}")
    e(f"s_cbranch_scc1 L_p2_{typ}_n3")
    ld_o()
    e("s_mov_b64 exec, -1")
    lab(f"L_p2_{typ}_n3")
    e(f"s_cmp_lg_u32 s{sIt}, {ICHK}")
    e(f"s_cbranch_scc1 L_p2_{typ}_nv")
    e("s_waitcnt vmcnt(0)")
    e("s_mov_b64 exec, 0xff")
    spin_check(vPo, sNo, ld_o)
    if typ == "Q":
        srd(S_DBG, 66, 256)
        e(f"s_lshl_b32 s{sT}, s{sRB}, 2")
        e(f"s_cmp_eq_u32 s{sG}, 0")
        e(f"s_cselect_b32 s{sT}, s{sT}, 0x1000")
        e(f"v_mov_b32 v{vT}, 1")
        e(f"v_mov_b32 v{vT+1}, 0")
        e("s_mov_b64 exec, 1")
        e(f"buffer_store_dword v{vT}, v{vT+1}, s[{S_DBG}:{S_DBG+3}], s{sT} offen sc1")
    e("s_mov_b64 exec, -1")
    lab(f"L_p2_{typ}_nv")
    half(0, vF)
    if STAMP:
        e(f"s_cmp_lg_u32 s{sIt}, 0")
        e(f"s_cbranch_scc1 L_p2_{typ}_ns")
        stamp(10)
        lab(f"L_p2_{typ}_ns")
    half(1, vF)
    e(f"s_add_u32 s{sIt}, s{sIt}, 1")
    e(f"s_cmp_lt_u32 s{sIt}, 12")
    e(f"s_cbranch_scc1 L_p2_{typ}_h")
    half(0, vF)
    half(1, vS)
    lab(f"L_p2_{typ}_o")
    half(0, vS)
    half(1, vS)
    e(f"s_add_u32 s{sIt}, s{sIt}, 1")
    e(f"s_cmp_lt_u32 s{sIt}, 16")
    e(f"s_cbranch_scc1 L_p2_{typ}_o")
    nel = 4 * nu
    vG, vSl = vT, vT + 1
    vBb, vXx, vE, vXf = fr(0, 0, 0), fr(0, 0, 0) + 12, 128, 144
    e(f"v_lshrrev_b32 v{vG}, 4, v{vLane}")
    e(f"v_and_b32 v{vSl}, 15, v{vLane}")
    e(f"v_mul_u32_u24 v{vT+2}, {16*n}, v{vG}")
    e(f"s_mul_i32 s{sT}, s{sHf}, {8*n}")
    e(f"s_add_u32 s{sT}, s{sT}, {p['B2']}")
    e(f"v_add_u32 v{vT+2}, s{sT}, v{vT+2}")
    e(f"v_mul_u32_u24 v{vT+3}, {32*n}, v{vSl}")
    e(f"v_mul_u32_u24 v{vT+4}, {8*n}, v{vG}")
    e(f"s_mul_i32 s{sT}, s{sS}, {16*32*n}")
    e(f"s_mul_i32 s{sT+1}, s{sHf}, {4*n}")
    e(f"s_add_u32 s{sT}, s{sT}, s{sT+1}")
    e(f"s_add_u32 s{sT}, s{sT}, {p['X']}")
    e(f"v_add3_u32 v{vT+3}, v{vT+3}, v{vT+4}, s{sT}")
    e(f"v_mul_u32_u24 v{vT+5}, 2560, v{vSl}")
    e(f"v_add3_u32 v{vT+5}, v{vT+5}, v{vT+4}, s{sT+1}")
    e("s_waitcnt lgkmcnt(0)")
    for i in range(nu):
        e(f"ds_read_b128 {vr(vBb+4*i,4)}, v{vT+2} offset:{16*i}")
    for i in range(nu):
        e(f"ds_read_b64 {vr(vXx+2*i,2)}, v{vT+3} offset:{8*i}")
    for ks in range(2):
        for i in range(nu):
            a = vS + 4 * i
            e(f"v_mfma_f32_16x16x32_bf16 {vr(a,4)}, {vr(fr(1,ks,1+i),4)}, {vr(fr(1,ks,0),4)}, {vr(a,4)}")
    stamp(11)
    p2_rowcol(typ, sT, sT + 1)
    srd(S_R, 64, 2048 * 1280)
    e(f"s_mov_b32 s{sT+1}, {f32(-1.4426950408889634)}")
    e("s_waitcnt lgkmcnt(0)")
    for r in range(nel):
        e(f"v_add_f32 v{vF+r}, v{vF+r}, v{vBb+r}")
    for r in range(nel):
        e(f"v_mul_f32 v{vE+r}, s{sT+1}, v{vF+r}")
    for r in range(nel):
        e(f"v_exp_f32 v{vE+r}, v{vE+r}")
    for d in range(nel // 2):
        e(f"v_lshlrev_b32 v{vXf+2*d}, 16, v{vXx+d}")
        e(f"v_and_b32 v{vXf+2*d+1}, 0xffff0000, v{vXx+d}")
    for r in range(nel):
        e(f"v_add_f32 v{vE+r}, 1.0, v{vE+r}")
    for r in range(nel):
        e(f"v_rcp_f32 v{vE+r}, v{vE+r}")
    for r in range(nel):
        e(f"v_mul_f32 v{vF+r}, v{vF+r}, v{vS+r}")
    for r in range(nel):
        e(f"v_fmac_f32 v{vXf+r}, v{vF+r}, v{vE+r}")
    for d in range(nel // 2):
        e(f"v_cvt_pk_bf16_f32 v{vBb+d}, v{vXf+2*d}, v{vXf+2*d+1}")
    e(f"buffer_store_dwordx4 {vr(vBb,4)}, v{vT+5}, s[{S_R}:{S_R+3}], s{sT} offen")
    if typ == "F":
        e(f"buffer_store_dwordx2 {vr(vBb+4,2)}, v{vT+5}, s[{S_R}:{S_R+3}], s{sT} offen offset:16")
    stamp(12)
    stamp_flush()
    e("s_endpgm")


def wave_sum(v, t):
    for ctl in ("quad_perm:[1,0,3,2]", "quad_perm:[2,3,0,1]", "row_half_mirror", "row_mirror"):
        e("s_nop 1")
        e(f"v_add_f32_dpp v{v}, v{v}, v{v} {ctl} row_mask:0xf bank_mask:0xf")
    for sw in ("v_permlane16_swap_b32", "v_permlane32_swap_b32"):
        e(f"v_mov_b32 v{t}, v{v}")
        e("s_nop 1")
        e(f"{sw} v{v}, v{t}")
        e("s_nop 0")
        e(f"v_add_f32 v{v}, v{v}, v{t}")


def wave_sum2(a, b, ta, tb):
    for ctl in ("quad_perm:[1,0,3,2]", "quad_perm:[2,3,0,1]", "row_half_mirror", "row_mirror"):
        e("s_nop 0")
        e(f"v_add_f32_dpp v{a}, v{a}, v{a} {ctl} row_mask:0xf bank_mask:0xf")
        e(f"v_add_f32_dpp v{b}, v{b}, v{b} {ctl} row_mask:0xf bank_mask:0xf")
    for sw in ("v_permlane16_swap_b32", "v_permlane32_swap_b32"):
        e(f"v_mov_b32 v{ta}, v{a}")
        e(f"v_mov_b32 v{tb}, v{b}")
        e("s_nop 1")
        e(f"{sw} v{a}, v{ta}")
        e(f"{sw} v{b}, v{tb}")
        e("s_nop 0")
        e(f"v_add_f32 v{a}, v{a}, v{ta}")
        e(f"v_add_f32 v{b}, v{b}, v{tb}")


def w_touch(typ):
    if not TOUCH2:
        return
    RP = 3840 if typ == "Q" else 3072
    nl = 50 if typ == "Q" else 60
    e(f"s_cmp_ge_u32 s{sWave}, {3 if typ == 'Q' else 2}")
    e(f"s_cbranch_scc1 L_notouch{typ}")
    e(f"v_lshlrev_b32 v{vXF+10}, 7, v{vLane}")
    srd(S_R, 6 if typ == "Q" else 32, 640 * RP)
    e(f"s_lshl_b32 s{sT}, s{sRB}, 3")
    e(f"s_add_u32 s{sT}, s{sT}, s{sG}")
    e(f"s_mul_i32 s{sT}, s{sT}, {5*RP}")
    e(f"s_mul_i32 s{sT+1}, s{sWave}, {nl*128}")
    e(f"s_add_u32 s{sT}, s{sT}, s{sT+1}")
    e(f"s_mov_b32 s{sT+2}, -1")
    e(f"s_mov_b32 s{sT+3}, {hex((1 << (nl - 32)) - 1)}")
    e(f"s_mov_b64 exec, s[{sT+2}:{sT+3}]")
    e(f"buffer_load_dword v0, v{vXF+10}, s[{S_R}:{S_R+3}], s{sT} offen")
    e("s_mov_b64 exec, -1")
    lab(f"L_notouch{typ}")


def row_stats():
    U = [vXF + 12 + i for i in range(10)]
    M, O = vXF + 24, vXF + 28
    e("s_waitcnt vmcnt(0)")
    for d in range(5):
        e(f"v_lshlrev_b32 v{U[2*d]}, 16, v{vXF+d}")
        e(f"v_and_b32 v{U[2*d+1]}, 0xffff0000, v{vXF+d}")
    e(f"v_add_f32 v{M}, v{U[0]}, v{U[1]}")
    e(f"v_add_f32 v{M+1}, v{U[2]}, v{U[3]}")
    for k in range(4, 10, 2):
        e(f"v_add_f32 v{M}, v{M}, v{U[k]}")
        e(f"v_add_f32 v{M+1}, v{M+1}, v{U[k+1]}")
    e(f"v_add_f32 v{M}, v{M}, v{M+1}")
    wave_sum(M, M + 1)
    e(f"v_mul_f32 v{O}, {f32(-1.0/640)}, v{M}")
    for k in range(10):
        e(f"v_add_f32 v{U[k]}, v{U[k]}, v{O}")
    e(f"v_mul_f32 v{M}, v{U[0]}, v{U[0]}")
    e(f"v_mul_f32 v{M+1}, v{U[1]}, v{U[1]}")
    for k in range(2, 10, 2):
        e(f"v_fmac_f32 v{M}, v{U[k]}, v{U[k]}")
        e(f"v_fmac_f32 v{M+1}, v{U[k+1]}, v{U[k+1]}")
    e(f"v_add_f32 v{M}, v{M}, v{M+1}")
    wave_sum(M, M + 1)
    e(f"v_mov_b32 v{M+1}, {f32(1e-5)}")
    e(f"v_fmac_f32 v{M+1}, {f32(1.0/640)}, v{M}")
    e(f"v_rsq_f32 v{O+1}, v{M+1}")
    e(f"v_mov_b32 v{O+2}, s{sNo}")
    e(f"v_mov_b32 v{O+3}, s{sNo+1}")
    e(f"v_mov_b32 v{M}, 0")
    e("s_mov_b64 exec, 1")
    e(f"buffer_store_dwordx4 {vr(O,4)}, v{M}, s[{S_WS}:{S_WS+3}], s99 offen sc1")
    e("s_mov_b64 exec, -1")


def cfg_lookup(cfg):
    def tab(f):
        return hex(sum((f(c) & 15) << (4 * i) for i, c in enumerate(cfg)))
    e(f"s_lshl_b32 s{sT}, s{sWave}, 2")
    for dst, f in ((sRh, lambda c: c[0]), (sU0, lambda c: c[1]), (sH0, lambda c: c[1] + c[3]), (sNH, lambda c: c[4]), (sNU, lambda c: c[2])):
        e(f"s_lshr_b32 s{dst}, {tab(f)}, s{sT}")
        e(f"s_and_b32 s{dst}, s{dst}, 15")


def gen():
    K = NAME + "_kernel"
    L.append(f".globl {K}")
    L.append(".p2align 8")
    L.append(f".type {K},@function")
    lab(K)
    e("s_cmp_ge_u32 s2, 256")
    e("s_cbranch_scc1 L_end")
    stamp(0)
    stamp(14, real=True)
    e("s_load_dwordx4 s[4:7], s[0:1], 0")
    e("s_load_dwordx8 s[32:39], s[0:1], 32")
    e("s_load_dwordx2 s[28:29], s[0:1], 16")
    e("s_load_dwordx4 s[64:67], s[0:1], 64")
    e("s_load_dwordx2 s[68:69], s[0:1], 80")
    e(f"v_lshrrev_b32 v{vT}, 6, v0")
    e(f"v_and_b32 v{vLane}, 63, v0")
    e(f"v_readfirstlane_b32 s{sWave}, v{vT}")
    e(f"s_and_b32 s{sT}, s2, 3")
    e(f"s_lshl_b32 s{sT}, s{sT}, 1")
    e(f"s_bfe_u32 s{sG}, s2, 0x10004")
    e(f"s_add_u32 s{sG}, s{sG}, s{sT}")
    e(f"s_bfe_u32 s{sT}, s2, 0x10002")
    e(f"s_lshl_b32 s{sT}, s{sT}, 3")
    e(f"s_lshr_b32 s{sRB}, s2, 5")
    e(f"s_add_u32 s{sRB}, s{sRB}, s{sT}")
    e(f"s_and_b32 s{sS}, s{sWave}, 3")
    e(f"v_lshrrev_b32 v{vT}, 4, v{vLane}")
    e(f"s_cmp_lt_u32 s{sWave}, 8")
    e("s_cbranch_scc1 L_compute")

    e(f"v_and_b32 v{vT+1}, 7, v{vLane}")
    e(f"v_xor_b32 v{vT+5}, v{vT+1}, v{vT}")
    e(f"v_lshlrev_b32 v{vT+5}, 4, v{vT+5}")
    e(f"v_lshrrev_b32 v{vT+2}, 3, v{vLane}")
    e(f"v_mul_u32_u24 v{vT+2}, 2560, v{vT+2}")
    e(f"v_add_u32 v{vT+3}, v{vT+2}, v{vT+5}")
    e(f"v_xor_b32 v{vT+5}, 64, v{vT+5}")
    e(f"v_add_u32 v{vT+4}, v{vT+2}, v{vT+5}")
    e(f"s_lshl_b32 s{sT}, s{sRB}, 7")
    e(f"s_lshl_b32 s{sT+1}, s{sS}, 5")
    e(f"s_add_u32 s{sT+1}, s{sT+1}, s{sT}")
    e(f"s_mul_i32 s{sT+1}, s{sT+1}, 1280")
    e(f"v_add_u32 v{vX0}, s{sT+1}, v{vT+3}")
    e(f"s_add_u32 s{sT+1}, s{sT+1}, {16*1280-1024}")
    e(f"v_add_u32 v{vX1}, s{sT+1}, v{vT+4}")
    e(f"s_mov_b32 s{sKW}, 0")
    e(f"s_mov_b32 s{sKX}, 0")
    e("s_bitcmp1_b32 s2, 3")
    e("s_cbranch_scc1 L_ldF")
    e(f"s_lshl_b32 s{sT+1}, s{sS}, 1")
    e(f"v_add_u32 v{vT+3}, s{sT+1}, v{vT}")
    e(f"v_xor_b32 v{vT+3}, v{vT+3}, v{vT+1}")
    e(f"v_and_b32 v{vT+3}, 7, v{vT+3}")
    e(f"v_lshl_add_u32 v{vT+3}, v{vT+3}, 4, v{vT+2}")
    e(f"s_and_b32 s{sT+1}, s{sS}, 1")
    e(f"s_lshl_b32 s{sT+1}, s{sT+1}, 3")
    e(f"s_lshr_b32 s{sT+2}, s{sS}, 1")
    e(f"s_add_u32 s{sT+1}, s{sT+1}, s{sT+2}")
    e(f"s_add_u32 s{sT+1}, s{sT+1}, s{sT}")
    e(f"s_sub_u32 s{sT+1}, s{sT+1}, 16")
    e(f"s_mul_i32 s{sT+1}, s{sT+1}, 1280")
    e(f"v_add_u32 v{vH0}, s{sT+1}, v{vT+3}")
    e(f"s_lshl_b32 s{sHoff}, s{sS}, 9")
    e(f"s_add_u32 s{sHoff}, s{sHoff}, {Q_XB}")
    e(f"s_cmp_eq_u32 s{sS}, 0")
    e(f"s_cselect_b32 s{sMaskH}, 0xffffff00, -1")
    e(f"s_mov_b32 s{sMaskH+1}, 0")
    e(f"v_cmp_le_u32 vcc, 30, v{vLane}")
    e(f"v_mov_b32 v{vT+3}, 0")
    e(f"v_mov_b32 v{vT+4}, 30")
    e(f"v_cndmask_b32 v{vT+3}, v{vT+3}, v{vT+4}, vcc")
    e(f"v_sub_u32 v{vT+4}, v{vLane}, v{vT+3}")
    e(f"v_mul_u32_u24 v{vT+3}, 128, v{vT+3}")
    e(f"v_mul_u32_u24 v{vT+5}, 26, v{vT+4}")
    e(f"v_lshrrev_b32 v{vT+5}, 8, v{vT+5}")
    e(f"v_mul_u32_u24 v{vT+6}, 10, v{vT+5}")
    e(f"v_sub_u32 v{vT+4}, v{vT+4}, v{vT+6}")
    e(f"v_lshl_add_u32 v{vT+3}, v{vT+4}, 4, v{vT+3}")
    e(f"v_add_u32 v{vT+5}, 1, v{vT+5}")
    e(f"v_cmp_le_u32 vcc, 3, v{vT+5}")
    e(f"v_mov_b32 v{vT+6}, 0")
    e(f"s_mul_i32 s{sT}, s{sS}, {8*3840}")
    e(f"v_cndmask_b32 v{vT+5}, v{vT+5}, v{vT+6}, vcc")
    e(f"v_mul_u32_u24 v{vT+5}, 1280, v{vT+5}")
    e(f"v_add_u32 v{vT+3}, v{vT+3}, v{vT+5}")
    e(f"s_mul_i32 s{sT+1}, s{sG}, 160")
    e(f"s_add_u32 s{sT}, s{sT}, s{sT+1}")
    e(f"v_add_u32 v{vWd}, s{sT}, v{vT+3}")
    for t in range(1, 4):
        e(f"v_add_u32 v{vWd+t}, {6720*t}, v{vWd}")
    e(f"s_mul_i32 s{sWoff}, s{sS}, {Q_GP}")
    e(f"s_lshl_b32 s{sXoff}, s{sS}, 12")
    e(f"s_add_u32 s{sXoff}, s{sXoff}, {Q_XB+2048}")
    e(f"s_mov_b32 s{sMaskW}, -1")
    e(f"s_mov_b32 s{sMaskW+1}, 0x0fffffff")
    e("s_waitcnt lgkmcnt(0)")
    srd(S_X, 4, 2048 * 1280)
    srd(S_W, 6, 640 * 3840)
    loader("Q")
    lab("L_ldF")
    e(f"v_cmp_le_u32 vcc, 26, v{vLane}")
    e(f"v_mov_b32 v{vT+3}, 0")
    e(f"v_mov_b32 v{vT+4}, {3072-26*16}")
    e(f"v_cndmask_b32 v{vT+3}, v{vT+3}, v{vT+4}, vcc")
    e(f"v_lshl_add_u32 v{vT+3}, v{vLane}, 4, v{vT+3}")
    e(f"s_mul_i32 s{sT}, s{sS}, {8*3072}")
    e(f"s_mul_i32 s{sT+1}, s{sG}, 384")
    e(f"s_add_u32 s{sT}, s{sT}, s{sT+1}")
    e(f"v_add_u32 v{vWd}, s{sT}, v{vT+3}")
    for t in range(1, 4):
        e(f"v_add_u32 v{vWd+t}, {5312*t}, v{vWd}")
    e(f"s_mul_i32 s{sWoff}, s{sS}, {F_GP}")
    e(f"s_lshl_b32 s{sXoff}, s{sS}, 12")
    e(f"s_add_u32 s{sXoff}, s{sXoff}, {F_XB}")
    e(f"s_mov_b32 s{sMaskW}, 0xfcffffff")
    e(f"s_mov_b32 s{sMaskW+1}, 0x0003ffff")
    e("s_waitcnt lgkmcnt(0)")
    srd(S_X, 4, 2048 * 1280)
    srd(S_W, 32, 640 * 3072)
    loader("F")

    lab("L_compute")
    if CODEPF:
        e(f"s_getpc_b64 s[{sT}:{sT+1}]")
        lab("L_pc")
        e(f"s_sub_u32 s{sT}, s{sT}, L_pc-{K}")
        e(f"s_subb_u32 s{sT+1}, s{sT+1}, 0")
        e(f"v_lshlrev_b32 v{vT+1}, 7, v0")
        e(f"v_min_u32 v{vT+1}, L_end-{K}, v{vT+1}")
        e(f"s_bfe_u32 s{sT+2}, s2, 0x20004")
        e(f"s_cmp_lg_u32 s{sT+2}, 0")
        e("s_cbranch_scc1 L_nopf")
        e(f"s_cmp_gt_u32 s{sWave}, 4")
        e("s_cbranch_scc1 L_nopf")
        e(f"global_load_dword v0, v{vT+1}, s[{sT}:{sT+1}]")
        lab("L_nopf")
    e(f"v_and_b32 v{vT+1}, 15, v{vLane}")
    e(f"v_lshrrev_b32 v{vT+2}, 1, v{vT+1}")
    e(f"v_xor_b32 v{vT+2}, v{vT+2}, v{vT}")
    e(f"v_lshlrev_b32 v{vT+2}, 4, v{vT+2}")
    e(f"v_lshl_add_u32 v{vXl0}, v{vT+1}, 7, v{vT+2}")
    e(f"v_xor_b32 v{vXl1}, 64, v{vXl0}")
    e(f"v_mov_b32 v{vXa}, v{vXl0}")
    e(f"v_bfe_u32 v{vT+1}, v{vLane}, 2, 2")
    e(f"v_and_b32 v{vT+2}, 3, v{vLane}")
    e(f"s_mov_b32 s{sIt}, 0")
    e(f"s_lshl_b32 s{sT}, s{sRB}, 4")
    e(f"s_add_u32 s{sT}, s{sT}, s{sG}")
    e(f"s_and_b32 s{sT+1}, s2, 8")
    e(f"s_add_u32 s{sT}, s{sT}, s{sT+1}")
    e(f"s_lshl_b32 s{sT}, s{sT}, 3")
    e(f"s_add_u32 s{sT}, s{sT}, s{sWave}")
    e(f"s_lshl_b32 s99, s{sT}, 4")
    e(f"s_add_u32 s99, s99, {ST_OFF}")
    e(f"s_mul_i32 s{sT}, s{sT}, 1280")
    e(f"v_lshlrev_b32 v{vXF+8}, 4, v{vLane}")
    e(f"v_lshlrev_b32 v{vXF+9}, 2, v{vLane}")
    e("s_waitcnt lgkmcnt(0)")
    stamp(1)
    srd(S_X, 4, 2048 * 1280)
    e(f"buffer_load_dwordx4 {vr(vXF,4)}, v{vXF+8}, s[{S_X}:{S_X+3}], s{sT} offen")
    e(f"buffer_load_dword v{vXF+4}, v{vXF+9}, s[{S_X}:{S_X+3}], s{sT} offen offset:1024")
    nonce_load()
    srd(S_WS, 68, WS_USED)
    e("s_bitcmp1_b32 s2, 3")
    e("s_cbranch_scc1 L_F")
    w_touch("Q")
    e(f"v_mul_u32_u24 v{vWl}, {Q_GP}, v{vT}")
    e(f"v_mul_u32_u24 v{vT+3}, {Q_P}, v{vT+1}")
    e(f"v_add_u32 v{vWl}, v{vWl}, v{vT+3}")
    e(f"v_mul_u32_u24 v{vT+3}, 40, v{vT+2}")
    e(f"v_add_u32 v{vWl}, v{vWl}, v{vT+3}")
    e(f"v_mov_b32 v{vWa}, v{vWl}")
    e(f"v_and_b32 v{vT+3}, 31, v{vLane}")
    e(f"v_lshlrev_b32 v{vT+3}, 2, v{vT+3}")
    e(f"v_mov_b32 v{vT+4}, 0x3f803f80")
    e(f"ds_write_b32 v{vT+3}, v{vT+4} offset:{Q_XB}")
    e(f"v_add_u32 v{vT+3}, {Q_STAGE}, v{vT+3}")
    e(f"ds_write_b32 v{vT+3}, v{vT+4} offset:{Q_XB}")
    e(f"v_add_u32 v{vT+3}, {Q_STAGE}, v{vT+3}")
    e(f"ds_write_b32 v{vT+3}, v{vT+4} offset:{Q_XB}")
    for r in range(vACC, vHACC + 16):
        e(f"v_mov_b32 v{r}, 0")
    e(f"s_mov_b32 s{sNxt}, {Q_STAGE}")
    cfg_lookup(QCFG)
    tG, tS, tR, tC, t0, t1 = 112, 113, 114, 115, 116, 117
    e(f"v_mov_b32 v{tG}, v{vT}")
    e(f"v_mov_b32 v{tR}, v{vT+1}")
    e(f"v_mov_b32 v{tC}, v{vT+2}")
    e(f"v_and_b32 v{tS}, 15, v{vLane}")
    e(f"v_lshlrev_b32 v{t0}, 4, v{tG}")
    e(f"s_lshl_b32 s{sT}, s{sH0}, 6")
    e(f"s_add_u32 s{sT}, s{sT}, {Q_MISC+QM_CS}")
    e(f"v_add_u32 v{qCSh}, s{sT}, v{t0}")
    e(f"s_lshl_b32 s{sT}, s{sU0}, 6")
    e(f"s_add_u32 s{sT}, s{sT}, {Q_MISC+QM_CS}")
    e(f"v_add_u32 v{qCSu}, s{sT}, v{t0}")
    e(f"v_lshlrev_b32 v{qSa}, 3, v{tS}")
    e(f"v_add_u32 v{qSa}, {Q_MISC+QM_ST}, v{qSa}")
    e(f"s_lshl_b32 s{sT}, s{sRh}, 9")
    e(f"v_add_u32 v{qSm}, s{sT}, v{qSa}")
    e(f"v_mul_u32_u24 v{t0}, 640, v{tG}")
    e(f"v_lshl_add_u32 v{t0}, v{tS}, 3, v{t0}")
    e(f"v_lshrrev_b32 v{qPh}, 3, v{tS}")
    e(f"v_mul_u32_u24 v{qPh}, {2560-64}, v{qPh}")
    e(f"s_mul_i32 s{sT}, s{sH0}, {PLANE}")
    e(f"s_add_u32 s{sT}, s{sT}, {Q_PL}")
    e(f"v_add3_u32 v{qPh}, v{qPh}, v{t0}, s{sT}")
    e(f"s_and_b32 s{sT}, s{sWave}, 1")
    e(f"s_mul_i32 s{sT+2}, s{sT}, 320")
    e(f"s_mul_i32 s{sT}, s{sT}, 2560")
    e(f"s_lshr_b32 s{sT+1}, s{sWave}, 1")
    e(f"s_lshl_b32 s{sT+3}, s{sT+1}, 6")
    e(f"s_add_u32 s{sT+2}, s{sT+2}, s{sT+3}")
    e(f"s_add_u32 s{sT+2}, s{sT+2}, {Q_MISC+QM_RK}")
    e(f"s_lshl_b32 s{sT+1}, s{sT+1}, 7")
    e(f"s_add_u32 s{sT}, s{sT}, s{sT+1}")
    e(f"s_add_u32 s{sT}, s{sT}, {Q_PL}")
    e(f"v_add_u32 v{qAt}, s{sT}, v{t0}")
    e(f"v_add_u32 v{qAq}, {10*PLANE+64}, v{qAt}")
    e(f"v_lshl_add_u32 v{t1}, v{tC}, 2, v{tR}")
    e(f"v_mul_u32_u24 v{qAv}, 640, v{tG}")
    e(f"v_lshl_add_u32 v{qAv}, v{t1}, 3, v{qAv}")
    e(f"v_add_u32 v{qAv}, s{sT}, v{qAv}")
    e(f"v_lshlrev_b32 v{qRk}, 4, v{tR}")
    e(f"v_add_u32 v{qRk}, s{sT+2}, v{qRk}")
    e(f"v_lshl_add_u32 v{qRq}, v{tC}, 2, v{qRk}")
    e(f"s_mul_i32 s{sT}, s{sU0}, {PLANE}")
    e(f"s_lshl_b32 s{sT+1}, s{sRh}, 8")
    e(f"s_add_u32 s{sT}, s{sT}, s{sT+1}")
    e(f"s_add_u32 s{sT}, s{sT}, {Q_PL+64}")
    e(f"v_add_u32 v{qPw}, s{sT}, v{t0}")
    e(f"v_lshlrev_b32 v{qOa}, 4, v{vLane}")
    e(f"v_lshrrev_b32 v{qOb}, 5, v{vLane}")
    e(f"v_lshlrev_b32 v{qOb}, 8, v{qOb}")
    e(f"v_lshl_add_u32 v{qOb}, v{tS}, 4, v{qOb}")
    e(f"v_bfe_u32 v{t1}, v{vLane}, 4, 1")
    e(f"v_lshl_add_u32 v{qOb}, v{t1}, 3, v{qOb}")
    BIG = 2.0 ** 100
    lo, hi = t0, t1
    e(f"v_lshlrev_b32 v{lo}, 2, v{tR}")
    e(f"s_lshr_b32 s{sT}, s{sWave}, 1")
    e(f"s_or_b32 s{sT}, s{sRB}, s{sT}")
    e(f"s_cmp_eq_u32 s{sT}, 0")
    e(f"s_cselect_b32 s{sT}, 8, 0")
    e(f"v_sub_u32 v{lo}, s{sT}, v{lo}")
    e(f"v_add_u32 v{hi}, 1, v{tC}")
    e(f"v_max_i32 v{lo}, v{lo}, v{hi}")
    e(f"v_cvt_f32_i32 v{lo}, v{lo}")
    e(f"v_cvt_f32_i32 v{hi}, v{tC}")
    e(f"v_mov_b32 v{tG}, {f32(-BIG)}")
    e(f"v_mov_b32 v{tS}, {f32(BIG)}")
    for pp in range(1, 8):
        e(f"v_fmaak_f32 v{qMk(pp)}, v{lo}, v{tG}, {f32(pp*BIG)}")
        e(f"v_min_f32 v{qMk(pp)}, 0, v{qMk(pp)}")
    for pp in range(9, 12):
        e(f"v_fmaak_f32 v{qMk(pp)}, v{hi}, v{tS}, {f32(-(pp-8)*BIG)}")
        e(f"v_min_f32 v{qMk(pp)}, 0, v{qMk(pp)}")
    e(f"s_lshl_b32 s{sT}, s{sRB}, 3")
    e(f"s_add_u32 s{sT}, s{sT}, s{sWave}")
    e(f"s_mul_i32 s{sT}, s{sT}, 68")
    e(f"s_lshr_b32 s{sT+1}, s{sG}, 1")
    e(f"s_mul_i32 s{sT+1}, s{sT+1}, 5")
    e(f"s_add_u32 s{sT}, s{sT}, s{sT+1}")
    e(f"s_add_u32 s{sT}, s{sT}, 48")
    e(f"s_and_b32 s{sT+1}, s{sG}, 1")
    e(f"s_lshl_b32 s{sJ}, s{sT+1}, 1")
    e(f"s_add_u32 s{sJ}, s{sJ}, s{sT}")
    e(f"s_lshl_b32 s{sJ}, s{sJ}, 10")
    e(f"s_add_u32 s{sT}, s{sT}, 4")
    e(f"s_lshl_b32 s{sT}, s{sT}, 10")
    e(f"s_lshl_b32 s{sT+1}, s{sT+1}, 9")
    e(f"s_add_u32 s{sJ+1}, s{sT}, s{sT+1}")
    e(f"s_mov_b32 s{sMaskW}, 0x00010001")
    e(f"s_mov_b32 s{sMaskW+1}, 0x00010001")
    e("s_waitcnt lgkmcnt(0)")
    nonce_fix()
    row_stats()
    for w in range(7):
        e(f"s_cmp_eq_u32 s{sWave}, {w}")
        e(f"s_cbranch_scc1 L_p1_Q{w}")
    e("s_branch L_p1_Q7")

    lab("L_F")
    w_touch("F")
    e(f"v_mul_u32_u24 v{vWl}, {F_GP}, v{vT}")
    e(f"v_mul_u32_u24 v{vT+3}, {F_P}, v{vT+1}")
    e(f"v_add_u32 v{vWl}, v{vWl}, v{vT+3}")
    e(f"v_lshl_add_u32 v{vWl}, v{vT+2}, 3, v{vWl}")
    e(f"v_mov_b32 v{vWa}, v{vWl}")
    srd(S_X, 4, 2048 * 1280)
    fL16, fTr, fCSu, fCSh, fSm = 2, 3, 4, 5, 6
    e(f"v_lshlrev_b32 v{fL16}, 4, v{vLane}")
    cfg_lookup(FCFG)
    e(f"v_lshlrev_b32 v{vT+3}, 4, v{vT}")
    e(f"s_lshl_b32 s{sT}, s{sH0}, 6")
    e(f"s_add_u32 s{sT}, s{sT}, {F_MISC+FM_CS}")
    e(f"v_add_u32 v{fCSh}, s{sT}, v{vT+3}")
    e(f"s_lshl_b32 s{sT}, s{sU0}, 6")
    e(f"s_add_u32 s{sT}, s{sT}, {F_MISC+FM_CS}")
    e(f"v_add_u32 v{fCSu}, s{sT}, v{vT+3}")
    e(f"v_and_b32 v{fSm}, 15, v{vLane}")
    e(f"v_lshlrev_b32 v{fSm}, 3, v{fSm}")
    e(f"s_lshl_b32 s{sT}, s{sRh}, 9")
    e(f"s_add_u32 s{sT}, s{sT}, {F_MISC+FM_ST}")
    e(f"v_add_u32 v{fSm}, s{sT}, v{fSm}")
    e(f"s_mov_b32 s{sMaskW}, 0x00010001")
    e(f"s_mov_b32 s{sMaskW+1}, 0x00010001")
    sRow, sF = sKW, sKX
    e(f"s_lshl_b32 s{sRow}, s{sRB}, 7")
    e(f"s_bfe_u32 s{sT}, s2, 0x10004")
    e(f"s_lshl_b32 s{sT}, s{sT}, 6")
    e(f"s_add_u32 s{sRow}, s{sRow}, s{sT}")
    e(f"s_lshr_b32 s{sF}, s2, 4")
    e(f"s_cmp_ge_u32 s{sWave}, 4")
    e("s_cbranch_scc1 L_F_helper")
    if TOUCH:
        e(f"v_mul_u32_u24 v{vT+3}, 26, v{vLane}")
        e(f"v_lshrrev_b32 v{vT+3}, 8, v{vT+3}")
        e(f"v_mul_u32_u24 v{vT+4}, 10, v{vT+3}")
        e(f"v_sub_u32 v{vT+4}, v{vLane}, v{vT+4}")
        e(f"v_lshlrev_b32 v{vT+4}, 7, v{vT+4}")
        e(f"s_and_b32 s{sT}, s2, 3")
        e(f"s_lshl_b32 s{sT}, s{sT}, 4")
        e(f"s_mul_i32 s{sT+4}, s{sRow}, 1280")
        e(f"s_mov_b32 s{sT+6}, -1")
        e(f"s_mov_b32 s{sT+7}, 0x0fffffff")
        for i in range(2):
            e(f"s_mul_i32 s{sT+2}, s{sWave}, 12")
            e(f"s_add_u32 s{sT+2}, s{sT+2}, {6*i}")
            e(f"v_add_u32 v{vT+5}, s{sT+2}, v{vT+3}")
            e(f"v_cmp_le_u32 vcc, s{sT}, v{vT+5}")
            e(f"v_add_u32 v{vT+6}, 16, v{vT+5}")
            e("s_nop 0")
            e(f"v_cndmask_b32 v{vT+5}, v{vT+5}, v{vT+6}, vcc")
            e(f"v_mul_u32_u24 v{vT+5}, 1280, v{vT+5}")
            e(f"v_add_u32 v{vT+7+i}, v{vT+5}, v{vT+4}")
        e(f"v_mul_u32_u24 v{vT+3}, 57, v{vLane}")
        e(f"v_lshrrev_b32 v{vT+3}, 9, v{vT+3}")
        e(f"v_mul_u32_u24 v{vT+4}, 9, v{vT+3}")
        e(f"v_sub_u32 v{vT+4}, v{vLane}, v{vT+4}")
        e(f"v_mul_u32_u24 v{vT+5}, 86, v{vT+4}")
        e(f"v_lshrrev_b32 v{vT+5}, 8, v{vT+5}")
        e(f"v_mul_u32_u24 v{vT+3}, 3840, v{vT+3}")
        e(f"v_lshl_add_u32 v{vT+3}, v{vT+4}, 7, v{vT+3}")
        e(f"v_mul_u32_u24 v{vT+5}, {1280-384}, v{vT+5}")
        e(f"v_add_u32 v{vT+3}, v{vT+3}, v{vT+5}")
        e(f"v_mul_u32_u24 v{vT+4}, 43, v{vLane}")
        e(f"v_lshrrev_b32 v{vT+4}, 8, v{vT+4}")
        e(f"v_mul_u32_u24 v{vT+4}, {3072-768}, v{vT+4}")
        e(f"v_lshl_add_u32 v{vT+4}, v{vLane}, 7, v{vT+4}")
        e(f"s_mul_i32 s{sT}, s{sF}, 40")
        e(f"s_mul_i32 s{sT+1}, s{sWave}, 10")
        e(f"s_add_u32 s{sT}, s{sT}, s{sT+1}")
        e(f"s_and_b32 s{sT+1}, s2, 3")
        e(f"s_mul_i32 s{sT+2}, s{sT+1}, 320")
        e(f"s_and_b32 s{sT+2}, s{sT+2}, 0xffffff80")
        e(f"s_mul_i32 s{sT+3}, s{sT}, 3840")
        e(f"s_add_u32 s{sT+2}, s{sT+2}, s{sT+3}")
        e(f"s_add_u32 s{sT+3}, s{sT+2}, {5*3840}")
        e(f"s_mul_i32 s{sT+1}, s{sT+1}, 768")
        e(f"s_mul_i32 s{sT}, s{sT}, 3072")
        e(f"s_add_u32 s{sT}, s{sT}, s{sT+1}")
        srd(S_W, 6, 640 * 3840)
        srd(S_R, 32, 640 * 3072)
        e(f"s_mov_b64 exec, s[{sT+6}:{sT+7}]")
        e(f"buffer_load_dword v{vT+10}, v{vT+4}, s[{S_R}:{S_R+3}], s{sT} offen")
        e(f"buffer_load_dword v{vT+10}, v{vT+7}, s[{S_X}:{S_X+3}], s{sT+4} offen")
        e(f"buffer_load_dword v{vT+10}, v{vT+8}, s[{S_X}:{S_X+3}], s{sT+4} offen")
        e(f"s_mov_b32 s{sT+7}, 0x1fff")
        e(f"s_mov_b64 exec, s[{sT+6}:{sT+7}]")
        e(f"buffer_load_dword v{vT+10}, v{vT+3}, s[{S_W}:{S_W+3}], s{sT+2} offen")
        e(f"buffer_load_dword v{vT+10}, v{vT+3}, s[{S_W}:{S_W+3}], s{sT+3} offen")
        e("s_mov_b64 exec, -1")
    for r in range(vACC + 32, vACC + 64):
        e(f"v_mov_b32 v{r}, 0")
    lab("L_F_go")
    for r in list(range(vACC, vACC + 32)) + list(range(vHACC, vHACC + 8)):
        e(f"v_mov_b32 v{r}, 0")
    for r in range(4):
        e(f"v_mov_b32 v{vOnes+r}, 0x3f803f80")
    e(f"s_mov_b32 s{sNxt}, {F_STAGE}")
    e("s_waitcnt lgkmcnt(0)")
    nonce_fix()
    row_stats()
    for w in range(7):
        e(f"s_cmp_eq_u32 s{sWave}, {w}")
        e(f"s_cbranch_scc1 L_p1_F{w}")
    e("s_branch L_p1_F7")

    lab("L_F_helper")
    sStD, sD1, sD2, sJb1, sNJ = sJ, sJ + 1, sJ + 2, sJ + 3, sJ + 4
    vR = 64
    JV1 = [77, 78, 79, 85, 86, 87]
    JV2 = [93, 94, 95, 69, 9, 15]
    for r_ in JV1 + JV2:
        e(f"v_mov_b32 v{r_}, 0")
    srd(S_W, 36, 1536 * 1280)
    e(f"s_and_b32 s{sT}, s2, 3")
    e(f"s_lshl_b32 s{sT}, s{sT}, 4")
    e(f"s_lshl_b32 s{sT+1}, s{sS}, 2")
    e(f"s_add_u32 s{sT+1}, s{sT+1}, s{sT}")
    e(f"s_add_u32 s{sT+1}, s{sT+1}, s{sRow}")
    e(f"s_mul_i32 s{sRow}, s{sT+1}, 1280")
    e(f"s_lshl_b32 s{sStD}, s{sT+1}, 4")
    e(f"s_add_u32 s{sStD}, s{sStD}, {ST_OFF}")
    srd(S_DBG, 34, 3072)
    sKS, sPair, sBase, sJa, sJb, sP, sTt = sWoff, sXoff, sHoff, sMaskH, sMaskH + 1, sCur, 98
    e(f"s_bfe_u32 s{sKS}, s2, 0x20001")
    e(f"s_mul_i32 s{sKS}, s{sKS}, 17")
    e(f"s_add_u32 s{sKS}, s{sKS}, s{sF}")
    e(f"s_and_b32 s{sPair}, s2, 1")
    e(f"s_lshl_b32 s{sPair}, s{sPair}, 1")
    e(f"s_lshr_b32 s{sP}, s{sS}, 1")
    e(f"s_add_u32 s{sPair}, s{sPair}, s{sP}")
    e(f"s_mul_i32 s{sJb1}, s{sP}, 10240")
    e(f"s_and_b32 s{sTt}, s{sS}, 1")
    e(f"s_lshl_b32 s{sTt}, s{sTt}, 12")
    e(f"s_add_u32 s{sJb1}, s{sJb1}, s{sTt}")
    e(f"s_add_u32 s{sJb1}, s{sJb1}, {F_JOB}")
    e(f"s_cmp_eq_u32 s{sF}, s{sS}")
    e(f"s_cselect_b32 s{sNJ}, 2, 1")
    e(f"s_mov_b32 s{sT+6}, 0")
    lab("L_F_jobissue")
    e(f"s_sub_u32 s{sT}, s{sKS}, 48")
    e(f"s_mul_i32 s{sP}, s{sT}, 52")
    e(f"s_lshr_b32 s{sP}, s{sP}, 8")
    e(f"s_mul_i32 s{sTt}, s{sP}, 5")
    e(f"s_sub_u32 s{sTt}, s{sT}, s{sTt}")
    e(f"s_mul_i32 s{sP}, s{sP}, 160")
    e(f"s_lshr_b32 s{sBase}, s{sTt}, 1")
    e(f"s_mul_i32 s{sBase}, s{sBase}, 80")
    e(f"s_and_b32 s{sJa}, s{sTt}, 1")
    e(f"s_lshl_b32 s{sJa}, s{sJa}, 3")
    e(f"s_add_u32 s{sBase}, s{sBase}, s{sJa}")
    e(f"s_cmp_eq_u32 s{sTt}, 4")
    e(f"s_cselect_b32 s{sBase}, 16, s{sBase}")
    e(f"s_cselect_b32 s{sJa}, 40, 20")
    e(f"s_cselect_b32 s{sJb}, 20, 4")
    e(f"s_add_u32 s{sBase}, s{sBase}, s{sP}")
    e(f"s_lshl_b32 s{sP}, s{sKS}, 5")
    e(f"s_mov_b32 s{S_R+2}, {640*1280}")
    e(f"s_cmp_ge_u32 s{sKS}, 48")
    e(f"s_cselect_b32 s{sBase}, s{sBase}, s{sP}")
    e(f"s_cselect_b32 s{sJa}, s{sJa}, 4")
    e(f"s_cselect_b32 s{sJb}, s{sJb}, 16")
    e(f"s_cselect_b32 s{S_R}, s28, s36")
    e(f"s_cselect_b32 s{S_R+1}, s29, s37")
    e(f"s_cselect_b32 s{S_R+2}, s{S_R+2}, {1536*1280}")
    e(f"s_and_b32 s{S_R+1}, s{S_R+1}, 0xffff")
    e(f"s_mov_b32 s{S_R+3}, 0x00020000")
    e(f"s_mul_i32 s{sBase}, s{sBase}, 1280")
    e(f"s_mul_i32 s{sP}, s{sPair}, 320")
    e(f"s_add_u32 s{sBase}, s{sBase}, s{sP}")
    e(f"s_mul_i32 s{sJa}, s{sJa}, 1280")
    e(f"s_mul_i32 s{sJb}, s{sJb}, 1280")
    e(f"s_mul_i32 s{sD2}, s{sPair}, 68")
    e(f"s_add_u32 s{sD2}, s{sD2}, s{sKS}")
    e(f"s_bitcmp1_b32 s{sS}, 0")
    e("s_cbranch_scc1 L_F_jobW_i")
    for part, nch in ((0, 8), (1, 12)):
        if part == 1:
            lab("L_F_jobW_i")
        for i in range(nch // 2):
            q, rho, t1 = vT + 3, vT + 4, vT + 5
            e(f"v_add_u32 v{q}, {64*i}, v{vLane}")
            if nch == 8:
                e(f"v_lshrrev_b32 v{rho}, 3, v{q}")
                e(f"v_and_b32 v{q}, 7, v{q}")
            else:
                e(f"v_mul_u32_u24 v{rho}, 171, v{q}")
                e(f"v_lshrrev_b32 v{rho}, 11, v{rho}")
                e(f"v_mul_u32_u24 v{t1}, 12, v{rho}")
                e(f"v_sub_u32 v{q}, v{q}, v{t1}")
            e(f"v_and_b32 v{t1}, 3, v{rho}")
            e(f"v_mul_u32_u24 v{t1}, 1280, v{t1}")
            e(f"v_lshl_add_u32 v{q}, v{q}, 4, v{t1}")
            e(f"v_bfe_u32 v{t1}, v{rho}, 2, 2")
            e(f"v_mad_u32_u24 v{q}, v{t1}, s{sJa}, v{q}")
            e(f"v_lshrrev_b32 v{t1}, 4, v{rho}")
            e(f"v_mad_u32_u24 v{q}, v{t1}, s{sJb}, v{q}")
            if part == 1:
                e(f"v_add_u32 v{q}, 128, v{q}")
            e(f"v_add_u32 v{JV2[i]}, s{sBase}, v{q}")
        n = nch // 2
        e(f"s_mul_i32 s{sD2}, s{sD2}, {n*1024}")
        e(f"s_add_u32 s{sD2}, s{sD2}, {B2N_OFF if part == 0 else B2W_OFF}")
        e(f"v_lshrrev_b32 v{fTr}, 2, v{vLane}")
        e(f"v_mul_u32_u24 v{fTr}, {32*n}, v{fTr}")
        e(f"v_mul_u32_u24 v{vT+4}, {8*n}, v{vT+2}")
        e(f"v_add_u32 v{fTr}, v{fTr}, v{vT+4}")
        if part == 0:
            e("s_branch L_F_jobnext")
    lab("L_F_jobnext")
    e(f"s_add_u32 s{sT+6}, s{sT+6}, 1")
    e(f"s_cmp_ge_u32 s{sT+6}, 2")
    e("s_cbranch_scc1 L_F_jobs_done")
    e(f"s_mov_b32 s{sD1}, s{sD2}")
    for i_ in range(6):
        e(f"v_mov_b32 v{JV1[i_]}, v{JV2[i_]}")
    for i_ in range(3):
        e(f"s_mov_b32 s{S_W+i_}, s{S_R+i_}")
    e(f"s_mov_b32 s{S_W+3}, 0x00020000")
    e(f"s_cmp_eq_u32 s{sNJ}, 1")
    e("s_cbranch_scc1 L_F_jobs_done")
    e(f"s_sub_u32 s{sKS}, s{sKS}, s{sF}")
    e(f"s_add_u32 s{sKS}, s{sKS}, 16")
    e("s_branch L_F_jobissue")
    lab("L_F_jobs_done")
    e("s_setprio 1")
    e("s_branch L_F_go")

    lab("L_task_jdma")
    e(f"s_mul_i32 s{sT+4}, s{sG}, 384")
    e(f"v_lshlrev_b32 v{vT+3}, 3, v{vLane}")
    e(f"buffer_load_dwordx2 v[70:71], v{vT+3}, s[{S_DBG}:{S_DBG+3}], s{sT+4} offen")
    for jn, (JV, SR) in enumerate(((JV1, S_W), (JV2, S_R))):
        if jn == 0:
            e(f"s_mov_b32 m0, s{sJb1}")
        else:
            e(f"s_cmp_eq_u32 s{sNJ}, 1")
            e("s_cbranch_scc1 L_task_ret")
            e(f"s_mov_b32 m0, {F_JOB+20480}")
        for i in range(6):
            if i == 4:
                e(f"s_bitcmp0_b32 s{sS}, 0")
                e(f"s_cbranch_scc1 L_task_jd{jn}")
            e("s_nop 0")
            e(f"buffer_load_dwordx4 v{JV[i]}, s[{SR}:{SR+3}], 0 offen lds")
            e(f"s_add_u32 m0, m0, 1024")
        lab(f"L_task_jd{jn}")
    e(f"s_setpc_b64 s[{sRet}:{sRet+1}]")
    lab("L_task")
    for it_, tgt in ((0, "L_task_jdma"), (2, "L_task_0"), (3, "L_task_j2"), (6, "L_task_6")):
        e(f"s_cmp_eq_u32 s{sIt}, {it_}")
        e(f"s_cbranch_scc1 {tgt}")
    e(f"s_cmp_lg_u32 s{sIt}, 5")
    e("s_cbranch_scc1 L_task_ret")
    e("s_waitcnt vmcnt(0)")
    e(f"s_setpc_b64 s[{sRet}:{sRet+1}]")
    lab("L_task_0")
    e("s_waitcnt vmcnt(0)")
    e(f"v_lshlrev_b32 v16, 16, v70")
    e(f"v_and_b32 v17, 0xffff0000, v70")
    e(f"v_lshlrev_b32 v18, 16, v71")
    e(f"v_and_b32 v19, 0xffff0000, v71")
    e(f"v_add_u32 v20, {F_MISC+FM_B1}, v{fL16}")
    e(f"s_mov_b32 s{sT+2}, -1")
    e(f"s_mov_b32 s{sT+3}, 0xffff")
    e(f"s_mov_b64 exec, s[{sT+2}:{sT+3}]")
    e(f"ds_write_b128 v20, v[16:19]")
    e("s_mov_b64 exec, -1")
    e(f"v_add_u32 v24, s{sJb1}, v{fTr}")
    e(f"s_mov_b32 s{sT}, s{sD1}")
    lab("L_task_job")
    e(f"s_add_u32 s{sT+1}, s{sT}, 4096")
    e(f"s_bitcmp1_b32 s{sS}, 0")
    e("s_cbranch_scc1 L_task_jobW")
    sets = [104, 120, 16]
    for part, n in ((0, 4), (1, 6)):
        if part == 1:
            lab("L_task_jobW")
        pitch = 32 * n
        e("s_waitcnt lgkmcnt(0)")
        for U in range(n):
            rg = sets[U >> 1] + 4 * (U & 1)
            for h in range(2):
                e(f"ds_read_b64_tr_b16 {vr(rg+2*h,2)}, v24 offset:{8*U+16*pitch*h}")
        for U in range(n):
            rg = sets[U >> 1] + 4 * (U & 1)
            e(f"s_waitcnt lgkmcnt({2*(n-1-U)})")
            e(f"buffer_store_dwordx4 {vr(rg,4)}, v{fL16}, s[{S_WS}:{S_WS+3}], s{sT + (U >> 2)} offen offset:{1024*(U&3)} sc1")
        e(f"s_setpc_b64 s[{sRet}:{sRet+1}]")
    lab("L_task_6")
    e(f"s_cmp_lg_u32 s{sWave}, 4")
    e("s_cbranch_scc1 L_task_ret")
    e(f"s_lshl_b32 s{sT}, s{sRB}, 4")
    e(f"s_add_u32 s{sT}, s{sT}, s{sG}")
    e(f"s_lshl_b32 s{sT}, s{sT}, 7")
    e(f"s_add_u32 s{sT}, s{sT}, {FL_OFF+1024}")
    e(f"v_mov_b32 v24, s{sNo}")
    e(f"v_mov_b32 v25, s{sNo+1}")
    e(f"v_mov_b32 v26, 0")
    e("s_mov_b64 exec, 1")
    e(f"buffer_store_dwordx2 v[24:25], v26, s[{S_WS}:{S_WS+3}], s{sT} offen offset:8 sc1")
    e("s_mov_b64 exec, -1")
    e(f"s_setpc_b64 s[{sRet}:{sRet+1}]")
    lab("L_task_j2")
    e(f"s_cmp_eq_u32 s{sNJ}, 1")
    e("s_cbranch_scc1 L_task_ret")
    e(f"v_add_u32 v24, {F_JOB+20480}, v{fTr}")
    e(f"s_mov_b32 s{sT}, s{sD2}")
    e("s_branch L_task_job")
    lab("L_task_ret")
    e(f"s_setpc_b64 s[{sRet}:{sRet+1}]")

    for typ in "QF":
        for w in range(8):
            p1_loop(typ, w)

    lab("L_epi_Q")
    vST = vXF
    for i in range(4):
        e(f"ds_read_b32 v{vST+i}, v{qSm} offset:{128*(i+1)}")
    e(f"ds_read_b32 v{vST+4}, v{qSa}")
    e(f"s_mov_b64 exec, s[{sMaskW}:{sMaskW+1}]")
    e("s_nop 1")
    for j in range(4):
        e(f"s_cmp_le_u32 s{sNH}, {j}")
        e("s_cbranch_scc1 L_q_cs_done")
        e(f"ds_write_b128 v{qCSh}, {vr(vHACC+4*j,4)} offset:{64*j}")
    lab("L_q_cs_done")
    e("s_mov_b64 exec, -1")
    e("s_waitcnt lgkmcnt(0)")
    e("s_barrier")
    stamp(5)
    vCS, vCSH = vWF, 136
    for u in range(4):
        e(f"ds_read_b128 {vr(vCS+4*u,4)}, v{qCSu} offset:{64*u}")
    for j in range(4):
        e(f"ds_read_b128 {vr(vCSH+4*j,4)}, v{qCSh} offset:{64*j}")
    vRK = 152
    for kb in range(3):
        e(f"ds_read_b128 {vr(vRK+4*kb,4)}, v{qRk} offset:{16*kb}")
    e(f"ds_read_b32 v164, v{qRq} offset:32")

    def norm_unit(a, cs, nm, addr, off):
        for r in range(4):
            e(f"v_fmac_f32 v{a+r}, v{cs+r}, v{nm}")
        e(f"v_cvt_pk_bf16_f32 v{a}, v{a}, v{a+1}")
        e(f"v_cvt_pk_bf16_f32 v{a+1}, v{a+2}, v{a+3}")
        e(f"ds_write_b64 v{addr}, v[{a}:{a+1}] offset:{off}")

    for u in range(4):
        if u == 3:
            e(f"s_cmp_eq_u32 s{sNU}, 3")
            e("s_cbranch_scc1 L_q_skip3")
        if u == 0:
            e("s_waitcnt lgkmcnt(11)")
        if u == 1:
            e("s_waitcnt lgkmcnt(12)")
        for i in range(4):
            norm_unit(acc(u, i), vCS + 4 * u, vST + i, qPw, u * PLANE + (i & 1) * 2560 + (i >> 1) * 128)
    lab("L_q_skip3")
    e("s_waitcnt lgkmcnt(12)")
    for j in range(4):
        e(f"s_cmp_le_u32 s{sNH}, {j}")
        e("s_cbranch_scc1 L_q_halo_done")
        norm_unit(vHACC + 4 * j, vCSH + 4 * j, vST + 4, qPh, j * PLANE)
    lab("L_q_halo_done")
    vLg = 112
    vKf, vVf, vQf, vO, vPf, vOp = 32, 62, 92, 32, 104, 124
    vAt, vAq, vAv = qAt, qAq, qAv
    cexp = (20 ** -0.5) * 1.4426950408889634
    e(f"v_mul_f32 v164, {f32(cexp)}, v164")
    e("s_waitcnt lgkmcnt(0)")
    stamp(6)
    e("s_barrier")
    stamp(7)

    def qk_reads(t):
        e(f"ds_read_b64 {vr(vQf+2*t,2)}, v{vAq} offset:{t*PLANE}")
        for kb in range(3):
            e(f"ds_read_b64 {vr(vKf+2*(3*t+kb),2)}, v{vAt} offset:{t*PLANE+32*kb}")
    for t in range(2):
        qk_reads(t)
    for t in range(5):
        if t < 3:
            qk_reads(t + 2)
        e(f"s_waitcnt lgkmcnt({min(8, 4*(4-t))})")
        for kb in range(3):
            cin = "0" if t == 0 else vr(vLg + 4 * kb, 4)
            e(f"v_mfma_f32_4x4x4_16b_bf16 {vr(vLg+4*kb,4)}, {vr(vKf+2*(3*t+kb),2)}, {vr(vQf+2*t,2)}, {cin}")
    for kb in range(3):
        for t in range(5):
            e(f"ds_read_b64_tr_b16 {vr(vVf+2*(5*kb+t),2)}, v{vAv} offset:{(5+t)*PLANE+32*kb}")
    for pp in range(1, 12):
        if pp == 8:
            e(f"v_mul_f32 v{vLg+pp}, v{vLg+pp}, v{vRK+pp}")
        else:
            e(f"v_fma_f32 v{vLg+pp}, v{vLg+pp}, v{vRK+pp}, v{qMk(pp)}")
    m = 136
    e(f"v_max3_f32 v{m}, v{vLg+1}, v{vLg+2}, v{vLg+3}")
    e(f"v_max3_f32 v{m+1}, v{vLg+4}, v{vLg+5}, v{vLg+6}")
    e(f"v_max3_f32 v{m+2}, v{vLg+7}, v{vLg+8}, v{vLg+9}")
    e(f"v_max3_f32 v{m}, v{m}, v{vLg+10}, v{vLg+11}")
    e(f"v_max3_f32 v{m}, v{m}, v{m+1}, v{m+2}")
    e(f"v_mul_f32 v{m}, v{m}, v164")
    for pp in range(1, 12):
        e(f"v_fma_f32 v{vLg+pp}, v{vLg+pp}, v164, -v{m}")
    for pp in range(1, 12):
        e(f"v_exp_f32 v{vLg+pp}, v{vLg+pp}")
    e(f"v_add_f32 v{m}, v{vLg+1}, v{vLg+2}")
    e(f"v_add_f32 v{m+1}, v{vLg+3}, v{vLg+4}")
    for pp in range(5, 11, 2):
        e(f"v_add_f32 v{m}, v{m}, v{vLg+pp}")
        e(f"v_add_f32 v{m+1}, v{m+1}, v{vLg+pp+1}")
    e(f"v_add_f32 v{m}, v{m}, v{vLg+11}")
    e(f"v_add_f32 v{m}, v{m}, v{m+1}")
    e(f"v_rcp_f32 v{m}, v{m}")
    e(f"v_mov_b32 v{vLg}, 0")
    for pp in range(1, 12):
        e(f"v_mul_f32 v{vLg+pp}, v{vLg+pp}, v{vRK+pp}")
    for j in range(6):
        e(f"v_cvt_pk_bf16_f32 v{vPf+j}, v{vLg+2*j}, v{vLg+2*j+1}")
    e("s_waitcnt lgkmcnt(0)")
    e("s_nop 0")
    for kb in range(3):
        for t in range(5):
            cin = "0" if kb == 0 else vr(vO + 4 * t, 4)
            e(f"v_mfma_f32_4x4x4_16b_bf16 {vr(vO+4*t,4)}, {vr(vVf+2*(5*kb+t),2)}, {vr(vPf+2*kb,2)}, {cin}")
    e("s_nop 1")
    for t in range(5):
        for r in range(4):
            e(f"v_mul_f32 v{vO+4*t+r}, v{vO+4*t+r}, v{m}")
        e(f"v_cvt_pk_bf16_f32 v{vOp+2*t}, v{vO+4*t}, v{vO+4*t+1}")
        e(f"v_cvt_pk_bf16_f32 v{vOp+2*t+1}, v{vO+4*t+2}, v{vO+4*t+3}")
    e(f"buffer_store_dwordx4 {vr(vOp,4)}, v{qOa}, s[{S_WS}:{S_WS+3}], s{sJ} offen sc1")
    e(f"buffer_store_dwordx4 {vr(vOp+4,4)}, v{qOa}, s[{S_WS}:{S_WS+3}], s{sJ} offen offset:1024 sc1")
    e(f"buffer_store_dwordx2 {vr(vOp+8,2)}, v{qOb}, s[{S_WS}:{S_WS+3}], s{sJ+1} offen sc1")
    stamp(8)
    p2_compute("Q")

    lab("L_epi_F")
    e("s_setprio 0")
    vST = 160
    vB1 = 128
    for i in range(4):
        e(f"ds_read_b64 v[{vST+2*i}:{vST+2*i+1}], v{fSm} offset:{128*i}")
    for u in range(4):
        e(f"ds_read_b128 {vr(vB1+4*u,4)}, v{fCSu} offset:{64*u+FM_B1-FM_CS}")
    e(f"s_mov_b64 exec, s[{sMaskW}:{sMaskW+1}]")
    e(f"ds_write_b128 v{fCSh}, {vr(vHACC,4)}")
    e(f"s_cmp_le_u32 s{sNH}, 1")
    e("s_cbranch_scc1 L_f_cs_done")
    e(f"ds_write_b128 v{fCSh}, {vr(vHACC+4,4)} offset:64")
    lab("L_f_cs_done")
    e("s_mov_b64 exec, -1")
    e(f"s_lshl_b32 s{sT}, s{sRB}, 3")
    e(f"s_lshl_b32 s{sT+1}, s{sRh}, 2")
    e(f"s_add_u32 s{sT}, s{sT}, s{sT+1}")
    e(f"s_mul_i32 s{sT}, s{sT}, 68")
    e(f"s_mul_i32 s{sT+1}, s{sG}, 6")
    e(f"s_add_u32 s{sT}, s{sT}, s{sT+1}")
    e(f"s_lshr_b32 s{sT+1}, s{sU0}, 1")
    e(f"s_add_u32 s{sT}, s{sT}, s{sT+1}")
    e(f"s_lshl_b32 s{sT}, s{sT}, 10")
    for i in range(1, 4):
        e(f"s_add_u32 s{sT+i}, s{sT}, {i*68*1024}")
    vPw = fL16
    e("s_waitcnt lgkmcnt(0)")
    e("s_barrier")
    stamp(5)
    for u in range(4):
        e(f"ds_read_b128 {vr(vCS+4*u,4)}, v{fCSu} offset:{64*u}")
    vPk = 144
    k = 0
    for pr in range(2):
        if pr == 1:
            e(f"s_cmp_eq_u32 s{sNU}, 2")
            e("s_cbranch_scc1 L_f_done")
        e(f"s_waitcnt lgkmcnt({2-2*pr})")
        for i in range(4):
            pk = vPk + 4 * (k & 3); k += 1
            nm, rs = vST + 2 * i, vST + 2 * i + 1
            for uu in range(2):
                u = 2 * pr + uu
                a = acc(u, i)
                for r in range(4):
                    e(f"v_fmac_f32 v{a+r}, v{vCS+4*u+r}, v{nm}")
                for r in range(4):
                    e(f"v_fma_f32 v{a+r}, v{a+r}, v{rs}, v{vB1+4*u+r}")
                for r in range(4):
                    e(f"v_max_f32 v{a+r}, 0, v{a+r}")
                for r in range(4):
                    e(f"v_mul_f32 v{a+r}, v{a+r}, v{a+r}")
                e(f"v_cvt_pk_bf16_f32 v{pk+2*uu}, v{a}, v{a+1}")
                e(f"v_cvt_pk_bf16_f32 v{pk+2*uu+1}, v{a+2}, v{a+3}")
            e(f"buffer_store_dwordx4 {vr(pk,4)}, v{vPw}, s[{S_WS}:{S_WS+3}], s{sT+i} offen offset:{1024*pr} sc1")
    lab("L_f_done")
    stamp(6)
    e("s_waitcnt vmcnt(0) lgkmcnt(0)")
    stamp(7)
    e("s_barrier")
    stamp(8)
    p2_compute("F")
    lab("L_end")
    e("s_endpgm")


def main():
    L.append("; Fused LN + [QKV|W1] GEMM + dilated local attention + [h|o]x[w2;wo] GEMM + gating, one persistent kernel")
    L.append(f"; @launch grid=(256,1,1) block=(768,1,1) lds={LDS_TOTAL}")
    L.append('.amdgcn_target "amdgcn-amd-amdhsa--gfx950"')
    L.append(".text")
    gen()
    L.append('.section .rodata,"a"')
    L.append(".p2align 6")
    L.append(f".amdhsa_kernel {NAME}_kernel")
    L.append(f"  .amdhsa_next_free_vgpr {NVGPR}")
    L.append("  .amdhsa_next_free_sgpr 102")
    L.append(f"  .amdhsa_accum_offset {NVGPR}")
    L.append("  .amdhsa_group_segment_fixed_size 0")
    L.append("  .amdhsa_kernarg_size 88")
    L.append("  .amdhsa_user_sgpr_count 2")
    L.append("  .amdhsa_user_sgpr_kernarg_segment_ptr 1")
    L.append("  .amdhsa_system_sgpr_workgroup_id_x 1")
    L.append(".end_amdhsa_kernel")
    out = sys.argv[1] if len(sys.argv) > 1 else OUT
    open(out, "w").write("\n".join(L) + "\n")
    print("wrote", out, len(L), "lines")


main()
```

```python
import sys
import os
import struct

NAME = "recurrent_scan__sliding_local_dilated__dense_activation_squared_relu__prompt"
OUT = f"cdna_kernels/{NAME}.s"
STAMP = os.environ.get("STAMP") in ("1", "2")
STAMP_RT = os.environ.get("STAMP") == "2"
STAMP_OFF = 16 << 20
L = []


DIAG = os.environ.get("DIAG", "")
ZONE = [""]


def e(s=""):
    if ZONE[0] == "p2c" and "nocomp2" in DIAG and (s.startswith("ds_read") or s.startswith("v_mfma")):
        return
    if ZONE[0] == "p2l" and "nodma2" in DIAG and s.startswith("buffer_load"):
        return
    if ZONE[0] == "p1c" and "nocomp1" in DIAG and (s.startswith("ds_read") or s.startswith("v_mfma")):
        return
    if ZONE[0] == "p1l" and "nodma1" in DIAG and s.startswith("buffer_load"):
        return
    L.append("    " + s)


def lab(s):
    L.append(s + ":")


def vr(a, n=1):
    return f"v{a}" if n == 1 else f"v[{a}:{a+n-1}]"


def f32(x):
    return hex(struct.unpack("<I", struct.pack("<f", x))[0])


A2_OFF = 0
A2_SIZE = 128 * 68 * 1024
B2N_OFF = A2_SIZE
B2W_OFF = B2N_OFF + 4 * 68 * 4096
ST_OFF = B2W_OFF + 4 * 68 * 6144
FL_OFF = ST_OFF + 2048 * 16
NONCE_OFF = FL_OFF + 256 * 128
WS_USED = NONCE_OFF + 128 if not STAMP else (32 << 20)

Q_P, Q_GP = 480, 3968
Q_XB = 8 * Q_GP
Q_STAGE = Q_XB + 9 * 2048
F_P, F_GP = 416, 3456
F_XB = 8 * F_GP
F_STAGE = F_XB + 8 * 2048
PLANE = 5120
Q_PL = Q_STAGE
Q_MISC = 3 * Q_STAGE
QM_ST, QM_CS, QM_RK = 0, 1152, 2112
Q_X2 = 153600
Q_B2 = Q_X2 + 8192
F_JOB = 3 * F_STAGE
F_MISC = 158720
FM_ST, FM_CS, FM_B1, FM_CNT = 0, 1024, 1792, 2560
F_X2 = 143360
F_B2 = F_X2 + 12288
LDS_TOTAL = 162048
assert Q_B2 + 256 <= LDS_TOTAL and F_MISC + FM_CNT + 4 <= LDS_TOTAL and F_B2 + 384 <= F_MISC
assert F_JOB + 2 * 4096 + 3 * 6144 <= F_MISC and Q_MISC + QM_RK + 640 <= Q_X2
P2 = {"Q": dict(n=4, slot=16384, nslot=9, first=8, X=Q_X2, B2=Q_B2, boff=B2N_OFF),
      "F": dict(n=6, slot=20480, nslot=7, first=3, X=F_X2, B2=F_B2, boff=B2W_OFF)}

S_X, S_W, S_WS, S_R, S_DBG = 8, 12, 16, 20, 24
sWave, sS, sG, sRB = 40, 41, 42, 43
sCur, sNxt, sKW, sKX, sIt = 44, 45, 46, 47, 48
sWoff, sXoff, sHoff = 49, 50, 51
sMaskW, sMaskH = 52, 54
sT = 56
sA = 70
sRh, sU0, sH0, sNH = 70, 71, 72, 73
sRet = 96
sNo = 30
sNU = 74
sJ = 75
sSt = 80

vLane = 1
vX0, vX1, vH0 = 2, 3, 4
vWd = 6
vWl, vXl0, vXl1, vWa, vXa = 10, 11, 12, 13, 14
vT = 16
vOnes = 28
vACC = 32
vHACC = 96
vWF = 112
vXF = 128
NVGPR = 168
qAt, qAq, qAv, qRk, qOa, qOb, qPw, qPh = 2, 3, 4, 5, 6, 7, 8, 9
qCSu, qCSh, qSa, qSm, qRq = 15, 16, 17, 18, 19


def qMk(p):
    return 20 + (p - 1 if p < 8 else p - 2)


TOUCH = os.environ.get("TOUCH", "0") == "1"
CODEPF = os.environ.get("CODEPF", "1") == "1"
BPF = os.environ.get("BPF", "0") == "1"
TOUCH2 = os.environ.get("TOUCH2", "1") == "1"
ROT = os.environ.get("ROT", "0") == "1"
TSKIP = int(os.environ.get("TSKIP", "38"))
DBGOUT = os.environ.get("DBGOUT", "0") == "1"
TSH = int(os.environ.get("TSH", "0"))


def acc(u, i):
    return vACC + (u * 4 + i) * 4


def wf(u):
    return vWF + 4 * u


def xf(b, i):
    return vXF + (b * 5 + i) * 4


def srd(d, base, nrec):
    e(f"s_mov_b32 s{d}, s{base}")
    e(f"s_and_b32 s{d+1}, s{base+1}, 0xffff")
    e(f"s_mov_b32 s{d+2}, {nrec}")
    e(f"s_mov_b32 s{d+3}, 0x00020000")


def nonce_load():
    e(f"s_add_u32 s{sNo}, s68, {NONCE_OFF}")
    e(f"s_addc_u32 s{sNo+1}, s69, 0")
    e(f"s_load_dwordx2 s[{sNo}:{sNo+1}], s[{sNo}:{sNo+1}], 0")


def nonce_fix():
    e(f"s_add_u32 s{sNo}, s{sNo}, 1")
    e(f"s_addc_u32 s{sNo+1}, s{sNo+1}, 0")


def stamp(i, real=False):
    if STAMP:
        e(f"{'s_memrealtime' if (real or STAMP_RT) else 's_memtime'} s[100:101]")
        e("s_waitcnt lgkmcnt(0)")
        e(f"s_mov_b32 s{sSt+i}, s100")


def stamp_flush():
    if STAMP:
        e("s_waitcnt vmcnt(0)")
        stamp(13)
        stamp(15, real=True)
        for i in range(16):
            e(f"v_mov_b32 v{32+i}, s{sSt+i}")
        e(f"s_mul_i32 s{sT}, s2, 12")
        e(f"s_add_u32 s{sT}, s{sT}, s{sWave}")
        e(f"s_lshl_b32 s{sT}, s{sT}, 6")
        e(f"s_add_u32 s{sT}, s{sT}, {STAMP_OFF}")
        e("v_mov_b32 v48, 0")
        e("s_mov_b64 exec, 1")
        for i in range(4):
            e(f"buffer_store_dwordx4 v[{32+4*i}:{35+4*i}], v48, s[{S_WS}:{S_WS+3}], s{sT} offen offset:{16*i}")


QCFG = [(0, 0, 4, 0, 4), (0, 4, 4, 0, 4), (0, 8, 4, 0, 2), (1, 4, 4, 0, 0),
        (0, 12, 3, 0, 2), (1, 12, 3, 2, 1), (1, 0, 4, 0, 0), (1, 8, 4, 2, 2)]
FCFG = [(0, 0, 4, 0, 2), (0, 6, 4, 0, 2), (1, 0, 4, 2, 2), (1, 6, 4, 2, 2),
        (0, 4, 2, 0, 1), (0, 10, 2, 0, 1), (1, 4, 2, 1, 1), (1, 10, 2, 1, 1)]


def p1_dma(typ):
    P2_ = 960 if typ == "Q" else 832
    GP = Q_GP if typ == "Q" else F_GP
    RP = 3840 if typ == "Q" else 3072
    e(f"s_add_u32 m0, s{sCur}, s{sXoff}")
    e(f"s_add_u32 s{sT}, s{sKX}, 1280")
    e(f"buffer_load_dwordx4 v{vX0}, s[{S_X}:{S_X+3}], s{sKX} offen lds")
    e(f"buffer_load_dwordx4 v{vX1}, s[{S_X}:{S_X+3}], s{sKX} offen offset:1024 lds")
    e(f"s_add_u32 m0, m0, 2048")
    e("s_nop 0")
    e(f"buffer_load_dwordx4 v{vX0}, s[{S_X}:{S_X+3}], s{sT} offen lds")
    e(f"buffer_load_dwordx4 v{vX1}, s[{S_X}:{S_X+3}], s{sT} offen offset:1024 lds")
    if typ == "Q":
        e(f"s_add_u32 m0, s{sCur}, s{sHoff}")
        e(f"s_mov_b64 exec, s[{sMaskH}:{sMaskH+1}]")
        e(f"buffer_load_dwordx4 v{vH0}, s[{S_X}:{S_X+3}], s{sKX} offen lds")
    e(f"s_add_u32 m0, s{sCur}, s{sWoff}")
    e(f"s_mov_b64 exec, s[{sMaskW}:{sMaskW+1}]")
    for t in range(4):
        e(f"buffer_load_dwordx4 v{vWd+t}, s[{S_W}:{S_W+3}], s{sKW} offen offset:{P2_*t} lds")
    e(f"s_add_u32 m0, m0, {4*GP}")
    e(f"s_add_u32 s{sT}, s{sKW}, {32*RP}")
    for t in range(4):
        e(f"buffer_load_dwordx4 v{vWd+t}, s[{S_W}:{S_W+3}], s{sT} offen offset:{P2_*t} lds")
    e("s_mov_b64 exec, -1")
    e(f"s_add_u32 s{sKW}, s{sKW}, {64*RP}")
    e(f"s_add_u32 s{sKX}, s{sKX}, 128")
    STG = Q_STAGE if typ == "Q" else F_STAGE
    e(f"s_add_u32 s{sCur}, s{sCur}, {STG}")
    e(f"s_cmp_eq_u32 s{sCur}, {3*STG}")
    e(f"s_cselect_b32 s{sCur}, 0, s{sCur}")


def p1_loop(typ, w):
    rh, u0, nu, h0, nh = (QCFG if typ == "Q" else FCFG)[w]
    STG = Q_STAGE if typ == "Q" else F_STAGE
    P, GP, XB = (Q_P, Q_GP, Q_XB) if typ == "Q" else (F_P, F_GP, F_XB)
    tag = f"{typ}{w}"
    usehx = typ == "Q" and nh > 0
    tasks = typ == "F" and w >= 4
    tlast = 6

    def xreads(b):
        o = []
        for i in range(4):
            off = XB + 2048 * (4 * rh + i + (1 if typ == "Q" else 0))
            o.append(f"ds_read_b128 {vr(xf(b,i),4)}, v{vXa} offset:{off}")
        if usehx:
            o.append(f"ds_read_b128 {vr(xf(b,4),4)}, v{vXa} offset:{XB}")
        return o

    def wreads(u, ks):
        U = u0 + u
        col = (U // 5) * 160 + 8 * (U % 5) if typ == "Q" else 32 * U
        return [f"ds_read_b64_tr_b16 {vr(wf(u)+2*h,2)}, v{vWa} offset:{ks*4*GP+h*4*P+col}" for h in range(2)]

    def mfmas(u, b):
        o = [f"v_mfma_f32_16x16x32_bf16 {vr(acc(u,i),4)}, {vr(wf(u),4)}, {vr(xf(b,i),4)}, {vr(acc(u,i),4)}" for i in range(4)]
        if h0 <= u < h0 + nh:
            a = vHACC + 4 * (u - h0)
            bsrc = xf(b, 4) if typ == "Q" else vOnes
            o.append(f"v_mfma_f32_16x16x32_bf16 {vr(a,4)}, {vr(wf(u),4)}, {vr(bsrc,4)}, {vr(a,4)}")
        return o

    lab(f"L_p1_{tag}")
    stamp(2)
    e("s_barrier")
    stamp(3)
    for x in xreads(0):
        e(x)
    for u in range(nu):
        for x in wreads(u, 0):
            e(x)
    e(f"v_mov_b32 v{vXa}, v{vXl1}")
    e("s_waitcnt lgkmcnt(0)")
    lab(f"L_p1_{tag}_loop")
    body = []
    NB = 1
    for ph in range(2):
        pend = []
        if ph == 0:
            pend += [("l", x, ("x", 1)) for x in xreads(1)]
        for u in range(nu):
            if ph == 1 and u == NB:
                body.append(("o", f"v_add_u32 v{vXa}, s{sNxt}, v{vXl0}"))
                body.append(("o", f"v_add_u32 v{vWa}, s{sNxt}, v{vWl}"))
                if tasks:
                    body.append(("o", f"s_cmp_gt_u32 s{sIt}, {tlast}"))
                    body.append(("o", f"s_cbranch_scc1 L_p1_{tag}_nt"))
                    body.append(("o", f"s_call_b64 s[{sRet}:{sRet+1}], {'L_task' if typ == 'F' else 'L_syncQ'}"))
                    body.append(("lab", f"L_p1_{tag}_nt"))
                    body.append(("w0", "s_waitcnt lgkmcnt(0)"))
                else:
                    body.append(("w0", "s_waitcnt lgkmcnt(0)"))
                body.append(("o", "s_barrier"))
                pend = [("l", x, ("x", 0)) for x in xreads(0)] + pend
            ms = mfmas(u, ph)
            rem_after = sum(len(mfmas(uu, ph)) for uu in range(u + 1, nu))
            for mi, m in enumerate(ms):
                body.append(("m", m, [("w", u, ph), ("x", ph)] if mi == 0 else []))
                if mi == len(ms) - 1:
                    pend += [("l", x, ("w", u, 1 - ph)) for x in wreads(u, 1 - ph)]
                if not (ph == 1 and u < NB):
                    left = len(ms) - 1 - mi + rem_after + 1
                    k = 1 if len(pend) <= left else 2
                    while pend and k > 0:
                        body.append(pend.pop(0)); k -= 1
        while pend:
            body.append(pend.pop(0))
        if ph == 1:
            body.append(("o", f"v_add_u32 v{vXa}, s{sNxt}, v{vXl1}"))
            body.append(("o", f"s_add_u32 s{sNxt}, s{sNxt}, {STG}"))
            body.append(("o", f"s_cmp_eq_u32 s{sNxt}, {3*STG}"))
            body.append(("o", f"s_cselect_b32 s{sNxt}, 0, s{sNxt}"))
            body.append(("o", f"s_add_u32 s{sIt}, s{sIt}, 1"))
    n = len(body)
    waits = {}
    covered, ops = -1, []
    for pos, it in enumerate(body + body):
        if it[0] == "l":
            ops.append(it[2])
        elif it[0] == "w0":
            covered = len(ops) - 1
        elif it[0] == "m" and it[2]:
            need = -1
            for tg in it[2]:
                idx = [i for i, t in enumerate(ops) if t == tg]
                if idx:
                    need = max(need, idx[-1])
            if need > covered:
                cnt = min(13, len(ops) - 1 - need)
                covered = len(ops) - 1 - cnt
                if pos >= n:
                    waits[pos - n] = min(cnt, waits.get(pos - n, 99))
                else:
                    waits[pos] = cnt
    ops, covered = [], -1
    for pos, it in enumerate(body * 3):
        p0 = pos % n
        if p0 in waits:
            covered = max(covered, len(ops) - 1 - waits[p0])
        if it[0] == "l":
            ops.append(it[2])
        elif it[0] == "w0":
            covered = len(ops) - 1
        elif it[0] == "m" and it[2]:
            for tg in it[2]:
                idx = [i for i, t in enumerate(ops) if t == tg]
                assert not idx or idx[-1] <= covered, (tag, pos, tg)
    ZONE[0] = "p1c"
    for pos, it in enumerate(body):
        if pos in waits:
            e(f"s_waitcnt lgkmcnt({waits[pos]})")
        if it[0] == "lab":
            lab(it[1])
        else:
            e(it[1])
    ZONE[0] = ""
    e(f"s_cmp_lt_u32 s{sIt}, 10")
    e(f"s_cbranch_scc1 L_p1_{tag}_loop")
    e("s_waitcnt lgkmcnt(0)")
    stamp(4)
    e(f"s_branch L_epi_{typ}")


_spin = [0]


def spin_check(vreg, want_s, reload_fn, wide=True):
    k = _spin[0]; _spin[0] += 1
    regs = vreg if isinstance(vreg, list) else [vreg]
    e(f"s_mov_b32 s{sT+7}, 0")
    lab(f"L_spin{k}")
    for i, r in enumerate(regs):
        dst = "vcc" if i == 0 else f"s[{sT+4}:{sT+5}]"
        if wide:
            e(f"v_cmp_ne_u64 {dst}, s[{want_s}:{want_s+1}], v[{r}:{r+1}]")
        else:
            e(f"v_cmp_ne_u32 {dst}, s{want_s}, v{r}")
        if i:
            e("s_nop 1")
            e(f"s_or_b64 vcc, vcc, s[{sT+4}:{sT+5}]")
    e("s_nop 1")
    e(f"s_cmp_eq_u64 vcc, 0")
    e(f"s_cbranch_scc1 L_spin{k}_ok")
    e(f"s_add_u32 s{sT+7}, s{sT+7}, 1")
    e(f"s_cmp_gt_u32 s{sT+7}, 0x40000")
    e(f"s_cbranch_scc1 L_spin{k}_ok")
    e("s_sleep 2")
    reload_fn()
    e("s_waitcnt vmcnt(0)")
    e(f"s_branch L_spin{k}")
    lab(f"L_spin{k}_ok")


def loader(typ):
    N = 13 if typ == "Q" else 12
    p = P2[typ]
    n, SLOT, NSLOT = p["n"], p["slot"], p["nslot"]
    NBq = n // 2
    N2 = 2 + NBq
    vP, vFa, vL16, vSa = vT + 8, vT + 9, vT + 10, vT + 11
    vE1, vGl, vLs, vRs, vD = 32, 33, 34, 35, 36
    vP = 40
    sSrcA, sSrcB, sDst, sMA, sMB, sOne, sFl = sA, sA + 1, sA + 2, sA + 3, sA + 4, sA + 5, sA + 6
    e(f"s_mov_b32 s{sCur}, 0")
    nonce_load()
    p1_dma(typ)
    p1_dma(typ)
    srd(S_WS, 68, WS_USED)
    e(f"s_waitcnt vmcnt({N}) lgkmcnt(0)")
    e("s_barrier")
    stamp(1)
    p1_dma(typ)
    e(f"v_lshlrev_b32 v{vL16}, 4, v{vLane}")
    e(f"v_lshlrev_b32 v{vFa}, 7, v{vLane}")
    e(f"v_lshlrev_b32 v{vSa}, 2, v{vLane}")
    nonce_fix()
    e(f"v_lshrrev_b32 v{vE1}, 2, v{vLane}")
    e(f"v_lshlrev_b32 v{vE1}, 4, v{vE1}")
    e(f"v_bfe_u32 v{vT}, v{vLane}, 1, 1")
    e(f"v_lshl_add_u32 v{vE1}, v{vT}, 2, v{vE1}")
    e(f"v_and_b32 v{vT}, 1, v{vLane}")
    e(f"v_add_u32 v{vE1}, v{vE1}, v{vT}")
    e(f"s_and_b32 s{sT}, s2, 1")
    e(f"s_lshl_b32 s{sT}, s{sT}, 1")
    e(f"s_add_u32 s{sT}, s{sT}, 8")
    e(f"v_add_lshl_u32 v{vE1}, v{vE1}, s{sT}, 7")
    per = 36 if typ == "Q" else 32
    t0, t1, t2, t3 = vT, vT + 1, vT + 2, vT + 3
    e(f"s_mul_i32 s{sT}, s{sS}, {per}")
    if typ == "Q":
        e(f"s_sub_u32 s{sT}, s{sT}, 16")
    e(f"v_add_u32 v{t0}, s{sT}, v{vLane}")
    e(f"s_lshl_b32 s{sT}, s{sRB}, 7")
    e(f"v_add_u32 v{t1}, s{sT}, v{t0}")
    e(f"v_max_i32 v{t1}, 0, v{t1}")
    e(f"v_lshlrev_b32 v{vGl}, 4, v{t1}")
    e(f"v_ashrrev_i32 v{t1}, 5, v{t0}")
    e(f"v_and_b32 v{t2}, 1, v{t0}")
    e(f"v_lshl_add_u32 v{t1}, v{t1}, 1, v{t2}")
    e(f"v_bfe_u32 v{t3}, v{t0}, 1, 4")
    e(f"v_lshl_add_u32 v{t1}, v{t1}, 4, v{t3}")
    if typ == "Q":
        e(f"v_add_u32 v{t1}, 16, v{t1}")
        e(f"v_and_b32 v{t3}, 7, v{t3}")
        e(f"v_cmp_gt_i32 vcc, 0, v{t0}")
        e(f"v_lshl_add_u32 v{t3}, v{t2}, 3, v{t3}")
        e("s_nop 0")
        e(f"v_cndmask_b32 v{t1}, v{t1}, v{t3}, vcc")
    e(f"v_lshlrev_b32 v{vLs}, 3, v{t1}")
    e(f"v_add_u32 v{vLs}, {(Q_MISC+QM_ST) if typ == 'Q' else (F_MISC+FM_ST)}, v{vLs}")
    if typ == "Q":
        e(f"v_add_u32 v{t1}, 16, v{t0}")
        e(f"v_lshrrev_b32 v{t1}, 1, v{t1}")
        e(f"v_mul_u32_u24 v{t2}, 320, v{t2}")
        e(f"v_lshl_add_u32 v{vRs}, v{t1}, 2, v{t2}")
        e(f"v_add_u32 v{vRs}, {Q_MISC+QM_RK}, v{vRs}")
    e(f"s_bfe_u32 s{sT}, s2, 0x10001")
    e(f"s_lshl_b32 s{sT+1}, s{sRB}, 1")
    e(f"s_add_u32 s{sT}, s{sT}, s{sT+1}")
    e(f"s_lshl_b32 s{sFl}, s{sRB}, 11")
    e(f"s_add_u32 s{sFl}, s{sFl}, {FL_OFF}")
    e(f"s_lshl_b32 s{sSrcA}, s{sT}, 2")
    e(f"s_add_u32 s{sSrcA}, s{sSrcA}, s{sS}")
    e(f"s_mul_i32 s{sSrcA}, s{sSrcA}, {68*1024}")
    e(f"s_and_b32 s{sT}, s2, 1")
    e(f"s_lshl_b32 s{sT}, s{sT}, 1")
    e(f"s_bfe_u32 s{sT+1}, s2, 0x10004")
    e(f"s_add_u32 s{sT}, s{sT}, s{sT+1}")
    e(f"s_mul_i32 s{sSrcB}, s{sT}, {68*n*1024}")
    e(f"s_mul_i32 s{sMB}, s{sS}, {NBq*1024}")
    e(f"s_add_u32 s{sSrcB}, s{sSrcB}, s{sMB}")
    e(f"s_add_u32 s{sSrcB}, s{sSrcB}, {p['boff']}")
    e(f"s_lshl_b32 s{sMA}, s{sS}, 11")
    e(f"s_add_u32 s{sMA}, s{sMA}, {2*n*1024}")
    e(f"s_mov_b32 s{sOne}, 1")
    e(f"s_mov_b32 s{sIt}, 0")
    lab(f"L_ld{typ}_loop")
    e(f"s_waitcnt vmcnt({N})")
    e("s_barrier")
    if STAMP:
        for it_, ix in ((0, 2), (2, 3), (5, 4), (6, 6)):
            e(f"s_cmp_lg_u32 s{sIt}, {it_}")
            e(f"s_cbranch_scc1 L_ld{typ}_st{it_}")
            stamp(ix)
            lab(f"L_ld{typ}_st{it_}")
    ZONE[0] = "p1l"
    p1_dma(typ)
    ZONE[0] = ""
    e(f"s_add_u32 s{sIt}, s{sIt}, 1")
    e(f"s_cmp_lt_u32 s{sIt}, 7")
    e(f"s_cbranch_scc1 L_ld{typ}_loop")
    e(f"s_waitcnt vmcnt({N})")
    e("s_barrier")
    stamp(7)

    def ld_stats():
        e(f"s_mov_b32 s{sT}, {ST_OFF}")
        e(f"s_mov_b32 s{sT+2}, -1")
        e(f"s_mov_b32 s{sT+3}, {0xf if typ == 'Q' else 0}")
        e(f"s_mov_b64 exec, s[{sT+2}:{sT+3}]")
        e(f"buffer_load_dwordx4 {vr(vD,4)}, v{vGl}, s[{S_WS}:{S_WS+3}], s{sT} offen sc1")
    ld_stats()
    e("s_waitcnt vmcnt(1)")
    e("s_barrier")
    stamp(10)
    e("s_waitcnt vmcnt(0)")
    spin_check(vD + 2, sNo, ld_stats)
    e(f"ds_write_b64 v{vLs}, v[{vD}:{vD+1}]")
    if typ == "Q":
        e(f"ds_write_b32 v{vRs}, v{vD+1}")
    e("s_mov_b64 exec, -1")
    stamp(9)

    def ld_bflags():
        e(f"s_mov_b32 s{sT}, {FL_OFF}")
        e(f"buffer_load_dwordx2 v[{vP}:{vP+1}], v{vE1}, s[{S_WS}:{S_WS+3}], s{sT} offen offset:8 sc1")
    e("s_waitcnt lgkmcnt(0)")

    sBaseA, sBaseB, sJJ = sKW, sKX, sWoff
    sMk = sMaskH
    Qs = []

    def slot_of(k):
        return ((p["first"] + k) % NSLOT) * SLOT

    def set_src(k, which):
        src, base, stride = (sSrcA, sBaseA, 2048) if which == "A" else (sSrcB, sBaseB, 2 * n * 1024)
        if k < 24 and k % 6 == 0:
            e(f"s_add_u32 s{sT}, s{sJJ}, {k//6}")
            e(f"s_and_b32 s{sT}, s{sT}, 3")
            e(f"s_mul_i32 s{sT}, s{sT}, {6*stride}")
            e(f"s_add_u32 s{src}, s{base}, s{sT}")
        elif k == 24:
            e(f"s_add_u32 s{src}, s{base}, {24*stride}")

    def dmaB(k):
        set_src(k, "B")
        e(f"s_add_u32 m0, s{sMB}, {slot_of(k)}")
        e("s_nop 0")
        ZONE[0] = "p2l"
        for i in range(NBq):
            e(f"buffer_load_dwordx4 v{vL16}, s[{S_WS}:{S_WS+3}], s{sSrcB} offen offset:{1024*i} sc1 lds")
            Qs.append(("S", k))
        ZONE[0] = ""
        e(f"s_add_u32 s{sSrcB}, s{sSrcB}, {2*n*1024}")

    def dmaA(k):
        set_src(k, "A")
        e(f"s_add_u32 m0, s{sMA}, {slot_of(k)}")
        e("s_nop 0")
        ZONE[0] = "p2l"
        for i in range(2):
            e(f"buffer_load_dwordx4 v{vL16}, s[{S_WS}:{S_WS+3}], s{sSrcA} offen offset:{1024*i} sc1 lds")
            Qs.append(("S", k))
        ZONE[0] = ""
        e(f"s_add_u32 s{sSrcA}, s{sSrcA}, 2048")

    def ld_flags():
        e("s_mov_b64 exec, 0xffff")
        e(f"buffer_load_dwordx2 v[{vP+2}:{vP+3}], v{vFa}, s[{S_WS}:{S_WS+3}], s{sFl} offen sc1")
        e(f"s_mov_b64 exec, s[{sMk}:{sMk+1}]")

    def poll():
        ld_flags()
        e("s_mov_b64 exec, -1")
        Qs.append(("P",))

    def wait_for(pred):
        idx = [i for i, t in enumerate(Qs) if pred(t)]
        if idx:
            e(f"s_waitcnt vmcnt({min(63, len(Qs) - 1 - idx[-1])})")
            del Qs[:idx[-1] + 1]

    def check(blk):
        if blk < 4:
            e(f"s_add_u32 s{sT}, s{sJJ}, {blk}")
            e(f"s_and_b32 s{sT}, s{sT}, 3")
            e(f"s_lshl_b32 s{sT}, s{sT}, 1")
            e(f"s_lshl_b32 s{sMk}, 0x300, s{sT}")
        else:
            e(f"s_mov_b32 s{sMk}, 0xff")
        wait_for(lambda t: t[0] == "P")
        e(f"s_mov_b64 exec, s[{sMk}:{sMk+1}]")
        spin_check(vP + 2, sNo, ld_flags)
        e("s_mov_b64 exec, -1")

    e(f"s_mov_b32 s{sBaseA}, s{sSrcA}")
    e(f"s_mov_b32 s{sBaseB}, s{sSrcB}")
    e(f"s_add_u32 s{sJJ}, s2, 1")
    e(f"s_mov_b32 s{sMk}, 0xffff")
    e(f"s_mov_b32 s{sMk+1}, 0")
    ld_bflags()
    e("s_barrier")
    stamp(11)
    e("s_barrier")
    e("s_waitcnt vmcnt(0)")
    spin_check(vP, sNo, ld_bflags)
    stamp(8)
    PRE = 4 if typ == "Q" else 6
    PREB = 4 if typ == "Q" else 7
    for k in range(PREB):
        dmaB(k)
    poll()
    if typ == "Q":
        e("s_barrier")
    check(0)
    stamp(5)
    for k in range(PRE):
        dmaA(k)
    poll()
    nA, nB = PRE, PREB
    TEND = None
    for T in range(17):
        if nA == 34:
            TEND = T - 1
            break
        wait_for(lambda t: t[0] == "S" and t[1] <= 2 * T + 1)
        e("s_barrier")
        k = 0
        while nA <= min(33, 2 * T - 1 + NSLOT) and k < 4:
            if nA % 6 == 0 and nA <= 24:
                check(nA // 6)
                if nA == 24 and typ == "Q":
                    srd(S_DBG, 66, 256)
                    e(f"s_lshl_b32 s{sT}, s{sRB}, 2")
                    e(f"s_or_b32 s{sT+1}, s{sG}, s{sS}")
                    e(f"s_cmp_eq_u32 s{sT+1}, 0")
                    e(f"s_cselect_b32 s{sT}, s{sT}, 0x1000")
                    e(f"v_mov_b32 v{vT}, 1")
                    e(f"v_mov_b32 v{vT+1}, 0")
                    e("s_mov_b64 exec, 1")
                    e(f"buffer_store_dword v{vT}, v{vT+1}, s[{S_DBG}:{S_DBG+3}], s{sT} offen sc1")
                    e("s_mov_b64 exec, -1")
                    Qs.append(("X",))
            if nB <= nA:
                dmaB(nB); nB += 1
            dmaA(nA); nA += 1
            if nA % 6 == 2 and 6 < nA < 24:
                poll()
            k += 1
    nch = 2 * n
    rows_per = 64 // nch
    if typ == "F":
        rows_per = 4
    nin = 16 // rows_per
    srd(S_R, 38, 1280)
    if typ == "Q":
        e(f"v_lshrrev_b32 v{vT}, 3, v{vLane}")
        e(f"v_and_b32 v{vT+1}, 7, v{vLane}")
    else:
        e(f"v_mul_u32_u24 v{vT}, 43, v{vLane}")
        e(f"v_lshrrev_b32 v{vT}, 9, v{vT}")
        e(f"v_mul_u32_u24 v{vT+1}, 12, v{vT}")
        e(f"v_sub_u32 v{vT+1}, v{vLane}, v{vT+1}")
    e(f"v_mul_u32_u24 v{vT}, 2560, v{vT}")
    e(f"v_lshl_add_u32 v{vT}, v{vT+1}, 4, v{vT}")
    p2_rowcol(typ, sT, sT + 1)
    e(f"s_mul_i32 s{sT+2}, s{sS}, {16*nch*16}")
    e(f"s_add_u32 m0, s{sT+2}, {p['X']}")
    if typ == "F":
        e(f"s_mov_b32 s{sT+2}, -1")
        e(f"s_mov_b32 s{sT+3}, 0xffff")
        e(f"s_mov_b64 exec, s[{sT+2}:{sT+3}]")
    for i in range(nin):
        lo = rows_per * nch * 16 * i
        e(f"s_add_u32 s{sT+4}, s{sT}, {i*rows_per*2560-lo}")
        e(f"buffer_load_dwordx4 v{vT}, s[{S_X}:{S_X+3}], s{sT+4} offen offset:{lo} lds")
    e("s_mov_b64 exec, -1")
    e(f"buffer_load_dword v{vT+2}, v{vSa}, s[{S_R}:{S_R+3}], s{sT+1} offen")
    e(f"v_lshlrev_b32 v{vT}, 3, v{vLane}")
    e(f"v_add_u32 v{vT}, {p['B2']}, v{vT}")
    Qs.extend([("X",)] * (nin + 1))
    for tt in range(TEND + 1, 17):
        if tt < 16:
            wait_for(lambda t: t[0] == "S" and t[1] <= 2 * tt + 1)
        else:
            e("s_waitcnt vmcnt(0)")
            e(f"v_lshlrev_b32 v{vT+4}, 16, v{vT+2}")
            e(f"v_and_b32 v{vT+5}, 0xffff0000, v{vT+2}")
            e(f"s_mov_b32 s{sT+2}, -1")
            e(f"s_mov_b32 s{sT+3}, {0 if typ == 'Q' else 0xffff}")
            e(f"s_mov_b64 exec, s[{sT+2}:{sT+3}]")
            e(f"ds_write_b64 v{vT}, v[{vT+4}:{vT+5}]")
            e("s_waitcnt lgkmcnt(0)")
        e("s_barrier")
    e("s_mov_b64 exec, -1")
    if typ == "Q":
        e(f"s_or_b32 s{sT}, s2, s{sS}")
        e(f"s_cmp_lg_u32 s{sT}, 0")
        e("s_cbranch_scc1 L_ldQ_fin")
        srd(S_DBG, 66, 256)

        def ld_dbg():
            e(f"buffer_load_dword v{vP}, v{vSa}, s[{S_DBG}:{S_DBG+3}], 0 offen sc1")
        e("s_mov_b64 exec, 0xffff")
        ld_dbg()
        e(f"s_mov_b32 s{sT+6}, 1")
        e("s_waitcnt vmcnt(0)")
        spin_check(vP, sT + 6, ld_dbg, wide=False)
        e(f"v_mov_b32 v{vT}, s{sNo}")
        e(f"v_mov_b32 v{vT+1}, s{sNo+1}")
        e(f"v_mov_b32 v{vT+2}, 0")
        e(f"s_mov_b32 s{sT}, {NONCE_OFF}")
        e("s_mov_b64 exec, 1")
        e(f"buffer_store_dwordx2 v[{vT}:{vT+1}], v{vT+2}, s[{S_WS}:{S_WS+3}], s{sT} offen sc1")
        e("s_mov_b64 exec, -1")
        if DBGOUT:
            stamp(13)
            stamp(15, real=True)
            for i in range(16):
                base = sSt + (14 if i >= 14 else 0)
                e(f"s_sub_u32 s{sT}, s{sSt+i}, s{base}")
                e(f"v_mov_b32 v{48+i}, s{sT}")
            e("v_mov_b32 v64, 0")
            e("s_mov_b64 exec, 1")
            for i in range(4):
                e(f"buffer_store_dwordx4 v[{48+4*i}:{51+4*i}], v64, s[{S_DBG}:{S_DBG+3}], 0 offen offset:{16*i}")
            e("s_mov_b64 exec, -1")
        lab("L_ldQ_fin")
    stamp_flush()
    e("s_endpgm")


def p2_rowcol(typ, sd, sc):
    e(f"s_bfe_u32 s{sd}, s2, 0x10001")
    e(f"s_lshl_b32 s{sc}, s{sRB}, 1")
    e(f"s_add_u32 s{sd}, s{sd}, s{sc}")
    e(f"s_lshl_b32 s{sd}, s{sd}, 6")
    e(f"s_lshr_b32 s{sc}, s{sS}, 1")
    e(f"s_lshl_b32 s{sc}, s{sc}, 5")
    e(f"s_add_u32 s{sd}, s{sd}, s{sc}")
    e(f"s_and_b32 s{sc}, s{sS}, 1")
    e(f"s_add_u32 s{sd}, s{sd}, s{sc}")
    e(f"s_mul_i32 s{sd}, s{sd}, 1280")
    e(f"s_and_b32 s{sc}, s2, 1")
    e(f"s_lshl_b32 s{sc}, s{sc}, 1")
    e(f"s_bfe_u32 s{sd+2}, s2, 0x10004")
    e(f"s_add_u32 s{sc}, s{sc}, s{sd+2}")
    e(f"s_mul_i32 s{sc}, s{sc}, 320")
    if typ == "F":
        e(f"s_add_u32 s{sc}, s{sc}, 128")
    e(f"s_add_u32 s{sd}, s{sd}, s{sc}")


def p2_compute(typ):
    p = P2[typ]
    n, SLOT, NSLOT = p["n"], p["slot"], p["nslot"]
    nu = n // 2
    vAl, vBl, vAa, vBa = 10, 11, 12, 13
    vF, vS = 32, 44
    vFr = 64
    sHf = sA

    def fr(st, ks, i):
        return vFr + ((st * 2 + ks) * (1 + nu) + i) * 4
    lab(f"L_p2_{typ}")
    e(f"s_lshr_b32 s{sHf}, s{sWave}, 2")
    e(f"v_lshlrev_b32 v{vBl}, 4, v{vLane}")
    e(f"s_lshl_b32 s{sT}, s{sS}, 11")
    e(f"s_add_u32 s{sT}, s{sT}, {2*n*1024}")
    e(f"v_add_u32 v{vAl}, s{sT}, v{vBl}")
    e(f"s_mul_i32 s{sT}, s{sHf}, {nu*1024}")
    e(f"v_add_u32 v{vBl}, s{sT}, v{vBl}")
    for r in range(4 * nu):
        e(f"v_mov_b32 v{vF+r}, 0")
        e(f"v_mov_b32 v{vS+r}, 0")
    for r in range(2 * (1 + nu) * 4):
        e(f"v_mov_b32 v{fr(1,0,0)+r}, 0")
    e(f"s_mov_b32 s{sCur}, {p['first']*SLOT}")
    e(f"s_mov_b32 s{sIt}, 0")
    e(f"v_lshlrev_b32 v15, 7, v{vLane}")
    e(f"s_lshl_b32 s{sJ}, s{sRB}, 11")
    e(f"s_add_u32 s{sJ}, s{sJ}, {FL_OFF}")
    stamp(9)

    def half(st, accprev, first_wait=False):
        e(f"v_add_u32 v{vAa}, s{sCur}, v{vAl}")
        e(f"v_add_u32 v{vBa}, s{sCur}, v{vBl}")
        e("s_waitcnt lgkmcnt(0)")
        if st == 0:
            e("s_barrier")
        rds = []
        for ks in range(2):
            rds.append(f"ds_read_b128 {vr(fr(st,ks,0),4)}, v{vAa} offset:{1024*ks}")
            for i in range(nu):
                rds.append(f"ds_read_b128 {vr(fr(st,ks,1+i),4)}, v{vBa} offset:{(ks*n+i)*1024}")
        ms = []
        for ks in range(2):
            for i in range(nu):
                a = accprev + 4 * i
                ms.append(f"v_mfma_f32_16x16x32_bf16 {vr(a,4)}, {vr(fr(1-st,ks,1+i),4)}, {vr(fr(1-st,ks,0),4)}, {vr(a,4)}")
        sal = [f"s_add_u32 s{sCur}, s{sCur}, {SLOT}", f"s_cmp_eq_u32 s{sCur}, {NSLOT*SLOT}", f"s_cselect_b32 s{sCur}, 0, s{sCur}"]
        ZONE[0] = "p2c"
        e(rds.pop(0)); e(rds.pop(0))
        for m in ms:
            e(m)
            if rds:
                e(rds.pop(0))
            if rds and len(rds) > len(ms) - ms.index(m) - 1:
                e(rds.pop(0))
        for x in rds + sal:
            e(x)
        ZONE[0] = ""

    lab(f"L_p2_{typ}_h")
    LOOK = NSLOT - 1
    ICHK = (24 - NSLOT + 1) // 2
    vPo, vFo = 8, 15

    def ld_o():
        e("s_mov_b64 exec, 0xff")
        e(f"buffer_load_dwordx2 v[{vPo}:{vPo+1}], v{vFo}, s[{S_WS}:{S_WS+3}], s{sJ} offen sc1")
    if typ == "Q":
        e(f"s_cmp_gt_u32 s{sIt}, 2")
        e(f"s_cbranch_scc1 L_p2_{typ}_nv")
        e(f"s_cmp_lg_u32 s{sIt}, 1")
        e(f"s_cbranch_scc1 L_p2_{typ}_n1")
        e("s_waitcnt vmcnt(0)")
        lab(f"L_p2_{typ}_n1")
        e(f"s_cmp_lg_u32 s{sWave}, 0")
        e(f"s_cbranch_scc1 L_p2_{typ}_nv")
        e(f"s_cmp_lg_u32 s{sIt}, 2")
        e(f"s_cbranch_scc1 L_p2_{typ}_n2")
        e(f"s_lshl_b32 s{sT}, s{sG}, 7")
        e(f"s_add_u32 s{sT}, s{sT}, s{sJ}")
        e(f"v_mov_b32 v{vT}, s{sNo}")
        e(f"v_mov_b32 v{vT+1}, s{sNo+1}")
        e(f"v_mov_b32 v{vT+2}, 0")
        e("s_mov_b64 exec, 1")
        e(f"buffer_store_dwordx2 v[{vT}:{vT+1}], v{vT+2}, s[{S_WS}:{S_WS+3}], s{sT} offen sc1")
        e("s_mov_b64 exec, -1")
        lab(f"L_p2_{typ}_n2")
    lab(f"L_p2_{typ}_nv")
    half(0, vF)
    if STAMP:
        e(f"s_cmp_lg_u32 s{sIt}, 0")
        e(f"s_cbranch_scc1 L_p2_{typ}_ns")
        stamp(10)
        lab(f"L_p2_{typ}_ns")
    half(1, vF)
    e(f"s_add_u32 s{sIt}, s{sIt}, 1")
    e(f"s_cmp_lt_u32 s{sIt}, 12")
    e(f"s_cbranch_scc1 L_p2_{typ}_h")
    half(0, vF)
    half(1, vS)
    lab(f"L_p2_{typ}_o")
    half(0, vS)
    half(1, vS)
    e(f"s_add_u32 s{sIt}, s{sIt}, 1")
    e(f"s_cmp_lt_u32 s{sIt}, 16")
    e(f"s_cbranch_scc1 L_p2_{typ}_o")
    nel = 4 * nu
    vG, vSl = vT, vT + 1
    vBb, vXx, vE, vXf = fr(0, 0, 0), fr(0, 0, 0) + 12, 128, 144
    e(f"v_lshrrev_b32 v{vG}, 4, v{vLane}")
    e(f"v_and_b32 v{vSl}, 15, v{vLane}")
    e(f"v_mul_u32_u24 v{vT+2}, {16*n}, v{vG}")
    e(f"s_mul_i32 s{sT}, s{sHf}, {8*n}")
    e(f"s_add_u32 s{sT}, s{sT}, {p['B2']}")
    e(f"v_add_u32 v{vT+2}, s{sT}, v{vT+2}")
    e(f"v_mul_u32_u24 v{vT+3}, {32*n}, v{vSl}")
    e(f"v_mul_u32_u24 v{vT+4}, {8*n}, v{vG}")
    e(f"s_mul_i32 s{sT}, s{sS}, {16*32*n}")
    e(f"s_mul_i32 s{sT+1}, s{sHf}, {4*n}")
    e(f"s_add_u32 s{sT}, s{sT}, s{sT+1}")
    e(f"s_add_u32 s{sT}, s{sT}, {p['X']}")
    e(f"v_add3_u32 v{vT+3}, v{vT+3}, v{vT+4}, s{sT}")
    e(f"v_mul_u32_u24 v{vT+5}, 2560, v{vSl}")
    e(f"v_add3_u32 v{vT+5}, v{vT+5}, v{vT+4}, s{sT+1}")
    e("s_waitcnt lgkmcnt(0)")
    for i in range(nu):
        e(f"ds_read_b128 {vr(vBb+4*i,4)}, v{vT+2} offset:{16*i}")
    for i in range(nu):
        e(f"ds_read_b64 {vr(vXx+2*i,2)}, v{vT+3} offset:{8*i}")
    for ks in range(2):
        for i in range(nu):
            a = vS + 4 * i
            e(f"v_mfma_f32_16x16x32_bf16 {vr(a,4)}, {vr(fr(1,ks,1+i),4)}, {vr(fr(1,ks,0),4)}, {vr(a,4)}")
    stamp(11)
    p2_rowcol(typ, sT, sT + 1)
    srd(S_R, 64, 2048 * 1280)
    e(f"s_mov_b32 s{sT+1}, {f32(-1.4426950408889634)}")
    e("s_waitcnt lgkmcnt(0)")
    for r in range(nel):
        e(f"v_add_f32 v{vF+r}, v{vF+r}, v{vBb+r}")
    for r in range(nel):
        e(f"v_mul_f32 v{vE+r}, s{sT+1}, v{vF+r}")
    for r in range(nel):
        e(f"v_exp_f32 v{vE+r}, v{vE+r}")
    for d in range(nel // 2):
        e(f"v_lshlrev_b32 v{vXf+2*d}, 16, v{vXx+d}")
        e(f"v_and_b32 v{vXf+2*d+1}, 0xffff0000, v{vXx+d}")
    for r in range(nel):
        e(f"v_add_f32 v{vE+r}, 1.0, v{vE+r}")
    for r in range(nel):
        e(f"v_rcp_f32 v{vE+r}, v{vE+r}")
    for r in range(nel):
        e(f"v_mul_f32 v{vF+r}, v{vF+r}, v{vS+r}")
    for r in range(nel):
        e(f"v_fmac_f32 v{vXf+r}, v{vF+r}, v{vE+r}")
    for d in range(nel // 2):
        e(f"v_cvt_pk_bf16_f32 v{vBb+d}, v{vXf+2*d}, v{vXf+2*d+1}")
    e(f"buffer_store_dwordx4 {vr(vBb,4)}, v{vT+5}, s[{S_R}:{S_R+3}], s{sT} offen")
    if typ == "F":
        e(f"buffer_store_dwordx2 {vr(vBb+4,2)}, v{vT+5}, s[{S_R}:{S_R+3}], s{sT} offen offset:16")
    stamp(12)
    stamp_flush()
    e("s_endpgm")


def wave_sum(v, t):
    for ctl in ("quad_perm:[1,0,3,2]", "quad_perm:[2,3,0,1]", "row_half_mirror", "row_mirror"):
        e("s_nop 1")
        e(f"v_add_f32_dpp v{v}, v{v}, v{v} {ctl} row_mask:0xf bank_mask:0xf")
    for sw in ("v_permlane16_swap_b32", "v_permlane32_swap_b32"):
        e(f"v_mov_b32 v{t}, v{v}")
        e("s_nop 1")
        e(f"{sw} v{v}, v{t}")
        e("s_nop 0")
        e(f"v_add_f32 v{v}, v{v}, v{t}")


def wave_sum2(a, b, ta, tb):
    for ctl in ("quad_perm:[1,0,3,2]", "quad_perm:[2,3,0,1]", "row_half_mirror", "row_mirror"):
        e("s_nop 0")
        e(f"v_add_f32_dpp v{a}, v{a}, v{a} {ctl} row_mask:0xf bank_mask:0xf")
        e(f"v_add_f32_dpp v{b}, v{b}, v{b} {ctl} row_mask:0xf bank_mask:0xf")
    for sw in ("v_permlane16_swap_b32", "v_permlane32_swap_b32"):
        e(f"v_mov_b32 v{ta}, v{a}")
        e(f"v_mov_b32 v{tb}, v{b}")
        e("s_nop 1")
        e(f"{sw} v{a}, v{ta}")
        e(f"{sw} v{b}, v{tb}")
        e("s_nop 0")
        e(f"v_add_f32 v{a}, v{a}, v{ta}")
        e(f"v_add_f32 v{b}, v{b}, v{tb}")


def w_touch(typ):
    if not TOUCH2:
        return
    RP = 3840 if typ == "Q" else 3072
    nl = 50 if typ == "Q" else 60
    e(f"s_cmp_ge_u32 s{sWave}, {3 if typ == 'Q' else 2}")
    e(f"s_cbranch_scc1 L_notouch{typ}")
    e(f"v_lshlrev_b32 v{vXF+10}, 7, v{vLane}")
    srd(S_R, 6 if typ == "Q" else 32, 640 * RP)
    e(f"s_lshl_b32 s{sT}, s{sRB}, 3")
    e(f"s_add_u32 s{sT}, s{sT}, s{sG}")
    e(f"s_cmp_lt_u32 s{sT}, {TSKIP}")
    e(f"s_cbranch_scc1 L_notouch{typ}")
    e(f"s_mul_i32 s{sT}, s{sT}, {5*RP}")
    e(f"s_mul_i32 s{sT+1}, s{sWave}, {nl*128}")
    e(f"s_add_u32 s{sT}, s{sT}, s{sT+1}")
    e(f"s_mov_b32 s{sT+2}, -1")
    e(f"s_mov_b32 s{sT+3}, {hex((1 << (nl - 32)) - 1)}")
    e(f"s_mov_b64 exec, s[{sT+2}:{sT+3}]")
    e(f"buffer_load_dword v0, v{vXF+10}, s[{S_R}:{S_R+3}], s{sT} offen")
    e("s_mov_b64 exec, -1")
    lab(f"L_notouch{typ}")


def row_stats():
    U = [vXF + 12 + i for i in range(10)]
    M, O = vXF + 24, vXF + 28
    e("s_waitcnt vmcnt(0)")
    for d in range(5):
        e(f"v_lshlrev_b32 v{U[2*d]}, 16, v{vXF+d}")
        e(f"v_and_b32 v{U[2*d+1]}, 0xffff0000, v{vXF+d}")
    e(f"v_add_f32 v{M}, v{U[0]}, v{U[1]}")
    e(f"v_add_f32 v{M+1}, v{U[2]}, v{U[3]}")
    for k in range(4, 10, 2):
        e(f"v_add_f32 v{M}, v{M}, v{U[k]}")
        e(f"v_add_f32 v{M+1}, v{M+1}, v{U[k+1]}")
    e(f"v_add_f32 v{M}, v{M}, v{M+1}")
    wave_sum(M, M + 1)
    e(f"v_mul_f32 v{O}, {f32(-1.0/640)}, v{M}")
    for k in range(10):
        e(f"v_add_f32 v{U[k]}, v{U[k]}, v{O}")
    e(f"v_mul_f32 v{M}, v{U[0]}, v{U[0]}")
    e(f"v_mul_f32 v{M+1}, v{U[1]}, v{U[1]}")
    for k in range(2, 10, 2):
        e(f"v_fmac_f32 v{M}, v{U[k]}, v{U[k]}")
        e(f"v_fmac_f32 v{M+1}, v{U[k+1]}, v{U[k+1]}")
    e(f"v_add_f32 v{M}, v{M}, v{M+1}")
    wave_sum(M, M + 1)
    e(f"v_mov_b32 v{M+1}, {f32(1e-5)}")
    e(f"v_fmac_f32 v{M+1}, {f32(1.0/640)}, v{M}")
    e(f"v_rsq_f32 v{O+1}, v{M+1}")
    e(f"v_mov_b32 v{O+2}, s{sNo}")
    e(f"v_mov_b32 v{O+3}, s{sNo+1}")
    e(f"v_mov_b32 v{M}, 0")
    e("s_mov_b64 exec, 1")
    e(f"buffer_store_dwordx4 {vr(O,4)}, v{M}, s[{S_WS}:{S_WS+3}], s99 offen sc1")
    e("s_mov_b64 exec, -1")


def cfg_lookup(cfg):
    def tab(f):
        return hex(sum((f(c) & 15) << (4 * i) for i, c in enumerate(cfg)))
    e(f"s_lshl_b32 s{sT}, s{sWave}, 2")
    for dst, f in ((sRh, lambda c: c[0]), (sU0, lambda c: c[1]), (sH0, lambda c: c[1] + c[3]), (sNH, lambda c: c[4]), (sNU, lambda c: c[2])):
        e(f"s_lshr_b32 s{dst}, {tab(f)}, s{sT}")
        e(f"s_and_b32 s{dst}, s{dst}, 15")


def gen():
    K = NAME + "_kernel"
    L.append(f".globl {K}")
    L.append(".p2align 8")
    L.append(f".type {K},@function")
    lab(K)
    e("s_cmp_ge_u32 s2, 256")
    e("s_cbranch_scc1 L_end")
    stamp(0)
    stamp(14, real=True)
    e("s_load_dwordx4 s[4:7], s[0:1], 0")
    e("s_load_dwordx8 s[32:39], s[0:1], 32")
    e("s_load_dwordx2 s[28:29], s[0:1], 16")
    e("s_load_dwordx4 s[64:67], s[0:1], 64")
    e("s_load_dwordx2 s[68:69], s[0:1], 80")
    e(f"v_lshrrev_b32 v{vT}, 6, v0")
    e(f"v_and_b32 v{vLane}, 63, v0")
    e(f"v_readfirstlane_b32 s{sWave}, v{vT}")
    e(f"s_and_b32 s{sT}, s2, 3")
    e(f"s_lshl_b32 s{sT}, s{sT}, 1")
    e(f"s_bfe_u32 s{sG}, s2, 0x10004")
    e(f"s_add_u32 s{sG}, s{sG}, s{sT}")
    e(f"s_bfe_u32 s{sT}, s2, 0x10002")
    e(f"s_lshl_b32 s{sT}, s{sT}, 3")
    e(f"s_lshr_b32 s{sRB}, s2, 5")
    e(f"s_add_u32 s{sRB}, s{sRB}, s{sT}")
    e(f"s_and_b32 s{sS}, s{sWave}, 3")
    e(f"v_lshrrev_b32 v{vT}, 4, v{vLane}")
    e(f"s_cmp_lt_u32 s{sWave}, 8")
    e("s_cbranch_scc1 L_compute")

    e(f"v_and_b32 v{vT+1}, 7, v{vLane}")
    e(f"v_xor_b32 v{vT+5}, v{vT+1}, v{vT}")
    e(f"v_lshlrev_b32 v{vT+5}, 4, v{vT+5}")
    e(f"v_lshrrev_b32 v{vT+2}, 3, v{vLane}")
    e(f"v_mul_u32_u24 v{vT+2}, 2560, v{vT+2}")
    e(f"v_add_u32 v{vT+3}, v{vT+2}, v{vT+5}")
    e(f"v_xor_b32 v{vT+5}, 64, v{vT+5}")
    e(f"v_add_u32 v{vT+4}, v{vT+2}, v{vT+5}")
    e(f"s_lshl_b32 s{sT}, s{sRB}, 7")
    e(f"s_lshl_b32 s{sT+1}, s{sS}, 5")
    e(f"s_add_u32 s{sT+1}, s{sT+1}, s{sT}")
    e(f"s_mul_i32 s{sT+1}, s{sT+1}, 1280")
    e(f"v_add_u32 v{vX0}, s{sT+1}, v{vT+3}")
    e(f"s_add_u32 s{sT+1}, s{sT+1}, {16*1280-1024}")
    e(f"v_add_u32 v{vX1}, s{sT+1}, v{vT+4}")
    e(f"s_mov_b32 s{sKW}, 0")
    e(f"s_mov_b32 s{sKX}, 0")
    e("s_bitcmp1_b32 s2, 3")
    e("s_cbranch_scc1 L_ldF")
    e(f"s_lshl_b32 s{sT+1}, s{sS}, 1")
    e(f"v_add_u32 v{vT+3}, s{sT+1}, v{vT}")
    e(f"v_xor_b32 v{vT+3}, v{vT+3}, v{vT+1}")
    e(f"v_and_b32 v{vT+3}, 7, v{vT+3}")
    e(f"v_lshl_add_u32 v{vT+3}, v{vT+3}, 4, v{vT+2}")
    e(f"s_and_b32 s{sT+1}, s{sS}, 1")
    e(f"s_lshl_b32 s{sT+1}, s{sT+1}, 3")
    e(f"s_lshr_b32 s{sT+2}, s{sS}, 1")
    e(f"s_add_u32 s{sT+1}, s{sT+1}, s{sT+2}")
    e(f"s_add_u32 s{sT+1}, s{sT+1}, s{sT}")
    e(f"s_sub_u32 s{sT+1}, s{sT+1}, 16")
    e(f"s_mul_i32 s{sT+1}, s{sT+1}, 1280")
    e(f"v_add_u32 v{vH0}, s{sT+1}, v{vT+3}")
    e(f"s_lshl_b32 s{sHoff}, s{sS}, 9")
    e(f"s_add_u32 s{sHoff}, s{sHoff}, {Q_XB}")
    e(f"s_cmp_eq_u32 s{sS}, 0")
    e(f"s_cselect_b32 s{sMaskH}, 0xffffff00, -1")
    e(f"s_mov_b32 s{sMaskH+1}, 0")
    e(f"v_cmp_le_u32 vcc, 30, v{vLane}")
    e(f"v_mov_b32 v{vT+3}, 0")
    e(f"v_mov_b32 v{vT+4}, 30")
    e(f"v_cndmask_b32 v{vT+3}, v{vT+3}, v{vT+4}, vcc")
    e(f"v_sub_u32 v{vT+4}, v{vLane}, v{vT+3}")
    e(f"v_mul_u32_u24 v{vT+3}, 128, v{vT+3}")
    e(f"v_mul_u32_u24 v{vT+5}, 26, v{vT+4}")
    e(f"v_lshrrev_b32 v{vT+5}, 8, v{vT+5}")
    e(f"v_mul_u32_u24 v{vT+6}, 10, v{vT+5}")
    e(f"v_sub_u32 v{vT+4}, v{vT+4}, v{vT+6}")
    e(f"v_lshl_add_u32 v{vT+3}, v{vT+4}, 4, v{vT+3}")
    e(f"v_add_u32 v{vT+5}, 1, v{vT+5}")
    e(f"v_cmp_le_u32 vcc, 3, v{vT+5}")
    e(f"v_mov_b32 v{vT+6}, 0")
    e(f"s_mul_i32 s{sT}, s{sS}, {8*3840}")
    e(f"v_cndmask_b32 v{vT+5}, v{vT+5}, v{vT+6}, vcc")
    e(f"v_mul_u32_u24 v{vT+5}, 1280, v{vT+5}")
    e(f"v_add_u32 v{vT+3}, v{vT+3}, v{vT+5}")
    e(f"s_mul_i32 s{sT+1}, s{sG}, 160")
    e(f"s_add_u32 s{sT}, s{sT}, s{sT+1}")
    e(f"v_add_u32 v{vWd}, s{sT}, v{vT+3}")
    for t in range(1, 4):
        e(f"v_add_u32 v{vWd+t}, {6720*t}, v{vWd}")
    e(f"s_mul_i32 s{sWoff}, s{sS}, {Q_GP}")
    e(f"s_lshl_b32 s{sXoff}, s{sS}, 12")
    e(f"s_add_u32 s{sXoff}, s{sXoff}, {Q_XB+2048}")
    e(f"s_mov_b32 s{sMaskW}, -1")
    e(f"s_mov_b32 s{sMaskW+1}, 0x0fffffff")
    e("s_waitcnt lgkmcnt(0)")
    srd(S_X, 4, 2048 * 1280)
    srd(S_W, 6, 640 * 3840)
    loader("Q")
    lab("L_ldF")
    e(f"v_cmp_le_u32 vcc, 26, v{vLane}")
    e(f"v_mov_b32 v{vT+3}, 0")
    e(f"v_mov_b32 v{vT+4}, {3072-26*16}")
    e(f"v_cndmask_b32 v{vT+3}, v{vT+3}, v{vT+4}, vcc")
    e(f"v_lshl_add_u32 v{vT+3}, v{vLane}, 4, v{vT+3}")
    e(f"s_mul_i32 s{sT}, s{sS}, {8*3072}")
    e(f"s_mul_i32 s{sT+1}, s{sG}, 384")
    e(f"s_add_u32 s{sT}, s{sT}, s{sT+1}")
    e(f"v_add_u32 v{vWd}, s{sT}, v{vT+3}")
    for t in range(1, 4):
        e(f"v_add_u32 v{vWd+t}, {5312*t}, v{vWd}")
    e(f"s_mul_i32 s{sWoff}, s{sS}, {F_GP}")
    e(f"s_lshl_b32 s{sXoff}, s{sS}, 12")
    e(f"s_add_u32 s{sXoff}, s{sXoff}, {F_XB}")
    e(f"s_mov_b32 s{sMaskW}, 0xfcffffff")
    e(f"s_mov_b32 s{sMaskW+1}, 0x0003ffff")
    e("s_waitcnt lgkmcnt(0)")
    srd(S_X, 4, 2048 * 1280)
    srd(S_W, 32, 640 * 3072)
    loader("F")

    lab("L_compute")
    if CODEPF:
        e(f"s_getpc_b64 s[{sT}:{sT+1}]")
        lab("L_pc")
        e(f"s_sub_u32 s{sT}, s{sT}, L_pc-{K}")
        e(f"s_subb_u32 s{sT+1}, s{sT+1}, 0")
        e(f"v_lshlrev_b32 v{vT+1}, 7, v0")
        e(f"v_min_u32 v{vT+1}, L_end-{K}, v{vT+1}")
        e(f"s_bfe_u32 s{sT+2}, s2, 0x20004")
        e(f"s_cmp_lg_u32 s{sT+2}, 0")
        e("s_cbranch_scc1 L_nopf")
        e(f"s_cmp_gt_u32 s{sWave}, 4")
        e("s_cbranch_scc1 L_nopf")
        e(f"global_load_dword v0, v{vT+1}, s[{sT}:{sT+1}]")
        lab("L_nopf")
    e(f"v_and_b32 v{vT+1}, 15, v{vLane}")
    e(f"v_lshrrev_b32 v{vT+2}, 1, v{vT+1}")
    e(f"v_xor_b32 v{vT+2}, v{vT+2}, v{vT}")
    e(f"v_lshlrev_b32 v{vT+2}, 4, v{vT+2}")
    e(f"v_lshl_add_u32 v{vXl0}, v{vT+1}, 7, v{vT+2}")
    e(f"v_xor_b32 v{vXl1}, 64, v{vXl0}")
    e(f"v_mov_b32 v{vXa}, v{vXl0}")
    e(f"v_bfe_u32 v{vT+1}, v{vLane}, 2, 2")
    e(f"v_and_b32 v{vT+2}, 3, v{vLane}")
    e(f"s_mov_b32 s{sIt}, 0")
    e(f"s_lshl_b32 s{sT}, s{sRB}, 4")
    e(f"s_add_u32 s{sT}, s{sT}, s{sG}")
    e(f"s_and_b32 s{sT+1}, s2, 8")
    e(f"s_add_u32 s{sT}, s{sT}, s{sT+1}")
    e(f"s_lshl_b32 s{sT}, s{sT}, 3")
    e(f"s_add_u32 s{sT}, s{sT}, s{sWave}")
    e(f"s_lshl_b32 s99, s{sT}, 4")
    e(f"s_add_u32 s99, s99, {ST_OFF}")
    e(f"s_mul_i32 s{sT}, s{sT}, 1280")
    e(f"v_lshlrev_b32 v{vXF+8}, 4, v{vLane}")
    e(f"v_lshlrev_b32 v{vXF+9}, 2, v{vLane}")
    e("s_waitcnt lgkmcnt(0)")
    stamp(1)
    srd(S_X, 4, 2048 * 1280)
    e(f"buffer_load_dwordx4 {vr(vXF,4)}, v{vXF+8}, s[{S_X}:{S_X+3}], s{sT} offen")
    e(f"buffer_load_dword v{vXF+4}, v{vXF+9}, s[{S_X}:{S_X+3}], s{sT} offen offset:1024")
    nonce_load()
    srd(S_WS, 68, WS_USED)
    e("s_bitcmp1_b32 s2, 3")
    e("s_cbranch_scc1 L_F")
    e(f"v_mul_u32_u24 v{vWl}, {Q_GP}, v{vT}")
    e(f"v_mul_u32_u24 v{vT+3}, {Q_P}, v{vT+1}")
    e(f"v_add_u32 v{vWl}, v{vWl}, v{vT+3}")
    e(f"v_mul_u32_u24 v{vT+3}, 40, v{vT+2}")
    e(f"v_add_u32 v{vWl}, v{vWl}, v{vT+3}")
    e(f"v_mov_b32 v{vWa}, v{vWl}")
    e(f"v_and_b32 v{vT+3}, 31, v{vLane}")
    e(f"v_lshlrev_b32 v{vT+3}, 2, v{vT+3}")
    e(f"v_mov_b32 v{vT+4}, 0x3f803f80")
    e(f"ds_write_b32 v{vT+3}, v{vT+4} offset:{Q_XB}")
    e(f"v_add_u32 v{vT+3}, {Q_STAGE}, v{vT+3}")
    e(f"ds_write_b32 v{vT+3}, v{vT+4} offset:{Q_XB}")
    e(f"v_add_u32 v{vT+3}, {Q_STAGE}, v{vT+3}")
    e(f"ds_write_b32 v{vT+3}, v{vT+4} offset:{Q_XB}")
    for r in range(vACC, vHACC + 16):
        e(f"v_mov_b32 v{r}, 0")
    e(f"s_mov_b32 s{sNxt}, {Q_STAGE}")
    cfg_lookup(QCFG)
    tG, tS, tR, tC, t0, t1 = 112, 113, 114, 115, 116, 117
    e(f"v_mov_b32 v{tG}, v{vT}")
    e(f"v_mov_b32 v{tR}, v{vT+1}")
    e(f"v_mov_b32 v{tC}, v{vT+2}")
    e(f"v_and_b32 v{tS}, 15, v{vLane}")
    e(f"v_lshlrev_b32 v{t0}, 4, v{tG}")
    e(f"s_lshl_b32 s{sT}, s{sH0}, 6")
    e(f"s_add_u32 s{sT}, s{sT}, {Q_MISC+QM_CS}")
    e(f"v_add_u32 v{qCSh}, s{sT}, v{t0}")
    e(f"s_lshl_b32 s{sT}, s{sU0}, 6")
    e(f"s_add_u32 s{sT}, s{sT}, {Q_MISC+QM_CS}")
    e(f"v_add_u32 v{qCSu}, s{sT}, v{t0}")
    e(f"v_lshlrev_b32 v{qSa}, 3, v{tS}")
    e(f"v_add_u32 v{qSa}, {Q_MISC+QM_ST}, v{qSa}")
    e(f"s_lshl_b32 s{sT}, s{sRh}, 9")
    e(f"v_add_u32 v{qSm}, s{sT}, v{qSa}")
    e(f"v_mul_u32_u24 v{t0}, 640, v{tG}")
    e(f"v_lshl_add_u32 v{t0}, v{tS}, 3, v{t0}")
    e(f"v_lshrrev_b32 v{qPh}, 3, v{tS}")
    e(f"v_mul_u32_u24 v{qPh}, {2560-64}, v{qPh}")
    e(f"s_mul_i32 s{sT}, s{sH0}, {PLANE}")
    e(f"s_add_u32 s{sT}, s{sT}, {Q_PL}")
    e(f"v_add3_u32 v{qPh}, v{qPh}, v{t0}, s{sT}")
    e(f"s_and_b32 s{sT}, s{sWave}, 1")
    e(f"s_mul_i32 s{sT+2}, s{sT}, 320")
    e(f"s_mul_i32 s{sT}, s{sT}, 2560")
    e(f"s_lshr_b32 s{sT+1}, s{sWave}, 1")
    e(f"s_lshl_b32 s{sT+3}, s{sT+1}, 6")
    e(f"s_add_u32 s{sT+2}, s{sT+2}, s{sT+3}")
    e(f"s_add_u32 s{sT+2}, s{sT+2}, {Q_MISC+QM_RK}")
    e(f"s_lshl_b32 s{sT+1}, s{sT+1}, 7")
    e(f"s_add_u32 s{sT}, s{sT}, s{sT+1}")
    e(f"s_add_u32 s{sT}, s{sT}, {Q_PL}")
    e(f"v_add_u32 v{qAt}, s{sT}, v{t0}")
    e(f"v_add_u32 v{qAq}, {10*PLANE+64}, v{qAt}")
    e(f"v_lshl_add_u32 v{t1}, v{tC}, 2, v{tR}")
    e(f"v_mul_u32_u24 v{qAv}, 640, v{tG}")
    e(f"v_lshl_add_u32 v{qAv}, v{t1}, 3, v{qAv}")
    e(f"v_add_u32 v{qAv}, s{sT}, v{qAv}")
    e(f"v_lshlrev_b32 v{qRk}, 4, v{tR}")
    e(f"v_add_u32 v{qRk}, s{sT+2}, v{qRk}")
    e(f"v_lshl_add_u32 v{qRq}, v{tC}, 2, v{qRk}")
    e(f"s_mul_i32 s{sT}, s{sU0}, {PLANE}")
    e(f"s_lshl_b32 s{sT+1}, s{sRh}, 8")
    e(f"s_add_u32 s{sT}, s{sT}, s{sT+1}")
    e(f"s_add_u32 s{sT}, s{sT}, {Q_PL+64}")
    e(f"v_add_u32 v{qPw}, s{sT}, v{t0}")
    e(f"v_lshlrev_b32 v{qOa}, 4, v{vLane}")
    e(f"v_lshrrev_b32 v{qOb}, 5, v{vLane}")
    e(f"v_lshlrev_b32 v{qOb}, 8, v{qOb}")
    e(f"v_lshl_add_u32 v{qOb}, v{tS}, 4, v{qOb}")
    e(f"v_bfe_u32 v{t1}, v{vLane}, 4, 1")
    e(f"v_lshl_add_u32 v{qOb}, v{t1}, 3, v{qOb}")
    BIG = 2.0 ** 100
    lo, hi = t0, t1
    e(f"v_lshlrev_b32 v{lo}, 2, v{tR}")
    e(f"s_lshr_b32 s{sT}, s{sWave}, 1")
    e(f"s_or_b32 s{sT}, s{sRB}, s{sT}")
    e(f"s_cmp_eq_u32 s{sT}, 0")
    e(f"s_cselect_b32 s{sT}, 8, 0")
    e(f"v_sub_u32 v{lo}, s{sT}, v{lo}")
    e(f"v_add_u32 v{hi}, 1, v{tC}")
    e(f"v_max_i32 v{lo}, v{lo}, v{hi}")
    e(f"v_cvt_f32_i32 v{lo}, v{lo}")
    e(f"v_cvt_f32_i32 v{hi}, v{tC}")
    e(f"v_mov_b32 v{tG}, {f32(-BIG)}")
    e(f"v_mov_b32 v{tS}, {f32(BIG)}")
    for pp in range(1, 8):
        e(f"v_fmaak_f32 v{qMk(pp)}, v{lo}, v{tG}, {f32(pp*BIG)}")
        e(f"v_min_f32 v{qMk(pp)}, 0, v{qMk(pp)}")
    for pp in range(9, 12):
        e(f"v_fmaak_f32 v{qMk(pp)}, v{hi}, v{tS}, {f32(-(pp-8)*BIG)}")
        e(f"v_min_f32 v{qMk(pp)}, 0, v{qMk(pp)}")
    e(f"s_lshl_b32 s{sT}, s{sRB}, 3")
    e(f"s_add_u32 s{sT}, s{sT}, s{sWave}")
    e(f"s_mul_i32 s{sT}, s{sT}, 68")
    e(f"s_lshr_b32 s{sT+1}, s{sG}, 1")
    e(f"s_mul_i32 s{sT+1}, s{sT+1}, 5")
    e(f"s_add_u32 s{sT}, s{sT}, s{sT+1}")
    e(f"s_add_u32 s{sT}, s{sT}, 48")
    e(f"s_and_b32 s{sT+1}, s{sG}, 1")
    e(f"s_lshl_b32 s{sJ}, s{sT+1}, 1")
    e(f"s_add_u32 s{sJ}, s{sJ}, s{sT}")
    e(f"s_lshl_b32 s{sJ}, s{sJ}, 10")
    e(f"s_add_u32 s{sT}, s{sT}, 4")
    e(f"s_lshl_b32 s{sT}, s{sT}, 10")
    e(f"s_lshl_b32 s{sT+1}, s{sT+1}, 9")
    e(f"s_add_u32 s{sJ+1}, s{sT}, s{sT+1}")
    e(f"s_mov_b32 s{sMaskW}, 0x00010001")
    e(f"s_mov_b32 s{sMaskW+1}, 0x00010001")
    e("s_waitcnt lgkmcnt(0)")
    nonce_fix()
    row_stats()
    w_touch("Q")
    for w in range(7):
        e(f"s_cmp_eq_u32 s{sWave}, {w}")
        e(f"s_cbranch_scc1 L_p1_Q{w}")
    e("s_branch L_p1_Q7")

    lab("L_F")
    e(f"v_mul_u32_u24 v{vWl}, {F_GP}, v{vT}")
    e(f"v_mul_u32_u24 v{vT+3}, {F_P}, v{vT+1}")
    e(f"v_add_u32 v{vWl}, v{vWl}, v{vT+3}")
    e(f"v_lshl_add_u32 v{vWl}, v{vT+2}, 3, v{vWl}")
    e(f"v_mov_b32 v{vWa}, v{vWl}")
    srd(S_X, 4, 2048 * 1280)
    fL16, fTr, fCSu, fCSh, fSm = 2, 3, 4, 5, 6
    e(f"v_lshlrev_b32 v{fL16}, 4, v{vLane}")
    cfg_lookup(FCFG)
    e(f"v_lshlrev_b32 v{vT+3}, 4, v{vT}")
    e(f"s_lshl_b32 s{sT}, s{sH0}, 6")
    e(f"s_add_u32 s{sT}, s{sT}, {F_MISC+FM_CS}")
    e(f"v_add_u32 v{fCSh}, s{sT}, v{vT+3}")
    e(f"s_lshl_b32 s{sT}, s{sU0}, 6")
    e(f"s_add_u32 s{sT}, s{sT}, {F_MISC+FM_CS}")
    e(f"v_add_u32 v{fCSu}, s{sT}, v{vT+3}")
    e(f"v_and_b32 v{fSm}, 15, v{vLane}")
    e(f"v_lshlrev_b32 v{fSm}, 3, v{fSm}")
    e(f"s_lshl_b32 s{sT}, s{sRh}, 9")
    e(f"s_add_u32 s{sT}, s{sT}, {F_MISC+FM_ST}")
    e(f"v_add_u32 v{fSm}, s{sT}, v{fSm}")
    e(f"s_mov_b32 s{sMaskW}, 0x00010001")
    e(f"s_mov_b32 s{sMaskW+1}, 0x00010001")
    sRow, sF = sKW, sKX
    e(f"s_lshl_b32 s{sRow}, s{sRB}, 7")
    e(f"s_bfe_u32 s{sT}, s2, 0x10004")
    e(f"s_lshl_b32 s{sT}, s{sT}, 6")
    e(f"s_add_u32 s{sRow}, s{sRow}, s{sT}")
    e(f"s_lshr_b32 s{sF}, s2, 4")
    e(f"s_cmp_ge_u32 s{sWave}, 4")
    e("s_cbranch_scc1 L_F_helper")
    if TOUCH:
        e(f"v_mul_u32_u24 v{vT+3}, 26, v{vLane}")
        e(f"v_lshrrev_b32 v{vT+3}, 8, v{vT+3}")
        e(f"v_mul_u32_u24 v{vT+4}, 10, v{vT+3}")
        e(f"v_sub_u32 v{vT+4}, v{vLane}, v{vT+4}")
        e(f"v_lshlrev_b32 v{vT+4}, 7, v{vT+4}")
        e(f"s_and_b32 s{sT}, s2, 3")
        e(f"s_lshl_b32 s{sT}, s{sT}, 4")
        e(f"s_mul_i32 s{sT+4}, s{sRow}, 1280")
        e(f"s_mov_b32 s{sT+6}, -1")
        e(f"s_mov_b32 s{sT+7}, 0x0fffffff")
        for i in range(2):
            e(f"s_mul_i32 s{sT+2}, s{sWave}, 12")
            e(f"s_add_u32 s{sT+2}, s{sT+2}, {6*i}")
            e(f"v_add_u32 v{vT+5}, s{sT+2}, v{vT+3}")
            e(f"v_cmp_le_u32 vcc, s{sT}, v{vT+5}")
            e(f"v_add_u32 v{vT+6}, 16, v{vT+5}")
            e("s_nop 0")
            e(f"v_cndmask_b32 v{vT+5}, v{vT+5}, v{vT+6}, vcc")
            e(f"v_mul_u32_u24 v{vT+5}, 1280, v{vT+5}")
            e(f"v_add_u32 v{vT+7+i}, v{vT+5}, v{vT+4}")
        e(f"v_mul_u32_u24 v{vT+3}, 57, v{vLane}")
        e(f"v_lshrrev_b32 v{vT+3}, 9, v{vT+3}")
        e(f"v_mul_u32_u24 v{vT+4}, 9, v{vT+3}")
        e(f"v_sub_u32 v{vT+4}, v{vLane}, v{vT+4}")
        e(f"v_mul_u32_u24 v{vT+5}, 86, v{vT+4}")
        e(f"v_lshrrev_b32 v{vT+5}, 8, v{vT+5}")
        e(f"v_mul_u32_u24 v{vT+3}, 3840, v{vT+3}")
        e(f"v_lshl_add_u32 v{vT+3}, v{vT+4}, 7, v{vT+3}")
        e(f"v_mul_u32_u24 v{vT+5}, {1280-384}, v{vT+5}")
        e(f"v_add_u32 v{vT+3}, v{vT+3}, v{vT+5}")
        e(f"v_mul_u32_u24 v{vT+4}, 43, v{vLane}")
        e(f"v_lshrrev_b32 v{vT+4}, 8, v{vT+4}")
        e(f"v_mul_u32_u24 v{vT+4}, {3072-768}, v{vT+4}")
        e(f"v_lshl_add_u32 v{vT+4}, v{vLane}, 7, v{vT+4}")
        e(f"s_mul_i32 s{sT}, s{sF}, 40")
        e(f"s_mul_i32 s{sT+1}, s{sWave}, 10")
        e(f"s_add_u32 s{sT}, s{sT}, s{sT+1}")
        e(f"s_and_b32 s{sT+1}, s2, 3")
        e(f"s_mul_i32 s{sT+2}, s{sT+1}, 320")
        e(f"s_and_b32 s{sT+2}, s{sT+2}, 0xffffff80")
        e(f"s_mul_i32 s{sT+3}, s{sT}, 3840")
        e(f"s_add_u32 s{sT+2}, s{sT+2}, s{sT+3}")
        e(f"s_add_u32 s{sT+3}, s{sT+2}, {5*3840}")
        e(f"s_mul_i32 s{sT+1}, s{sT+1}, 768")
        e(f"s_mul_i32 s{sT}, s{sT}, 3072")
        e(f"s_add_u32 s{sT}, s{sT}, s{sT+1}")
        srd(S_W, 6, 640 * 3840)
        srd(S_R, 32, 640 * 3072)
        e(f"s_mov_b64 exec, s[{sT+6}:{sT+7}]")
        e(f"buffer_load_dword v{vT+10}, v{vT+4}, s[{S_R}:{S_R+3}], s{sT} offen")
        e(f"buffer_load_dword v{vT+10}, v{vT+7}, s[{S_X}:{S_X+3}], s{sT+4} offen")
        e(f"buffer_load_dword v{vT+10}, v{vT+8}, s[{S_X}:{S_X+3}], s{sT+4} offen")
        e(f"s_mov_b32 s{sT+7}, 0x1fff")
        e(f"s_mov_b64 exec, s[{sT+6}:{sT+7}]")
        e(f"buffer_load_dword v{vT+10}, v{vT+3}, s[{S_W}:{S_W+3}], s{sT+2} offen")
        e(f"buffer_load_dword v{vT+10}, v{vT+3}, s[{S_W}:{S_W+3}], s{sT+3} offen")
        e("s_mov_b64 exec, -1")
    for r in range(vACC + 32, vACC + 64):
        e(f"v_mov_b32 v{r}, 0")
    lab("L_F_go")
    e(f"v_mov_b32 v{vT+10}, {F_MISC+FM_CNT}")
    e(f"v_mov_b32 v{vT+11}, 0")
    e(f"ds_write_b32 v{vT+10}, v{vT+11}")
    for r in list(range(vACC, vACC + 32)) + list(range(vHACC, vHACC + 8)):
        e(f"v_mov_b32 v{r}, 0")
    for r in range(4):
        e(f"v_mov_b32 v{vOnes+r}, 0x3f803f80")
    e(f"s_mov_b32 s{sNxt}, {F_STAGE}")
    e("s_waitcnt lgkmcnt(0)")
    nonce_fix()
    row_stats()
    w_touch("F")
    for w in range(7):
        e(f"s_cmp_eq_u32 s{sWave}, {w}")
        e(f"s_cbranch_scc1 L_p1_F{w}")
    e("s_branch L_p1_F7")

    lab("L_F_helper")
    sStD, sD1, sD2, sJb1, sNJ = sJ, sJ + 1, sJ + 2, sJ + 3, sJ + 4
    vR = 64
    JV1 = [77, 78, 79, 85, 86, 87]
    JV2 = [93, 94, 95, 69, 9, 15]
    for r_ in JV1 + JV2:
        e(f"v_mov_b32 v{r_}, 0")
    srd(S_W, 36, 1536 * 1280)
    e(f"s_and_b32 s{sT}, s2, 3")
    e(f"s_lshl_b32 s{sT}, s{sT}, 4")
    e(f"s_lshl_b32 s{sT+1}, s{sS}, 2")
    e(f"s_add_u32 s{sT+1}, s{sT+1}, s{sT}")
    e(f"s_add_u32 s{sT+1}, s{sT+1}, s{sRow}")
    e(f"s_mul_i32 s{sRow}, s{sT+1}, 1280")
    e(f"s_lshl_b32 s{sStD}, s{sT+1}, 4")
    e(f"s_add_u32 s{sStD}, s{sStD}, {ST_OFF}")
    srd(S_DBG, 34, 3072)
    sKS, sPair, sBase, sJa, sJb, sP, sTt = sWoff, sXoff, sHoff, sMaskH, sMaskH + 1, sCur, 98
    e(f"s_bfe_u32 s{sKS}, s2, 0x20001")
    e(f"s_mul_i32 s{sKS}, s{sKS}, 17")
    e(f"s_add_u32 s{sKS}, s{sKS}, s{sF}")
    e(f"s_and_b32 s{sPair}, s2, 1")
    e(f"s_lshl_b32 s{sPair}, s{sPair}, 1")
    e(f"s_lshr_b32 s{sP}, s{sS}, 1")
    e(f"s_add_u32 s{sPair}, s{sPair}, s{sP}")
    e(f"s_mul_i32 s{sJb1}, s{sP}, 10240")
    e(f"s_and_b32 s{sTt}, s{sS}, 1")
    e(f"s_lshl_b32 s{sTt}, s{sTt}, 12")
    e(f"s_add_u32 s{sJb1}, s{sJb1}, s{sTt}")
    e(f"s_add_u32 s{sJb1}, s{sJb1}, {F_JOB}")
    e(f"s_cmp_eq_u32 s{sF}, s{sS}")
    e(f"s_cselect_b32 s{sNJ}, 2, 1")
    e(f"s_mov_b32 s{sT+6}, 0")
    lab("L_F_jobissue")
    e(f"s_sub_u32 s{sT}, s{sKS}, 48")
    e(f"s_mul_i32 s{sP}, s{sT}, 52")
    e(f"s_lshr_b32 s{sP}, s{sP}, 8")
    e(f"s_mul_i32 s{sTt}, s{sP}, 5")
    e(f"s_sub_u32 s{sTt}, s{sT}, s{sTt}")
    e(f"s_mul_i32 s{sP}, s{sP}, 160")
    e(f"s_lshr_b32 s{sBase}, s{sTt}, 1")
    e(f"s_mul_i32 s{sBase}, s{sBase}, 80")
    e(f"s_and_b32 s{sJa}, s{sTt}, 1")
    e(f"s_lshl_b32 s{sJa}, s{sJa}, 3")
    e(f"s_add_u32 s{sBase}, s{sBase}, s{sJa}")
    e(f"s_cmp_eq_u32 s{sTt}, 4")
    e(f"s_cselect_b32 s{sBase}, 16, s{sBase}")
    e(f"s_cselect_b32 s{sJa}, 40, 20")
    e(f"s_cselect_b32 s{sJb}, 20, 4")
    e(f"s_add_u32 s{sBase}, s{sBase}, s{sP}")
    e(f"s_lshl_b32 s{sP}, s{sKS}, 5")
    e(f"s_mov_b32 s{S_R+2}, {640*1280}")
    e(f"s_cmp_ge_u32 s{sKS}, 48")
    e(f"s_cselect_b32 s{sBase}, s{sBase}, s{sP}")
    e(f"s_cselect_b32 s{sJa}, s{sJa}, 4")
    e(f"s_cselect_b32 s{sJb}, s{sJb}, 16")
    e(f"s_cselect_b32 s{S_R}, s28, s36")
    e(f"s_cselect_b32 s{S_R+1}, s29, s37")
    e(f"s_cselect_b32 s{S_R+2}, s{S_R+2}, {1536*1280}")
    e(f"s_and_b32 s{S_R+1}, s{S_R+1}, 0xffff")
    e(f"s_mov_b32 s{S_R+3}, 0x00020000")
    e(f"s_mul_i32 s{sBase}, s{sBase}, 1280")
    e(f"s_mul_i32 s{sP}, s{sPair}, 320")
    e(f"s_add_u32 s{sBase}, s{sBase}, s{sP}")
    e(f"s_mul_i32 s{sJa}, s{sJa}, 1280")
    e(f"s_mul_i32 s{sJb}, s{sJb}, 1280")
    e(f"s_mul_i32 s{sD2}, s{sPair}, 68")
    e(f"s_add_u32 s{sD2}, s{sD2}, s{sKS}")
    e(f"s_bitcmp1_b32 s{sS}, 0")
    e("s_cbranch_scc1 L_F_jobW_i")
    for part, nch in ((0, 8), (1, 12)):
        if part == 1:
            lab("L_F_jobW_i")
        for i in range(nch // 2):
            q, rho, t1 = vT + 3, vT + 4, vT + 5
            e(f"v_add_u32 v{q}, {64*i}, v{vLane}")
            if nch == 8:
                e(f"v_lshrrev_b32 v{rho}, 3, v{q}")
                e(f"v_and_b32 v{q}, 7, v{q}")
            else:
                e(f"v_mul_u32_u24 v{rho}, 171, v{q}")
                e(f"v_lshrrev_b32 v{rho}, 11, v{rho}")
                e(f"v_mul_u32_u24 v{t1}, 12, v{rho}")
                e(f"v_sub_u32 v{q}, v{q}, v{t1}")
            e(f"v_and_b32 v{t1}, 3, v{rho}")
            e(f"v_mul_u32_u24 v{t1}, 1280, v{t1}")
            e(f"v_lshl_add_u32 v{q}, v{q}, 4, v{t1}")
            e(f"v_bfe_u32 v{t1}, v{rho}, 2, 2")
            e(f"v_mad_u32_u24 v{q}, v{t1}, s{sJa}, v{q}")
            e(f"v_lshrrev_b32 v{t1}, 4, v{rho}")
            e(f"v_mad_u32_u24 v{q}, v{t1}, s{sJb}, v{q}")
            if part == 1:
                e(f"v_add_u32 v{q}, 128, v{q}")
            e(f"v_add_u32 v{JV2[i]}, s{sBase}, v{q}")
        n = nch // 2
        e(f"s_mul_i32 s{sD2}, s{sD2}, {n*1024}")
        e(f"s_add_u32 s{sD2}, s{sD2}, {B2N_OFF if part == 0 else B2W_OFF}")
        e(f"v_lshrrev_b32 v{fTr}, 2, v{vLane}")
        e(f"v_mul_u32_u24 v{fTr}, {32*n}, v{fTr}")
        e(f"v_mul_u32_u24 v{vT+4}, {8*n}, v{vT+2}")
        e(f"v_add_u32 v{fTr}, v{fTr}, v{vT+4}")
        if part == 0:
            e("s_branch L_F_jobnext")
    lab("L_F_jobnext")
    e(f"s_add_u32 s{sT+6}, s{sT+6}, 1")
    e(f"s_cmp_ge_u32 s{sT+6}, 2")
    e("s_cbranch_scc1 L_F_jobs_done")
    e(f"s_mov_b32 s{sD1}, s{sD2}")
    for i_ in range(6):
        e(f"v_mov_b32 v{JV1[i_]}, v{JV2[i_]}")
    for i_ in range(3):
        e(f"s_mov_b32 s{S_W+i_}, s{S_R+i_}")
    e(f"s_mov_b32 s{S_W+3}, 0x00020000")
    e(f"s_cmp_eq_u32 s{sNJ}, 1")
    e("s_cbranch_scc1 L_F_jobs_done")
    e(f"s_sub_u32 s{sKS}, s{sKS}, s{sF}")
    e(f"s_add_u32 s{sKS}, s{sKS}, 16")
    e("s_branch L_F_jobissue")
    lab("L_F_jobs_done")
    e("s_setprio 1")
    e("s_branch L_F_go")

    lab("L_task_jdma")
    e(f"s_mul_i32 s{sT+4}, s{sG}, 384")
    e(f"v_lshlrev_b32 v{vT+3}, 3, v{vLane}")
    e(f"buffer_load_dwordx2 v[70:71], v{vT+3}, s[{S_DBG}:{S_DBG+3}], s{sT+4} offen")
    for jn, (JV, SR) in enumerate(((JV1, S_W), (JV2, S_R))):
        if jn == 0:
            e(f"s_mov_b32 m0, s{sJb1}")
        else:
            e(f"s_cmp_eq_u32 s{sNJ}, 1")
            e("s_cbranch_scc1 L_task_ret")
            e(f"s_mov_b32 m0, {F_JOB+20480}")
        for i in range(6):
            if i == 4:
                e(f"s_bitcmp0_b32 s{sS}, 0")
                e(f"s_cbranch_scc1 L_task_jd{jn}")
            e("s_nop 0")
            e(f"buffer_load_dwordx4 v{JV[i]}, s[{SR}:{SR+3}], 0 offen lds")
            e(f"s_add_u32 m0, m0, 1024")
        lab(f"L_task_jd{jn}")
    e(f"s_setpc_b64 s[{sRet}:{sRet+1}]")
    lab("L_task")
    for it_, tgt in ((0, "L_task_jdma"), (2, "L_task_0"), (3, "L_task_j2"), (6, "L_task_6")):
        e(f"s_cmp_eq_u32 s{sIt}, {it_}")
        e(f"s_cbranch_scc1 {tgt}")
    e(f"s_cmp_lg_u32 s{sIt}, 5")
    e("s_cbranch_scc1 L_task_ret")
    e("s_waitcnt vmcnt(0)")
    e(f"s_setpc_b64 s[{sRet}:{sRet+1}]")
    lab("L_task_0")
    e("s_waitcnt vmcnt(0)")
    e(f"v_lshlrev_b32 v16, 16, v70")
    e(f"v_and_b32 v17, 0xffff0000, v70")
    e(f"v_lshlrev_b32 v18, 16, v71")
    e(f"v_and_b32 v19, 0xffff0000, v71")
    e(f"v_add_u32 v20, {F_MISC+FM_B1}, v{fL16}")
    e(f"s_mov_b32 s{sT+2}, -1")
    e(f"s_mov_b32 s{sT+3}, 0xffff")
    e(f"s_mov_b64 exec, s[{sT+2}:{sT+3}]")
    e(f"ds_write_b128 v20, v[16:19]")
    e("s_mov_b64 exec, -1")
    e(f"v_add_u32 v24, s{sJb1}, v{fTr}")
    e(f"s_mov_b32 s{sT}, s{sD1}")
    lab("L_task_job")
    e(f"s_add_u32 s{sT+1}, s{sT}, 4096")
    e(f"s_bitcmp1_b32 s{sS}, 0")
    e("s_cbranch_scc1 L_task_jobW")
    sets = [104, 120, 16]
    for part, n in ((0, 4), (1, 6)):
        if part == 1:
            lab("L_task_jobW")
        pitch = 32 * n
        e("s_waitcnt lgkmcnt(0)")
        for U in range(n):
            rg = sets[U >> 1] + 4 * (U & 1)
            for h in range(2):
                e(f"ds_read_b64_tr_b16 {vr(rg+2*h,2)}, v24 offset:{8*U+16*pitch*h}")
        for U in range(n):
            rg = sets[U >> 1] + 4 * (U & 1)
            e(f"s_waitcnt lgkmcnt({2*(n-1-U)})")
            e(f"buffer_store_dwordx4 {vr(rg,4)}, v{fL16}, s[{S_WS}:{S_WS+3}], s{sT + (U >> 2)} offen offset:{1024*(U&3)} sc1")
        e(f"s_setpc_b64 s[{sRet}:{sRet+1}]")
    lab("L_task_6")
    e(f"s_cmp_lg_u32 s{sWave}, 4")
    e("s_cbranch_scc1 L_task_ret")
    e(f"s_lshl_b32 s{sT}, s{sRB}, 4")
    e(f"s_add_u32 s{sT}, s{sT}, s{sG}")
    e(f"s_lshl_b32 s{sT}, s{sT}, 7")
    e(f"s_add_u32 s{sT}, s{sT}, {FL_OFF+1024}")
    e(f"v_mov_b32 v24, s{sNo}")
    e(f"v_mov_b32 v25, s{sNo+1}")
    e(f"v_mov_b32 v26, 0")
    e("s_mov_b64 exec, 1")
    e(f"buffer_store_dwordx2 v[24:25], v26, s[{S_WS}:{S_WS+3}], s{sT} offen offset:8 sc1")
    e("s_mov_b64 exec, -1")
    e(f"s_setpc_b64 s[{sRet}:{sRet+1}]")
    lab("L_task_j2")
    e(f"s_cmp_eq_u32 s{sNJ}, 1")
    e("s_cbranch_scc1 L_task_ret")
    e(f"v_add_u32 v24, {F_JOB+20480}, v{fTr}")
    e(f"s_mov_b32 s{sT}, s{sD2}")
    e("s_branch L_task_job")
    lab("L_task_ret")
    e(f"s_setpc_b64 s[{sRet}:{sRet+1}]")

    for typ in "QF":
        for w in range(8):
            p1_loop(typ, w)

    lab("L_epi_Q")
    vST = vXF
    for i in range(4):
        e(f"ds_read_b32 v{vST+i}, v{qSm} offset:{128*(i+1)}")
    e(f"ds_read_b32 v{vST+4}, v{qSa}")
    e(f"s_mov_b64 exec, s[{sMaskW}:{sMaskW+1}]")
    e("s_nop 1")
    for j in range(4):
        e(f"s_cmp_le_u32 s{sNH}, {j}")
        e("s_cbranch_scc1 L_q_cs_done")
        e(f"ds_write_b128 v{qCSh}, {vr(vHACC+4*j,4)} offset:{64*j}")
    lab("L_q_cs_done")
    e("s_mov_b64 exec, -1")
    e("s_waitcnt lgkmcnt(0)")
    e("s_barrier")
    stamp(5)
    vCS, vCSH = vWF, 136
    for u in range(4):
        e(f"ds_read_b128 {vr(vCS+4*u,4)}, v{qCSu} offset:{64*u}")
    for j in range(4):
        e(f"ds_read_b128 {vr(vCSH+4*j,4)}, v{qCSh} offset:{64*j}")
    vRK = 152
    for kb in range(3):
        e(f"ds_read_b128 {vr(vRK+4*kb,4)}, v{qRk} offset:{16*kb}")
    e(f"ds_read_b32 v164, v{qRq} offset:32")

    def norm_unit(a, cs, nm, addr, off):
        for r in range(4):
            e(f"v_fmac_f32 v{a+r}, v{cs+r}, v{nm}")
        e(f"v_cvt_pk_bf16_f32 v{a}, v{a}, v{a+1}")
        e(f"v_cvt_pk_bf16_f32 v{a+1}, v{a+2}, v{a+3}")
        e(f"ds_write_b64 v{addr}, v[{a}:{a+1}] offset:{off}")

    for u in range(4):
        if u == 3:
            e(f"s_cmp_eq_u32 s{sNU}, 3")
            e("s_cbranch_scc1 L_q_skip3")
        if u == 0:
            e("s_waitcnt lgkmcnt(11)")
        if u == 1:
            e("s_waitcnt lgkmcnt(12)")
        for i in range(4):
            norm_unit(acc(u, i), vCS + 4 * u, vST + i, qPw, u * PLANE + (i & 1) * 2560 + (i >> 1) * 128)
    lab("L_q_skip3")
    e("s_waitcnt lgkmcnt(12)")
    for j in range(4):
        e(f"s_cmp_le_u32 s{sNH}, {j}")
        e("s_cbranch_scc1 L_q_halo_done")
        norm_unit(vHACC + 4 * j, vCSH + 4 * j, vST + 4, qPh, j * PLANE)
    lab("L_q_halo_done")
    vLg = 112
    vKf, vVf, vQf, vO, vPf, vOp = 32, 62, 92, 32, 104, 124
    vAt, vAq, vAv = qAt, qAq, qAv
    cexp = (20 ** -0.5) * 1.4426950408889634
    e(f"v_mul_f32 v164, {f32(cexp)}, v164")
    e("s_waitcnt lgkmcnt(0)")
    stamp(6)
    e("s_barrier")
    stamp(7)

    def qk_reads(t):
        e(f"ds_read_b64 {vr(vQf+2*t,2)}, v{vAq} offset:{t*PLANE}")
        for kb in range(3):
            e(f"ds_read_b64 {vr(vKf+2*(3*t+kb),2)}, v{vAt} offset:{t*PLANE+32*kb}")
    for t in range(2):
        qk_reads(t)
    for t in range(5):
        if t < 3:
            qk_reads(t + 2)
        e(f"s_waitcnt lgkmcnt({min(8, 4*(4-t))})")
        for kb in range(3):
            cin = "0" if t == 0 else vr(vLg + 4 * kb, 4)
            e(f"v_mfma_f32_4x4x4_16b_bf16 {vr(vLg+4*kb,4)}, {vr(vKf+2*(3*t+kb),2)}, {vr(vQf+2*t,2)}, {cin}")
    for kb in range(3):
        for t in range(5):
            e(f"ds_read_b64_tr_b16 {vr(vVf+2*(5*kb+t),2)}, v{vAv} offset:{(5+t)*PLANE+32*kb}")
    for pp in range(1, 12):
        if pp == 8:
            e(f"v_mul_f32 v{vLg+pp}, v{vLg+pp}, v{vRK+pp}")
        else:
            e(f"v_fma_f32 v{vLg+pp}, v{vLg+pp}, v{vRK+pp}, v{qMk(pp)}")
    m = 136
    e(f"v_max3_f32 v{m}, v{vLg+1}, v{vLg+2}, v{vLg+3}")
    e(f"v_max3_f32 v{m+1}, v{vLg+4}, v{vLg+5}, v{vLg+6}")
    e(f"v_max3_f32 v{m+2}, v{vLg+7}, v{vLg+8}, v{vLg+9}")
    e(f"v_max3_f32 v{m}, v{m}, v{vLg+10}, v{vLg+11}")
    e(f"v_max3_f32 v{m}, v{m}, v{m+1}, v{m+2}")
    e(f"v_mul_f32 v{m}, v{m}, v164")
    for pp in range(1, 12):
        e(f"v_fma_f32 v{vLg+pp}, v{vLg+pp}, v164, -v{m}")
    for pp in range(1, 12):
        e(f"v_exp_f32 v{vLg+pp}, v{vLg+pp}")
    e(f"v_add_f32 v{m}, v{vLg+1}, v{vLg+2}")
    e(f"v_add_f32 v{m+1}, v{vLg+3}, v{vLg+4}")
    for pp in range(5, 11, 2):
        e(f"v_add_f32 v{m}, v{m}, v{vLg+pp}")
        e(f"v_add_f32 v{m+1}, v{m+1}, v{vLg+pp+1}")
    e(f"v_add_f32 v{m}, v{m}, v{vLg+11}")
    e(f"v_add_f32 v{m}, v{m}, v{m+1}")
    e(f"v_rcp_f32 v{m}, v{m}")
    e(f"v_mov_b32 v{vLg}, 0")
    for pp in range(1, 12):
        e(f"v_mul_f32 v{vLg+pp}, v{vLg+pp}, v{vRK+pp}")
    for j in range(6):
        e(f"v_cvt_pk_bf16_f32 v{vPf+j}, v{vLg+2*j}, v{vLg+2*j+1}")
    e("s_waitcnt lgkmcnt(0)")
    e("s_nop 0")
    for kb in range(3):
        for t in range(5):
            cin = "0" if kb == 0 else vr(vO + 4 * t, 4)
            e(f"v_mfma_f32_4x4x4_16b_bf16 {vr(vO+4*t,4)}, {vr(vVf+2*(5*kb+t),2)}, {vr(vPf+2*kb,2)}, {cin}")
    e("s_nop 1")
    for t in range(5):
        for r in range(4):
            e(f"v_mul_f32 v{vO+4*t+r}, v{vO+4*t+r}, v{m}")
        e(f"v_cvt_pk_bf16_f32 v{vOp+2*t}, v{vO+4*t}, v{vO+4*t+1}")
        e(f"v_cvt_pk_bf16_f32 v{vOp+2*t+1}, v{vO+4*t+2}, v{vO+4*t+3}")
    e(f"buffer_store_dwordx4 {vr(vOp,4)}, v{qOa}, s[{S_WS}:{S_WS+3}], s{sJ} offen sc1")
    e(f"buffer_store_dwordx4 {vr(vOp+4,4)}, v{qOa}, s[{S_WS}:{S_WS+3}], s{sJ} offen offset:1024 sc1")
    e(f"buffer_store_dwordx2 {vr(vOp+8,2)}, v{qOb}, s[{S_WS}:{S_WS+3}], s{sJ+1} offen sc1")
    stamp(8)
    p2_compute("Q")

    lab("L_epi_F")
    e("s_setprio 0")
    vST = 160
    vB1 = 128
    for i in range(4):
        e(f"ds_read_b64 v[{vST+2*i}:{vST+2*i+1}], v{fSm} offset:{128*i}")
    for u in range(4):
        e(f"ds_read_b128 {vr(vB1+4*u,4)}, v{fCSu} offset:{64*u+FM_B1-FM_CS}")
    e(f"s_mov_b64 exec, s[{sMaskW}:{sMaskW+1}]")
    e(f"ds_write_b128 v{fCSh}, {vr(vHACC,4)}")
    e(f"s_cmp_le_u32 s{sNH}, 1")
    e("s_cbranch_scc1 L_f_cs_done")
    e(f"ds_write_b128 v{fCSh}, {vr(vHACC+4,4)} offset:64")
    lab("L_f_cs_done")
    e("s_mov_b64 exec, -1")
    e(f"s_lshl_b32 s{sT}, s{sRB}, 3")
    e(f"s_lshl_b32 s{sT+1}, s{sRh}, 2")
    e(f"s_add_u32 s{sT}, s{sT}, s{sT+1}")
    e(f"s_mul_i32 s{sT}, s{sT}, 68")
    e(f"s_mul_i32 s{sT+1}, s{sG}, 6")
    e(f"s_add_u32 s{sT}, s{sT}, s{sT+1}")
    e(f"s_lshr_b32 s{sT+1}, s{sU0}, 1")
    e(f"s_add_u32 s{sT}, s{sT}, s{sT+1}")
    e(f"s_lshl_b32 s{sT}, s{sT}, 10")
    for i in range(1, 4):
        e(f"s_add_u32 s{sT+i}, s{sT}, {i*68*1024}")
    vPw = fL16
    e("s_waitcnt lgkmcnt(0)")
    e("s_barrier")
    stamp(5)
    for u in range(4):
        e(f"ds_read_b128 {vr(vCS+4*u,4)}, v{fCSu} offset:{64*u}")
    vPk = 144
    k = 0
    for pr in range(2):
        if pr == 1:
            e(f"s_cmp_eq_u32 s{sNU}, 2")
            e("s_cbranch_scc1 L_f_done")
        e(f"s_waitcnt lgkmcnt({2-2*pr})")
        for i in range(4):
            pk = vPk + 4 * (k & 3); k += 1
            nm, rs = vST + 2 * i, vST + 2 * i + 1
            for uu in range(2):
                u = 2 * pr + uu
                a = acc(u, i)
                for r in range(4):
                    e(f"v_fmac_f32 v{a+r}, v{vCS+4*u+r}, v{nm}")
                for r in range(4):
                    e(f"v_fma_f32 v{a+r}, v{a+r}, v{rs}, v{vB1+4*u+r}")
                for r in range(4):
                    e(f"v_max_f32 v{a+r}, 0, v{a+r}")
                for r in range(4):
                    e(f"v_mul_f32 v{a+r}, v{a+r}, v{a+r}")
                e(f"v_cvt_pk_bf16_f32 v{pk+2*uu}, v{a}, v{a+1}")
                e(f"v_cvt_pk_bf16_f32 v{pk+2*uu+1}, v{a+2}, v{a+3}")
            e(f"buffer_store_dwordx4 {vr(pk,4)}, v{vPw}, s[{S_WS}:{S_WS+3}], s{sT+i} offen offset:{1024*pr} sc1")
    lab("L_f_done")
    stamp(6)
    e(f"v_mov_b32 v{vT}, {F_MISC+FM_CNT}")
    e(f"v_mov_b32 v{vT+1}, 1")
    e(f"s_lshl_b32 s{sT}, s{sRB}, 4")
    e(f"s_add_u32 s{sT}, s{sT}, s{sG}")
    e(f"s_lshl_b32 s{sT}, s{sT}, 7")
    e(f"s_add_u32 s{sT}, s{sT}, {FL_OFF+1024}")
    e(f"v_mov_b32 v{vT+4}, s{sNo}")
    e(f"v_mov_b32 v{vT+5}, s{sNo+1}")
    e(f"v_mov_b32 v{vT+6}, 0")
    e("s_waitcnt vmcnt(0) lgkmcnt(0)")
    stamp(7)
    e("s_mov_b64 exec, 1")
    e(f"ds_add_rtn_u32 v{vT+2}, v{vT}, v{vT+1}")
    e("s_waitcnt lgkmcnt(0)")
    e(f"v_readfirstlane_b32 s{sT+1}, v{vT+2}")
    e("s_nop 3")
    e(f"s_cmp_lg_u32 s{sT+1}, 7")
    e("s_cbranch_scc1 L_f_notlast")
    e(f"buffer_store_dwordx2 v[{vT+4}:{vT+5}], v{vT+6}, s[{S_WS}:{S_WS+3}], s{sT} offen sc1")
    lab("L_f_notlast")
    e("s_mov_b64 exec, -1")
    stamp(8)
    p2_compute("F")
    lab("L_end")
    e("s_endpgm")


def main():
    L.append("; Fused LN + [QKV|W1] GEMM + dilated local attention + [h|o]x[w2;wo] GEMM + gating, one persistent kernel")
    L.append(f"; @launch grid=(256,1,1) block=(768,1,1) lds={LDS_TOTAL}")
    L.append('.amdgcn_target "amdgcn-amd-amdhsa--gfx950"')
    L.append(".text")
    gen()
    L.append('.section .rodata,"a"')
    L.append(".p2align 6")
    L.append(f".amdhsa_kernel {NAME}_kernel")
    L.append(f"  .amdhsa_next_free_vgpr {NVGPR}")
    L.append("  .amdhsa_next_free_sgpr 102")
    L.append(f"  .amdhsa_accum_offset {NVGPR}")
    L.append("  .amdhsa_group_segment_fixed_size 0")
    L.append("  .amdhsa_kernarg_size 88")
    L.append("  .amdhsa_user_sgpr_count 2")
    L.append("  .amdhsa_user_sgpr_kernarg_segment_ptr 1")
    L.append("  .amdhsa_system_sgpr_workgroup_id_x 1")
    L.append(".end_amdhsa_kernel")
    out = sys.argv[1] if len(sys.argv) > 1 else OUT
    open(out, "w").write("\n".join(L) + "\n")
    print("wrote", out, len(L), "lines")


main()
```

```python
import sys
import os
import struct

NAME = "recurrent_scan__sliding_local_dilated__dense_activation_squared_relu__prompt"
OUT = f"cdna_kernels/{NAME}.s"
STAMP = os.environ.get("STAMP") in ("1", "2", "3")
STAMP_MIN = os.environ.get("STAMP") == "3"
OPT = os.environ.get("OPT", "abf")
STAMP_RT = os.environ.get("STAMP") == "2"
STAMP_OFF = 16 << 20
L = []


DIAG = os.environ.get("DIAG", "")
ZONE = [""]


def e(s=""):
    if ZONE[0] == "p2c" and "nocomp2" in DIAG and (s.startswith("ds_read") or s.startswith("v_mfma")):
        return
    if ZONE[0] == "p2l" and "nodma2" in DIAG and s.startswith("buffer_load"):
        return
    if ZONE[0] == "p1c" and "nocomp1" in DIAG and (s.startswith("ds_read") or s.startswith("v_mfma")):
        return
    if ZONE[0] == "p1l" and "nodma1" in DIAG and s.startswith("buffer_load"):
        return
    L.append("    " + s)


def lab(s):
    L.append(s + ":")


def vr(a, n=1):
    return f"v{a}" if n == 1 else f"v[{a}:{a+n-1}]"


def f32(x):
    return hex(struct.unpack("<I", struct.pack("<f", x))[0])


A2_OFF = 0
A2_SIZE = 128 * 68 * 1024
B2_OFF = A2_SIZE
ST_OFF = B2_OFF + 8 * 68 * 5120
FL_OFF = ST_OFF + 2048 * 16
NONCE_OFF = FL_OFF + 256 * 128
WS_USED = NONCE_OFF + 128 if not STAMP else (32 << 20)

Q_P, Q_GP = 480, 3968
Q_XB = 8 * Q_GP
Q_STAGE = Q_XB + 9 * 2048
F_P, F_GP = 416, 3456
F_XB = 8 * F_GP
F_STAGE = F_XB + 8 * 2048
PLANE = 5120
Q_PL = 73728
Q_MISC = 3 * Q_STAGE
QM_ST, QM_CS, QM_RK = 0, 1152, 2112
F_JOB = 3 * F_STAGE
F_MISC = 158720
FM_ST, FM_CS, FM_B1 = 0, 1024, 1792
SLOT = 36864
X2 = 4 * SLOT
B2L = X2 + 10240
LDS_TOTAL = F_MISC + FM_B1 + 768
assert Q_PL + 15 * PLANE == Q_MISC and B2L + 320 <= F_MISC and F_JOB + 5 * 5120 <= F_MISC and LDS_TOTAL <= 163840

S_X, S_W, S_WS, S_R, S_DBG = 8, 12, 16, 20, 24
sWave, sS, sG, sRB = 40, 41, 42, 43
sCur, sNxt, sKW, sKX, sIt = 44, 45, 46, 47, 48
sWoff, sXoff, sHoff = 49, 50, 51
sMaskW, sMaskH = 52, 54
sT = 56
sA = 70
sRh, sU0, sH0, sNH = 70, 71, 72, 73
sRet = 96
sNo = 30
sNU = 74
sJ = 75
sSt = 80

vLane = 1
vX0, vX1, vH0 = 2, 3, 4
vWd = 6
vWl, vXl0, vXl1, vWa, vXa = 10, 11, 12, 13, 14
vT = 16
vOnes = 28
vACC = 32
vHACC = 96
vWF = 112
vXF = 128
NVGPR = 168
qAt, qAq, qAv, qRk, qOa, qOb, qPw, qPh = 2, 3, 4, 5, 6, 7, 8, 9
qCSu, qCSh, qSa, qSm, qRq = 15, 16, 17, 18, 19


def qMk(p):
    return 20 + (p - 1 if p < 8 else p - 2)


TOUCH = os.environ.get("TOUCH", "0") == "1"
CODEPF = os.environ.get("CODEPF", "1") == "1"
BPF = os.environ.get("BPF", "0") == "1"
TOUCH2 = os.environ.get("TOUCH2", "1") == "1"
ROT = os.environ.get("ROT", "0") == "1"
TSKIP = int(os.environ.get("TSKIP", "38"))
PREBF = int(os.environ.get("PREBF", "2"))
PREBQ = int(os.environ.get("PREBQ", "2"))
OUTPOL = os.environ.get("OUTPOL", "")
NBK = int(os.environ.get("NBK", "1"))
NRS = int(os.environ.get("NRS", "0"))
TS = [int(x) for x in os.environ.get("TS", "2,3,5,6").split(",")]
DBGOUT = os.environ.get("DBGOUT", "0") == "1"
TSH = int(os.environ.get("TSH", "0"))


def acc(u, i):
    return vACC + (u * 4 + i) * 4


def wf(u):
    return vWF + 4 * u


def xf(b, i):
    return vXF + (b * 5 + i) * 4


def srd(d, base, nrec):
    e(f"s_mov_b32 s{d}, s{base}")
    e(f"s_and_b32 s{d+1}, s{base+1}, 0xffff")
    e(f"s_mov_b32 s{d+2}, {nrec}")
    e(f"s_mov_b32 s{d+3}, 0x00020000")


def nonce_load():
    e(f"s_add_u32 s{sNo}, s68, {NONCE_OFF}")
    e(f"s_addc_u32 s{sNo+1}, s69, 0")
    e(f"s_load_dwordx2 s[{sNo}:{sNo+1}], s[{sNo}:{sNo+1}], 0")


def nonce_fix():
    e(f"s_add_u32 s{sNo}, s{sNo}, 1")
    e(f"s_addc_u32 s{sNo+1}, s{sNo+1}, 0")


def stamp(i, real=False):
    if STAMP and not (STAMP_MIN and i not in (0, 13, 14, 15)):
        e(f"{'s_memrealtime' if (real or STAMP_RT) else 's_memtime'} s[100:101]")
        e("s_waitcnt lgkmcnt(0)")
        e(f"s_mov_b32 s{sSt+i}, s100")


def stamp_flush():
    if STAMP:
        e("s_waitcnt vmcnt(0)")
        stamp(13)
        stamp(15, real=True)
        for i in range(16):
            e(f"v_mov_b32 v{32+i}, s{sSt+i}")
        e(f"s_mul_i32 s{sT}, s2, 12")
        e(f"s_add_u32 s{sT}, s{sT}, s{sWave}")
        e(f"s_lshl_b32 s{sT}, s{sT}, 6")
        e(f"s_add_u32 s{sT}, s{sT}, {STAMP_OFF}")
        e("v_mov_b32 v48, 0")
        e("s_mov_b64 exec, 1")
        for i in range(4):
            e(f"buffer_store_dwordx4 v[{32+4*i}:{35+4*i}], v48, s[{S_WS}:{S_WS+3}], s{sT} offen offset:{16*i}")


QCFG = [(0, 0, 4, 0, 4), (0, 4, 4, 0, 4), (0, 8, 4, 0, 2), (1, 4, 4, 0, 0),
        (0, 12, 3, 0, 2), (1, 12, 3, 2, 1), (1, 0, 4, 0, 0), (1, 8, 4, 2, 2)]
FCFG = [(0, 0, 4, 0, 2), (0, 6, 4, 0, 2), (1, 0, 4, 2, 2), (1, 6, 4, 2, 2),
        (0, 4, 2, 0, 1), (0, 10, 2, 0, 1), (1, 4, 2, 1, 1), (1, 10, 2, 1, 1)]


def p1_dma(typ):
    P2_ = 960 if typ == "Q" else 832
    GP = Q_GP if typ == "Q" else F_GP
    RP = 3840 if typ == "Q" else 3072
    e(f"s_add_u32 m0, s{sCur}, s{sXoff}")
    e(f"s_add_u32 s{sT}, s{sKX}, 1280")
    e(f"buffer_load_dwordx4 v{vX0}, s[{S_X}:{S_X+3}], s{sKX} offen lds")
    e(f"buffer_load_dwordx4 v{vX1}, s[{S_X}:{S_X+3}], s{sKX} offen offset:1024 lds")
    e(f"s_add_u32 m0, m0, 2048")
    e("s_nop 0")
    e(f"buffer_load_dwordx4 v{vX0}, s[{S_X}:{S_X+3}], s{sT} offen lds")
    e(f"buffer_load_dwordx4 v{vX1}, s[{S_X}:{S_X+3}], s{sT} offen offset:1024 lds")
    if typ == "Q":
        e(f"s_add_u32 m0, s{sCur}, s{sHoff}")
        e(f"s_mov_b64 exec, s[{sMaskH}:{sMaskH+1}]")
        e(f"buffer_load_dwordx4 v{vH0}, s[{S_X}:{S_X+3}], s{sKX} offen lds")
    e(f"s_add_u32 m0, s{sCur}, s{sWoff}")
    e(f"s_mov_b64 exec, s[{sMaskW}:{sMaskW+1}]")
    for t in range(4):
        e(f"buffer_load_dwordx4 v{vWd+t}, s[{S_W}:{S_W+3}], s{sKW} offen offset:{P2_*t} lds")
    e(f"s_add_u32 m0, m0, {4*GP}")
    e(f"s_add_u32 s{sT}, s{sKW}, {32*RP}")
    for t in range(4):
        e(f"buffer_load_dwordx4 v{vWd+t}, s[{S_W}:{S_W+3}], s{sT} offen offset:{P2_*t} lds")
    e("s_mov_b64 exec, -1")
    e(f"s_add_u32 s{sKW}, s{sKW}, {64*RP}")
    e(f"s_add_u32 s{sKX}, s{sKX}, 128")
    STG = Q_STAGE if typ == "Q" else F_STAGE
    e(f"s_add_u32 s{sCur}, s{sCur}, {STG}")
    e(f"s_cmp_eq_u32 s{sCur}, {3*STG}")
    e(f"s_cselect_b32 s{sCur}, 0, s{sCur}")


def p1_loop(typ, w):
    rh, u0, nu, h0, nh = (QCFG if typ == "Q" else FCFG)[w]
    STG = Q_STAGE if typ == "Q" else F_STAGE
    P, GP, XB = (Q_P, Q_GP, Q_XB) if typ == "Q" else (F_P, F_GP, F_XB)
    tag = f"{typ}{w}"
    usehx = typ == "Q" and nh > 0
    tasks = typ == "F" and w >= 4
    tlast = TS[3]

    def xreads(b):
        o = []
        for i in range(4):
            off = XB + 2048 * (4 * rh + i + (1 if typ == "Q" else 0))
            o.append(f"ds_read_b128 {vr(xf(b,i),4)}, v{vXa} offset:{off}")
        if usehx:
            o.append(f"ds_read_b128 {vr(xf(b,4),4)}, v{vXa} offset:{XB}")
        return o

    def wreads(u, ks):
        U = u0 + u
        col = (U // 5) * 160 + 8 * (U % 5) if typ == "Q" else 32 * U
        return [f"ds_read_b64_tr_b16 {vr(wf(u)+2*h,2)}, v{vWa} offset:{ks*4*GP+h*4*P+col}" for h in range(2)]

    def mfmas(u, b):
        o = [f"v_mfma_f32_16x16x32_bf16 {vr(acc(u,i),4)}, {vr(wf(u),4)}, {vr(xf(b,i),4)}, {vr(acc(u,i),4)}" for i in range(4)]
        if h0 <= u < h0 + nh:
            a = vHACC + 4 * (u - h0)
            bsrc = xf(b, 4) if typ == "Q" else vOnes
            o.append(f"v_mfma_f32_16x16x32_bf16 {vr(a,4)}, {vr(wf(u),4)}, {vr(bsrc,4)}, {vr(a,4)}")
        return o

    lab(f"L_p1_{tag}")
    stamp(2)
    e("s_barrier")
    stamp(3)
    for x in xreads(0):
        e(x)
    for u in range(nu):
        for x in wreads(u, 0):
            e(x)
    e(f"v_mov_b32 v{vXa}, v{vXl1}")
    e("s_waitcnt lgkmcnt(0)")
    lab(f"L_p1_{tag}_loop")
    body = []
    NB = NBK if nu > NBK else 1
    for ph in range(2):
        pend = []
        if ph == 0:
            pend += [("l", x, ("x", 1)) for x in xreads(1)]
        for u in range(nu):
            if ph == 1 and u == NB:
                body.append(("o", f"v_add_u32 v{vXa}, s{sNxt}, v{vXl0}"))
                body.append(("o", f"v_add_u32 v{vWa}, s{sNxt}, v{vWl}"))
                if tasks:
                    body.append(("o", f"s_cmp_gt_u32 s{sIt}, {tlast}"))
                    body.append(("o", f"s_cbranch_scc1 L_p1_{tag}_nt"))
                    body.append(("o", f"s_call_b64 s[{sRet}:{sRet+1}], {'L_task' if typ == 'F' else 'L_syncQ'}"))
                    body.append(("lab", f"L_p1_{tag}_nt"))
                    body.append(("w0", "s_waitcnt lgkmcnt(0)"))
                else:
                    body.append(("w0", "s_waitcnt lgkmcnt(0)"))
                body.append(("o", "s_barrier"))
                pend = [("l", x, ("x", 0)) for x in xreads(0)] + pend
            ms = mfmas(u, ph)
            rem_after = sum(len(mfmas(uu, ph)) for uu in range(u + 1, nu))
            for mi, m in enumerate(ms):
                body.append(("m", m, [("w", u, ph), ("x", ph)] if mi == 0 else []))
                if mi == len(ms) - 1:
                    pend += [("l", x, ("w", u, 1 - ph)) for x in wreads(u, 1 - ph)]
                if not (ph == 1 and u < NB):
                    left = len(ms) - 1 - mi + rem_after + 1
                    k = 1 if len(pend) <= left else 2
                    while pend and k > 0:
                        body.append(pend.pop(0)); k -= 1
        while pend:
            body.append(pend.pop(0))
        if ph == 1:
            body.append(("o", f"v_add_u32 v{vXa}, s{sNxt}, v{vXl1}"))
            body.append(("o", f"s_add_u32 s{sNxt}, s{sNxt}, {STG}"))
            body.append(("o", f"s_cmp_eq_u32 s{sNxt}, {3*STG}"))
            body.append(("o", f"s_cselect_b32 s{sNxt}, 0, s{sNxt}"))
            body.append(("o", f"s_add_u32 s{sIt}, s{sIt}, 1"))
    n = len(body)
    waits = {}
    covered, ops = -1, []
    for pos, it in enumerate(body + body):
        if it[0] == "l":
            ops.append(it[2])
        elif it[0] == "w0":
            covered = len(ops) - 1
        elif it[0] == "m" and it[2]:
            need = -1
            for tg in it[2]:
                idx = [i for i, t in enumerate(ops) if t == tg]
                if idx:
                    need = max(need, idx[-1])
            if need > covered:
                cnt = min(13, len(ops) - 1 - need)
                covered = len(ops) - 1 - cnt
                if pos >= n:
                    waits[pos - n] = min(cnt, waits.get(pos - n, 99))
                else:
                    waits[pos] = cnt
    ops, covered = [], -1
    for pos, it in enumerate(body * 3):
        p0 = pos % n
        if p0 in waits:
            covered = max(covered, len(ops) - 1 - waits[p0])
        if it[0] == "l":
            ops.append(it[2])
        elif it[0] == "w0":
            covered = len(ops) - 1
        elif it[0] == "m" and it[2]:
            for tg in it[2]:
                idx = [i for i, t in enumerate(ops) if t == tg]
                assert not idx or idx[-1] <= covered, (tag, pos, tg)
    ZONE[0] = "p1c"
    for pos, it in enumerate(body):
        if pos in waits:
            e(f"s_waitcnt lgkmcnt({waits[pos]})")
        if it[0] == "lab":
            lab(it[1])
        else:
            e(it[1])
    ZONE[0] = ""
    e(f"s_cmp_lt_u32 s{sIt}, 10")
    e(f"s_cbranch_scc1 L_p1_{tag}_loop")
    e("s_waitcnt lgkmcnt(0)")
    stamp(4)
    e(f"s_branch L_epi_{typ}")


_spin = [0]


def spin_check(vreg, want_s, reload_fn, wide=True):
    k = _spin[0]; _spin[0] += 1
    regs = vreg if isinstance(vreg, list) else [vreg]
    e(f"s_mov_b32 s{sT+7}, 0")
    lab(f"L_spin{k}")
    for i, r in enumerate(regs):
        dst = "vcc" if i == 0 else f"s[{sT+4}:{sT+5}]"
        if wide:
            e(f"v_cmp_ne_u64 {dst}, s[{want_s}:{want_s+1}], v[{r}:{r+1}]")
        else:
            e(f"v_cmp_ne_u32 {dst}, s{want_s}, v{r}")
        if i:
            e("s_nop 1")
            e(f"s_or_b64 vcc, vcc, s[{sT+4}:{sT+5}]")
    e("s_nop 1")
    e(f"s_cmp_eq_u64 vcc, 0")
    e(f"s_cbranch_scc1 L_spin{k}_ok")
    e(f"s_add_u32 s{sT+7}, s{sT+7}, 1")
    e(f"s_cmp_gt_u32 s{sT+7}, 0x40000")
    e(f"s_cbranch_scc1 L_spin{k}_ok")
    e("s_sleep 2")
    reload_fn()
    e("s_waitcnt vmcnt(0)")
    e(f"s_branch L_spin{k}")
    lab(f"L_spin{k}_ok")


def loader(typ):
    N = 13 if typ == "Q" else 12
    N2 = 9
    vP, vFa, vL16, vSa = vT + 8, vT + 9, vT + 10, vT + 11
    vE1, vGl, vLs, vRs, vD = 32, 33, 34, 35, 36
    vP = 40
    sSrcA, sSrcB, sDst, sMA, sMB, sOne, sFl = sA, sA + 1, sA + 2, sA + 3, sA + 4, sA + 5, sA + 6
    e(f"s_mov_b32 s{sCur}, 0")
    if "p" in OPT:
        e("s_setprio 2")
    nonce_load()
    p1_dma(typ)
    if "z" in OPT:
        srd(S_WS, 68, WS_USED)
        e(f"s_waitcnt vmcnt(0) lgkmcnt(0)")
        e("s_barrier")
        stamp(1)
        p1_dma(typ)
        p1_dma(typ)
    else:
        p1_dma(typ)
        srd(S_WS, 68, WS_USED)
        e(f"s_waitcnt vmcnt({N}) lgkmcnt(0)")
        e("s_barrier")
        stamp(1)
        p1_dma(typ)
    e(f"v_lshlrev_b32 v{vL16}, 4, v{vLane}")
    e(f"v_lshlrev_b32 v{vFa}, 7, v{vLane}")
    e(f"v_lshlrev_b32 v{vSa}, 2, v{vLane}")
    nonce_fix()
    e(f"v_lshrrev_b32 v{vE1}, 2, v{vLane}")
    e(f"v_lshlrev_b32 v{vE1}, 4, v{vE1}")
    e(f"v_bfe_u32 v{vT}, v{vLane}, 1, 1")
    e(f"v_lshl_add_u32 v{vE1}, v{vT}, 2, v{vE1}")
    e(f"v_and_b32 v{vT}, 1, v{vLane}")
    e(f"v_add_u32 v{vE1}, v{vE1}, v{vT}")
    e(f"s_and_b32 s{sT}, s2, 1")
    e(f"s_lshl_b32 s{sT}, s{sT}, 1")
    e(f"s_add_u32 s{sT}, s{sT}, 8")
    e(f"v_add_lshl_u32 v{vE1}, v{vE1}, s{sT}, 7")
    per = 36 if typ == "Q" else 32
    t0, t1, t2, t3 = vT, vT + 1, vT + 2, vT + 3
    e(f"s_mul_i32 s{sT}, s{sS}, {per}")
    if typ == "Q":
        e(f"s_sub_u32 s{sT}, s{sT}, 16")
    e(f"v_add_u32 v{t0}, s{sT}, v{vLane}")
    e(f"s_lshl_b32 s{sT}, s{sRB}, 7")
    e(f"v_add_u32 v{t1}, s{sT}, v{t0}")
    e(f"v_max_i32 v{t1}, 0, v{t1}")
    e(f"v_lshlrev_b32 v{vGl}, 4, v{t1}")
    e(f"v_ashrrev_i32 v{t1}, 5, v{t0}")
    e(f"v_and_b32 v{t2}, 1, v{t0}")
    e(f"v_lshl_add_u32 v{t1}, v{t1}, 1, v{t2}")
    e(f"v_bfe_u32 v{t3}, v{t0}, 1, 4")
    e(f"v_lshl_add_u32 v{t1}, v{t1}, 4, v{t3}")
    if typ == "Q":
        e(f"v_add_u32 v{t1}, 16, v{t1}")
        e(f"v_and_b32 v{t3}, 7, v{t3}")
        e(f"v_cmp_gt_i32 vcc, 0, v{t0}")
        e(f"v_lshl_add_u32 v{t3}, v{t2}, 3, v{t3}")
        e("s_nop 0")
        e(f"v_cndmask_b32 v{t1}, v{t1}, v{t3}, vcc")
    e(f"v_lshlrev_b32 v{vLs}, 3, v{t1}")
    e(f"v_add_u32 v{vLs}, {(Q_MISC+QM_ST) if typ == 'Q' else (F_MISC+FM_ST)}, v{vLs}")
    if typ == "Q":
        e(f"v_add_u32 v{t1}, 16, v{t0}")
        e(f"v_lshrrev_b32 v{t1}, 1, v{t1}")
        e(f"v_mul_u32_u24 v{t2}, 320, v{t2}")
        e(f"v_lshl_add_u32 v{vRs}, v{t1}, 2, v{t2}")
        e(f"v_add_u32 v{vRs}, {Q_MISC+QM_RK}, v{vRs}")
    e(f"s_bfe_u32 s{sT}, s2, 0x10001")
    e(f"s_lshl_b32 s{sT+1}, s{sRB}, 1")
    e(f"s_add_u32 s{sT}, s{sT}, s{sT+1}")
    e(f"s_lshl_b32 s{sFl}, s{sRB}, 11")
    e(f"s_add_u32 s{sFl}, s{sFl}, {FL_OFF}")
    e(f"s_lshl_b32 s{sSrcA}, s{sT}, 2")
    e(f"s_add_u32 s{sSrcA}, s{sSrcA}, s{sS}")
    e(f"s_mul_i32 s{sSrcA}, s{sSrcA}, {68*1024}")
    cg_of(sT, sT + 1)
    e(f"s_mul_i32 s{sSrcB}, s{sT}, 68")
    e(f"s_add_u32 s{sSrcB}, s{sSrcB}, s{sS}")
    e(f"s_mul_i32 s{sSrcB}, s{sSrcB}, 5120")
    e(f"s_add_u32 s{sSrcB}, s{sSrcB}, {B2_OFF}")
    e(f"s_mul_i32 s{sMB}, s{sS}, 5120")
    e(f"s_lshl_b32 s{sMA}, s{sS}, 12")
    e(f"s_add_u32 s{sMA}, s{sMA}, 20480")
    e(f"s_mov_b32 s{sOne}, 1")
    e(f"s_mov_b32 s{sIt}, 0")
    lab(f"L_ld{typ}_loop")
    e(f"s_waitcnt vmcnt({N})")
    e("s_barrier")
    if STAMP:
        for it_, ix in ((0, 2), (2, 3), (5, 4), (6, 6)):
            e(f"s_cmp_lg_u32 s{sIt}, {it_}")
            e(f"s_cbranch_scc1 L_ld{typ}_st{it_}")
            stamp(ix)
            lab(f"L_ld{typ}_st{it_}")
    ZONE[0] = "p1l"
    p1_dma(typ)
    ZONE[0] = ""
    e(f"s_add_u32 s{sIt}, s{sIt}, 1")
    e(f"s_cmp_lt_u32 s{sIt}, 7")
    e(f"s_cbranch_scc1 L_ld{typ}_loop")
    e(f"s_waitcnt vmcnt({N})")
    e("s_barrier")
    stamp(7)

    def ld_stats():
        e(f"s_mov_b32 s{sT}, {ST_OFF}")
        e(f"s_mov_b32 s{sT+2}, -1")
        e(f"s_mov_b32 s{sT+3}, {0xf if typ == 'Q' else 0}")
        e(f"s_mov_b64 exec, s[{sT+2}:{sT+3}]")
        e(f"buffer_load_dwordx4 {vr(vD,4)}, v{vGl}, s[{S_WS}:{S_WS+3}], s{sT} offen sc1")
    def ld_bflags():
        e(f"s_mov_b32 s{sT}, {FL_OFF}")
        e(f"buffer_load_dwordx2 v[{vP}:{vP+1}], v{vE1}, s[{S_WS}:{S_WS+3}], s{sT} offen offset:8 sc1")
    if NRS:
        ld_bflags()
    ld_stats()
    e(f"s_waitcnt vmcnt({2 if NRS else 1})")
    e("s_barrier")
    stamp(10)
    e("s_waitcnt vmcnt(0)")
    spin_check(vD + 2, sNo, ld_stats)
    e(f"ds_write_b64 v{vLs}, v[{vD}:{vD+1}]")
    if typ == "Q":
        e(f"ds_write_b32 v{vRs}, v{vD+1}")
    e("s_mov_b64 exec, -1")
    stamp(9)
    e("s_waitcnt lgkmcnt(0)")

    Qs = []

    def dmaB(k=None):
        e(f"s_add_u32 m0, s{sDst}, s{sMB}")
        e(f"s_add_u32 s{sT}, s{sSrcB}, 4096")
        ZONE[0] = "p2l"
        for i in range(4):
            e(f"buffer_load_dwordx4 v{vL16}, s[{S_WS}:{S_WS+3}], s{sSrcB} offen offset:{1024*i} sc1 lds")
        e(f"s_add_u32 m0, m0, 4096")
        e(f"s_add_u32 s{sSrcB}, s{sSrcB}, 20480")
        e(f"buffer_load_dwordx4 v{vL16}, s[{S_WS}:{S_WS+3}], s{sT} offen sc1 lds")
        ZONE[0] = ""
        Qs.extend([k] * 5)

    def dmaA(k=None):
        e(f"s_add_u32 m0, s{sDst}, s{sMA}")
        e("s_nop 0")
        ZONE[0] = "p2l"
        for i in range(4):
            e(f"buffer_load_dwordx4 v{vL16}, s[{S_WS}:{S_WS+3}], s{sSrcA} offen offset:{1024*i} sc1 lds")
        ZONE[0] = ""
        e(f"s_add_u32 s{sSrcA}, s{sSrcA}, 4096")
        Qs.extend([k] * 4)

    def stage(k=None):
        dmaB(k); dmaA(k)
        e(f"s_add_u32 s{sDst}, s{sDst}, {SLOT}")
        e(f"s_cmp_eq_u32 s{sDst}, {4*SLOT}")
        e(f"s_cselect_b32 s{sDst}, 0, s{sDst}")

    def wait_for(tag):
        idx = [i for i, t in enumerate(Qs) if t == tag]
        if idx:
            e(f"s_waitcnt vmcnt({len(Qs) - 1 - idx[-1]})")
            del Qs[:idx[-1] + 1]

    def load_flags():
        e("s_mov_b64 exec, 0xff")
        e(f"buffer_load_dwordx2 v[{vP+2}:{vP+3}], v{vFa}, s[{S_WS}:{S_WS+3}], s{sFl} offen offset:1024 sc1")

    PRE = 2 if typ == "Q" else 4
    vRB = 44
    RS = [PRE + 1 + (i * (16 - PRE)) // NRS for i in range(NRS)] if NRS else []
    sBaseB, sSrcR = sKW, sKX

    def reg_load(i0, i1):
        for i in range(i0, min(i1, 5 * NRS)):
            if i % 5 in (0, 4) or i == i0:
                e(f"s_add_u32 s{sSrcR}, s{sBaseB}, {RS[i//5]*20480 + (4096 if i % 5 == 4 else 0)}")
            e(f"buffer_load_dwordx4 {vr(vRB+4*i,4)}, v{vL16}, s[{S_WS}:{S_WS+3}], s{sSrcR} offen offset:{1024*(i%5%4) if i % 5 < 4 else 0} sc1")

    def putB(k):
        i0 = RS.index(k) * 5
        e(f"s_add_u32 s{sT}, s{sMB}, {(k%4)*SLOT}")
        e(f"v_add_u32 v{vT+6}, s{sT}, v{vL16}")
        for i in range(5):
            e(f"ds_write_b128 v{vT+6}, {vr(vRB+4*(i0+i),4)} offset:{1024*i}")
    if NRS:
        e(f"s_mov_b32 s{sBaseB}, s{sSrcB}")
        spin_check(vP, sNo, ld_bflags)
        stamp(8)
        reg_load(0, 10)
        e("s_barrier")
        stamp(11)
        reg_load(10, 15)
        e("s_barrier")
        reg_load(15, 99)
    else:
        ld_bflags()
        e("s_barrier")
        stamp(11)
        e("s_barrier")
        e("s_waitcnt vmcnt(0)")
        spin_check(vP, sNo, ld_bflags)
        stamp(8)
    PREB = PREBQ if typ == "Q" else PREBF
    for k in range(PREB):
        e(f"s_mov_b32 s{sDst}, {k*SLOT}")
        dmaB(k)
    if BPF:
        e(f"s_lshr_b32 s{sT}, s2, 5")
        e(f"s_lshl_b32 s{sT}, s{sT}, 2")
        e(f"s_add_u32 s{sT}, s{sT}, s{sS}")
        e(f"s_mul_i32 s{sT}, s{sT}, {85*128}")
        e(f"s_add_u32 s{sT}, s{sT}, s{sSrcB}")
        e(f"s_sub_u32 s{sT}, s{sT}, s{sMB}")
        e(f"s_sub_u32 s{sT}, s{sT}, {PREB*20480}")
        e(f"s_add_u32 s{sT+1}, s{sT}, 8192")
        e(f"buffer_load_dword v{vD}, v{vFa}, s[{S_WS}:{S_WS+3}], s{sT} offen sc1")
        e(f"s_mov_b64 exec, 0x1fffff")
        e(f"buffer_load_dword v{vD}, v{vFa}, s[{S_WS}:{S_WS+3}], s{sT+1} offen sc1")
        e("s_mov_b64 exec, -1")
    if typ == "Q":
        load_flags()
        e("s_mov_b64 exec, -1")
    e("s_barrier")
    if typ == "F":
        e(f"s_lshl_b32 s{sT}, s{sG}, 7")
        e(f"s_add_u32 s{sT}, s{sT}, s{sFl}")
        e(f"s_cmp_eq_u32 s{sS}, 0")
        e(f"s_cselect_b32 s{sT}, s{sT}, 0x7f000000")
        e(f"v_mov_b32 v{vT}, s{sNo}")
        e(f"v_mov_b32 v{vT+1}, s{sNo+1}")
        e(f"v_mov_b32 v{vT+2}, 0")
        e("s_mov_b64 exec, 1")
        e(f"buffer_store_dwordx2 v[{vT}:{vT+1}], v{vT+2}, s[{S_WS}:{S_WS+3}], s{sT} offen offset:1024 sc1")
        e("s_mov_b64 exec, -1")
        for k in range(PREB, PRE):
            e(f"s_mov_b32 s{sDst}, {k*SLOT}")
            dmaB(k)
        load_flags()
    e("s_waitcnt vmcnt(0)")
    del Qs[:]
    if typ == "Q":
        for k in range(PREB, PRE):
            e(f"s_mov_b32 s{sDst}, {k*SLOT}")
            dmaB(k)
    e("s_mov_b64 exec, 0xff")
    spin_check(vP + 2, sNo, load_flags)
    e("s_mov_b64 exec, -1")
    stamp(5)
    for k in range(PRE):
        e(f"s_mov_b32 s{sDst}, {k*SLOT}")
        dmaA(k)
    e(f"s_mov_b32 s{sDst}, {(PRE % 4)*SLOT}")
    srd(S_R, 38, 1280)
    e(f"v_mul_u32_u24 v{vT}, 26, v{vLane}")
    e(f"v_lshrrev_b32 v{vT}, 8, v{vT}")
    e(f"v_mul_u32_u24 v{vT+1}, 10, v{vT}")
    e(f"v_sub_u32 v{vT+1}, v{vLane}, v{vT+1}")
    e(f"v_mul_u32_u24 v{vT}, 2560, v{vT}")
    e(f"v_lshl_add_u32 v{vT}, v{vT+1}, 4, v{vT}")
    e(f"v_lshlrev_b32 v{vT+1}, 3, v{vLane}")
    e(f"v_add_u32 v{vT+1}, {B2L}, v{vT+1}")
    e(f"s_mov_b32 s{sMaskH}, -1")
    e(f"s_mov_b32 s{sMaskH+1}, 0xff")
    issued = PRE
    NUN = 14 if NRS else 5
    for T in range(NUN):
        wait_for(T)
        if NRS and T != 4:
            e("s_waitcnt lgkmcnt(0)")
        if T == 4:
            wait_for("X")
            e(f"v_lshlrev_b32 v{vT+4}, 16, v{vD}")
            e(f"v_and_b32 v{vT+5}, 0xffff0000, v{vD}")
            e(f"s_mov_b64 exec, s[{sMaskH}:{sMaskH+1}]")
            e(f"ds_write_b64 v{vT+1}, v[{vT+4}:{vT+5}]")
            e("s_mov_b64 exec, -1")
            e("s_waitcnt lgkmcnt(0)")
        e("s_barrier")
        puts = []
        while issued <= T + 3:
            if issued in RS:
                dmaA(issued)
                e(f"s_add_u32 s{sSrcB}, s{sSrcB}, 20480")
                e(f"s_mov_b32 s{sDst}, {((issued+1)%4)*SLOT}")
                puts.append(issued)
            else:
                stage(issued)
            issued += 1
        for k_ in puts:
            putB(k_)
        if T == 0:
            p2_rowcol(sT, sT + 1)
            e(f"s_mul_i32 s{sT+2}, s{sS}, 2560")
            e(f"s_add_u32 m0, s{sT+2}, {X2}")
            e(f"s_mov_b64 exec, s[{sMaskH}:{sMaskH+1}]")
            for i in range(4):
                e(f"s_add_u32 s{sT+4}, s{sT}, {i*(4*2560-640)}")
                e(f"buffer_load_dwordx4 v{vT}, s[{S_X}:{S_X+3}], s{sT+4} offen offset:{640*i} lds")
            e(f"buffer_load_dword v{vD}, v{vSa}, s[{S_R}:{S_R+3}], s{sT+1} offen")
            e("s_mov_b64 exec, -1")
            Qs.extend(["X"] * 5)
    if not NRS:
        e(f"s_mov_b32 s{sIt}, {NUN}")
        lab(f"L_ld{typ}_p2b")
        e(f"s_waitcnt vmcnt({2*N2})")
        e("s_barrier")
        stage()
        e(f"s_add_u32 s{sIt}, s{sIt}, 1")
        e(f"s_cmp_lt_u32 s{sIt}, 14")
        e(f"s_cbranch_scc1 L_ld{typ}_p2b")
    for T in range(14, 17):
        if NRS:
            wait_for(T)
            e("s_waitcnt lgkmcnt(0)")
        else:
            e(f"s_waitcnt vmcnt({(16-T)*N2})")
        e("s_barrier")
    e("s_mov_b64 exec, -1")
    stamp_flush()
    e("s_endpgm")


def cg_of(sd, st):
    e(f"s_and_b32 s{sd}, s2, 1")
    e(f"s_lshl_b32 s{sd}, s{sd}, 2")
    e(f"s_bfe_u32 s{st}, s2, 0x20003")
    e(f"s_add_u32 s{sd}, s{sd}, s{st}")


def p2_rowcol(sd, sc):
    e(f"s_bfe_u32 s{sd}, s2, 0x10001")
    e(f"s_lshl_b32 s{sc}, s{sRB}, 1")
    e(f"s_add_u32 s{sd}, s{sd}, s{sc}")
    e(f"s_lshl_b32 s{sd}, s{sd}, 6")
    e(f"s_lshr_b32 s{sc}, s{sS}, 1")
    e(f"s_lshl_b32 s{sc}, s{sc}, 5")
    e(f"s_add_u32 s{sd}, s{sd}, s{sc}")
    e(f"s_and_b32 s{sc}, s{sS}, 1")
    e(f"s_add_u32 s{sd}, s{sd}, s{sc}")
    e(f"s_mul_i32 s{sd}, s{sd}, 1280")
    cg_of(sc, sd + 2)
    e(f"s_mul_i32 s{sc}, s{sc}, 160")
    e(f"s_add_u32 s{sd}, s{sd}, s{sc}")


def p2_compute():
    vAl, vBl, vAa, vBa = 10, 11, 12, 13
    vF, vS = 32, 44
    vFr = 56
    vPo, vFo = 8, 15
    ICHK = 9
    lab("L_p2")
    e(f"v_lshlrev_b32 v{vBl}, 4, v{vLane}")
    e(f"s_lshl_b32 s{sT}, s{sS}, 12")
    e(f"s_add_u32 s{sT}, s{sT}, 20480")
    e(f"v_add_u32 v{vAl}, s{sT}, v{vBl}")
    for r in range(24):
        e(f"v_mov_b32 v{vF+r}, 0")
    e(f"s_mov_b32 s{sCur}, 0")
    e(f"s_mov_b32 s{sIt}, 0")
    e(f"v_lshlrev_b32 v{vFo}, 7, v{vLane}")
    e(f"s_lshl_b32 s{sJ}, s{sRB}, 11")
    e(f"s_add_u32 s{sJ}, s{sJ}, {FL_OFF}")
    srd(S_DBG, 66, 256)
    stamp(9)
    e(f"s_cmp_ge_u32 s{sWave}, 4")
    e("s_cbranch_scc1 L_p2_1")
    for hf in range(2):
        nu = 3 if hf == 0 else 2
        u0 = 0 if hf == 0 else 3

        def fr(st, ks, i):
            return vFr + ((st * 2 + ks) * (1 + nu) + i) * 4

        def half(st, accprev, nomf=False):
            if st == 0:
                e(f"v_add_u32 v{vAa}, s{sCur}, v{vAl}")
                e(f"v_add_u32 v{vBa}, s{sCur}, v{vBl}")
            e("s_waitcnt lgkmcnt(0)")
            if st == 0:
                e("s_barrier")
            rds = []
            for ks in range(2):
                kk = 2 * st + ks
                rds.append(f"ds_read_b128 {vr(fr(st,ks,0),4)}, v{vAa} offset:{1024*kk}")
                for i in range(nu):
                    rds.append(f"ds_read_b128 {vr(fr(st,ks,1+i),4)}, v{vBa} offset:{(kk*5+u0+i)*1024}")
            ms = []
            if not nomf:
                for ks in range(2):
                    for i in range(nu):
                        a = accprev + 4 * i
                        ms.append(f"v_mfma_f32_16x16x32_bf16 {vr(a,4)}, {vr(fr(1-st,ks,1+i),4)}, {vr(fr(1-st,ks,0),4)}, {vr(a,4)}")
            ZONE[0] = "p2c"
            e(rds.pop(0)); e(rds.pop(0))
            for m in ms:
                e(m)
                if rds:
                    e(rds.pop(0))
            for x in rds:
                e(x)
            ZONE[0] = ""
            if st == 1:
                e(f"s_add_u32 s{sCur}, s{sCur}, {SLOT}")
                e(f"s_cmp_eq_u32 s{sCur}, {4*SLOT}")
                e(f"s_cselect_b32 s{sCur}, 0, s{sCur}")
                e(f"s_add_u32 s{sIt}, s{sIt}, 1")

        lab(f"L_p2_{hf}")
        half(0, vF, nomf=True)
        stamp(10)
        half(1, vF)
        e("s_waitcnt vmcnt(0)")
        lab(f"L_p2_{hf}_h")
        if hf == 0:
            def ld_o():
                e("s_mov_b64 exec, 0xff")
                e(f"buffer_load_dwordx2 v[{vPo}:{vPo+1}], v{vFo}, s[{S_WS}:{S_WS+3}], s{sJ} offen sc1")
            e(f"s_cmp_lg_u32 s{sWave}, 0")
            e(f"s_cbranch_scc1 L_p2_nv")
            e(f"s_cmp_lg_u32 s{sIt}, 2")
            e(f"s_cbranch_scc1 L_p2_n2")
            e(f"s_lshl_b32 s{sT}, s{sG}, 7")
            e(f"s_add_u32 s{sT}, s{sT}, s{sJ}")
            e("s_bitcmp1_b32 s2, 3")
            e(f"s_cselect_b32 s{sT}, 0x7f000000, s{sT}")
            e(f"v_mov_b32 v{vT}, s{sNo}")
            e(f"v_mov_b32 v{vT+1}, s{sNo+1}")
            e(f"v_mov_b32 v{vT+2}, 0")
            e("s_mov_b64 exec, 1")
            e(f"buffer_store_dwordx2 v[{vT}:{vT+1}], v{vT+2}, s[{S_WS}:{S_WS+3}], s{sT} offen sc1")
            e("s_mov_b64 exec, -1")
            lab("L_p2_n2")
            e(f"s_cmp_lg_u32 s{sIt}, {ICHK-2}")
            e(f"s_cbranch_scc1 L_p2_n3")
            ld_o()
            e("s_mov_b64 exec, -1")
            lab("L_p2_n3")
            e(f"s_cmp_lg_u32 s{sIt}, {ICHK}")
            e(f"s_cbranch_scc1 L_p2_nv")
            e("s_waitcnt vmcnt(0)")
            e("s_mov_b64 exec, 0xff")
            spin_check(vPo, sNo, ld_o)
            e(f"s_lshl_b32 s{sT}, s{sRB}, 2")
            e(f"s_and_b32 s{sT+1}, s2, 0x1b")
            e(f"s_cmp_eq_u32 s{sT+1}, 0")
            e(f"s_cselect_b32 s{sT}, s{sT}, 0x1000")
            e(f"v_mov_b32 v{vT}, 1")
            e(f"v_mov_b32 v{vT+1}, 0")
            e("s_mov_b64 exec, 1")
            e(f"buffer_store_dword v{vT}, v{vT+1}, s[{S_DBG}:{S_DBG+3}], s{sT} offen sc1")
            e("s_mov_b64 exec, -1")
            lab("L_p2_nv")
        half(0, vF)
        half(1, vF)
        e(f"s_cmp_lt_u32 s{sIt}, 12")
        e(f"s_cbranch_scc1 L_p2_{hf}_h")
        half(0, vF)
        nel = 4 * nu
        cb = 4 * u0
        vG, vSl = vT, vT + 1
        vBb, vXx, vE, vXf = 128, 160, 140, 128
        e(f"v_lshrrev_b32 v{vG}, 4, v{vLane}")
        e(f"v_and_b32 v{vSl}, 15, v{vLane}")
        e(f"v_mul_u32_u24 v{vT+2}, 80, v{vG}")
        e(f"v_add_u32 v{vT+2}, {B2L+4*cb}, v{vT+2}")
        e(f"v_mul_u32_u24 v{vT+3}, 160, v{vSl}")
        e(f"v_mul_u32_u24 v{vT+4}, 40, v{vG}")
        e(f"s_mul_i32 s{sT}, s{sS}, 2560")
        e(f"s_add_u32 s{sT}, s{sT}, {X2+2*cb}")
        e(f"v_add3_u32 v{vT+3}, v{vT+3}, v{vT+4}, s{sT}")
        e(f"v_mul_u32_u24 v{vT+5}, 2560, v{vSl}")
        e(f"v_add_u32 v{vT+5}, v{vT+5}, v{vT+4}")
        for i in range(nu):
            e(f"ds_read_b128 {vr(vBb+4*i,4)}, v{vT+2} offset:{16*i}")
        for i in range(nu):
            e(f"ds_read_b64 {vr(vXx+2*i,2)}, v{vT+3} offset:{8*i}")
        half(1, vS)
        e(f"s_mov_b32 s{sT+1}, {f32(-1.4426950408889634)}")
        for r in range(nel):
            e(f"v_add_f32 v{vF+r}, v{vF+r}, v{vBb+r}")
        for r in range(nel):
            e(f"v_mul_f32 v{vE+r}, s{sT+1}, v{vF+r}")
        for r in range(nel):
            e(f"v_exp_f32 v{vE+r}, v{vE+r}")
        for d in range(nel // 2):
            e(f"v_lshlrev_b32 v{vXf+2*d}, 16, v{vXx+d}")
            e(f"v_and_b32 v{vXf+2*d+1}, 0xffff0000, v{vXx+d}")
        for r in range(nel):
            e(f"v_add_f32 v{vE+r}, 1.0, v{vE+r}")
        for r in range(nel):
            e(f"v_rcp_f32 v{vE+r}, v{vE+r}")
        p2_rowcol(sT, sT + 1)
        srd(S_R, 64, 2048 * 1280)
        e(f"v_lshlrev_b32 v{vT+9}, 2, v{vLane}")
        if "f" in OPT:
            e(f"s_mul_i32 s{sT+2}, s{sS}, 2560")
            e(f"s_add_u32 s{sT+2}, s{sT+2}, {X2+1280*hf}")
            e(f"v_lshlrev_b32 v{vT+6}, 4, v{vLane}")
            e(f"v_mul_u32_u24 v{vT+7}, 26, v{vLane}")
            e(f"v_lshrrev_b32 v{vT+7}, 8, v{vT+7}")
            e(f"v_mul_u32_u24 v{vT+7}, {2560-160}, v{vT+7}")
            e(f"v_add3_u32 v{vT+7}, v{vT+7}, v{vT+6}, 0")
            e(f"v_add_u32 v{vT+7}, {8*2560*hf}, v{vT+7}")
            e(f"v_add_u32 v{vT+6}, s{sT+2}, v{vT+6}")
        for r in range(nel):
            e(f"v_mul_f32 v{vF+r}, v{vF+r}, v{vE+r}")
        lab(f"L_p2_{hf}_o")
        if hf == 1:
            e(f"s_or_b32 s{sT+2}, s{sS}, s2")
            e(f"s_cmp_lg_u32 s{sT+2}, 0")
            e("s_cbranch_scc1 L_nonce_skip")

            def ld_dbg():
                e(f"buffer_load_dword v{vT+8}, v{vT+9}, s[{S_DBG}:{S_DBG+3}], 0 offen sc1")
            e("s_mov_b64 exec, 0xffff")
            e(f"s_cmp_lg_u32 s{sIt}, 13")
            e("s_cbranch_scc1 L_nonce_b")
            ld_dbg()
            lab("L_nonce_b")
            e(f"s_cmp_lg_u32 s{sIt}, 15")
            e("s_cbranch_scc1 L_nonce_c")
            e(f"s_mov_b32 s{sT+6}, 1")
            e("s_waitcnt vmcnt(0)")
            spin_check(vT + 8, sT + 6, ld_dbg, wide=False)
            e(f"v_mov_b32 v{vT+10}, s{sNo}")
            e(f"v_mov_b32 v{vT+11}, s{sNo+1}")
            e(f"s_mov_b32 s{sT+2}, {NONCE_OFF}")
            e("s_mov_b64 exec, 1")
            e(f"buffer_store_dwordx2 v[{vT+10}:{vT+11}], v{vT+9}, s[{S_WS}:{S_WS+3}], s{sT+2} offen sc1")
            lab("L_nonce_c")
            e("s_mov_b64 exec, -1")
            lab("L_nonce_skip")
        half(0, vS)
        half(1, vS)
        e(f"s_cmp_lt_u32 s{sIt}, 17")
        e(f"s_cbranch_scc1 L_p2_{hf}_o")
        e("s_waitcnt lgkmcnt(0)")
        for ks in range(2):
            for i in range(nu):
                a = vS + 4 * i
                e(f"v_mfma_f32_16x16x32_bf16 {vr(a,4)}, {vr(fr(1,ks,1+i),4)}, {vr(fr(1,ks,0),4)}, {vr(a,4)}")
        stamp(11)
        e("s_nop 7")
        for r in range(nel):
            e(f"v_fmac_f32 v{vXf+r}, v{vF+r}, v{vS+r}")
        for d in range(nel // 2):
            e(f"v_cvt_pk_bf16_f32 v{vE+d}, v{vXf+2*d}, v{vXf+2*d+1}")
        if "f" in OPT:
            for i in range(nu):
                e(f"ds_write_b64 v{vT+3}, {vr(vE+2*i,2)} offset:{8*i}")
            e(f"s_mov_b32 s{sT+2}, -1")
            e(f"s_mov_b32 s{sT+3}, 0xff")
            e(f"s_add_u32 s{sT+1}, s{sT}, {4*2560}")
            e("s_waitcnt lgkmcnt(0)")
            e("s_barrier")
            e(f"s_mov_b64 exec, s[{sT+2}:{sT+3}]")
            e(f"ds_read_b128 {vr(vE,4)}, v{vT+6}")
            e(f"ds_read_b128 {vr(vE+4,4)}, v{vT+6} offset:640")
            e("s_waitcnt lgkmcnt(1)")
            e(f"buffer_store_dwordx4 {vr(vE,4)}, v{vT+7}, s[{S_R}:{S_R+3}], s{sT} offen{OUTPOL}")
            e("s_waitcnt lgkmcnt(0)")
            e(f"buffer_store_dwordx4 {vr(vE+4,4)}, v{vT+7}, s[{S_R}:{S_R+3}], s{sT+1} offen{OUTPOL}")
            e("s_mov_b64 exec, -1")
        else:
            e(f"buffer_store_dwordx4 {vr(vE,4)}, v{vT+5}, s[{S_R}:{S_R+3}], s{sT} offen offset:{2*cb}")
            if hf == 0:
                e(f"buffer_store_dwordx2 {vr(vE+4,2)}, v{vT+5}, s[{S_R}:{S_R+3}], s{sT} offen offset:16")
        stamp(12)
        stamp_flush()
        e("s_endpgm")


def wave_sum(v, t):
    for ctl in ("quad_perm:[1,0,3,2]", "quad_perm:[2,3,0,1]", "row_half_mirror", "row_mirror"):
        e("s_nop 1")
        e(f"v_add_f32_dpp v{v}, v{v}, v{v} {ctl} row_mask:0xf bank_mask:0xf")
    for sw in ("v_permlane16_swap_b32", "v_permlane32_swap_b32"):
        e(f"v_mov_b32 v{t}, v{v}")
        e("s_nop 1")
        e(f"{sw} v{v}, v{t}")
        e("s_nop 0")
        e(f"v_add_f32 v{v}, v{v}, v{t}")


def wave_sum2(a, b, ta, tb):
    for ctl in ("quad_perm:[1,0,3,2]", "quad_perm:[2,3,0,1]", "row_half_mirror", "row_mirror"):
        e("s_nop 0")
        e(f"v_add_f32_dpp v{a}, v{a}, v{a} {ctl} row_mask:0xf bank_mask:0xf")
        e(f"v_add_f32_dpp v{b}, v{b}, v{b} {ctl} row_mask:0xf bank_mask:0xf")
    for sw in ("v_permlane16_swap_b32", "v_permlane32_swap_b32"):
        e(f"v_mov_b32 v{ta}, v{a}")
        e(f"v_mov_b32 v{tb}, v{b}")
        e("s_nop 1")
        e(f"{sw} v{a}, v{ta}")
        e(f"{sw} v{b}, v{tb}")
        e("s_nop 0")
        e(f"v_add_f32 v{a}, v{a}, v{ta}")
        e(f"v_add_f32 v{b}, v{b}, v{tb}")


def w_touch(typ):
    if not TOUCH2 or "e" in OPT:
        return
    RP = 3840 if typ == "Q" else 3072
    nl = 50 if typ == "Q" else 60
    e(f"s_cmp_ge_u32 s{sWave}, {3 if typ == 'Q' else 2}")
    e(f"s_cbranch_scc1 L_notouch{typ}")
    e(f"v_lshlrev_b32 v{vXF+10}, 7, v{vLane}")
    srd(S_R, 6 if typ == "Q" else 32, 640 * RP)
    e(f"s_lshl_b32 s{sT}, s{sRB}, 3")
    e(f"s_add_u32 s{sT}, s{sT}, s{sG}")
    e(f"s_cmp_lt_u32 s{sT}, {TSKIP}")
    e(f"s_cbranch_scc1 L_notouch{typ}")
    e(f"s_mul_i32 s{sT}, s{sT}, {5*RP}")
    e(f"s_mul_i32 s{sT+1}, s{sWave}, {nl*128}")
    e(f"s_add_u32 s{sT}, s{sT}, s{sT+1}")
    e(f"s_mov_b32 s{sT+2}, -1")
    e(f"s_mov_b32 s{sT+3}, {hex((1 << (nl - 32)) - 1)}")
    e(f"s_mov_b64 exec, s[{sT+2}:{sT+3}]")
    e(f"buffer_load_dword v0, v{vXF+10}, s[{S_R}:{S_R+3}], s{sT} offen")
    e("s_mov_b64 exec, -1")
    lab(f"L_notouch{typ}")


def w_touch_early(typ):
    RP = 3840 if typ == "Q" else 3072
    nl = 50 if typ == "Q" else 60
    e(f"v_lshlrev_b32 v{vXF+10}, 7, v{vLane}")
    srd(S_R, 6 if typ == "Q" else 32, 640 * RP)
    e(f"s_lshl_b32 s{sT}, s{sRB}, 3")
    e(f"s_add_u32 s{sT+2}, s{sT}, s{sG}")
    e(f"s_mul_i32 s{sT}, s{sT+2}, {5*RP}")
    e(f"s_mul_i32 s{sT+1}, s{sWave}, {nl*128}")
    e(f"s_add_u32 s{sT}, s{sT}, s{sT+1}")
    e(f"s_cmp_lt_u32 s{sT+2}, {TSKIP}")
    e(f"s_cselect_b32 s{sT}, 0x7f000000, s{sT}")
    e(f"s_cmp_ge_u32 s{sWave}, {3 if typ == 'Q' else 2}")
    e(f"s_cselect_b32 s{sT}, 0x7f000000, s{sT}")
    e(f"s_mov_b32 s{sT+2}, -1")
    e(f"s_mov_b32 s{sT+3}, {hex((1 << (nl - 32)) - 1)}")
    e(f"s_mov_b64 exec, s[{sT+2}:{sT+3}]")
    e(f"buffer_load_dword v0, v{vXF+10}, s[{S_R}:{S_R+3}], s{sT} offen")
    e("s_mov_b64 exec, -1")


def row_stats():
    U = [vXF + 12 + i for i in range(10)]
    M, O = vXF + 24, vXF + 28
    e("s_waitcnt vmcnt(1)" if "e" in OPT else "s_waitcnt vmcnt(0)")
    for d in range(5):
        e(f"v_lshlrev_b32 v{U[2*d]}, 16, v{vXF+d}")
        e(f"v_and_b32 v{U[2*d+1]}, 0xffff0000, v{vXF+d}")
    e(f"v_add_f32 v{M}, v{U[0]}, v{U[1]}")
    e(f"v_add_f32 v{M+1}, v{U[2]}, v{U[3]}")
    for k in range(4, 10, 2):
        e(f"v_add_f32 v{M}, v{M}, v{U[k]}")
        e(f"v_add_f32 v{M+1}, v{M+1}, v{U[k+1]}")
    e(f"v_add_f32 v{M}, v{M}, v{M+1}")
    wave_sum(M, M + 1)
    e(f"v_mul_f32 v{O}, {f32(-1.0/640)}, v{M}")
    for k in range(10):
        e(f"v_add_f32 v{U[k]}, v{U[k]}, v{O}")
    e(f"v_mul_f32 v{M}, v{U[0]}, v{U[0]}")
    e(f"v_mul_f32 v{M+1}, v{U[1]}, v{U[1]}")
    for k in range(2, 10, 2):
        e(f"v_fmac_f32 v{M}, v{U[k]}, v{U[k]}")
        e(f"v_fmac_f32 v{M+1}, v{U[k+1]}, v{U[k+1]}")
    e(f"v_add_f32 v{M}, v{M}, v{M+1}")
    wave_sum(M, M + 1)
    e(f"v_mov_b32 v{M+1}, {f32(1e-5)}")
    e(f"v_fmac_f32 v{M+1}, {f32(1.0/640)}, v{M}")
    e(f"v_rsq_f32 v{O+1}, v{M+1}")
    e(f"v_mov_b32 v{O+2}, s{sNo}")
    e(f"v_mov_b32 v{O+3}, s{sNo+1}")
    e(f"v_mov_b32 v{M}, 0")
    e("s_mov_b64 exec, 1")
    e(f"buffer_store_dwordx4 {vr(O,4)}, v{M}, s[{S_WS}:{S_WS+3}], s99 offen sc1")
    e("s_mov_b64 exec, -1")


def cfg_lookup(cfg):
    def tab(f):
        return hex(sum((f(c) & 15) << (4 * i) for i, c in enumerate(cfg)))
    e(f"s_lshl_b32 s{sT}, s{sWave}, 2")
    for dst, f in ((sRh, lambda c: c[0]), (sU0, lambda c: c[1]), (sH0, lambda c: c[1] + c[3]), (sNH, lambda c: c[4]), (sNU, lambda c: c[2])):
        e(f"s_lshr_b32 s{dst}, {tab(f)}, s{sT}")
        e(f"s_and_b32 s{dst}, s{dst}, 15")


def gen():
    K = NAME + "_kernel"
    L.append(f".globl {K}")
    L.append(".p2align 8")
    L.append(f".type {K},@function")
    lab(K)
    e("s_cmp_ge_u32 s2, 256")
    e("s_cbranch_scc1 L_end")
    stamp(0)
    stamp(14, real=True)
    e("s_load_dwordx4 s[4:7], s[0:1], 0")
    e("s_load_dwordx8 s[32:39], s[0:1], 32")
    e("s_load_dwordx2 s[28:29], s[0:1], 16")
    e("s_load_dwordx4 s[64:67], s[0:1], 64")
    e("s_load_dwordx2 s[68:69], s[0:1], 80")
    e(f"v_lshrrev_b32 v{vT}, 6, v0")
    e(f"v_and_b32 v{vLane}, 63, v0")
    e(f"v_readfirstlane_b32 s{sWave}, v{vT}")
    e(f"s_and_b32 s{sT}, s2, 3")
    e(f"s_lshl_b32 s{sT}, s{sT}, 1")
    e(f"s_bfe_u32 s{sG}, s2, 0x10004")
    e(f"s_add_u32 s{sG}, s{sG}, s{sT}")
    e(f"s_bfe_u32 s{sT}, s2, 0x10002")
    e(f"s_lshl_b32 s{sT}, s{sT}, 3")
    e(f"s_lshr_b32 s{sRB}, s2, 5")
    e(f"s_add_u32 s{sRB}, s{sRB}, s{sT}")
    e(f"s_and_b32 s{sS}, s{sWave}, 3")
    e(f"v_lshrrev_b32 v{vT}, 4, v{vLane}")
    e(f"s_cmp_lt_u32 s{sWave}, 8")
    e("s_cbranch_scc1 L_compute")

    e(f"v_and_b32 v{vT+1}, 7, v{vLane}")
    e(f"v_xor_b32 v{vT+5}, v{vT+1}, v{vT}")
    e(f"v_lshlrev_b32 v{vT+5}, 4, v{vT+5}")
    e(f"v_lshrrev_b32 v{vT+2}, 3, v{vLane}")
    e(f"v_mul_u32_u24 v{vT+2}, 2560, v{vT+2}")
    e(f"v_add_u32 v{vT+3}, v{vT+2}, v{vT+5}")
    e(f"v_xor_b32 v{vT+5}, 64, v{vT+5}")
    e(f"v_add_u32 v{vT+4}, v{vT+2}, v{vT+5}")
    e(f"s_lshl_b32 s{sT}, s{sRB}, 7")
    e(f"s_lshl_b32 s{sT+1}, s{sS}, 5")
    e(f"s_add_u32 s{sT+1}, s{sT+1}, s{sT}")
    e(f"s_mul_i32 s{sT+1}, s{sT+1}, 1280")
    e(f"v_add_u32 v{vX0}, s{sT+1}, v{vT+3}")
    e(f"s_add_u32 s{sT+1}, s{sT+1}, {16*1280-1024}")
    e(f"v_add_u32 v{vX1}, s{sT+1}, v{vT+4}")
    e(f"s_mov_b32 s{sKW}, 0")
    e(f"s_mov_b32 s{sKX}, 0")
    e("s_bitcmp1_b32 s2, 3")
    e("s_cbranch_scc1 L_ldF")
    e(f"s_lshl_b32 s{sT+1}, s{sS}, 1")
    e(f"v_add_u32 v{vT+3}, s{sT+1}, v{vT}")
    e(f"v_xor_b32 v{vT+3}, v{vT+3}, v{vT+1}")
    e(f"v_and_b32 v{vT+3}, 7, v{vT+3}")
    e(f"v_lshl_add_u32 v{vT+3}, v{vT+3}, 4, v{vT+2}")
    e(f"s_and_b32 s{sT+1}, s{sS}, 1")
    e(f"s_lshl_b32 s{sT+1}, s{sT+1}, 3")
    e(f"s_lshr_b32 s{sT+2}, s{sS}, 1")
    e(f"s_add_u32 s{sT+1}, s{sT+1}, s{sT+2}")
    e(f"s_add_u32 s{sT+1}, s{sT+1}, s{sT}")
    e(f"s_sub_u32 s{sT+1}, s{sT+1}, 16")
    e(f"s_mul_i32 s{sT+1}, s{sT+1}, 1280")
    e(f"v_add_u32 v{vH0}, s{sT+1}, v{vT+3}")
    e(f"s_lshl_b32 s{sHoff}, s{sS}, 9")
    e(f"s_add_u32 s{sHoff}, s{sHoff}, {Q_XB}")
    e(f"s_cmp_eq_u32 s{sS}, 0")
    e(f"s_cselect_b32 s{sMaskH}, 0xffffff00, -1")
    e(f"s_mov_b32 s{sMaskH+1}, 0")
    e(f"v_cmp_le_u32 vcc, 30, v{vLane}")
    e(f"v_mov_b32 v{vT+3}, 0")
    e(f"v_mov_b32 v{vT+4}, 30")
    e(f"v_cndmask_b32 v{vT+3}, v{vT+3}, v{vT+4}, vcc")
    e(f"v_sub_u32 v{vT+4}, v{vLane}, v{vT+3}")
    e(f"v_mul_u32_u24 v{vT+3}, 128, v{vT+3}")
    e(f"v_mul_u32_u24 v{vT+5}, 26, v{vT+4}")
    e(f"v_lshrrev_b32 v{vT+5}, 8, v{vT+5}")
    e(f"v_mul_u32_u24 v{vT+6}, 10, v{vT+5}")
    e(f"v_sub_u32 v{vT+4}, v{vT+4}, v{vT+6}")
    e(f"v_lshl_add_u32 v{vT+3}, v{vT+4}, 4, v{vT+3}")
    e(f"v_add_u32 v{vT+5}, 1, v{vT+5}")
    e(f"v_cmp_le_u32 vcc, 3, v{vT+5}")
    e(f"v_mov_b32 v{vT+6}, 0")
    e(f"s_mul_i32 s{sT}, s{sS}, {8*3840}")
    e(f"v_cndmask_b32 v{vT+5}, v{vT+5}, v{vT+6}, vcc")
    e(f"v_mul_u32_u24 v{vT+5}, 1280, v{vT+5}")
    e(f"v_add_u32 v{vT+3}, v{vT+3}, v{vT+5}")
    e(f"s_mul_i32 s{sT+1}, s{sG}, 160")
    e(f"s_add_u32 s{sT}, s{sT}, s{sT+1}")
    e(f"v_add_u32 v{vWd}, s{sT}, v{vT+3}")
    for t in range(1, 4):
        e(f"v_add_u32 v{vWd+t}, {6720*t}, v{vWd}")
    e(f"s_mul_i32 s{sWoff}, s{sS}, {Q_GP}")
    e(f"s_lshl_b32 s{sXoff}, s{sS}, 12")
    e(f"s_add_u32 s{sXoff}, s{sXoff}, {Q_XB+2048}")
    e(f"s_mov_b32 s{sMaskW}, -1")
    e(f"s_mov_b32 s{sMaskW+1}, 0x0fffffff")
    e("s_waitcnt lgkmcnt(0)")
    srd(S_X, 4, 2048 * 1280)
    srd(S_W, 6, 640 * 3840)
    loader("Q")
    lab("L_ldF")
    e(f"v_cmp_le_u32 vcc, 26, v{vLane}")
    e(f"v_mov_b32 v{vT+3}, 0")
    e(f"v_mov_b32 v{vT+4}, {3072-26*16}")
    e(f"v_cndmask_b32 v{vT+3}, v{vT+3}, v{vT+4}, vcc")
    e(f"v_lshl_add_u32 v{vT+3}, v{vLane}, 4, v{vT+3}")
    e(f"s_mul_i32 s{sT}, s{sS}, {8*3072}")
    e(f"s_mul_i32 s{sT+1}, s{sG}, 384")
    e(f"s_add_u32 s{sT}, s{sT}, s{sT+1}")
    e(f"v_add_u32 v{vWd}, s{sT}, v{vT+3}")
    for t in range(1, 4):
        e(f"v_add_u32 v{vWd+t}, {5312*t}, v{vWd}")
    e(f"s_mul_i32 s{sWoff}, s{sS}, {F_GP}")
    e(f"s_lshl_b32 s{sXoff}, s{sS}, 12")
    e(f"s_add_u32 s{sXoff}, s{sXoff}, {F_XB}")
    e(f"s_mov_b32 s{sMaskW}, 0xfcffffff")
    e(f"s_mov_b32 s{sMaskW+1}, 0x0003ffff")
    e("s_waitcnt lgkmcnt(0)")
    srd(S_X, 4, 2048 * 1280)
    srd(S_W, 32, 640 * 3072)
    loader("F")

    lab("L_compute")
    if CODEPF:
        e(f"s_getpc_b64 s[{sT}:{sT+1}]")
        lab("L_pc")
        e(f"s_sub_u32 s{sT}, s{sT}, L_pc-{K}")
        e(f"s_subb_u32 s{sT+1}, s{sT+1}, 0")
        e(f"v_lshlrev_b32 v{vT+1}, 7, v0")
        e(f"v_min_u32 v{vT+1}, L_end-{K}, v{vT+1}")
        e(f"s_bfe_u32 s{sT+2}, s2, 0x20004")
        e(f"s_cmp_lg_u32 s{sT+2}, 0")
        e("s_cbranch_scc1 L_nopf")
        e(f"s_cmp_gt_u32 s{sWave}, 4")
        e("s_cbranch_scc1 L_nopf")
        e(f"global_load_dword v0, v{vT+1}, s[{sT}:{sT+1}]")
        lab("L_nopf")
    e(f"v_and_b32 v{vT+1}, 15, v{vLane}")
    e(f"v_lshrrev_b32 v{vT+2}, 1, v{vT+1}")
    e(f"v_xor_b32 v{vT+2}, v{vT+2}, v{vT}")
    e(f"v_lshlrev_b32 v{vT+2}, 4, v{vT+2}")
    e(f"v_lshl_add_u32 v{vXl0}, v{vT+1}, 7, v{vT+2}")
    e(f"v_xor_b32 v{vXl1}, 64, v{vXl0}")
    e(f"v_mov_b32 v{vXa}, v{vXl0}")
    e(f"v_bfe_u32 v{vT+1}, v{vLane}, 2, 2")
    e(f"v_and_b32 v{vT+2}, 3, v{vLane}")
    e(f"s_mov_b32 s{sIt}, 0")
    e(f"s_lshl_b32 s{sT}, s{sRB}, 4")
    e(f"s_add_u32 s{sT}, s{sT}, s{sG}")
    e(f"s_and_b32 s{sT+1}, s2, 8")
    e(f"s_add_u32 s{sT}, s{sT}, s{sT+1}")
    e(f"s_lshl_b32 s{sT}, s{sT}, 3")
    e(f"s_add_u32 s{sT}, s{sT}, s{sWave}")
    e(f"s_lshl_b32 s99, s{sT}, 4")
    e(f"s_add_u32 s99, s99, {ST_OFF}")
    e(f"s_mul_i32 s{sT}, s{sT}, 1280")
    e(f"v_lshlrev_b32 v{vXF+8}, 4, v{vLane}")
    e(f"v_lshlrev_b32 v{vXF+9}, 2, v{vLane}")
    e("s_waitcnt lgkmcnt(0)")
    stamp(1)
    srd(S_X, 4, 2048 * 1280)
    e(f"buffer_load_dwordx4 {vr(vXF,4)}, v{vXF+8}, s[{S_X}:{S_X+3}], s{sT} offen")
    e(f"buffer_load_dword v{vXF+4}, v{vXF+9}, s[{S_X}:{S_X+3}], s{sT} offen offset:1024")
    nonce_load()
    srd(S_WS, 68, WS_USED)
    if "t" in OPT:
        e(f"s_cmp_lg_u32 s{sWave}, 6")
        e("s_cbranch_scc1 L_notlb")
        srd(S_R, 64, 2048 * 1280)
        e(f"v_lshlrev_b32 v{vXF+10}, 20, v{vLane}")
        e("s_mov_b64 exec, 0xfff")
        e(f"buffer_load_dword v0, v{vXF+10}, s[{S_WS}:{S_WS+3}], 0 offen sc1")
        e("s_mov_b64 exec, 7")
        e(f"buffer_load_dword v0, v{vXF+10}, s[{S_R}:{S_R+3}], 0 offen sc1")
        e("s_mov_b64 exec, -1")
        lab("L_notlb")
    e("s_bitcmp1_b32 s2, 3")
    e("s_cbranch_scc1 L_F")
    if "e" in OPT:
        w_touch_early("Q")
    e(f"v_mul_u32_u24 v{vWl}, {Q_GP}, v{vT}")
    e(f"v_mul_u32_u24 v{vT+3}, {Q_P}, v{vT+1}")
    e(f"v_add_u32 v{vWl}, v{vWl}, v{vT+3}")
    e(f"v_mul_u32_u24 v{vT+3}, 40, v{vT+2}")
    e(f"v_add_u32 v{vWl}, v{vWl}, v{vT+3}")
    e(f"v_mov_b32 v{vWa}, v{vWl}")
    e(f"v_and_b32 v{vT+3}, 31, v{vLane}")
    e(f"v_lshlrev_b32 v{vT+3}, 2, v{vT+3}")
    e(f"v_mov_b32 v{vT+4}, 0x3f803f80")
    e(f"ds_write_b32 v{vT+3}, v{vT+4} offset:{Q_XB}")
    e(f"v_add_u32 v{vT+3}, {Q_STAGE}, v{vT+3}")
    e(f"ds_write_b32 v{vT+3}, v{vT+4} offset:{Q_XB}")
    e(f"v_add_u32 v{vT+3}, {Q_STAGE}, v{vT+3}")
    e(f"ds_write_b32 v{vT+3}, v{vT+4} offset:{Q_XB}")
    for r in range(vACC, vHACC + 16):
        e(f"v_mov_b32 v{r}, 0")
    e(f"s_mov_b32 s{sNxt}, {Q_STAGE}")
    cfg_lookup(QCFG)
    tG, tS, tR, tC, t0, t1 = 112, 113, 114, 115, 116, 117
    e(f"v_mov_b32 v{tG}, v{vT}")
    e(f"v_mov_b32 v{tR}, v{vT+1}")
    e(f"v_mov_b32 v{tC}, v{vT+2}")
    e(f"v_and_b32 v{tS}, 15, v{vLane}")
    e(f"v_lshlrev_b32 v{t0}, 4, v{tG}")
    e(f"s_lshl_b32 s{sT}, s{sH0}, 6")
    e(f"s_add_u32 s{sT}, s{sT}, {Q_MISC+QM_CS}")
    e(f"v_add_u32 v{qCSh}, s{sT}, v{t0}")
    e(f"s_lshl_b32 s{sT}, s{sU0}, 6")
    e(f"s_add_u32 s{sT}, s{sT}, {Q_MISC+QM_CS}")
    e(f"v_add_u32 v{qCSu}, s{sT}, v{t0}")
    e(f"v_lshlrev_b32 v{qSa}, 3, v{tS}")
    e(f"v_add_u32 v{qSa}, {Q_MISC+QM_ST}, v{qSa}")
    e(f"s_lshl_b32 s{sT}, s{sRh}, 9")
    e(f"v_add_u32 v{qSm}, s{sT}, v{qSa}")
    e(f"v_mul_u32_u24 v{t0}, 640, v{tG}")
    e(f"v_lshl_add_u32 v{t0}, v{tS}, 3, v{t0}")
    e(f"v_lshrrev_b32 v{qPh}, 3, v{tS}")
    e(f"v_mul_u32_u24 v{qPh}, {2560-64}, v{qPh}")
    e(f"s_mul_i32 s{sT}, s{sH0}, {PLANE}")
    e(f"s_add_u32 s{sT}, s{sT}, {Q_PL}")
    e(f"v_add3_u32 v{qPh}, v{qPh}, v{t0}, s{sT}")
    e(f"s_and_b32 s{sT}, s{sWave}, 1")
    e(f"s_mul_i32 s{sT+2}, s{sT}, 320")
    e(f"s_mul_i32 s{sT}, s{sT}, 2560")
    e(f"s_lshr_b32 s{sT+1}, s{sWave}, 1")
    e(f"s_lshl_b32 s{sT+3}, s{sT+1}, 6")
    e(f"s_add_u32 s{sT+2}, s{sT+2}, s{sT+3}")
    e(f"s_add_u32 s{sT+2}, s{sT+2}, {Q_MISC+QM_RK}")
    e(f"s_lshl_b32 s{sT+1}, s{sT+1}, 7")
    e(f"s_add_u32 s{sT}, s{sT}, s{sT+1}")
    e(f"s_add_u32 s{sT}, s{sT}, {Q_PL}")
    e(f"v_add_u32 v{qAt}, s{sT}, v{t0}")
    e(f"v_add_u32 v{qAq}, {10*PLANE+64}, v{qAt}")
    e(f"v_lshl_add_u32 v{t1}, v{tC}, 2, v{tR}")
    e(f"v_mul_u32_u24 v{qAv}, 640, v{tG}")
    e(f"v_lshl_add_u32 v{qAv}, v{t1}, 3, v{qAv}")
    e(f"v_add_u32 v{qAv}, s{sT}, v{qAv}")
    e(f"v_lshlrev_b32 v{qRk}, 4, v{tR}")
    e(f"v_add_u32 v{qRk}, s{sT+2}, v{qRk}")
    e(f"v_lshl_add_u32 v{qRq}, v{tC}, 2, v{qRk}")
    e(f"s_mul_i32 s{sT}, s{sU0}, {PLANE}")
    e(f"s_lshl_b32 s{sT+1}, s{sRh}, 8")
    e(f"s_add_u32 s{sT}, s{sT}, s{sT+1}")
    e(f"s_add_u32 s{sT}, s{sT}, {Q_PL+64}")
    e(f"v_add_u32 v{qPw}, s{sT}, v{t0}")
    e(f"v_lshlrev_b32 v{qOa}, 4, v{vLane}")
    e(f"v_lshrrev_b32 v{qOb}, 5, v{vLane}")
    e(f"v_lshlrev_b32 v{qOb}, 8, v{qOb}")
    e(f"v_lshl_add_u32 v{qOb}, v{tS}, 4, v{qOb}")
    e(f"v_bfe_u32 v{t1}, v{vLane}, 4, 1")
    e(f"v_lshl_add_u32 v{qOb}, v{t1}, 3, v{qOb}")
    BIG = 2.0 ** 100
    lo, hi = t0, t1
    e(f"v_lshlrev_b32 v{lo}, 2, v{tR}")
    e(f"s_lshr_b32 s{sT}, s{sWave}, 1")
    e(f"s_or_b32 s{sT}, s{sRB}, s{sT}")
    e(f"s_cmp_eq_u32 s{sT}, 0")
    e(f"s_cselect_b32 s{sT}, 8, 0")
    e(f"v_sub_u32 v{lo}, s{sT}, v{lo}")
    e(f"v_add_u32 v{hi}, 1, v{tC}")
    e(f"v_max_i32 v{lo}, v{lo}, v{hi}")
    e(f"v_cvt_f32_i32 v{lo}, v{lo}")
    e(f"v_cvt_f32_i32 v{hi}, v{tC}")
    e(f"v_mov_b32 v{tG}, {f32(-BIG)}")
    e(f"v_mov_b32 v{tS}, {f32(BIG)}")
    for pp in range(1, 8):
        e(f"v_fmaak_f32 v{qMk(pp)}, v{lo}, v{tG}, {f32(pp*BIG)}")
        e(f"v_min_f32 v{qMk(pp)}, 0, v{qMk(pp)}")
    for pp in range(9, 12):
        e(f"v_fmaak_f32 v{qMk(pp)}, v{hi}, v{tS}, {f32(-(pp-8)*BIG)}")
        e(f"v_min_f32 v{qMk(pp)}, 0, v{qMk(pp)}")
    e(f"s_lshl_b32 s{sT}, s{sRB}, 3")
    e(f"s_add_u32 s{sT}, s{sT}, s{sWave}")
    e(f"s_mul_i32 s{sT}, s{sT}, 68")
    e(f"s_lshr_b32 s{sT+1}, s{sG}, 1")
    e(f"s_mul_i32 s{sT+1}, s{sT+1}, 5")
    e(f"s_add_u32 s{sT}, s{sT}, s{sT+1}")
    e(f"s_add_u32 s{sT}, s{sT}, 48")
    e(f"s_and_b32 s{sT+1}, s{sG}, 1")
    e(f"s_lshl_b32 s{sJ}, s{sT+1}, 1")
    e(f"s_add_u32 s{sJ}, s{sJ}, s{sT}")
    e(f"s_lshl_b32 s{sJ}, s{sJ}, 10")
    e(f"s_add_u32 s{sT}, s{sT}, 4")
    e(f"s_lshl_b32 s{sT}, s{sT}, 10")
    e(f"s_lshl_b32 s{sT+1}, s{sT+1}, 9")
    e(f"s_add_u32 s{sJ+1}, s{sT}, s{sT+1}")
    e(f"s_mov_b32 s{sMaskW}, 0x00010001")
    e(f"s_mov_b32 s{sMaskW+1}, 0x00010001")
    e("s_waitcnt lgkmcnt(0)")
    nonce_fix()
    row_stats()
    w_touch("Q")
    for w in range(7):
        e(f"s_cmp_eq_u32 s{sWave}, {w}")
        e(f"s_cbranch_scc1 L_p1_Q{w}")
    e("s_branch L_p1_Q7")

    lab("L_F")
    if "e" in OPT:
        w_touch_early("F")
    e(f"v_mul_u32_u24 v{vWl}, {F_GP}, v{vT}")
    e(f"v_mul_u32_u24 v{vT+3}, {F_P}, v{vT+1}")
    e(f"v_add_u32 v{vWl}, v{vWl}, v{vT+3}")
    e(f"v_lshl_add_u32 v{vWl}, v{vT+2}, 3, v{vWl}")
    e(f"v_mov_b32 v{vWa}, v{vWl}")
    srd(S_X, 4, 2048 * 1280)
    fL16, fTr, fCSu, fCSh, fSm = 2, 3, 4, 5, 6
    e(f"v_lshlrev_b32 v{fL16}, 4, v{vLane}")
    cfg_lookup(FCFG)
    e(f"v_lshlrev_b32 v{vT+3}, 4, v{vT}")
    e(f"s_lshl_b32 s{sT}, s{sH0}, 6")
    e(f"s_add_u32 s{sT}, s{sT}, {F_MISC+FM_CS}")
    e(f"v_add_u32 v{fCSh}, s{sT}, v{vT+3}")
    e(f"s_lshl_b32 s{sT}, s{sU0}, 6")
    e(f"s_add_u32 s{sT}, s{sT}, {F_MISC+FM_CS}")
    e(f"v_add_u32 v{fCSu}, s{sT}, v{vT+3}")
    e(f"v_and_b32 v{fSm}, 15, v{vLane}")
    e(f"v_lshlrev_b32 v{fSm}, 3, v{fSm}")
    e(f"s_lshl_b32 s{sT}, s{sRh}, 9")
    e(f"s_add_u32 s{sT}, s{sT}, {F_MISC+FM_ST}")
    e(f"v_add_u32 v{fSm}, s{sT}, v{fSm}")
    e(f"s_mov_b32 s{sMaskW}, 0x00010001")
    e(f"s_mov_b32 s{sMaskW+1}, 0x00010001")
    sRow, sF = sKW, sKX
    e(f"s_lshl_b32 s{sRow}, s{sRB}, 7")
    e(f"s_bfe_u32 s{sT}, s2, 0x10004")
    e(f"s_lshl_b32 s{sT}, s{sT}, 6")
    e(f"s_add_u32 s{sRow}, s{sRow}, s{sT}")
    e(f"s_lshr_b32 s{sF}, s2, 4")
    e(f"s_cmp_ge_u32 s{sWave}, 4")
    e("s_cbranch_scc1 L_F_helper")
    if TOUCH:
        e(f"v_mul_u32_u24 v{vT+3}, 26, v{vLane}")
        e(f"v_lshrrev_b32 v{vT+3}, 8, v{vT+3}")
        e(f"v_mul_u32_u24 v{vT+4}, 10, v{vT+3}")
        e(f"v_sub_u32 v{vT+4}, v{vLane}, v{vT+4}")
        e(f"v_lshlrev_b32 v{vT+4}, 7, v{vT+4}")
        e(f"s_and_b32 s{sT}, s2, 3")
        e(f"s_lshl_b32 s{sT}, s{sT}, 4")
        e(f"s_mul_i32 s{sT+4}, s{sRow}, 1280")
        e(f"s_mov_b32 s{sT+6}, -1")
        e(f"s_mov_b32 s{sT+7}, 0x0fffffff")
        for i in range(2):
            e(f"s_mul_i32 s{sT+2}, s{sWave}, 12")
            e(f"s_add_u32 s{sT+2}, s{sT+2}, {6*i}")
            e(f"v_add_u32 v{vT+5}, s{sT+2}, v{vT+3}")
            e(f"v_cmp_le_u32 vcc, s{sT}, v{vT+5}")
            e(f"v_add_u32 v{vT+6}, 16, v{vT+5}")
            e("s_nop 0")
            e(f"v_cndmask_b32 v{vT+5}, v{vT+5}, v{vT+6}, vcc")
            e(f"v_mul_u32_u24 v{vT+5}, 1280, v{vT+5}")
            e(f"v_add_u32 v{vT+7+i}, v{vT+5}, v{vT+4}")
        e(f"v_mul_u32_u24 v{vT+3}, 57, v{vLane}")
        e(f"v_lshrrev_b32 v{vT+3}, 9, v{vT+3}")
        e(f"v_mul_u32_u24 v{vT+4}, 9, v{vT+3}")
        e(f"v_sub_u32 v{vT+4}, v{vLane}, v{vT+4}")
        e(f"v_mul_u32_u24 v{vT+5}, 86, v{vT+4}")
        e(f"v_lshrrev_b32 v{vT+5}, 8, v{vT+5}")
        e(f"v_mul_u32_u24 v{vT+3}, 3840, v{vT+3}")
        e(f"v_lshl_add_u32 v{vT+3}, v{vT+4}, 7, v{vT+3}")
        e(f"v_mul_u32_u24 v{vT+5}, {1280-384}, v{vT+5}")
        e(f"v_add_u32 v{vT+3}, v{vT+3}, v{vT+5}")
        e(f"v_mul_u32_u24 v{vT+4}, 43, v{vLane}")
        e(f"v_lshrrev_b32 v{vT+4}, 8, v{vT+4}")
        e(f"v_mul_u32_u24 v{vT+4}, {3072-768}, v{vT+4}")
        e(f"v_lshl_add_u32 v{vT+4}, v{vLane}, 7, v{vT+4}")
        e(f"s_mul_i32 s{sT}, s{sF}, 40")
        e(f"s_mul_i32 s{sT+1}, s{sWave}, 10")
        e(f"s_add_u32 s{sT}, s{sT}, s{sT+1}")
        e(f"s_and_b32 s{sT+1}, s2, 3")
        e(f"s_mul_i32 s{sT+2}, s{sT+1}, 320")
        e(f"s_and_b32 s{sT+2}, s{sT+2}, 0xffffff80")
        e(f"s_mul_i32 s{sT+3}, s{sT}, 3840")
        e(f"s_add_u32 s{sT+2}, s{sT+2}, s{sT+3}")
        e(f"s_add_u32 s{sT+3}, s{sT+2}, {5*3840}")
        e(f"s_mul_i32 s{sT+1}, s{sT+1}, 768")
        e(f"s_mul_i32 s{sT}, s{sT}, 3072")
        e(f"s_add_u32 s{sT}, s{sT}, s{sT+1}")
        srd(S_W, 6, 640 * 3840)
        srd(S_R, 32, 640 * 3072)
        e(f"s_mov_b64 exec, s[{sT+6}:{sT+7}]")
        e(f"buffer_load_dword v{vT+10}, v{vT+4}, s[{S_R}:{S_R+3}], s{sT} offen")
        e(f"buffer_load_dword v{vT+10}, v{vT+7}, s[{S_X}:{S_X+3}], s{sT+4} offen")
        e(f"buffer_load_dword v{vT+10}, v{vT+8}, s[{S_X}:{S_X+3}], s{sT+4} offen")
        e(f"s_mov_b32 s{sT+7}, 0x1fff")
        e(f"s_mov_b64 exec, s[{sT+6}:{sT+7}]")
        e(f"buffer_load_dword v{vT+10}, v{vT+3}, s[{S_W}:{S_W+3}], s{sT+2} offen")
        e(f"buffer_load_dword v{vT+10}, v{vT+3}, s[{S_W}:{S_W+3}], s{sT+3} offen")
        e("s_mov_b64 exec, -1")
    for r in range(vACC + 32, vACC + 64):
        e(f"v_mov_b32 v{r}, 0")
    lab("L_F_go")
    for r in list(range(vACC, vACC + 32)) + list(range(vHACC, vHACC + 8)):
        e(f"v_mov_b32 v{r}, 0")
    for r in range(4):
        e(f"v_mov_b32 v{vOnes+r}, 0x3f803f80")
    e(f"s_mov_b32 s{sNxt}, {F_STAGE}")
    e("s_waitcnt lgkmcnt(0)")
    nonce_fix()
    row_stats()
    w_touch("F")
    for w in range(7):
        e(f"s_cmp_eq_u32 s{sWave}, {w}")
        e(f"s_cbranch_scc1 L_p1_F{w}")
    e("s_branch L_p1_F7")

    lab("L_F_helper")
    sD1, sD2, sJb1, sNJ = sJ + 1, sJ + 2, sJ + 3, sJ + 4
    JV1 = [64, 65, 66, 67, 68]
    JV2 = [72, 73, 74, 75, 76]
    for r_ in JV1:
        e(f"v_mov_b32 v{r_}, 0")
    srd(S_W, 36, 1536 * 1280)
    srd(S_DBG, 34, 3072)
    sKS, sCGj, sBase, sJa, sJb, sP, sTt = sWoff, sXoff, sHoff, sMaskH, sMaskH + 1, sCur, 98
    e(f"s_bfe_u32 s{sKS}, s2, 0x20001")
    e(f"s_mul_i32 s{sKS}, s{sKS}, 17")
    e(f"s_add_u32 s{sKS}, s{sKS}, s{sF}")
    e(f"s_and_b32 s{sCGj}, s2, 1")
    e(f"s_lshl_b32 s{sCGj}, s{sCGj}, 2")
    e(f"s_add_u32 s{sCGj}, s{sCGj}, s{sS}")
    e(f"s_mul_i32 s{sJb1}, s{sS}, 5120")
    e(f"s_add_u32 s{sJb1}, s{sJb1}, {F_JOB}")
    e(f"s_cmp_eq_u32 s{sF}, s{sS}")
    e(f"s_cselect_b32 s{sNJ}, 2, 1")
    e(f"s_mov_b32 s{sT+6}, 0")
    e(f"v_lshrrev_b32 v{fTr}, 2, v{vLane}")
    e(f"v_mul_u32_u24 v{fTr}, 160, v{fTr}")
    e(f"v_mul_u32_u24 v{vT+4}, 40, v{vT+2}")
    e(f"v_add_u32 v{fTr}, v{fTr}, v{vT+4}")
    lab("L_F_jobissue")
    e(f"s_sub_u32 s{sT}, s{sKS}, 48")
    e(f"s_mul_i32 s{sP}, s{sT}, 52")
    e(f"s_lshr_b32 s{sP}, s{sP}, 8")
    e(f"s_mul_i32 s{sTt}, s{sP}, 5")
    e(f"s_sub_u32 s{sTt}, s{sT}, s{sTt}")
    e(f"s_mul_i32 s{sP}, s{sP}, 160")
    e(f"s_lshr_b32 s{sBase}, s{sTt}, 1")
    e(f"s_mul_i32 s{sBase}, s{sBase}, 80")
    e(f"s_and_b32 s{sJa}, s{sTt}, 1")
    e(f"s_lshl_b32 s{sJa}, s{sJa}, 3")
    e(f"s_add_u32 s{sBase}, s{sBase}, s{sJa}")
    e(f"s_cmp_eq_u32 s{sTt}, 4")
    e(f"s_cselect_b32 s{sBase}, 16, s{sBase}")
    e(f"s_cselect_b32 s{sJa}, 40, 20")
    e(f"s_cselect_b32 s{sJb}, 20, 4")
    e(f"s_add_u32 s{sBase}, s{sBase}, s{sP}")
    e(f"s_lshl_b32 s{sP}, s{sKS}, 5")
    e(f"s_mov_b32 s{S_R+2}, {640*1280}")
    e(f"s_cmp_ge_u32 s{sKS}, 48")
    e(f"s_cselect_b32 s{sBase}, s{sBase}, s{sP}")
    e(f"s_cselect_b32 s{sJa}, s{sJa}, 4")
    e(f"s_cselect_b32 s{sJb}, s{sJb}, 16")
    e(f"s_cselect_b32 s{S_R}, s28, s36")
    e(f"s_cselect_b32 s{S_R+1}, s29, s37")
    e(f"s_cselect_b32 s{S_R+2}, s{S_R+2}, {1536*1280}")
    e(f"s_and_b32 s{S_R+1}, s{S_R+1}, 0xffff")
    e(f"s_mov_b32 s{S_R+3}, 0x00020000")
    e(f"s_mul_i32 s{sBase}, s{sBase}, 1280")
    e(f"s_mul_i32 s{sP}, s{sCGj}, 160")
    e(f"s_add_u32 s{sBase}, s{sBase}, s{sP}")
    e(f"s_mul_i32 s{sJa}, s{sJa}, 1280")
    e(f"s_mul_i32 s{sJb}, s{sJb}, 1280")
    e(f"s_mul_i32 s{sD2}, s{sCGj}, 68")
    e(f"s_add_u32 s{sD2}, s{sD2}, s{sKS}")
    e(f"s_mul_i32 s{sD2}, s{sD2}, 5120")
    e(f"s_add_u32 s{sD2}, s{sD2}, {B2_OFF}")
    for i in range(5):
        q, rho, t1 = vT + 3, vT + 4, vT + 5
        e(f"v_add_u32 v{q}, {64*i}, v{vLane}")
        e(f"v_mul_u32_u24 v{rho}, 205, v{q}")
        e(f"v_lshrrev_b32 v{rho}, 11, v{rho}")
        e(f"v_mul_u32_u24 v{t1}, 10, v{rho}")
        e(f"v_sub_u32 v{q}, v{q}, v{t1}")
        e(f"v_and_b32 v{t1}, 3, v{rho}")
        e(f"v_mul_u32_u24 v{t1}, 1280, v{t1}")
        e(f"v_lshl_add_u32 v{q}, v{q}, 4, v{t1}")
        e(f"v_bfe_u32 v{t1}, v{rho}, 2, 2")
        e(f"v_mad_u32_u24 v{q}, v{t1}, s{sJa}, v{q}")
        e(f"v_lshrrev_b32 v{t1}, 4, v{rho}")
        e(f"v_mad_u32_u24 v{q}, v{t1}, s{sJb}, v{q}")
        e(f"v_add_u32 v{JV2[i]}, s{sBase}, v{q}")
    e(f"s_add_u32 s{sT+6}, s{sT+6}, 1")
    e(f"s_cmp_ge_u32 s{sT+6}, 2")
    e("s_cbranch_scc1 L_F_jobs_done")
    e(f"s_mov_b32 s{sD1}, s{sD2}")
    for i_ in range(5):
        e(f"v_mov_b32 v{JV1[i_]}, v{JV2[i_]}")
    for i_ in range(3):
        e(f"s_mov_b32 s{S_W+i_}, s{S_R+i_}")
    e(f"s_mov_b32 s{S_W+3}, 0x00020000")
    e(f"s_cmp_eq_u32 s{sNJ}, 1")
    e("s_cbranch_scc1 L_F_jobs_done")
    e(f"s_sub_u32 s{sKS}, s{sKS}, s{sF}")
    e(f"s_add_u32 s{sKS}, s{sKS}, 16")
    e("s_branch L_F_jobissue")
    lab("L_F_jobs_done")
    e("s_setprio 1")
    e("s_branch L_F_go")
    lab("L_task_jdma")
    e(f"s_mul_i32 s{sT+4}, s{sG}, 384")
    e(f"v_lshlrev_b32 v{vT+3}, 3, v{vLane}")
    e(f"buffer_load_dwordx2 v[70:71], v{vT+3}, s[{S_DBG}:{S_DBG+3}], s{sT+4} offen")
    for jn, (JV, SR) in enumerate(((JV1, S_W), (JV2, S_R))):
        if jn == 0:
            e(f"s_mov_b32 m0, s{sJb1}")
        else:
            e(f"s_cmp_eq_u32 s{sNJ}, 1")
            e("s_cbranch_scc1 L_task_ret")
            e(f"s_mov_b32 m0, {F_JOB+20480}")
        for i in range(5):
            e("s_nop 0")
            e(f"buffer_load_dwordx4 v{JV[i]}, s[{SR}:{SR+3}], 0 offen lds")
            e(f"s_add_u32 m0, m0, 1024")
    e(f"s_setpc_b64 s[{sRet}:{sRet+1}]")
    lab("L_task")
    for it_, tgt in ((0, "L_task_jdma"), (TS[0], "L_task_0"), (TS[1], "L_task_j2"), (TS[3], "L_task_6")):
        e(f"s_cmp_eq_u32 s{sIt}, {it_}")
        e(f"s_cbranch_scc1 {tgt}")
    e(f"s_cmp_lg_u32 s{sIt}, {TS[2]}")
    e("s_cbranch_scc1 L_task_ret")
    e("s_waitcnt vmcnt(0)")
    e(f"s_setpc_b64 s[{sRet}:{sRet+1}]")
    lab("L_task_0")
    e("s_waitcnt vmcnt(0)")
    e(f"v_lshlrev_b32 v16, 16, v70")
    e(f"v_and_b32 v17, 0xffff0000, v70")
    e(f"v_lshlrev_b32 v18, 16, v71")
    e(f"v_and_b32 v19, 0xffff0000, v71")
    e(f"v_add_u32 v20, {F_MISC+FM_B1}, v{fL16}")
    e(f"s_mov_b32 s{sT+2}, -1")
    e(f"s_mov_b32 s{sT+3}, 0xffff")
    e(f"s_mov_b64 exec, s[{sT+2}:{sT+3}]")
    e(f"ds_write_b128 v20, v[16:19]")
    e("s_mov_b64 exec, -1")
    e(f"v_add_u32 v24, s{sJb1}, v{fTr}")
    e(f"s_mov_b32 s{sT}, s{sD1}")
    lab("L_task_job")
    e(f"s_add_u32 s{sT+1}, s{sT}, 4096")
    e("s_waitcnt lgkmcnt(0)")
    for U in range(5):
        for h in range(2):
            e(f"ds_read_b64_tr_b16 {vr(76+4*U+2*h,2)}, v24 offset:{8*U+2560*h}")
    for U in range(5):
        e(f"s_waitcnt lgkmcnt({2*(4-U)})")
        e(f"buffer_store_dwordx4 {vr(76+4*U,4)}, v{fL16}, s[{S_WS}:{S_WS+3}], s{sT + (U >> 2)} offen offset:{1024*(U&3)} sc1")
    e(f"s_setpc_b64 s[{sRet}:{sRet+1}]")
    lab("L_task_6")
    e(f"s_cmp_lg_u32 s{sWave}, 4")
    e("s_cbranch_scc1 L_task_ret")
    e(f"s_lshl_b32 s{sT}, s{sRB}, 4")
    e(f"s_add_u32 s{sT}, s{sT}, s{sG}")
    e(f"s_lshl_b32 s{sT}, s{sT}, 7")
    e(f"s_add_u32 s{sT}, s{sT}, {FL_OFF+1024}")
    e(f"v_mov_b32 v24, s{sNo}")
    e(f"v_mov_b32 v25, s{sNo+1}")
    e(f"v_mov_b32 v26, 0")
    e("s_mov_b64 exec, 1")
    e(f"buffer_store_dwordx2 v[24:25], v26, s[{S_WS}:{S_WS+3}], s{sT} offen offset:8 sc1")
    e("s_mov_b64 exec, -1")
    e(f"s_setpc_b64 s[{sRet}:{sRet+1}]")
    lab("L_task_j2")
    e(f"s_cmp_eq_u32 s{sNJ}, 1")
    e("s_cbranch_scc1 L_task_ret")
    e(f"v_add_u32 v24, {F_JOB+20480}, v{fTr}")
    e(f"s_mov_b32 s{sT}, s{sD2}")
    e("s_branch L_task_job")
    lab("L_task_ret")
    e(f"s_setpc_b64 s[{sRet}:{sRet+1}]")

    for typ in "QF":
        for w in range(8):
            p1_loop(typ, w)

    lab("L_epi_Q")
    vST = vXF
    for i in range(4):
        e(f"ds_read_b32 v{vST+i}, v{qSm} offset:{128*(i+1)}")
    e(f"ds_read_b32 v{vST+4}, v{qSa}")
    e(f"s_mov_b64 exec, s[{sMaskW}:{sMaskW+1}]")
    e("s_nop 1")
    for j in range(4):
        e(f"s_cmp_le_u32 s{sNH}, {j}")
        e("s_cbranch_scc1 L_q_cs_done")
        e(f"ds_write_b128 v{qCSh}, {vr(vHACC+4*j,4)} offset:{64*j}")
    lab("L_q_cs_done")
    e("s_mov_b64 exec, -1")
    e("s_waitcnt lgkmcnt(0)")
    e("s_barrier")
    stamp(5)
    vCS, vCSH = vWF, 136
    for u in range(4):
        e(f"ds_read_b128 {vr(vCS+4*u,4)}, v{qCSu} offset:{64*u}")
    for j in range(4):
        e(f"ds_read_b128 {vr(vCSH+4*j,4)}, v{qCSh} offset:{64*j}")
    vRK = 152
    for kb in range(3):
        e(f"ds_read_b128 {vr(vRK+4*kb,4)}, v{qRk} offset:{16*kb}")
    e(f"ds_read_b32 v164, v{qRq} offset:32")

    def norm_unit(a, cs, nm, addr, off):
        for r in range(4):
            e(f"v_fmac_f32 v{a+r}, v{cs+r}, v{nm}")
        e(f"v_cvt_pk_bf16_f32 v{a}, v{a}, v{a+1}")
        e(f"v_cvt_pk_bf16_f32 v{a+1}, v{a+2}, v{a+3}")
        e(f"ds_write_b64 v{addr}, v[{a}:{a+1}] offset:{off}")

    for u in range(4):
        if u == 3:
            e(f"s_cmp_eq_u32 s{sNU}, 3")
            e("s_cbranch_scc1 L_q_skip3")
        if u == 0:
            e("s_waitcnt lgkmcnt(11)")
        if u == 1:
            e("s_waitcnt lgkmcnt(12)")
        for i in range(4):
            norm_unit(acc(u, i), vCS + 4 * u, vST + i, qPw, u * PLANE + (i & 1) * 2560 + (i >> 1) * 128)
    lab("L_q_skip3")
    e("s_waitcnt lgkmcnt(12)")
    for j in range(4):
        e(f"s_cmp_le_u32 s{sNH}, {j}")
        e("s_cbranch_scc1 L_q_halo_done")
        norm_unit(vHACC + 4 * j, vCSH + 4 * j, vST + 4, qPh, j * PLANE)
    lab("L_q_halo_done")
    vLg = 112
    vKf, vVf, vQf, vO, vPf, vOp = 32, 62, 92, 32, 104, 124
    vAt, vAq, vAv = qAt, qAq, qAv
    cexp = (20 ** -0.5) * 1.4426950408889634
    e(f"v_mul_f32 v164, {f32(cexp)}, v164")
    e("s_waitcnt lgkmcnt(0)")
    stamp(6)
    e("s_barrier")
    stamp(7)

    def qk_reads(t):
        e(f"ds_read_b64 {vr(vQf+2*t,2)}, v{vAq} offset:{t*PLANE}")
        for kb in range(3):
            e(f"ds_read_b64 {vr(vKf+2*(3*t+kb),2)}, v{vAt} offset:{t*PLANE+32*kb}")
    for t in range(2):
        qk_reads(t)
    for t in range(5):
        if t < 3:
            qk_reads(t + 2)
        e(f"s_waitcnt lgkmcnt({min(8, 4*(4-t))})")
        for kb in range(3):
            cin = "0" if t == 0 else vr(vLg + 4 * kb, 4)
            e(f"v_mfma_f32_4x4x4_16b_bf16 {vr(vLg+4*kb,4)}, {vr(vKf+2*(3*t+kb),2)}, {vr(vQf+2*t,2)}, {cin}")
    for kb in range(3):
        for t in range(5):
            e(f"ds_read_b64_tr_b16 {vr(vVf+2*(5*kb+t),2)}, v{vAv} offset:{(5+t)*PLANE+32*kb}")
    for pp in range(1, 12):
        if pp == 8:
            e(f"v_mul_f32 v{vLg+pp}, v{vLg+pp}, v{vRK+pp}")
        else:
            e(f"v_fma_f32 v{vLg+pp}, v{vLg+pp}, v{vRK+pp}, v{qMk(pp)}")
    m = 136
    e(f"v_max3_f32 v{m}, v{vLg+1}, v{vLg+2}, v{vLg+3}")
    e(f"v_max3_f32 v{m+1}, v{vLg+4}, v{vLg+5}, v{vLg+6}")
    e(f"v_max3_f32 v{m+2}, v{vLg+7}, v{vLg+8}, v{vLg+9}")
    e(f"v_max3_f32 v{m}, v{m}, v{vLg+10}, v{vLg+11}")
    e(f"v_max3_f32 v{m}, v{m}, v{m+1}, v{m+2}")
    e(f"v_mul_f32 v{m}, v{m}, v164")
    for pp in range(1, 12):
        e(f"v_fma_f32 v{vLg+pp}, v{vLg+pp}, v164, -v{m}")
    for pp in range(1, 12):
        e(f"v_exp_f32 v{vLg+pp}, v{vLg+pp}")
    e(f"v_add_f32 v{m}, v{vLg+1}, v{vLg+2}")
    e(f"v_add_f32 v{m+1}, v{vLg+3}, v{vLg+4}")
    for pp in range(5, 11, 2):
        e(f"v_add_f32 v{m}, v{m}, v{vLg+pp}")
        e(f"v_add_f32 v{m+1}, v{m+1}, v{vLg+pp+1}")
    e(f"v_add_f32 v{m}, v{m}, v{vLg+11}")
    e(f"v_add_f32 v{m}, v{m}, v{m+1}")
    e(f"v_rcp_f32 v{m}, v{m}")
    e(f"v_mov_b32 v{vLg}, 0")
    for pp in range(1, 12):
        e(f"v_mul_f32 v{vLg+pp}, v{vLg+pp}, v{vRK+pp}")
    for j in range(6):
        e(f"v_cvt_pk_bf16_f32 v{vPf+j}, v{vLg+2*j}, v{vLg+2*j+1}")
    e("s_waitcnt lgkmcnt(0)")
    e("s_nop 0")
    for kb in range(3):
        for t in range(5):
            cin = "0" if kb == 0 else vr(vO + 4 * t, 4)
            e(f"v_mfma_f32_4x4x4_16b_bf16 {vr(vO+4*t,4)}, {vr(vVf+2*(5*kb+t),2)}, {vr(vPf+2*kb,2)}, {cin}")
    e("s_nop 1")
    for t in range(5):
        for r in range(4):
            e(f"v_mul_f32 v{vO+4*t+r}, v{vO+4*t+r}, v{m}")
        e(f"v_cvt_pk_bf16_f32 v{vOp+2*t}, v{vO+4*t}, v{vO+4*t+1}")
        e(f"v_cvt_pk_bf16_f32 v{vOp+2*t+1}, v{vO+4*t+2}, v{vO+4*t+3}")
    e(f"buffer_store_dwordx4 {vr(vOp,4)}, v{qOa}, s[{S_WS}:{S_WS+3}], s{sJ} offen sc1")
    e(f"buffer_store_dwordx4 {vr(vOp+4,4)}, v{qOa}, s[{S_WS}:{S_WS+3}], s{sJ} offen offset:1024 sc1")
    e(f"buffer_store_dwordx2 {vr(vOp+8,2)}, v{qOb}, s[{S_WS}:{S_WS+3}], s{sJ+1} offen sc1")
    stamp(8)
    e("s_branch L_p2")

    lab("L_epi_F")
    e("s_setprio 0")
    vST = 160
    vB1 = 128
    for i in range(4):
        e(f"ds_read_b64 v[{vST+2*i}:{vST+2*i+1}], v{fSm} offset:{128*i}")
    for u in range(4):
        e(f"ds_read_b128 {vr(vB1+4*u,4)}, v{fCSu} offset:{64*u+FM_B1-FM_CS}")
    e(f"s_mov_b64 exec, s[{sMaskW}:{sMaskW+1}]")
    e(f"ds_write_b128 v{fCSh}, {vr(vHACC,4)}")
    e(f"s_cmp_le_u32 s{sNH}, 1")
    e("s_cbranch_scc1 L_f_cs_done")
    e(f"ds_write_b128 v{fCSh}, {vr(vHACC+4,4)} offset:64")
    lab("L_f_cs_done")
    e("s_mov_b64 exec, -1")
    e(f"s_lshl_b32 s{sT}, s{sRB}, 3")
    e(f"s_lshl_b32 s{sT+1}, s{sRh}, 2")
    e(f"s_add_u32 s{sT}, s{sT}, s{sT+1}")
    e(f"s_mul_i32 s{sT}, s{sT}, 68")
    e(f"s_mul_i32 s{sT+1}, s{sG}, 6")
    e(f"s_add_u32 s{sT}, s{sT}, s{sT+1}")
    e(f"s_lshr_b32 s{sT+1}, s{sU0}, 1")
    e(f"s_add_u32 s{sT}, s{sT}, s{sT+1}")
    e(f"s_lshl_b32 s{sT}, s{sT}, 10")
    for i in range(1, 4):
        e(f"s_add_u32 s{sT+i}, s{sT}, {i*68*1024}")
    vPw = fL16
    e("s_waitcnt lgkmcnt(0)")
    e("s_barrier")
    stamp(5)
    for u in range(4):
        e(f"ds_read_b128 {vr(vCS+4*u,4)}, v{fCSu} offset:{64*u}")
    vPk = 144
    k = 0
    for pr in range(2):
        if pr == 1:
            e(f"s_cmp_eq_u32 s{sNU}, 2")
            e("s_cbranch_scc1 L_f_done")
        e(f"s_waitcnt lgkmcnt({2-2*pr})")
        for i in range(4):
            pk = vPk + 4 * (k & 3); k += 1
            nm, rs = vST + 2 * i, vST + 2 * i + 1
            for uu in range(2):
                u = 2 * pr + uu
                a = acc(u, i)
                for r in range(4):
                    e(f"v_fmac_f32 v{a+r}, v{vCS+4*u+r}, v{nm}")
                for r in range(4):
                    e(f"v_fma_f32 v{a+r}, v{a+r}, v{rs}, v{vB1+4*u+r}")
                if "b" in OPT:
                    for r in range(4):
                        e(f"v_mul_f32 v{a+r}, v{a+r}, abs(v{a+r})")
                    e(f"v_cvt_pk_bf16_f32 v{pk+2*uu}, v{a}, v{a+1}")
                    e(f"v_cvt_pk_bf16_f32 v{pk+2*uu+1}, v{a+2}, v{a+3}")
                    e(f"v_pk_max_i16 v{pk+2*uu}, v{pk+2*uu}, 0")
                    e(f"v_pk_max_i16 v{pk+2*uu+1}, v{pk+2*uu+1}, 0")
                else:
                    for r in range(4):
                        e(f"v_max_f32 v{a+r}, 0, v{a+r}")
                    for r in range(4):
                        e(f"v_mul_f32 v{a+r}, v{a+r}, v{a+r}")
                    e(f"v_cvt_pk_bf16_f32 v{pk+2*uu}, v{a}, v{a+1}")
                    e(f"v_cvt_pk_bf16_f32 v{pk+2*uu+1}, v{a+2}, v{a+3}")
            e(f"buffer_store_dwordx4 {vr(pk,4)}, v{vPw}, s[{S_WS}:{S_WS+3}], s{sT+i} offen offset:{1024*pr} sc1")
    lab("L_f_done")
    stamp(6)
    e("s_waitcnt vmcnt(0) lgkmcnt(0)")
    stamp(7)
    e("s_barrier")
    stamp(8)
    p2_compute()
    lab("L_end")
    e("s_endpgm")


def main():
    L.append("; Fused LN + [QKV|W1] GEMM + dilated local attention + [h|o]x[w2;wo] GEMM + gating, one persistent kernel")
    L.append(f"; @launch grid=(256,1,1) block=(768,1,1) lds={LDS_TOTAL}")
    L.append('.amdgcn_target "amdgcn-amd-amdhsa--gfx950"')
    L.append(".text")
    gen()
    L.append('.section .rodata,"a"')
    L.append(".p2align 6")
    L.append(f".amdhsa_kernel {NAME}_kernel")
    L.append(f"  .amdhsa_next_free_vgpr {NVGPR}")
    L.append("  .amdhsa_next_free_sgpr 102")
    L.append(f"  .amdhsa_accum_offset {NVGPR}")
    L.append("  .amdhsa_group_segment_fixed_size 0")
    L.append("  .amdhsa_kernarg_size 88")
    L.append("  .amdhsa_user_sgpr_count 2")
    L.append("  .amdhsa_user_sgpr_kernarg_segment_ptr 1")
    L.append("  .amdhsa_system_sgpr_workgroup_id_x 1")
    L.append(".end_amdhsa_kernel")
    out = sys.argv[1] if len(sys.argv) > 1 else OUT
    open(out, "w").write("\n".join(L) + "\n")
    print("wrote", out, len(L), "lines")


main()
```

```python
import sys
import os
import struct

NAME = "recurrent_scan__sliding_local_dilated__dense_activation_squared_relu__prompt"
OUT = f"cdna_kernels/{NAME}.s"
STAMP = os.environ.get("STAMP") in ("1", "2", "3")
STAMP_MIN = os.environ.get("STAMP") == "3"
OPT = os.environ.get("OPT", "abf")
STAMP_RT = os.environ.get("STAMP") == "2"
STAMP_OFF = 16 << 20
L = []


DIAG = os.environ.get("DIAG", "")
ZONE = [""]


def e(s=""):
    if ZONE[0] == "p2c" and "nocomp2" in DIAG and (s.startswith("ds_read") or s.startswith("v_mfma")):
        return
    if ZONE[0] == "p2l" and "nodma2" in DIAG and s.startswith("buffer_load"):
        return
    if ZONE[0] == "p1c" and "nocomp1" in DIAG and (s.startswith("ds_read") or s.startswith("v_mfma")):
        return
    if ZONE[0] == "p1l" and "nodma1" in DIAG and s.startswith("buffer_load"):
        return
    L.append("    " + s)


def lab(s):
    L.append(s + ":")


def vr(a, n=1):
    return f"v{a}" if n == 1 else f"v[{a}:{a+n-1}]"


def f32(x):
    return hex(struct.unpack("<I", struct.pack("<f", x))[0])


A2_OFF = 0
A2_SIZE = 128 * 68 * 1024
B2_OFF = A2_SIZE
ST_OFF = B2_OFF + 8 * 68 * 5120
FL_OFF = ST_OFF + 2048 * 16
NONCE_OFF = FL_OFF + 256 * 128
WS_USED = NONCE_OFF + 128 if not STAMP else (32 << 20)

Q_P, Q_GP = 480, 3968
Q_XB = 8 * Q_GP
Q_STAGE = Q_XB + 9 * 2048
F_P, F_GP = 416, 3456
F_XB = 8 * F_GP
F_STAGE = F_XB + 8 * 2048
PLANE = 5120
Q_PL = 73728
Q_MISC = 3 * Q_STAGE
QM_ST, QM_CS, QM_RK = 0, 1152, 2112
F_JOB = 3 * F_STAGE
F_MISC = 158720
FM_ST, FM_CS, FM_B1 = 0, 1024, 1792
SLOT = 36864
X2 = 4 * SLOT
B2L = X2 + 10240
LDS_TOTAL = F_MISC + FM_B1 + 768
assert Q_PL + 15 * PLANE == Q_MISC and B2L + 320 <= F_MISC and F_JOB + 5 * 5120 <= F_MISC and LDS_TOTAL <= 163840

S_X, S_W, S_WS, S_R, S_DBG = 8, 12, 16, 20, 24
sWave, sS, sG, sRB = 40, 41, 42, 43
sCur, sNxt, sKW, sKX, sIt = 44, 45, 46, 47, 48
sWoff, sXoff, sHoff = 49, 50, 51
sMaskW, sMaskH = 52, 54
sT = 56
sA = 70
sRh, sU0, sH0, sNH = 70, 71, 72, 73
sRet = 96
sNo = 30
sNU = 74
sJ = 75
sSt = 80

vLane = 1
vX0, vX1, vH0 = 2, 3, 4
vWd = 6
vWl, vXl0, vXl1, vWa, vXa = 10, 11, 12, 13, 14
vT = 16
vOnes = 28
vACC = 32
vHACC = 96
vWF = 112
vXF = 128
NVGPR = 168
qAt, qAq, qAv, qRk, qOa, qOb, qPw, qPh = 2, 3, 4, 5, 6, 7, 8, 9
qCSu, qCSh, qSa, qSm, qRq = 15, 16, 17, 18, 19


def qMk(p):
    return 20 + (p - 1 if p < 8 else p - 2)


TOUCH = os.environ.get("TOUCH", "0") == "1"
CODEPF = os.environ.get("CODEPF", "1") == "1"
BPF = os.environ.get("BPF", "0") == "1"
TOUCH2 = os.environ.get("TOUCH2", "1") == "1"
ROT = os.environ.get("ROT", "0") == "1"
TSKIP = int(os.environ.get("TSKIP", "38"))
PREBF = int(os.environ.get("PREBF", "2"))
PREBQ = int(os.environ.get("PREBQ", "2"))
OUTPOL = os.environ.get("OUTPOL", " sc1")
AMP = [int(x) for x in os.environ["AMP"].split(",")] if os.environ.get("AMP") else None
NBK = int(os.environ.get("NBK", "1"))
NRS = int(os.environ.get("NRS", "0"))
TS = [int(x) for x in os.environ.get("TS", "2,3,5,6").split(",")]
DBGOUT = os.environ.get("DBGOUT", "0") == "1"
TSH = int(os.environ.get("TSH", "0"))


def acc(u, i):
    return vACC + (u * 4 + i) * 4


def wf(u):
    return vWF + 4 * u


def xf(b, i):
    return vXF + (b * 5 + i) * 4


def srd(d, base, nrec):
    e(f"s_mov_b32 s{d}, s{base}")
    e(f"s_and_b32 s{d+1}, s{base+1}, 0xffff")
    e(f"s_mov_b32 s{d+2}, {nrec}")
    e(f"s_mov_b32 s{d+3}, 0x00020000")


def nonce_load():
    e(f"s_add_u32 s{sNo}, s68, {NONCE_OFF}")
    e(f"s_addc_u32 s{sNo+1}, s69, 0")
    e(f"s_load_dwordx2 s[{sNo}:{sNo+1}], s[{sNo}:{sNo+1}], 0")


def nonce_fix():
    e(f"s_add_u32 s{sNo}, s{sNo}, 1")
    e(f"s_addc_u32 s{sNo+1}, s{sNo+1}, 0")


def stamp(i, real=False):
    if STAMP and not (STAMP_MIN and i not in (0, 13, 14, 15)):
        e(f"{'s_memrealtime' if (real or STAMP_RT) else 's_memtime'} s[100:101]")
        e("s_waitcnt lgkmcnt(0)")
        e(f"s_mov_b32 s{sSt+i}, s100")


def stamp_flush():
    if STAMP:
        e("s_waitcnt vmcnt(0)")
        stamp(13)
        stamp(15, real=True)
        for i in range(16):
            e(f"v_mov_b32 v{32+i}, s{sSt+i}")
        e(f"s_mul_i32 s{sT}, s2, 12")
        e(f"s_add_u32 s{sT}, s{sT}, s{sWave}")
        e(f"s_lshl_b32 s{sT}, s{sT}, 6")
        e(f"s_add_u32 s{sT}, s{sT}, {STAMP_OFF}")
        e("v_mov_b32 v48, 0")
        e("s_mov_b64 exec, 1")
        for i in range(4):
            e(f"buffer_store_dwordx4 v[{32+4*i}:{35+4*i}], v48, s[{S_WS}:{S_WS+3}], s{sT} offen offset:{16*i}")


QCFG = [(0, 0, 4, 0, 4), (0, 4, 4, 0, 4), (0, 8, 4, 0, 2), (1, 4, 4, 0, 0),
        (0, 12, 3, 0, 2), (1, 12, 3, 2, 1), (1, 0, 4, 0, 0), (1, 8, 4, 2, 2)]
FCFG = [(0, 0, 4, 0, 2), (0, 6, 4, 0, 2), (1, 0, 4, 2, 2), (1, 6, 4, 2, 2),
        (0, 4, 2, 0, 1), (0, 10, 2, 0, 1), (1, 4, 2, 1, 1), (1, 10, 2, 1, 1)]


def p1_dma(typ):
    P2_ = 960 if typ == "Q" else 832
    GP = Q_GP if typ == "Q" else F_GP
    RP = 3840 if typ == "Q" else 3072
    e(f"s_add_u32 m0, s{sCur}, s{sXoff}")
    e(f"s_add_u32 s{sT}, s{sKX}, 1280")
    e(f"buffer_load_dwordx4 v{vX0}, s[{S_X}:{S_X+3}], s{sKX} offen lds")
    e(f"buffer_load_dwordx4 v{vX1}, s[{S_X}:{S_X+3}], s{sKX} offen offset:1024 lds")
    e(f"s_add_u32 m0, m0, 2048")
    e("s_nop 0")
    e(f"buffer_load_dwordx4 v{vX0}, s[{S_X}:{S_X+3}], s{sT} offen lds")
    e(f"buffer_load_dwordx4 v{vX1}, s[{S_X}:{S_X+3}], s{sT} offen offset:1024 lds")
    if typ == "Q":
        e(f"s_add_u32 m0, s{sCur}, s{sHoff}")
        e(f"s_mov_b64 exec, s[{sMaskH}:{sMaskH+1}]")
        e(f"buffer_load_dwordx4 v{vH0}, s[{S_X}:{S_X+3}], s{sKX} offen lds")
    e(f"s_add_u32 m0, s{sCur}, s{sWoff}")
    e(f"s_mov_b64 exec, s[{sMaskW}:{sMaskW+1}]")
    for t in range(4):
        e(f"buffer_load_dwordx4 v{vWd+t}, s[{S_W}:{S_W+3}], s{sKW} offen offset:{P2_*t} lds")
    e(f"s_add_u32 m0, m0, {4*GP}")
    e(f"s_add_u32 s{sT}, s{sKW}, {32*RP}")
    for t in range(4):
        e(f"buffer_load_dwordx4 v{vWd+t}, s[{S_W}:{S_W+3}], s{sT} offen offset:{P2_*t} lds")
    e("s_mov_b64 exec, -1")
    e(f"s_add_u32 s{sKW}, s{sKW}, {64*RP}")
    e(f"s_add_u32 s{sKX}, s{sKX}, 128")
    STG = Q_STAGE if typ == "Q" else F_STAGE
    e(f"s_add_u32 s{sCur}, s{sCur}, {STG}")
    e(f"s_cmp_eq_u32 s{sCur}, {3*STG}")
    e(f"s_cselect_b32 s{sCur}, 0, s{sCur}")


def p1_loop(typ, w):
    rh, u0, nu, h0, nh = (QCFG if typ == "Q" else FCFG)[w]
    STG = Q_STAGE if typ == "Q" else F_STAGE
    P, GP, XB = (Q_P, Q_GP, Q_XB) if typ == "Q" else (F_P, F_GP, F_XB)
    tag = f"{typ}{w}"
    usehx = typ == "Q" and nh > 0
    tasks = typ == "F" and w >= 4
    tlast = TS[3]

    def xreads(b):
        o = []
        for i in range(4):
            off = XB + 2048 * (4 * rh + i + (1 if typ == "Q" else 0))
            o.append(f"ds_read_b128 {vr(xf(b,i),4)}, v{vXa} offset:{off}")
        if usehx:
            o.append(f"ds_read_b128 {vr(xf(b,4),4)}, v{vXa} offset:{XB}")
        return o

    def wreads(u, ks):
        U = u0 + u
        col = (U // 5) * 160 + 8 * (U % 5) if typ == "Q" else 32 * U
        return [f"ds_read_b64_tr_b16 {vr(wf(u)+2*h,2)}, v{vWa} offset:{ks*4*GP+h*4*P+col}" for h in range(2)]

    def mfmas(u, b):
        o = [f"v_mfma_f32_16x16x32_bf16 {vr(acc(u,i),4)}, {vr(wf(u),4)}, {vr(xf(b,i),4)}, {vr(acc(u,i),4)}" for i in range(4)]
        if h0 <= u < h0 + nh:
            a = vHACC + 4 * (u - h0)
            bsrc = xf(b, 4) if typ == "Q" else vOnes
            o.append(f"v_mfma_f32_16x16x32_bf16 {vr(a,4)}, {vr(wf(u),4)}, {vr(bsrc,4)}, {vr(a,4)}")
        return o

    lab(f"L_p1_{tag}")
    stamp(2)
    e("s_barrier")
    stamp(3)
    for x in xreads(0):
        e(x)
    for u in range(nu):
        for x in wreads(u, 0):
            e(x)
    e(f"v_mov_b32 v{vXa}, v{vXl1}")
    e("s_waitcnt lgkmcnt(0)")
    lab(f"L_p1_{tag}_loop")
    body = []
    NB = NBK if nu > NBK else 1
    for ph in range(2):
        pend = []
        if ph == 0:
            pend += [("l", x, ("x", 1)) for x in xreads(1)]
        for u in range(nu):
            if ph == 1 and u == NB:
                body.append(("o", f"v_add_u32 v{vXa}, s{sNxt}, v{vXl0}"))
                body.append(("o", f"v_add_u32 v{vWa}, s{sNxt}, v{vWl}"))
                if tasks:
                    body.append(("o", f"s_cmp_gt_u32 s{sIt}, {tlast}"))
                    body.append(("o", f"s_cbranch_scc1 L_p1_{tag}_nt"))
                    body.append(("o", f"s_call_b64 s[{sRet}:{sRet+1}], {'L_task' if typ == 'F' else 'L_syncQ'}"))
                    body.append(("lab", f"L_p1_{tag}_nt"))
                    body.append(("w0", "s_waitcnt lgkmcnt(0)"))
                else:
                    body.append(("w0", "s_waitcnt lgkmcnt(0)"))
                body.append(("o", "s_barrier"))
                pend = [("l", x, ("x", 0)) for x in xreads(0)] + pend
            ms = mfmas(u, ph)
            rem_after = sum(len(mfmas(uu, ph)) for uu in range(u + 1, nu))
            for mi, m in enumerate(ms):
                body.append(("m", m, [("w", u, ph), ("x", ph)] if mi == 0 else []))
                if mi == len(ms) - 1:
                    pend += [("l", x, ("w", u, 1 - ph)) for x in wreads(u, 1 - ph)]
                if not (ph == 1 and u < NB):
                    left = len(ms) - 1 - mi + rem_after + 1
                    k = 1 if len(pend) <= left else 2
                    while pend and k > 0:
                        body.append(pend.pop(0)); k -= 1
        while pend:
            body.append(pend.pop(0))
        if ph == 1:
            body.append(("o", f"v_add_u32 v{vXa}, s{sNxt}, v{vXl1}"))
            body.append(("o", f"s_add_u32 s{sNxt}, s{sNxt}, {STG}"))
            body.append(("o", f"s_cmp_eq_u32 s{sNxt}, {3*STG}"))
            body.append(("o", f"s_cselect_b32 s{sNxt}, 0, s{sNxt}"))
            body.append(("o", f"s_add_u32 s{sIt}, s{sIt}, 1"))
    n = len(body)
    waits = {}
    covered, ops = -1, []
    for pos, it in enumerate(body + body):
        if it[0] == "l":
            ops.append(it[2])
        elif it[0] == "w0":
            covered = len(ops) - 1
        elif it[0] == "m" and it[2]:
            need = -1
            for tg in it[2]:
                idx = [i for i, t in enumerate(ops) if t == tg]
                if idx:
                    need = max(need, idx[-1])
            if need > covered:
                cnt = min(13, len(ops) - 1 - need)
                covered = len(ops) - 1 - cnt
                if pos >= n:
                    waits[pos - n] = min(cnt, waits.get(pos - n, 99))
                else:
                    waits[pos] = cnt
    ops, covered = [], -1
    for pos, it in enumerate(body * 3):
        p0 = pos % n
        if p0 in waits:
            covered = max(covered, len(ops) - 1 - waits[p0])
        if it[0] == "l":
            ops.append(it[2])
        elif it[0] == "w0":
            covered = len(ops) - 1
        elif it[0] == "m" and it[2]:
            for tg in it[2]:
                idx = [i for i, t in enumerate(ops) if t == tg]
                assert not idx or idx[-1] <= covered, (tag, pos, tg)
    ZONE[0] = "p1c"
    for pos, it in enumerate(body):
        if pos in waits:
            e(f"s_waitcnt lgkmcnt({waits[pos]})")
        if it[0] == "lab":
            lab(it[1])
        else:
            e(it[1])
    ZONE[0] = ""
    e(f"s_cmp_lt_u32 s{sIt}, 10")
    e(f"s_cbranch_scc1 L_p1_{tag}_loop")
    e("s_waitcnt lgkmcnt(0)")
    stamp(4)
    e(f"s_branch L_epi_{typ}")


_spin = [0]


def spin_check(vreg, want_s, reload_fn, wide=True):
    k = _spin[0]; _spin[0] += 1
    regs = vreg if isinstance(vreg, list) else [vreg]
    e(f"s_mov_b32 s{sT+7}, 0")
    lab(f"L_spin{k}")
    for i, r in enumerate(regs):
        dst = "vcc" if i == 0 else f"s[{sT+4}:{sT+5}]"
        if wide:
            e(f"v_cmp_ne_u64 {dst}, s[{want_s}:{want_s+1}], v[{r}:{r+1}]")
        else:
            e(f"v_cmp_ne_u32 {dst}, s{want_s}, v{r}")
        if i:
            e("s_nop 1")
            e(f"s_or_b64 vcc, vcc, s[{sT+4}:{sT+5}]")
    e("s_nop 1")
    e(f"s_cmp_eq_u64 vcc, 0")
    e(f"s_cbranch_scc1 L_spin{k}_ok")
    e(f"s_add_u32 s{sT+7}, s{sT+7}, 1")
    e(f"s_cmp_gt_u32 s{sT+7}, 0x40000")
    e(f"s_cbranch_scc1 L_spin{k}_ok")
    e("s_sleep 2")
    reload_fn()
    e("s_waitcnt vmcnt(0)")
    e(f"s_branch L_spin{k}")
    lab(f"L_spin{k}_ok")


def loader(typ):
    N = 13 if typ == "Q" else 12
    N2 = 9
    vP, vFa, vL16, vSa = vT + 8, vT + 9, vT + 10, vT + 11
    vE1, vGl, vLs, vRs, vD = 32, 33, 34, 35, 36
    vP = 40
    sSrcA, sSrcB, sDst, sMA, sMB, sOne, sFl = sA, sA + 1, sA + 2, sA + 3, sA + 4, sA + 5, sA + 6
    e(f"s_mov_b32 s{sCur}, 0")
    if "p" in OPT:
        e("s_setprio 2")
    nonce_load()
    p1_dma(typ)
    if "z" in OPT:
        srd(S_WS, 68, WS_USED)
        e(f"s_waitcnt vmcnt(0) lgkmcnt(0)")
        e("s_barrier")
        stamp(1)
        p1_dma(typ)
        p1_dma(typ)
    else:
        p1_dma(typ)
        srd(S_WS, 68, WS_USED)
        e(f"s_waitcnt vmcnt({N}) lgkmcnt(0)")
        e("s_barrier")
        stamp(1)
        p1_dma(typ)
    e(f"v_lshlrev_b32 v{vL16}, 4, v{vLane}")
    e(f"v_lshlrev_b32 v{vFa}, 7, v{vLane}")
    e(f"v_lshlrev_b32 v{vSa}, 2, v{vLane}")
    nonce_fix()
    e(f"v_lshrrev_b32 v{vE1}, 2, v{vLane}")
    e(f"v_lshlrev_b32 v{vE1}, 4, v{vE1}")
    e(f"v_bfe_u32 v{vT}, v{vLane}, 1, 1")
    e(f"v_lshl_add_u32 v{vE1}, v{vT}, 2, v{vE1}")
    e(f"v_and_b32 v{vT}, 1, v{vLane}")
    e(f"v_add_u32 v{vE1}, v{vE1}, v{vT}")
    e(f"s_and_b32 s{sT}, s2, 1")
    e(f"s_lshl_b32 s{sT}, s{sT}, 1")
    e(f"s_add_u32 s{sT}, s{sT}, 8")
    e(f"v_add_lshl_u32 v{vE1}, v{vE1}, s{sT}, 7")
    per = 36 if typ == "Q" else 32
    t0, t1, t2, t3 = vT, vT + 1, vT + 2, vT + 3
    e(f"s_mul_i32 s{sT}, s{sS}, {per}")
    if typ == "Q":
        e(f"s_sub_u32 s{sT}, s{sT}, 16")
    e(f"v_add_u32 v{t0}, s{sT}, v{vLane}")
    e(f"s_lshl_b32 s{sT}, s{sRB}, 7")
    e(f"v_add_u32 v{t1}, s{sT}, v{t0}")
    e(f"v_max_i32 v{t1}, 0, v{t1}")
    e(f"v_lshlrev_b32 v{vGl}, 4, v{t1}")
    e(f"v_ashrrev_i32 v{t1}, 5, v{t0}")
    e(f"v_and_b32 v{t2}, 1, v{t0}")
    e(f"v_lshl_add_u32 v{t1}, v{t1}, 1, v{t2}")
    e(f"v_bfe_u32 v{t3}, v{t0}, 1, 4")
    e(f"v_lshl_add_u32 v{t1}, v{t1}, 4, v{t3}")
    if typ == "Q":
        e(f"v_add_u32 v{t1}, 16, v{t1}")
        e(f"v_and_b32 v{t3}, 7, v{t3}")
        e(f"v_cmp_gt_i32 vcc, 0, v{t0}")
        e(f"v_lshl_add_u32 v{t3}, v{t2}, 3, v{t3}")
        e("s_nop 0")
        e(f"v_cndmask_b32 v{t1}, v{t1}, v{t3}, vcc")
    e(f"v_lshlrev_b32 v{vLs}, 3, v{t1}")
    e(f"v_add_u32 v{vLs}, {(Q_MISC+QM_ST) if typ == 'Q' else (F_MISC+FM_ST)}, v{vLs}")
    if typ == "Q":
        e(f"v_add_u32 v{t1}, 16, v{t0}")
        e(f"v_lshrrev_b32 v{t1}, 1, v{t1}")
        e(f"v_mul_u32_u24 v{t2}, 320, v{t2}")
        e(f"v_lshl_add_u32 v{vRs}, v{t1}, 2, v{t2}")
        e(f"v_add_u32 v{vRs}, {Q_MISC+QM_RK}, v{vRs}")
    e(f"s_bfe_u32 s{sT}, s2, 0x10001")
    e(f"s_lshl_b32 s{sT+1}, s{sRB}, 1")
    e(f"s_add_u32 s{sT}, s{sT}, s{sT+1}")
    e(f"s_lshl_b32 s{sFl}, s{sRB}, 11")
    e(f"s_add_u32 s{sFl}, s{sFl}, {FL_OFF}")
    e(f"s_lshl_b32 s{sSrcA}, s{sT}, 2")
    e(f"s_add_u32 s{sSrcA}, s{sSrcA}, s{sS}")
    e(f"s_mul_i32 s{sSrcA}, s{sSrcA}, {68*1024}")
    cg_of(sT, sT + 1)
    e(f"s_mul_i32 s{sSrcB}, s{sT}, 68")
    e(f"s_add_u32 s{sSrcB}, s{sSrcB}, s{sS}")
    e(f"s_mul_i32 s{sSrcB}, s{sSrcB}, 5120")
    e(f"s_add_u32 s{sSrcB}, s{sSrcB}, {B2_OFF}")
    e(f"s_mul_i32 s{sMB}, s{sS}, 5120")
    e(f"s_lshl_b32 s{sMA}, s{sS}, 12")
    e(f"s_add_u32 s{sMA}, s{sMA}, 20480")
    e(f"s_mov_b32 s{sOne}, 1")
    e(f"s_mov_b32 s{sIt}, 0")
    lab(f"L_ld{typ}_loop")
    e(f"s_waitcnt vmcnt({N})")
    e("s_barrier")
    if STAMP:
        for it_, ix in ((0, 2), (2, 3), (5, 4), (6, 6)):
            e(f"s_cmp_lg_u32 s{sIt}, {it_}")
            e(f"s_cbranch_scc1 L_ld{typ}_st{it_}")
            stamp(ix)
            lab(f"L_ld{typ}_st{it_}")
    ZONE[0] = "p1l"
    p1_dma(typ)
    ZONE[0] = ""
    e(f"s_add_u32 s{sIt}, s{sIt}, 1")
    e(f"s_cmp_lt_u32 s{sIt}, 7")
    e(f"s_cbranch_scc1 L_ld{typ}_loop")
    e(f"s_waitcnt vmcnt({N})")
    e("s_barrier")
    stamp(7)

    def ld_stats():
        e(f"s_mov_b32 s{sT}, {ST_OFF}")
        e(f"s_mov_b32 s{sT+2}, -1")
        e(f"s_mov_b32 s{sT+3}, {0xf if typ == 'Q' else 0}")
        e(f"s_mov_b64 exec, s[{sT+2}:{sT+3}]")
        e(f"buffer_load_dwordx4 {vr(vD,4)}, v{vGl}, s[{S_WS}:{S_WS+3}], s{sT} offen sc1")
    def ld_bflags():
        e(f"s_mov_b32 s{sT}, {FL_OFF}")
        e(f"buffer_load_dwordx2 v[{vP}:{vP+1}], v{vE1}, s[{S_WS}:{S_WS+3}], s{sT} offen offset:8 sc1")
    if NRS:
        ld_bflags()
    ld_stats()
    e(f"s_waitcnt vmcnt({2 if NRS else 1})")
    e("s_barrier")
    stamp(10)
    e("s_waitcnt vmcnt(0)")
    spin_check(vD + 2, sNo, ld_stats)
    e(f"ds_write_b64 v{vLs}, v[{vD}:{vD+1}]")
    if typ == "Q":
        e(f"ds_write_b32 v{vRs}, v{vD+1}")
    e("s_mov_b64 exec, -1")
    stamp(9)
    e("s_waitcnt lgkmcnt(0)")

    Qs = []

    def dmaB(k=None):
        e(f"s_add_u32 m0, s{sDst}, s{sMB}")
        e(f"s_add_u32 s{sT}, s{sSrcB}, 4096")
        ZONE[0] = "p2l"
        for i in range(4):
            e(f"buffer_load_dwordx4 v{vL16}, s[{S_WS}:{S_WS+3}], s{sSrcB} offen offset:{1024*i} sc1 lds")
        e(f"s_add_u32 m0, m0, 4096")
        e(f"s_add_u32 s{sSrcB}, s{sSrcB}, 20480")
        e(f"buffer_load_dwordx4 v{vL16}, s[{S_WS}:{S_WS+3}], s{sT} offen sc1 lds")
        ZONE[0] = ""
        Qs.extend([k] * 5)

    def dmaA(k=None):
        e(f"s_add_u32 m0, s{sDst}, s{sMA}")
        e("s_nop 0")
        ZONE[0] = "p2l"
        for i in range(4):
            e(f"buffer_load_dwordx4 v{vL16}, s[{S_WS}:{S_WS+3}], s{sSrcA} offen offset:{1024*i} sc1 lds")
        ZONE[0] = ""
        e(f"s_add_u32 s{sSrcA}, s{sSrcA}, 4096")
        Qs.extend([k] * 4)

    def stage(k=None):
        dmaB(k); dmaA(k)
        e(f"s_add_u32 s{sDst}, s{sDst}, {SLOT}")
        e(f"s_cmp_eq_u32 s{sDst}, {4*SLOT}")
        e(f"s_cselect_b32 s{sDst}, 0, s{sDst}")

    def wait_for(tag):
        idx = [i for i, t in enumerate(Qs) if t == tag]
        if idx:
            e(f"s_waitcnt vmcnt({len(Qs) - 1 - idx[-1]})")
            del Qs[:idx[-1] + 1]

    def load_flags():
        e("s_mov_b64 exec, 0xff")
        e(f"buffer_load_dwordx2 v[{vP+2}:{vP+3}], v{vFa}, s[{S_WS}:{S_WS+3}], s{sFl} offen offset:1024 sc1")

    PRE = 2 if typ == "Q" else 4
    vRB = 44
    RS = [PRE + 1 + (i * (16 - PRE)) // NRS for i in range(NRS)] if NRS else []
    sBaseB, sSrcR = sKW, sKX

    def reg_load(i0, i1):
        for i in range(i0, min(i1, 5 * NRS)):
            if i % 5 in (0, 4) or i == i0:
                e(f"s_add_u32 s{sSrcR}, s{sBaseB}, {RS[i//5]*20480 + (4096 if i % 5 == 4 else 0)}")
            e(f"buffer_load_dwordx4 {vr(vRB+4*i,4)}, v{vL16}, s[{S_WS}:{S_WS+3}], s{sSrcR} offen offset:{1024*(i%5%4) if i % 5 < 4 else 0} sc1")

    def putB(k):
        i0 = RS.index(k) * 5
        e(f"s_add_u32 s{sT}, s{sMB}, {(k%4)*SLOT}")
        e(f"v_add_u32 v{vT+6}, s{sT}, v{vL16}")
        for i in range(5):
            e(f"ds_write_b128 v{vT+6}, {vr(vRB+4*(i0+i),4)} offset:{1024*i}")
    if NRS:
        e(f"s_mov_b32 s{sBaseB}, s{sSrcB}")
        spin_check(vP, sNo, ld_bflags)
        stamp(8)
        reg_load(0, 10)
        e("s_barrier")
        stamp(11)
        reg_load(10, 15)
        e("s_barrier")
        reg_load(15, 99)
    else:
        ld_bflags()
        e("s_barrier")
        stamp(11)
        e("s_barrier")
        e("s_waitcnt vmcnt(0)")
        spin_check(vP, sNo, ld_bflags)
        stamp(8)
    PREB = PREBQ if typ == "Q" else PREBF
    for k in range(PREB):
        e(f"s_mov_b32 s{sDst}, {k*SLOT}")
        dmaB(k)
    if BPF:
        e(f"s_lshr_b32 s{sT}, s2, 5")
        e(f"s_lshl_b32 s{sT}, s{sT}, 2")
        e(f"s_add_u32 s{sT}, s{sT}, s{sS}")
        e(f"s_mul_i32 s{sT}, s{sT}, {85*128}")
        e(f"s_add_u32 s{sT}, s{sT}, s{sSrcB}")
        e(f"s_sub_u32 s{sT}, s{sT}, s{sMB}")
        e(f"s_sub_u32 s{sT}, s{sT}, {PREB*20480}")
        e(f"s_add_u32 s{sT+1}, s{sT}, 8192")
        e(f"buffer_load_dword v{vD}, v{vFa}, s[{S_WS}:{S_WS+3}], s{sT} offen sc1")
        e(f"s_mov_b64 exec, 0x1fffff")
        e(f"buffer_load_dword v{vD}, v{vFa}, s[{S_WS}:{S_WS+3}], s{sT+1} offen sc1")
        e("s_mov_b64 exec, -1")
    if typ == "Q":
        load_flags()
        e("s_mov_b64 exec, -1")
    e("s_barrier")
    if typ == "F":
        e(f"s_lshl_b32 s{sT}, s{sG}, 7")
        e(f"s_add_u32 s{sT}, s{sT}, s{sFl}")
        e(f"s_cmp_eq_u32 s{sS}, 0")
        e(f"s_cselect_b32 s{sT}, s{sT}, 0x7f000000")
        e(f"v_mov_b32 v{vT}, s{sNo}")
        e(f"v_mov_b32 v{vT+1}, s{sNo+1}")
        e(f"v_mov_b32 v{vT+2}, 0")
        e("s_mov_b64 exec, 1")
        e(f"buffer_store_dwordx2 v[{vT}:{vT+1}], v{vT+2}, s[{S_WS}:{S_WS+3}], s{sT} offen offset:1024 sc1")
        e("s_mov_b64 exec, -1")
        for k in range(PREB, PRE):
            e(f"s_mov_b32 s{sDst}, {k*SLOT}")
            dmaB(k)
        load_flags()
    e("s_waitcnt vmcnt(0)")
    del Qs[:]
    if typ == "Q":
        for k in range(PREB, PRE):
            e(f"s_mov_b32 s{sDst}, {k*SLOT}")
            dmaB(k)
    e("s_mov_b64 exec, 0xff")
    spin_check(vP + 2, sNo, load_flags)
    e("s_mov_b64 exec, -1")
    stamp(5)
    for k in range(PRE):
        e(f"s_mov_b32 s{sDst}, {k*SLOT}")
        dmaA(k)
    e(f"s_mov_b32 s{sDst}, {(PRE % 4)*SLOT}")
    srd(S_R, 38, 1280)
    e(f"v_mul_u32_u24 v{vT}, 26, v{vLane}")
    e(f"v_lshrrev_b32 v{vT}, 8, v{vT}")
    e(f"v_mul_u32_u24 v{vT+1}, 10, v{vT}")
    e(f"v_sub_u32 v{vT+1}, v{vLane}, v{vT+1}")
    e(f"v_mul_u32_u24 v{vT}, 2560, v{vT}")
    e(f"v_lshl_add_u32 v{vT}, v{vT+1}, 4, v{vT}")
    e(f"v_lshlrev_b32 v{vT+1}, 3, v{vLane}")
    e(f"v_add_u32 v{vT+1}, {B2L}, v{vT+1}")
    e(f"s_mov_b32 s{sMaskH}, -1")
    e(f"s_mov_b32 s{sMaskH+1}, 0xff")
    issued = PRE
    NUN = 14 if NRS else 5
    for T in range(NUN):
        wait_for(T)
        if NRS and T != 4:
            e("s_waitcnt lgkmcnt(0)")
        if T == 4:
            wait_for("X")
            e(f"v_lshlrev_b32 v{vT+4}, 16, v{vD}")
            e(f"v_and_b32 v{vT+5}, 0xffff0000, v{vD}")
            e(f"s_mov_b64 exec, s[{sMaskH}:{sMaskH+1}]")
            e(f"ds_write_b64 v{vT+1}, v[{vT+4}:{vT+5}]")
            e("s_mov_b64 exec, -1")
            e("s_waitcnt lgkmcnt(0)")
        e("s_barrier")
        puts = []
        while issued <= T + 3:
            if issued in RS:
                dmaA(issued)
                e(f"s_add_u32 s{sSrcB}, s{sSrcB}, 20480")
                e(f"s_mov_b32 s{sDst}, {((issued+1)%4)*SLOT}")
                puts.append(issued)
            else:
                stage(issued)
            issued += 1
        for k_ in puts:
            putB(k_)
        if T == 0:
            p2_rowcol(sT, sT + 1)
            e(f"s_mul_i32 s{sT+2}, s{sS}, 2560")
            e(f"s_add_u32 m0, s{sT+2}, {X2}")
            e(f"s_mov_b64 exec, s[{sMaskH}:{sMaskH+1}]")
            for i in range(4):
                e(f"s_add_u32 s{sT+4}, s{sT}, {i*(4*2560-640)}")
                e(f"buffer_load_dwordx4 v{vT}, s[{S_X}:{S_X+3}], s{sT+4} offen offset:{640*i} lds")
            e(f"buffer_load_dword v{vD}, v{vSa}, s[{S_R}:{S_R+3}], s{sT+1} offen")
            e("s_mov_b64 exec, -1")
            Qs.extend(["X"] * 5)
    if not NRS:
        e(f"s_mov_b32 s{sIt}, {NUN}")
        lab(f"L_ld{typ}_p2b")
        e(f"s_waitcnt vmcnt({2*N2})")
        e("s_barrier")
        stage()
        e(f"s_add_u32 s{sIt}, s{sIt}, 1")
        e(f"s_cmp_lt_u32 s{sIt}, 14")
        e(f"s_cbranch_scc1 L_ld{typ}_p2b")
    for T in range(14, 17):
        if NRS:
            wait_for(T)
            e("s_waitcnt lgkmcnt(0)")
        else:
            e(f"s_waitcnt vmcnt({(16-T)*N2})")
        e("s_barrier")
    e("s_mov_b64 exec, -1")
    if AMP:
        ai, ak = AMP
        stamp(13)
        e(f"s_sub_u32 s{sT}, s{sSt+ai}, s{sSt}")
        e(f"s_mul_i32 s{sT}, s{sT}, {ak}")
        lab(f"L_amp{typ}")
        e("s_memrealtime s[100:101]")
        e("s_waitcnt lgkmcnt(0)")
        e(f"s_sub_u32 s{sT+1}, s100, s{sSt+13}")
        e(f"s_cmp_lt_u32 s{sT+1}, s{sT}")
        e(f"s_cbranch_scc1 L_amp{typ}")
        e("s_endpgm")
    stamp_flush()
    e("s_endpgm")


def cg_of(sd, st):
    e(f"s_and_b32 s{sd}, s2, 1")
    e(f"s_lshl_b32 s{sd}, s{sd}, 2")
    e(f"s_bfe_u32 s{st}, s2, 0x20003")
    e(f"s_add_u32 s{sd}, s{sd}, s{st}")


def p2_rowcol(sd, sc):
    e(f"s_bfe_u32 s{sd}, s2, 0x10001")
    e(f"s_lshl_b32 s{sc}, s{sRB}, 1")
    e(f"s_add_u32 s{sd}, s{sd}, s{sc}")
    e(f"s_lshl_b32 s{sd}, s{sd}, 6")
    e(f"s_lshr_b32 s{sc}, s{sS}, 1")
    e(f"s_lshl_b32 s{sc}, s{sc}, 5")
    e(f"s_add_u32 s{sd}, s{sd}, s{sc}")
    e(f"s_and_b32 s{sc}, s{sS}, 1")
    e(f"s_add_u32 s{sd}, s{sd}, s{sc}")
    e(f"s_mul_i32 s{sd}, s{sd}, 1280")
    cg_of(sc, sd + 2)
    e(f"s_mul_i32 s{sc}, s{sc}, 160")
    e(f"s_add_u32 s{sd}, s{sd}, s{sc}")


def p2_compute():
    vAl, vBl, vAa, vBa = 10, 11, 12, 13
    vF, vS = 32, 44
    vFr = 56
    vPo, vFo = 8, 15
    ICHK = 9
    lab("L_p2")
    e(f"v_lshlrev_b32 v{vBl}, 4, v{vLane}")
    e(f"s_lshl_b32 s{sT}, s{sS}, 12")
    e(f"s_add_u32 s{sT}, s{sT}, 20480")
    e(f"v_add_u32 v{vAl}, s{sT}, v{vBl}")
    for r in range(24):
        e(f"v_mov_b32 v{vF+r}, 0")
    e(f"s_mov_b32 s{sCur}, 0")
    e(f"s_mov_b32 s{sIt}, 0")
    e(f"v_lshlrev_b32 v{vFo}, 7, v{vLane}")
    e(f"s_lshl_b32 s{sJ}, s{sRB}, 11")
    e(f"s_add_u32 s{sJ}, s{sJ}, {FL_OFF}")
    srd(S_DBG, 66, 256)
    stamp(9)
    e(f"s_cmp_ge_u32 s{sWave}, 4")
    e("s_cbranch_scc1 L_p2_1")
    for hf in range(2):
        nu = 3 if hf == 0 else 2
        u0 = 0 if hf == 0 else 3

        def fr(st, ks, i):
            return vFr + ((st * 2 + ks) * (1 + nu) + i) * 4

        def half(st, accprev, nomf=False):
            if st == 0:
                e(f"v_add_u32 v{vAa}, s{sCur}, v{vAl}")
                e(f"v_add_u32 v{vBa}, s{sCur}, v{vBl}")
            e("s_waitcnt lgkmcnt(0)")
            if st == 0:
                e("s_barrier")
            rds = []
            for ks in range(2):
                kk = 2 * st + ks
                rds.append(f"ds_read_b128 {vr(fr(st,ks,0),4)}, v{vAa} offset:{1024*kk}")
                for i in range(nu):
                    rds.append(f"ds_read_b128 {vr(fr(st,ks,1+i),4)}, v{vBa} offset:{(kk*5+u0+i)*1024}")
            ms = []
            if not nomf:
                for ks in range(2):
                    for i in range(nu):
                        a = accprev + 4 * i
                        ms.append(f"v_mfma_f32_16x16x32_bf16 {vr(a,4)}, {vr(fr(1-st,ks,1+i),4)}, {vr(fr(1-st,ks,0),4)}, {vr(a,4)}")
            ZONE[0] = "p2c"
            e(rds.pop(0)); e(rds.pop(0))
            for m in ms:
                e(m)
                if rds:
                    e(rds.pop(0))
            for x in rds:
                e(x)
            ZONE[0] = ""
            if st == 1:
                e(f"s_add_u32 s{sCur}, s{sCur}, {SLOT}")
                e(f"s_cmp_eq_u32 s{sCur}, {4*SLOT}")
                e(f"s_cselect_b32 s{sCur}, 0, s{sCur}")
                e(f"s_add_u32 s{sIt}, s{sIt}, 1")

        lab(f"L_p2_{hf}")
        half(0, vF, nomf=True)
        stamp(10)
        half(1, vF)
        e("s_waitcnt vmcnt(0)")
        lab(f"L_p2_{hf}_h")
        if hf == 0:
            def ld_o():
                e("s_mov_b64 exec, 0xff")
                e(f"buffer_load_dwordx2 v[{vPo}:{vPo+1}], v{vFo}, s[{S_WS}:{S_WS+3}], s{sJ} offen sc1")
            e(f"s_cmp_lg_u32 s{sWave}, 0")
            e(f"s_cbranch_scc1 L_p2_nv")
            e(f"s_cmp_lg_u32 s{sIt}, 2")
            e(f"s_cbranch_scc1 L_p2_n2")
            e(f"s_lshl_b32 s{sT}, s{sG}, 7")
            e(f"s_add_u32 s{sT}, s{sT}, s{sJ}")
            e("s_bitcmp1_b32 s2, 3")
            e(f"s_cselect_b32 s{sT}, 0x7f000000, s{sT}")
            e(f"v_mov_b32 v{vT}, s{sNo}")
            e(f"v_mov_b32 v{vT+1}, s{sNo+1}")
            e(f"v_mov_b32 v{vT+2}, 0")
            e("s_mov_b64 exec, 1")
            e(f"buffer_store_dwordx2 v[{vT}:{vT+1}], v{vT+2}, s[{S_WS}:{S_WS+3}], s{sT} offen sc1")
            e("s_mov_b64 exec, -1")
            lab("L_p2_n2")
            e(f"s_cmp_lg_u32 s{sIt}, {ICHK-2}")
            e(f"s_cbranch_scc1 L_p2_n3")
            ld_o()
            e("s_mov_b64 exec, -1")
            lab("L_p2_n3")
            e(f"s_cmp_lg_u32 s{sIt}, {ICHK}")
            e(f"s_cbranch_scc1 L_p2_nv")
            e("s_waitcnt vmcnt(0)")
            e("s_mov_b64 exec, 0xff")
            spin_check(vPo, sNo, ld_o)
            e(f"s_lshl_b32 s{sT}, s{sRB}, 2")
            e(f"s_and_b32 s{sT+1}, s2, 0x1b")
            e(f"s_cmp_eq_u32 s{sT+1}, 0")
            e(f"s_cselect_b32 s{sT}, s{sT}, 0x1000")
            e(f"v_mov_b32 v{vT}, 1")
            e(f"v_mov_b32 v{vT+1}, 0")
            e("s_mov_b64 exec, 1")
            e(f"buffer_store_dword v{vT}, v{vT+1}, s[{S_DBG}:{S_DBG+3}], s{sT} offen sc1")
            e("s_mov_b64 exec, -1")
            lab("L_p2_nv")
        half(0, vF)
        half(1, vF)
        e(f"s_cmp_lt_u32 s{sIt}, 12")
        e(f"s_cbranch_scc1 L_p2_{hf}_h")
        half(0, vF)
        nel = 4 * nu
        cb = 4 * u0
        vG, vSl = vT, vT + 1
        vBb, vXx, vE, vXf = 128, 160, 140, 128
        e(f"v_lshrrev_b32 v{vG}, 4, v{vLane}")
        e(f"v_and_b32 v{vSl}, 15, v{vLane}")
        e(f"v_mul_u32_u24 v{vT+2}, 80, v{vG}")
        e(f"v_add_u32 v{vT+2}, {B2L+4*cb}, v{vT+2}")
        e(f"v_mul_u32_u24 v{vT+3}, 160, v{vSl}")
        e(f"v_mul_u32_u24 v{vT+4}, 40, v{vG}")
        e(f"s_mul_i32 s{sT}, s{sS}, 2560")
        e(f"s_add_u32 s{sT}, s{sT}, {X2+2*cb}")
        e(f"v_add3_u32 v{vT+3}, v{vT+3}, v{vT+4}, s{sT}")
        e(f"v_mul_u32_u24 v{vT+5}, 2560, v{vSl}")
        e(f"v_add_u32 v{vT+5}, v{vT+5}, v{vT+4}")
        for i in range(nu):
            e(f"ds_read_b128 {vr(vBb+4*i,4)}, v{vT+2} offset:{16*i}")
        for i in range(nu):
            e(f"ds_read_b64 {vr(vXx+2*i,2)}, v{vT+3} offset:{8*i}")
        half(1, vS)
        e(f"s_mov_b32 s{sT+1}, {f32(-1.4426950408889634)}")
        for r in range(nel):
            e(f"v_add_f32 v{vF+r}, v{vF+r}, v{vBb+r}")
        for r in range(nel):
            e(f"v_mul_f32 v{vE+r}, s{sT+1}, v{vF+r}")
        for r in range(nel):
            e(f"v_exp_f32 v{vE+r}, v{vE+r}")
        for d in range(nel // 2):
            e(f"v_lshlrev_b32 v{vXf+2*d}, 16, v{vXx+d}")
            e(f"v_and_b32 v{vXf+2*d+1}, 0xffff0000, v{vXx+d}")
        for r in range(nel):
            e(f"v_add_f32 v{vE+r}, 1.0, v{vE+r}")
        for r in range(nel):
            e(f"v_rcp_f32 v{vE+r}, v{vE+r}")
        p2_rowcol(sT, sT + 1)
        srd(S_R, 64, 2048 * 1280)
        e(f"v_lshlrev_b32 v{vT+9}, 2, v{vLane}")
        if "f" in OPT:
            e(f"s_mul_i32 s{sT+2}, s{sS}, 2560")
            e(f"s_add_u32 s{sT+2}, s{sT+2}, {X2+1280*hf}")
            e(f"v_lshlrev_b32 v{vT+6}, 4, v{vLane}")
            e(f"v_mul_u32_u24 v{vT+7}, 26, v{vLane}")
            e(f"v_lshrrev_b32 v{vT+7}, 8, v{vT+7}")
            e(f"v_mul_u32_u24 v{vT+7}, {2560-160}, v{vT+7}")
            e(f"v_add3_u32 v{vT+7}, v{vT+7}, v{vT+6}, 0")
            e(f"v_add_u32 v{vT+7}, {8*2560*hf}, v{vT+7}")
            e(f"v_add_u32 v{vT+6}, s{sT+2}, v{vT+6}")
        for r in range(nel):
            e(f"v_mul_f32 v{vF+r}, v{vF+r}, v{vE+r}")
        lab(f"L_p2_{hf}_o")
        if hf == 1:
            e(f"s_or_b32 s{sT+2}, s{sS}, s2")
            e(f"s_cmp_lg_u32 s{sT+2}, 0")
            e("s_cbranch_scc1 L_nonce_skip")

            def ld_dbg():
                e(f"buffer_load_dword v{vT+8}, v{vT+9}, s[{S_DBG}:{S_DBG+3}], 0 offen sc1")
            e("s_mov_b64 exec, 0xffff")
            e(f"s_cmp_lg_u32 s{sIt}, 13")
            e("s_cbranch_scc1 L_nonce_b")
            ld_dbg()
            lab("L_nonce_b")
            e(f"s_cmp_lg_u32 s{sIt}, 15")
            e("s_cbranch_scc1 L_nonce_c")
            e(f"s_mov_b32 s{sT+6}, 1")
            e("s_waitcnt vmcnt(0)")
            spin_check(vT + 8, sT + 6, ld_dbg, wide=False)
            e(f"v_mov_b32 v{vT+10}, s{sNo}")
            e(f"v_mov_b32 v{vT+11}, s{sNo+1}")
            e(f"s_mov_b32 s{sT+2}, {NONCE_OFF}")
            e("s_mov_b64 exec, 1")
            e(f"buffer_store_dwordx2 v[{vT+10}:{vT+11}], v{vT+9}, s[{S_WS}:{S_WS+3}], s{sT+2} offen sc1")
            lab("L_nonce_c")
            e("s_mov_b64 exec, -1")
            lab("L_nonce_skip")
        half(0, vS)
        half(1, vS)
        e(f"s_cmp_lt_u32 s{sIt}, 17")
        e(f"s_cbranch_scc1 L_p2_{hf}_o")
        e("s_waitcnt lgkmcnt(0)")
        for ks in range(2):
            for i in range(nu):
                a = vS + 4 * i
                e(f"v_mfma_f32_16x16x32_bf16 {vr(a,4)}, {vr(fr(1,ks,1+i),4)}, {vr(fr(1,ks,0),4)}, {vr(a,4)}")
        stamp(11)
        e("s_nop 7")
        for r in range(nel):
            e(f"v_fmac_f32 v{vXf+r}, v{vF+r}, v{vS+r}")
        for d in range(nel // 2):
            e(f"v_cvt_pk_bf16_f32 v{vE+d}, v{vXf+2*d}, v{vXf+2*d+1}")
        if "f" in OPT:
            for i in range(nu):
                e(f"ds_write_b64 v{vT+3}, {vr(vE+2*i,2)} offset:{8*i}")
            e(f"s_mov_b32 s{sT+2}, -1")
            e(f"s_mov_b32 s{sT+3}, 0xff")
            e(f"s_add_u32 s{sT+1}, s{sT}, {4*2560}")
            e("s_waitcnt lgkmcnt(0)")
            e("s_barrier")
            e(f"s_mov_b64 exec, s[{sT+2}:{sT+3}]")
            e(f"ds_read_b128 {vr(vE,4)}, v{vT+6}")
            e(f"ds_read_b128 {vr(vE+4,4)}, v{vT+6} offset:640")
            e("s_waitcnt lgkmcnt(1)")
            e(f"buffer_store_dwordx4 {vr(vE,4)}, v{vT+7}, s[{S_R}:{S_R+3}], s{sT} offen{OUTPOL}")
            e("s_waitcnt lgkmcnt(0)")
            e(f"buffer_store_dwordx4 {vr(vE+4,4)}, v{vT+7}, s[{S_R}:{S_R+3}], s{sT+1} offen{OUTPOL}")
            e("s_mov_b64 exec, -1")
        else:
            e(f"buffer_store_dwordx4 {vr(vE,4)}, v{vT+5}, s[{S_R}:{S_R+3}], s{sT} offen offset:{2*cb}")
            if hf == 0:
                e(f"buffer_store_dwordx2 {vr(vE+4,2)}, v{vT+5}, s[{S_R}:{S_R+3}], s{sT} offen offset:16")
        stamp(12)
        stamp_flush()
        e("s_endpgm")


def wave_sum(v, t):
    for ctl in ("quad_perm:[1,0,3,2]", "quad_perm:[2,3,0,1]", "row_half_mirror", "row_mirror"):
        e("s_nop 1")
        e(f"v_add_f32_dpp v{v}, v{v}, v{v} {ctl} row_mask:0xf bank_mask:0xf")
    for sw in ("v_permlane16_swap_b32", "v_permlane32_swap_b32"):
        e(f"v_mov_b32 v{t}, v{v}")
        e("s_nop 1")
        e(f"{sw} v{v}, v{t}")
        e("s_nop 0")
        e(f"v_add_f32 v{v}, v{v}, v{t}")


def wave_sum2(a, b, ta, tb):
    for ctl in ("quad_perm:[1,0,3,2]", "quad_perm:[2,3,0,1]", "row_half_mirror", "row_mirror"):
        e("s_nop 0")
        e(f"v_add_f32_dpp v{a}, v{a}, v{a} {ctl} row_mask:0xf bank_mask:0xf")
        e(f"v_add_f32_dpp v{b}, v{b}, v{b} {ctl} row_mask:0xf bank_mask:0xf")
    for sw in ("v_permlane16_swap_b32", "v_permlane32_swap_b32"):
        e(f"v_mov_b32 v{ta}, v{a}")
        e(f"v_mov_b32 v{tb}, v{b}")
        e("s_nop 1")
        e(f"{sw} v{a}, v{ta}")
        e(f"{sw} v{b}, v{tb}")
        e("s_nop 0")
        e(f"v_add_f32 v{a}, v{a}, v{ta}")
        e(f"v_add_f32 v{b}, v{b}, v{tb}")


def w_touch(typ):
    if not TOUCH2 or "e" in OPT:
        return
    RP = 3840 if typ == "Q" else 3072
    nl = 50 if typ == "Q" else 60
    e(f"s_cmp_ge_u32 s{sWave}, {3 if typ == 'Q' else 2}")
    e(f"s_cbranch_scc1 L_notouch{typ}")
    e(f"v_lshlrev_b32 v{vXF+10}, 7, v{vLane}")
    srd(S_R, 6 if typ == "Q" else 32, 640 * RP)
    e(f"s_lshl_b32 s{sT}, s{sRB}, 3")
    e(f"s_add_u32 s{sT}, s{sT}, s{sG}")
    e(f"s_cmp_lt_u32 s{sT}, {TSKIP}")
    e(f"s_cbranch_scc1 L_notouch{typ}")
    e(f"s_mul_i32 s{sT}, s{sT}, {5*RP}")
    e(f"s_mul_i32 s{sT+1}, s{sWave}, {nl*128}")
    e(f"s_add_u32 s{sT}, s{sT}, s{sT+1}")
    e(f"s_mov_b32 s{sT+2}, -1")
    e(f"s_mov_b32 s{sT+3}, {hex((1 << (nl - 32)) - 1)}")
    e(f"s_mov_b64 exec, s[{sT+2}:{sT+3}]")
    e(f"buffer_load_dword v0, v{vXF+10}, s[{S_R}:{S_R+3}], s{sT} offen")
    e("s_mov_b64 exec, -1")
    lab(f"L_notouch{typ}")


def w_touch_early(typ):
    RP = 3840 if typ == "Q" else 3072
    nl = 50 if typ == "Q" else 60
    e(f"v_lshlrev_b32 v{vXF+10}, 7, v{vLane}")
    srd(S_R, 6 if typ == "Q" else 32, 640 * RP)
    e(f"s_lshl_b32 s{sT}, s{sRB}, 3")
    e(f"s_add_u32 s{sT+2}, s{sT}, s{sG}")
    e(f"s_mul_i32 s{sT}, s{sT+2}, {5*RP}")
    e(f"s_mul_i32 s{sT+1}, s{sWave}, {nl*128}")
    e(f"s_add_u32 s{sT}, s{sT}, s{sT+1}")
    e(f"s_cmp_lt_u32 s{sT+2}, {TSKIP}")
    e(f"s_cselect_b32 s{sT}, 0x7f000000, s{sT}")
    e(f"s_cmp_ge_u32 s{sWave}, {3 if typ == 'Q' else 2}")
    e(f"s_cselect_b32 s{sT}, 0x7f000000, s{sT}")
    e(f"s_mov_b32 s{sT+2}, -1")
    e(f"s_mov_b32 s{sT+3}, {hex((1 << (nl - 32)) - 1)}")
    e(f"s_mov_b64 exec, s[{sT+2}:{sT+3}]")
    e(f"buffer_load_dword v0, v{vXF+10}, s[{S_R}:{S_R+3}], s{sT} offen")
    e("s_mov_b64 exec, -1")


def row_stats():
    U = [vXF + 12 + i for i in range(10)]
    M, O = vXF + 24, vXF + 28
    e("s_waitcnt vmcnt(1)" if "e" in OPT else "s_waitcnt vmcnt(0)")
    for d in range(5):
        e(f"v_lshlrev_b32 v{U[2*d]}, 16, v{vXF+d}")
        e(f"v_and_b32 v{U[2*d+1]}, 0xffff0000, v{vXF+d}")
    e(f"v_add_f32 v{M}, v{U[0]}, v{U[1]}")
    e(f"v_add_f32 v{M+1}, v{U[2]}, v{U[3]}")
    for k in range(4, 10, 2):
        e(f"v_add_f32 v{M}, v{M}, v{U[k]}")
        e(f"v_add_f32 v{M+1}, v{M+1}, v{U[k+1]}")
    e(f"v_add_f32 v{M}, v{M}, v{M+1}")
    wave_sum(M, M + 1)
    e(f"v_mul_f32 v{O}, {f32(-1.0/640)}, v{M}")
    for k in range(10):
        e(f"v_add_f32 v{U[k]}, v{U[k]}, v{O}")
    e(f"v_mul_f32 v{M}, v{U[0]}, v{U[0]}")
    e(f"v_mul_f32 v{M+1}, v{U[1]}, v{U[1]}")
    for k in range(2, 10, 2):
        e(f"v_fmac_f32 v{M}, v{U[k]}, v{U[k]}")
        e(f"v_fmac_f32 v{M+1}, v{U[k+1]}, v{U[k+1]}")
    e(f"v_add_f32 v{M}, v{M}, v{M+1}")
    wave_sum(M, M + 1)
    e(f"v_mov_b32 v{M+1}, {f32(1e-5)}")
    e(f"v_fmac_f32 v{M+1}, {f32(1.0/640)}, v{M}")
    e(f"v_rsq_f32 v{O+1}, v{M+1}")
    e(f"v_mov_b32 v{O+2}, s{sNo}")
    e(f"v_mov_b32 v{O+3}, s{sNo+1}")
    e(f"v_mov_b32 v{M}, 0")
    e("s_mov_b64 exec, 1")
    e(f"buffer_store_dwordx4 {vr(O,4)}, v{M}, s[{S_WS}:{S_WS+3}], s99 offen sc1")
    e("s_mov_b64 exec, -1")


def cfg_lookup(cfg):
    def tab(f):
        return hex(sum((f(c) & 15) << (4 * i) for i, c in enumerate(cfg)))
    e(f"s_lshl_b32 s{sT}, s{sWave}, 2")
    for dst, f in ((sRh, lambda c: c[0]), (sU0, lambda c: c[1]), (sH0, lambda c: c[1] + c[3]), (sNH, lambda c: c[4]), (sNU, lambda c: c[2])):
        e(f"s_lshr_b32 s{dst}, {tab(f)}, s{sT}")
        e(f"s_and_b32 s{dst}, s{dst}, 15")


def gen():
    K = NAME + "_kernel"
    L.append(f".globl {K}")
    L.append(".p2align 8")
    L.append(f".type {K},@function")
    lab(K)
    e("s_cmp_ge_u32 s2, 256")
    e("s_cbranch_scc1 L_end")
    stamp(0)
    stamp(14, real=True)
    e("s_load_dwordx4 s[4:7], s[0:1], 0")
    e("s_load_dwordx8 s[32:39], s[0:1], 32")
    e("s_load_dwordx2 s[28:29], s[0:1], 16")
    e("s_load_dwordx4 s[64:67], s[0:1], 64")
    e("s_load_dwordx2 s[68:69], s[0:1], 80")
    e(f"v_lshrrev_b32 v{vT}, 6, v0")
    e(f"v_and_b32 v{vLane}, 63, v0")
    e(f"v_readfirstlane_b32 s{sWave}, v{vT}")
    e(f"s_and_b32 s{sT}, s2, 3")
    e(f"s_lshl_b32 s{sT}, s{sT}, 1")
    e(f"s_bfe_u32 s{sG}, s2, 0x10004")
    e(f"s_add_u32 s{sG}, s{sG}, s{sT}")
    e(f"s_bfe_u32 s{sT}, s2, 0x10002")
    e(f"s_lshl_b32 s{sT}, s{sT}, 3")
    e(f"s_lshr_b32 s{sRB}, s2, 5")
    e(f"s_add_u32 s{sRB}, s{sRB}, s{sT}")
    e(f"s_and_b32 s{sS}, s{sWave}, 3")
    e(f"v_lshrrev_b32 v{vT}, 4, v{vLane}")
    e(f"s_cmp_lt_u32 s{sWave}, 8")
    e("s_cbranch_scc1 L_compute")

    e(f"v_and_b32 v{vT+1}, 7, v{vLane}")
    e(f"v_xor_b32 v{vT+5}, v{vT+1}, v{vT}")
    e(f"v_lshlrev_b32 v{vT+5}, 4, v{vT+5}")
    e(f"v_lshrrev_b32 v{vT+2}, 3, v{vLane}")
    e(f"v_mul_u32_u24 v{vT+2}, 2560, v{vT+2}")
    e(f"v_add_u32 v{vT+3}, v{vT+2}, v{vT+5}")
    e(f"v_xor_b32 v{vT+5}, 64, v{vT+5}")
    e(f"v_add_u32 v{vT+4}, v{vT+2}, v{vT+5}")
    e(f"s_lshl_b32 s{sT}, s{sRB}, 7")
    e(f"s_lshl_b32 s{sT+1}, s{sS}, 5")
    e(f"s_add_u32 s{sT+1}, s{sT+1}, s{sT}")
    e(f"s_mul_i32 s{sT+1}, s{sT+1}, 1280")
    e(f"v_add_u32 v{vX0}, s{sT+1}, v{vT+3}")
    e(f"s_add_u32 s{sT+1}, s{sT+1}, {16*1280-1024}")
    e(f"v_add_u32 v{vX1}, s{sT+1}, v{vT+4}")
    e(f"s_mov_b32 s{sKW}, 0")
    e(f"s_mov_b32 s{sKX}, 0")
    e("s_bitcmp1_b32 s2, 3")
    e("s_cbranch_scc1 L_ldF")
    e(f"s_lshl_b32 s{sT+1}, s{sS}, 1")
    e(f"v_add_u32 v{vT+3}, s{sT+1}, v{vT}")
    e(f"v_xor_b32 v{vT+3}, v{vT+3}, v{vT+1}")
    e(f"v_and_b32 v{vT+3}, 7, v{vT+3}")
    e(f"v_lshl_add_u32 v{vT+3}, v{vT+3}, 4, v{vT+2}")
    e(f"s_and_b32 s{sT+1}, s{sS}, 1")
    e(f"s_lshl_b32 s{sT+1}, s{sT+1}, 3")
    e(f"s_lshr_b32 s{sT+2}, s{sS}, 1")
    e(f"s_add_u32 s{sT+1}, s{sT+1}, s{sT+2}")
    e(f"s_add_u32 s{sT+1}, s{sT+1}, s{sT}")
    e(f"s_sub_u32 s{sT+1}, s{sT+1}, 16")
    e(f"s_mul_i32 s{sT+1}, s{sT+1}, 1280")
    e(f"v_add_u32 v{vH0}, s{sT+1}, v{vT+3}")
    e(f"s_lshl_b32 s{sHoff}, s{sS}, 9")
    e(f"s_add_u32 s{sHoff}, s{sHoff}, {Q_XB}")
    e(f"s_cmp_eq_u32 s{sS}, 0")
    e(f"s_cselect_b32 s{sMaskH}, 0xffffff00, -1")
    e(f"s_mov_b32 s{sMaskH+1}, 0")
    e(f"v_cmp_le_u32 vcc, 30, v{vLane}")
    e(f"v_mov_b32 v{vT+3}, 0")
    e(f"v_mov_b32 v{vT+4}, 30")
    e(f"v_cndmask_b32 v{vT+3}, v{vT+3}, v{vT+4}, vcc")
    e(f"v_sub_u32 v{vT+4}, v{vLane}, v{vT+3}")
    e(f"v_mul_u32_u24 v{vT+3}, 128, v{vT+3}")
    e(f"v_mul_u32_u24 v{vT+5}, 26, v{vT+4}")
    e(f"v_lshrrev_b32 v{vT+5}, 8, v{vT+5}")
    e(f"v_mul_u32_u24 v{vT+6}, 10, v{vT+5}")
    e(f"v_sub_u32 v{vT+4}, v{vT+4}, v{vT+6}")
    e(f"v_lshl_add_u32 v{vT+3}, v{vT+4}, 4, v{vT+3}")
    e(f"v_add_u32 v{vT+5}, 1, v{vT+5}")
    e(f"v_cmp_le_u32 vcc, 3, v{vT+5}")
    e(f"v_mov_b32 v{vT+6}, 0")
    e(f"s_mul_i32 s{sT}, s{sS}, {8*3840}")
    e(f"v_cndmask_b32 v{vT+5}, v{vT+5}, v{vT+6}, vcc")
    e(f"v_mul_u32_u24 v{vT+5}, 1280, v{vT+5}")
    e(f"v_add_u32 v{vT+3}, v{vT+3}, v{vT+5}")
    e(f"s_mul_i32 s{sT+1}, s{sG}, 160")
    e(f"s_add_u32 s{sT}, s{sT}, s{sT+1}")
    e(f"v_add_u32 v{vWd}, s{sT}, v{vT+3}")
    for t in range(1, 4):
        e(f"v_add_u32 v{vWd+t}, {6720*t}, v{vWd}")
    e(f"s_mul_i32 s{sWoff}, s{sS}, {Q_GP}")
    e(f"s_lshl_b32 s{sXoff}, s{sS}, 12")
    e(f"s_add_u32 s{sXoff}, s{sXoff}, {Q_XB+2048}")
    e(f"s_mov_b32 s{sMaskW}, -1")
    e(f"s_mov_b32 s{sMaskW+1}, 0x0fffffff")
    e("s_waitcnt lgkmcnt(0)")
    srd(S_X, 4, 2048 * 1280)
    srd(S_W, 6, 640 * 3840)
    loader("Q")
    lab("L_ldF")
    e(f"v_cmp_le_u32 vcc, 26, v{vLane}")
    e(f"v_mov_b32 v{vT+3}, 0")
    e(f"v_mov_b32 v{vT+4}, {3072-26*16}")
    e(f"v_cndmask_b32 v{vT+3}, v{vT+3}, v{vT+4}, vcc")
    e(f"v_lshl_add_u32 v{vT+3}, v{vLane}, 4, v{vT+3}")
    e(f"s_mul_i32 s{sT}, s{sS}, {8*3072}")
    e(f"s_mul_i32 s{sT+1}, s{sG}, 384")
    e(f"s_add_u32 s{sT}, s{sT}, s{sT+1}")
    e(f"v_add_u32 v{vWd}, s{sT}, v{vT+3}")
    for t in range(1, 4):
        e(f"v_add_u32 v{vWd+t}, {5312*t}, v{vWd}")
    e(f"s_mul_i32 s{sWoff}, s{sS}, {F_GP}")
    e(f"s_lshl_b32 s{sXoff}, s{sS}, 12")
    e(f"s_add_u32 s{sXoff}, s{sXoff}, {F_XB}")
    e(f"s_mov_b32 s{sMaskW}, 0xfcffffff")
    e(f"s_mov_b32 s{sMaskW+1}, 0x0003ffff")
    e("s_waitcnt lgkmcnt(0)")
    srd(S_X, 4, 2048 * 1280)
    srd(S_W, 32, 640 * 3072)
    loader("F")

    lab("L_compute")
    if CODEPF:
        e(f"s_getpc_b64 s[{sT}:{sT+1}]")
        lab("L_pc")
        e(f"s_sub_u32 s{sT}, s{sT}, L_pc-{K}")
        e(f"s_subb_u32 s{sT+1}, s{sT+1}, 0")
        e(f"v_lshlrev_b32 v{vT+1}, 7, v0")
        e(f"v_min_u32 v{vT+1}, L_end-{K}, v{vT+1}")
        e(f"s_bfe_u32 s{sT+2}, s2, 0x20004")
        e(f"s_cmp_lg_u32 s{sT+2}, 0")
        e("s_cbranch_scc1 L_nopf")
        e(f"s_cmp_gt_u32 s{sWave}, 4")
        e("s_cbranch_scc1 L_nopf")
        e(f"global_load_dword v0, v{vT+1}, s[{sT}:{sT+1}]")
        lab("L_nopf")
    e(f"v_and_b32 v{vT+1}, 15, v{vLane}")
    e(f"v_lshrrev_b32 v{vT+2}, 1, v{vT+1}")
    e(f"v_xor_b32 v{vT+2}, v{vT+2}, v{vT}")
    e(f"v_lshlrev_b32 v{vT+2}, 4, v{vT+2}")
    e(f"v_lshl_add_u32 v{vXl0}, v{vT+1}, 7, v{vT+2}")
    e(f"v_xor_b32 v{vXl1}, 64, v{vXl0}")
    e(f"v_mov_b32 v{vXa}, v{vXl0}")
    e(f"v_bfe_u32 v{vT+1}, v{vLane}, 2, 2")
    e(f"v_and_b32 v{vT+2}, 3, v{vLane}")
    e(f"s_mov_b32 s{sIt}, 0")
    e(f"s_lshl_b32 s{sT}, s{sRB}, 4")
    e(f"s_add_u32 s{sT}, s{sT}, s{sG}")
    e(f"s_and_b32 s{sT+1}, s2, 8")
    e(f"s_add_u32 s{sT}, s{sT}, s{sT+1}")
    e(f"s_lshl_b32 s{sT}, s{sT}, 3")
    e(f"s_add_u32 s{sT}, s{sT}, s{sWave}")
    e(f"s_lshl_b32 s99, s{sT}, 4")
    e(f"s_add_u32 s99, s99, {ST_OFF}")
    e(f"s_mul_i32 s{sT}, s{sT}, 1280")
    e(f"v_lshlrev_b32 v{vXF+8}, 4, v{vLane}")
    e(f"v_lshlrev_b32 v{vXF+9}, 2, v{vLane}")
    e("s_waitcnt lgkmcnt(0)")
    stamp(1)
    srd(S_X, 4, 2048 * 1280)
    e(f"buffer_load_dwordx4 {vr(vXF,4)}, v{vXF+8}, s[{S_X}:{S_X+3}], s{sT} offen")
    e(f"buffer_load_dword v{vXF+4}, v{vXF+9}, s[{S_X}:{S_X+3}], s{sT} offen offset:1024")
    nonce_load()
    srd(S_WS, 68, WS_USED)
    if "t" in OPT:
        e(f"s_cmp_lg_u32 s{sWave}, 6")
        e("s_cbranch_scc1 L_notlb")
        srd(S_R, 64, 2048 * 1280)
        e(f"v_lshlrev_b32 v{vXF+10}, 20, v{vLane}")
        e("s_mov_b64 exec, 0xfff")
        e(f"buffer_load_dword v0, v{vXF+10}, s[{S_WS}:{S_WS+3}], 0 offen sc1")
        e("s_mov_b64 exec, 7")
        e(f"buffer_load_dword v0, v{vXF+10}, s[{S_R}:{S_R+3}], 0 offen sc1")
        e("s_mov_b64 exec, -1")
        lab("L_notlb")
    e("s_bitcmp1_b32 s2, 3")
    e("s_cbranch_scc1 L_F")
    if "e" in OPT:
        w_touch_early("Q")
    e(f"v_mul_u32_u24 v{vWl}, {Q_GP}, v{vT}")
    e(f"v_mul_u32_u24 v{vT+3}, {Q_P}, v{vT+1}")
    e(f"v_add_u32 v{vWl}, v{vWl}, v{vT+3}")
    e(f"v_mul_u32_u24 v{vT+3}, 40, v{vT+2}")
    e(f"v_add_u32 v{vWl}, v{vWl}, v{vT+3}")
    e(f"v_mov_b32 v{vWa}, v{vWl}")
    e(f"v_and_b32 v{vT+3}, 31, v{vLane}")
    e(f"v_lshlrev_b32 v{vT+3}, 2, v{vT+3}")
    e(f"v_mov_b32 v{vT+4}, 0x3f803f80")
    e(f"ds_write_b32 v{vT+3}, v{vT+4} offset:{Q_XB}")
    e(f"v_add_u32 v{vT+3}, {Q_STAGE}, v{vT+3}")
    e(f"ds_write_b32 v{vT+3}, v{vT+4} offset:{Q_XB}")
    e(f"v_add_u32 v{vT+3}, {Q_STAGE}, v{vT+3}")
    e(f"ds_write_b32 v{vT+3}, v{vT+4} offset:{Q_XB}")
    for r in range(vACC, vHACC + 16):
        e(f"v_mov_b32 v{r}, 0")
    e(f"s_mov_b32 s{sNxt}, {Q_STAGE}")
    cfg_lookup(QCFG)
    tG, tS, tR, tC, t0, t1 = 112, 113, 114, 115, 116, 117
    e(f"v_mov_b32 v{tG}, v{vT}")
    e(f"v_mov_b32 v{tR}, v{vT+1}")
    e(f"v_mov_b32 v{tC}, v{vT+2}")
    e(f"v_and_b32 v{tS}, 15, v{vLane}")
    e(f"v_lshlrev_b32 v{t0}, 4, v{tG}")
    e(f"s_lshl_b32 s{sT}, s{sH0}, 6")
    e(f"s_add_u32 s{sT}, s{sT}, {Q_MISC+QM_CS}")
    e(f"v_add_u32 v{qCSh}, s{sT}, v{t0}")
    e(f"s_lshl_b32 s{sT}, s{sU0}, 6")
    e(f"s_add_u32 s{sT}, s{sT}, {Q_MISC+QM_CS}")
    e(f"v_add_u32 v{qCSu}, s{sT}, v{t0}")
    e(f"v_lshlrev_b32 v{qSa}, 3, v{tS}")
    e(f"v_add_u32 v{qSa}, {Q_MISC+QM_ST}, v{qSa}")
    e(f"s_lshl_b32 s{sT}, s{sRh}, 9")
    e(f"v_add_u32 v{qSm}, s{sT}, v{qSa}")
    e(f"v_mul_u32_u24 v{t0}, 640, v{tG}")
    e(f"v_lshl_add_u32 v{t0}, v{tS}, 3, v{t0}")
    e(f"v_lshrrev_b32 v{qPh}, 3, v{tS}")
    e(f"v_mul_u32_u24 v{qPh}, {2560-64}, v{qPh}")
    e(f"s_mul_i32 s{sT}, s{sH0}, {PLANE}")
    e(f"s_add_u32 s{sT}, s{sT}, {Q_PL}")
    e(f"v_add3_u32 v{qPh}, v{qPh}, v{t0}, s{sT}")
    e(f"s_and_b32 s{sT}, s{sWave}, 1")
    e(f"s_mul_i32 s{sT+2}, s{sT}, 320")
    e(f"s_mul_i32 s{sT}, s{sT}, 2560")
    e(f"s_lshr_b32 s{sT+1}, s{sWave}, 1")
    e(f"s_lshl_b32 s{sT+3}, s{sT+1}, 6")
    e(f"s_add_u32 s{sT+2}, s{sT+2}, s{sT+3}")
    e(f"s_add_u32 s{sT+2}, s{sT+2}, {Q_MISC+QM_RK}")
    e(f"s_lshl_b32 s{sT+1}, s{sT+1}, 7")
    e(f"s_add_u32 s{sT}, s{sT}, s{sT+1}")
    e(f"s_add_u32 s{sT}, s{sT}, {Q_PL}")
    e(f"v_add_u32 v{qAt}, s{sT}, v{t0}")
    e(f"v_add_u32 v{qAq}, {10*PLANE+64}, v{qAt}")
    e(f"v_lshl_add_u32 v{t1}, v{tC}, 2, v{tR}")
    e(f"v_mul_u32_u24 v{qAv}, 640, v{tG}")
    e(f"v_lshl_add_u32 v{qAv}, v{t1}, 3, v{qAv}")
    e(f"v_add_u32 v{qAv}, s{sT}, v{qAv}")
    e(f"v_lshlrev_b32 v{qRk}, 4, v{tR}")
    e(f"v_add_u32 v{qRk}, s{sT+2}, v{qRk}")
    e(f"v_lshl_add_u32 v{qRq}, v{tC}, 2, v{qRk}")
    e(f"s_mul_i32 s{sT}, s{sU0}, {PLANE}")
    e(f"s_lshl_b32 s{sT+1}, s{sRh}, 8")
    e(f"s_add_u32 s{sT}, s{sT}, s{sT+1}")
    e(f"s_add_u32 s{sT}, s{sT}, {Q_PL+64}")
    e(f"v_add_u32 v{qPw}, s{sT}, v{t0}")
    e(f"v_lshlrev_b32 v{qOa}, 4, v{vLane}")
    e(f"v_lshrrev_b32 v{qOb}, 5, v{vLane}")
    e(f"v_lshlrev_b32 v{qOb}, 8, v{qOb}")
    e(f"v_lshl_add_u32 v{qOb}, v{tS}, 4, v{qOb}")
    e(f"v_bfe_u32 v{t1}, v{vLane}, 4, 1")
    e(f"v_lshl_add_u32 v{qOb}, v{t1}, 3, v{qOb}")
    BIG = 2.0 ** 100
    lo, hi = t0, t1
    e(f"v_lshlrev_b32 v{lo}, 2, v{tR}")
    e(f"s_lshr_b32 s{sT}, s{sWave}, 1")
    e(f"s_or_b32 s{sT}, s{sRB}, s{sT}")
    e(f"s_cmp_eq_u32 s{sT}, 0")
    e(f"s_cselect_b32 s{sT}, 8, 0")
    e(f"v_sub_u32 v{lo}, s{sT}, v{lo}")
    e(f"v_add_u32 v{hi}, 1, v{tC}")
    e(f"v_max_i32 v{lo}, v{lo}, v{hi}")
    e(f"v_cvt_f32_i32 v{lo}, v{lo}")
    e(f"v_cvt_f32_i32 v{hi}, v{tC}")
    e(f"v_mov_b32 v{tG}, {f32(-BIG)}")
    e(f"v_mov_b32 v{tS}, {f32(BIG)}")
    for pp in range(1, 8):
        e(f"v_fmaak_f32 v{qMk(pp)}, v{lo}, v{tG}, {f32(pp*BIG)}")
        e(f"v_min_f32 v{qMk(pp)}, 0, v{qMk(pp)}")
    for pp in range(9, 12):
        e(f"v_fmaak_f32 v{qMk(pp)}, v{hi}, v{tS}, {f32(-(pp-8)*BIG)}")
        e(f"v_min_f32 v{qMk(pp)}, 0, v{qMk(pp)}")
    e(f"s_lshl_b32 s{sT}, s{sRB}, 3")
    e(f"s_add_u32 s{sT}, s{sT}, s{sWave}")
    e(f"s_mul_i32 s{sT}, s{sT}, 68")
    e(f"s_lshr_b32 s{sT+1}, s{sG}, 1")
    e(f"s_mul_i32 s{sT+1}, s{sT+1}, 5")
    e(f"s_add_u32 s{sT}, s{sT}, s{sT+1}")
    e(f"s_add_u32 s{sT}, s{sT}, 48")
    e(f"s_and_b32 s{sT+1}, s{sG}, 1")
    e(f"s_lshl_b32 s{sJ}, s{sT+1}, 1")
    e(f"s_add_u32 s{sJ}, s{sJ}, s{sT}")
    e(f"s_lshl_b32 s{sJ}, s{sJ}, 10")
    e(f"s_add_u32 s{sT}, s{sT}, 4")
    e(f"s_lshl_b32 s{sT}, s{sT}, 10")
    e(f"s_lshl_b32 s{sT+1}, s{sT+1}, 9")
    e(f"s_add_u32 s{sJ+1}, s{sT}, s{sT+1}")
    e(f"s_mov_b32 s{sMaskW}, 0x00010001")
    e(f"s_mov_b32 s{sMaskW+1}, 0x00010001")
    e("s_waitcnt lgkmcnt(0)")
    nonce_fix()
    row_stats()
    w_touch("Q")
    for w in range(7):
        e(f"s_cmp_eq_u32 s{sWave}, {w}")
        e(f"s_cbranch_scc1 L_p1_Q{w}")
    e("s_branch L_p1_Q7")

    lab("L_F")
    if "e" in OPT:
        w_touch_early("F")
    e(f"v_mul_u32_u24 v{vWl}, {F_GP}, v{vT}")
    e(f"v_mul_u32_u24 v{vT+3}, {F_P}, v{vT+1}")
    e(f"v_add_u32 v{vWl}, v{vWl}, v{vT+3}")
    e(f"v_lshl_add_u32 v{vWl}, v{vT+2}, 3, v{vWl}")
    e(f"v_mov_b32 v{vWa}, v{vWl}")
    srd(S_X, 4, 2048 * 1280)
    fL16, fTr, fCSu, fCSh, fSm = 2, 3, 4, 5, 6
    e(f"v_lshlrev_b32 v{fL16}, 4, v{vLane}")
    cfg_lookup(FCFG)
    e(f"v_lshlrev_b32 v{vT+3}, 4, v{vT}")
    e(f"s_lshl_b32 s{sT}, s{sH0}, 6")
    e(f"s_add_u32 s{sT}, s{sT}, {F_MISC+FM_CS}")
    e(f"v_add_u32 v{fCSh}, s{sT}, v{vT+3}")
    e(f"s_lshl_b32 s{sT}, s{sU0}, 6")
    e(f"s_add_u32 s{sT}, s{sT}, {F_MISC+FM_CS}")
    e(f"v_add_u32 v{fCSu}, s{sT}, v{vT+3}")
    e(f"v_and_b32 v{fSm}, 15, v{vLane}")
    e(f"v_lshlrev_b32 v{fSm}, 3, v{fSm}")
    e(f"s_lshl_b32 s{sT}, s{sRh}, 9")
    e(f"s_add_u32 s{sT}, s{sT}, {F_MISC+FM_ST}")
    e(f"v_add_u32 v{fSm}, s{sT}, v{fSm}")
    e(f"s_mov_b32 s{sMaskW}, 0x00010001")
    e(f"s_mov_b32 s{sMaskW+1}, 0x00010001")
    sRow, sF = sKW, sKX
    e(f"s_lshl_b32 s{sRow}, s{sRB}, 7")
    e(f"s_bfe_u32 s{sT}, s2, 0x10004")
    e(f"s_lshl_b32 s{sT}, s{sT}, 6")
    e(f"s_add_u32 s{sRow}, s{sRow}, s{sT}")
    e(f"s_lshr_b32 s{sF}, s2, 4")
    e(f"s_cmp_ge_u32 s{sWave}, 4")
    e("s_cbranch_scc1 L_F_helper")
    if TOUCH:
        e(f"v_mul_u32_u24 v{vT+3}, 26, v{vLane}")
        e(f"v_lshrrev_b32 v{vT+3}, 8, v{vT+3}")
        e(f"v_mul_u32_u24 v{vT+4}, 10, v{vT+3}")
        e(f"v_sub_u32 v{vT+4}, v{vLane}, v{vT+4}")
        e(f"v_lshlrev_b32 v{vT+4}, 7, v{vT+4}")
        e(f"s_and_b32 s{sT}, s2, 3")
        e(f"s_lshl_b32 s{sT}, s{sT}, 4")
        e(f"s_mul_i32 s{sT+4}, s{sRow}, 1280")
        e(f"s_mov_b32 s{sT+6}, -1")
        e(f"s_mov_b32 s{sT+7}, 0x0fffffff")
        for i in range(2):
            e(f"s_mul_i32 s{sT+2}, s{sWave}, 12")
            e(f"s_add_u32 s{sT+2}, s{sT+2}, {6*i}")
            e(f"v_add_u32 v{vT+5}, s{sT+2}, v{vT+3}")
            e(f"v_cmp_le_u32 vcc, s{sT}, v{vT+5}")
            e(f"v_add_u32 v{vT+6}, 16, v{vT+5}")
            e("s_nop 0")
            e(f"v_cndmask_b32 v{vT+5}, v{vT+5}, v{vT+6}, vcc")
            e(f"v_mul_u32_u24 v{vT+5}, 1280, v{vT+5}")
            e(f"v_add_u32 v{vT+7+i}, v{vT+5}, v{vT+4}")
        e(f"v_mul_u32_u24 v{vT+3}, 57, v{vLane}")
        e(f"v_lshrrev_b32 v{vT+3}, 9, v{vT+3}")
        e(f"v_mul_u32_u24 v{vT+4}, 9, v{vT+3}")
        e(f"v_sub_u32 v{vT+4}, v{vLane}, v{vT+4}")
        e(f"v_mul_u32_u24 v{vT+5}, 86, v{vT+4}")
        e(f"v_lshrrev_b32 v{vT+5}, 8, v{vT+5}")
        e(f"v_mul_u32_u24 v{vT+3}, 3840, v{vT+3}")
        e(f"v_lshl_add_u32 v{vT+3}, v{vT+4}, 7, v{vT+3}")
        e(f"v_mul_u32_u24 v{vT+5}, {1280-384}, v{vT+5}")
        e(f"v_add_u32 v{vT+3}, v{vT+3}, v{vT+5}")
        e(f"v_mul_u32_u24 v{vT+4}, 43, v{vLane}")
        e(f"v_lshrrev_b32 v{vT+4}, 8, v{vT+4}")
        e(f"v_mul_u32_u24 v{vT+4}, {3072-768}, v{vT+4}")
        e(f"v_lshl_add_u32 v{vT+4}, v{vLane}, 7, v{vT+4}")
        e(f"s_mul_i32 s{sT}, s{sF}, 40")
        e(f"s_mul_i32 s{sT+1}, s{sWave}, 10")
        e(f"s_add_u32 s{sT}, s{sT}, s{sT+1}")
        e(f"s_and_b32 s{sT+1}, s2, 3")
        e(f"s_mul_i32 s{sT+2}, s{sT+1}, 320")
        e(f"s_and_b32 s{sT+2}, s{sT+2}, 0xffffff80")
        e(f"s_mul_i32 s{sT+3}, s{sT}, 3840")
        e(f"s_add_u32 s{sT+2}, s{sT+2}, s{sT+3}")
        e(f"s_add_u32 s{sT+3}, s{sT+2}, {5*3840}")
        e(f"s_mul_i32 s{sT+1}, s{sT+1}, 768")
        e(f"s_mul_i32 s{sT}, s{sT}, 3072")
        e(f"s_add_u32 s{sT}, s{sT}, s{sT+1}")
        srd(S_W, 6, 640 * 3840)
        srd(S_R, 32, 640 * 3072)
        e(f"s_mov_b64 exec, s[{sT+6}:{sT+7}]")
        e(f"buffer_load_dword v{vT+10}, v{vT+4}, s[{S_R}:{S_R+3}], s{sT} offen")
        e(f"buffer_load_dword v{vT+10}, v{vT+7}, s[{S_X}:{S_X+3}], s{sT+4} offen")
        e(f"buffer_load_dword v{vT+10}, v{vT+8}, s[{S_X}:{S_X+3}], s{sT+4} offen")
        e(f"s_mov_b32 s{sT+7}, 0x1fff")
        e(f"s_mov_b64 exec, s[{sT+6}:{sT+7}]")
        e(f"buffer_load_dword v{vT+10}, v{vT+3}, s[{S_W}:{S_W+3}], s{sT+2} offen")
        e(f"buffer_load_dword v{vT+10}, v{vT+3}, s[{S_W}:{S_W+3}], s{sT+3} offen")
        e("s_mov_b64 exec, -1")
    for r in range(vACC + 32, vACC + 64):
        e(f"v_mov_b32 v{r}, 0")
    lab("L_F_go")
    for r in list(range(vACC, vACC + 32)) + list(range(vHACC, vHACC + 8)):
        e(f"v_mov_b32 v{r}, 0")
    for r in range(4):
        e(f"v_mov_b32 v{vOnes+r}, 0x3f803f80")
    e(f"s_mov_b32 s{sNxt}, {F_STAGE}")
    e("s_waitcnt lgkmcnt(0)")
    nonce_fix()
    row_stats()
    w_touch("F")
    for w in range(7):
        e(f"s_cmp_eq_u32 s{sWave}, {w}")
        e(f"s_cbranch_scc1 L_p1_F{w}")
    e("s_branch L_p1_F7")

    lab("L_F_helper")
    sD1, sD2, sJb1, sNJ = sJ + 1, sJ + 2, sJ + 3, sJ + 4
    JV1 = [64, 65, 66, 67, 68]
    JV2 = [72, 73, 74, 75, 76]
    for r_ in JV1:
        e(f"v_mov_b32 v{r_}, 0")
    srd(S_W, 36, 1536 * 1280)
    srd(S_DBG, 34, 3072)
    sKS, sCGj, sBase, sJa, sJb, sP, sTt = sWoff, sXoff, sHoff, sMaskH, sMaskH + 1, sCur, 98
    e(f"s_bfe_u32 s{sKS}, s2, 0x20001")
    e(f"s_mul_i32 s{sKS}, s{sKS}, 17")
    e(f"s_add_u32 s{sKS}, s{sKS}, s{sF}")
    e(f"s_and_b32 s{sCGj}, s2, 1")
    e(f"s_lshl_b32 s{sCGj}, s{sCGj}, 2")
    e(f"s_add_u32 s{sCGj}, s{sCGj}, s{sS}")
    e(f"s_mul_i32 s{sJb1}, s{sS}, 5120")
    e(f"s_add_u32 s{sJb1}, s{sJb1}, {F_JOB}")
    e(f"s_cmp_eq_u32 s{sF}, s{sS}")
    e(f"s_cselect_b32 s{sNJ}, 2, 1")
    e(f"s_mov_b32 s{sT+6}, 0")
    e(f"v_lshrrev_b32 v{fTr}, 2, v{vLane}")
    e(f"v_mul_u32_u24 v{fTr}, 160, v{fTr}")
    e(f"v_mul_u32_u24 v{vT+4}, 40, v{vT+2}")
    e(f"v_add_u32 v{fTr}, v{fTr}, v{vT+4}")
    lab("L_F_jobissue")
    e(f"s_sub_u32 s{sT}, s{sKS}, 48")
    e(f"s_mul_i32 s{sP}, s{sT}, 52")
    e(f"s_lshr_b32 s{sP}, s{sP}, 8")
    e(f"s_mul_i32 s{sTt}, s{sP}, 5")
    e(f"s_sub_u32 s{sTt}, s{sT}, s{sTt}")
    e(f"s_mul_i32 s{sP}, s{sP}, 160")
    e(f"s_lshr_b32 s{sBase}, s{sTt}, 1")
    e(f"s_mul_i32 s{sBase}, s{sBase}, 80")
    e(f"s_and_b32 s{sJa}, s{sTt}, 1")
    e(f"s_lshl_b32 s{sJa}, s{sJa}, 3")
    e(f"s_add_u32 s{sBase}, s{sBase}, s{sJa}")
    e(f"s_cmp_eq_u32 s{sTt}, 4")
    e(f"s_cselect_b32 s{sBase}, 16, s{sBase}")
    e(f"s_cselect_b32 s{sJa}, 40, 20")
    e(f"s_cselect_b32 s{sJb}, 20, 4")
    e(f"s_add_u32 s{sBase}, s{sBase}, s{sP}")
    e(f"s_lshl_b32 s{sP}, s{sKS}, 5")
    e(f"s_mov_b32 s{S_R+2}, {640*1280}")
    e(f"s_cmp_ge_u32 s{sKS}, 48")
    e(f"s_cselect_b32 s{sBase}, s{sBase}, s{sP}")
    e(f"s_cselect_b32 s{sJa}, s{sJa}, 4")
    e(f"s_cselect_b32 s{sJb}, s{sJb}, 16")
    e(f"s_cselect_b32 s{S_R}, s28, s36")
    e(f"s_cselect_b32 s{S_R+1}, s29, s37")
    e(f"s_cselect_b32 s{S_R+2}, s{S_R+2}, {1536*1280}")
    e(f"s_and_b32 s{S_R+1}, s{S_R+1}, 0xffff")
    e(f"s_mov_b32 s{S_R+3}, 0x00020000")
    e(f"s_mul_i32 s{sBase}, s{sBase}, 1280")
    e(f"s_mul_i32 s{sP}, s{sCGj}, 160")
    e(f"s_add_u32 s{sBase}, s{sBase}, s{sP}")
    e(f"s_mul_i32 s{sJa}, s{sJa}, 1280")
    e(f"s_mul_i32 s{sJb}, s{sJb}, 1280")
    e(f"s_mul_i32 s{sD2}, s{sCGj}, 68")
    e(f"s_add_u32 s{sD2}, s{sD2}, s{sKS}")
    e(f"s_mul_i32 s{sD2}, s{sD2}, 5120")
    e(f"s_add_u32 s{sD2}, s{sD2}, {B2_OFF}")
    for i in range(5):
        q, rho, t1 = vT + 3, vT + 4, vT + 5
        e(f"v_add_u32 v{q}, {64*i}, v{vLane}")
        e(f"v_mul_u32_u24 v{rho}, 205, v{q}")
        e(f"v_lshrrev_b32 v{rho}, 11, v{rho}")
        e(f"v_mul_u32_u24 v{t1}, 10, v{rho}")
        e(f"v_sub_u32 v{q}, v{q}, v{t1}")
        e(f"v_and_b32 v{t1}, 3, v{rho}")
        e(f"v_mul_u32_u24 v{t1}, 1280, v{t1}")
        e(f"v_lshl_add_u32 v{q}, v{q}, 4, v{t1}")
        e(f"v_bfe_u32 v{t1}, v{rho}, 2, 2")
        e(f"v_mad_u32_u24 v{q}, v{t1}, s{sJa}, v{q}")
        e(f"v_lshrrev_b32 v{t1}, 4, v{rho}")
        e(f"v_mad_u32_u24 v{q}, v{t1}, s{sJb}, v{q}")
        e(f"v_add_u32 v{JV2[i]}, s{sBase}, v{q}")
    e(f"s_add_u32 s{sT+6}, s{sT+6}, 1")
    e(f"s_cmp_ge_u32 s{sT+6}, 2")
    e("s_cbranch_scc1 L_F_jobs_done")
    e(f"s_mov_b32 s{sD1}, s{sD2}")
    for i_ in range(5):
        e(f"v_mov_b32 v{JV1[i_]}, v{JV2[i_]}")
    for i_ in range(3):
        e(f"s_mov_b32 s{S_W+i_}, s{S_R+i_}")
    e(f"s_mov_b32 s{S_W+3}, 0x00020000")
    e(f"s_cmp_eq_u32 s{sNJ}, 1")
    e("s_cbranch_scc1 L_F_jobs_done")
    e(f"s_sub_u32 s{sKS}, s{sKS}, s{sF}")
    e(f"s_add_u32 s{sKS}, s{sKS}, 16")
    e("s_branch L_F_jobissue")
    lab("L_F_jobs_done")
    e("s_setprio 1")
    e("s_branch L_F_go")
    lab("L_task_jdma")
    e(f"s_mul_i32 s{sT+4}, s{sG}, 384")
    e(f"v_lshlrev_b32 v{vT+3}, 3, v{vLane}")
    e(f"buffer_load_dwordx2 v[70:71], v{vT+3}, s[{S_DBG}:{S_DBG+3}], s{sT+4} offen")
    for jn, (JV, SR) in enumerate(((JV1, S_W), (JV2, S_R))):
        if jn == 0:
            e(f"s_mov_b32 m0, s{sJb1}")
        else:
            e(f"s_cmp_eq_u32 s{sNJ}, 1")
            e("s_cbranch_scc1 L_task_ret")
            e(f"s_mov_b32 m0, {F_JOB+20480}")
        for i in range(5):
            e("s_nop 0")
            e(f"buffer_load_dwordx4 v{JV[i]}, s[{SR}:{SR+3}], 0 offen lds")
            e(f"s_add_u32 m0, m0, 1024")
    e(f"s_setpc_b64 s[{sRet}:{sRet+1}]")
    lab("L_task")
    for it_, tgt in ((0, "L_task_jdma"), (TS[0], "L_task_0"), (TS[1], "L_task_j2"), (TS[3], "L_task_6")):
        e(f"s_cmp_eq_u32 s{sIt}, {it_}")
        e(f"s_cbranch_scc1 {tgt}")
    e(f"s_cmp_lg_u32 s{sIt}, {TS[2]}")
    e("s_cbranch_scc1 L_task_ret")
    e("s_waitcnt vmcnt(0)")
    e(f"s_setpc_b64 s[{sRet}:{sRet+1}]")
    lab("L_task_0")
    e("s_waitcnt vmcnt(0)")
    e(f"v_lshlrev_b32 v16, 16, v70")
    e(f"v_and_b32 v17, 0xffff0000, v70")
    e(f"v_lshlrev_b32 v18, 16, v71")
    e(f"v_and_b32 v19, 0xffff0000, v71")
    e(f"v_add_u32 v20, {F_MISC+FM_B1}, v{fL16}")
    e(f"s_mov_b32 s{sT+2}, -1")
    e(f"s_mov_b32 s{sT+3}, 0xffff")
    e(f"s_mov_b64 exec, s[{sT+2}:{sT+3}]")
    e(f"ds_write_b128 v20, v[16:19]")
    e("s_mov_b64 exec, -1")
    e(f"v_add_u32 v24, s{sJb1}, v{fTr}")
    e(f"s_mov_b32 s{sT}, s{sD1}")
    lab("L_task_job")
    e(f"s_add_u32 s{sT+1}, s{sT}, 4096")
    e("s_waitcnt lgkmcnt(0)")
    for U in range(5):
        for h in range(2):
            e(f"ds_read_b64_tr_b16 {vr(76+4*U+2*h,2)}, v24 offset:{8*U+2560*h}")
    for U in range(5):
        e(f"s_waitcnt lgkmcnt({2*(4-U)})")
        e(f"buffer_store_dwordx4 {vr(76+4*U,4)}, v{fL16}, s[{S_WS}:{S_WS+3}], s{sT + (U >> 2)} offen offset:{1024*(U&3)} sc1")
    e(f"s_setpc_b64 s[{sRet}:{sRet+1}]")
    lab("L_task_6")
    e(f"s_cmp_lg_u32 s{sWave}, 4")
    e("s_cbranch_scc1 L_task_ret")
    e(f"s_lshl_b32 s{sT}, s{sRB}, 4")
    e(f"s_add_u32 s{sT}, s{sT}, s{sG}")
    e(f"s_lshl_b32 s{sT}, s{sT}, 7")
    e(f"s_add_u32 s{sT}, s{sT}, {FL_OFF+1024}")
    e(f"v_mov_b32 v24, s{sNo}")
    e(f"v_mov_b32 v25, s{sNo+1}")
    e(f"v_mov_b32 v26, 0")
    e("s_mov_b64 exec, 1")
    e(f"buffer_store_dwordx2 v[24:25], v26, s[{S_WS}:{S_WS+3}], s{sT} offen offset:8 sc1")
    e("s_mov_b64 exec, -1")
    e(f"s_setpc_b64 s[{sRet}:{sRet+1}]")
    lab("L_task_j2")
    e(f"s_cmp_eq_u32 s{sNJ}, 1")
    e("s_cbranch_scc1 L_task_ret")
    e(f"v_add_u32 v24, {F_JOB+20480}, v{fTr}")
    e(f"s_mov_b32 s{sT}, s{sD2}")
    e("s_branch L_task_job")
    lab("L_task_ret")
    e(f"s_setpc_b64 s[{sRet}:{sRet+1}]")

    for typ in "QF":
        for w in range(8):
            p1_loop(typ, w)

    lab("L_epi_Q")
    vST = vXF
    for i in range(4):
        e(f"ds_read_b32 v{vST+i}, v{qSm} offset:{128*(i+1)}")
    e(f"ds_read_b32 v{vST+4}, v{qSa}")
    e(f"s_mov_b64 exec, s[{sMaskW}:{sMaskW+1}]")
    e("s_nop 1")
    for j in range(4):
        e(f"s_cmp_le_u32 s{sNH}, {j}")
        e("s_cbranch_scc1 L_q_cs_done")
        e(f"ds_write_b128 v{qCSh}, {vr(vHACC+4*j,4)} offset:{64*j}")
    lab("L_q_cs_done")
    e("s_mov_b64 exec, -1")
    e("s_waitcnt lgkmcnt(0)")
    e("s_barrier")
    stamp(5)
    vCS, vCSH = vWF, 136
    for u in range(4):
        e(f"ds_read_b128 {vr(vCS+4*u,4)}, v{qCSu} offset:{64*u}")
    for j in range(4):
        e(f"ds_read_b128 {vr(vCSH+4*j,4)}, v{qCSh} offset:{64*j}")
    vRK = 152
    for kb in range(3):
        e(f"ds_read_b128 {vr(vRK+4*kb,4)}, v{qRk} offset:{16*kb}")
    e(f"ds_read_b32 v164, v{qRq} offset:32")

    def norm_unit(a, cs, nm, addr, off):
        for r in range(4):
            e(f"v_fmac_f32 v{a+r}, v{cs+r}, v{nm}")
        e(f"v_cvt_pk_bf16_f32 v{a}, v{a}, v{a+1}")
        e(f"v_cvt_pk_bf16_f32 v{a+1}, v{a+2}, v{a+3}")
        e(f"ds_write_b64 v{addr}, v[{a}:{a+1}] offset:{off}")

    for u in range(4):
        if u == 3:
            e(f"s_cmp_eq_u32 s{sNU}, 3")
            e("s_cbranch_scc1 L_q_skip3")
        if u == 0:
            e("s_waitcnt lgkmcnt(11)")
        if u == 1:
            e("s_waitcnt lgkmcnt(12)")
        for i in range(4):
            norm_unit(acc(u, i), vCS + 4 * u, vST + i, qPw, u * PLANE + (i & 1) * 2560 + (i >> 1) * 128)
    lab("L_q_skip3")
    e("s_waitcnt lgkmcnt(12)")
    for j in range(4):
        e(f"s_cmp_le_u32 s{sNH}, {j}")
        e("s_cbranch_scc1 L_q_halo_done")
        norm_unit(vHACC + 4 * j, vCSH + 4 * j, vST + 4, qPh, j * PLANE)
    lab("L_q_halo_done")
    vLg = 112
    vKf, vVf, vQf, vO, vPf, vOp = 32, 62, 92, 32, 104, 124
    vAt, vAq, vAv = qAt, qAq, qAv
    cexp = (20 ** -0.5) * 1.4426950408889634
    e(f"v_mul_f32 v164, {f32(cexp)}, v164")
    e("s_waitcnt lgkmcnt(0)")
    stamp(6)
    e("s_barrier")
    stamp(7)

    def qk_reads(t):
        e(f"ds_read_b64 {vr(vQf+2*t,2)}, v{vAq} offset:{t*PLANE}")
        for kb in range(3):
            e(f"ds_read_b64 {vr(vKf+2*(3*t+kb),2)}, v{vAt} offset:{t*PLANE+32*kb}")
    for t in range(2):
        qk_reads(t)
    for t in range(5):
        if t < 3:
            qk_reads(t + 2)
        e(f"s_waitcnt lgkmcnt({min(8, 4*(4-t))})")
        for kb in range(3):
            cin = "0" if t == 0 else vr(vLg + 4 * kb, 4)
            e(f"v_mfma_f32_4x4x4_16b_bf16 {vr(vLg+4*kb,4)}, {vr(vKf+2*(3*t+kb),2)}, {vr(vQf+2*t,2)}, {cin}")
    for kb in range(3):
        for t in range(5):
            e(f"ds_read_b64_tr_b16 {vr(vVf+2*(5*kb+t),2)}, v{vAv} offset:{(5+t)*PLANE+32*kb}")
    for pp in range(1, 12):
        if pp == 8:
            e(f"v_mul_f32 v{vLg+pp}, v{vLg+pp}, v{vRK+pp}")
        else:
            e(f"v_fma_f32 v{vLg+pp}, v{vLg+pp}, v{vRK+pp}, v{qMk(pp)}")
    m = 136
    e(f"v_max3_f32 v{m}, v{vLg+1}, v{vLg+2}, v{vLg+3}")
    e(f"v_max3_f32 v{m+1}, v{vLg+4}, v{vLg+5}, v{vLg+6}")
    e(f"v_max3_f32 v{m+2}, v{vLg+7}, v{vLg+8}, v{vLg+9}")
    e(f"v_max3_f32 v{m}, v{m}, v{vLg+10}, v{vLg+11}")
    e(f"v_max3_f32 v{m}, v{m}, v{m+1}, v{m+2}")
    e(f"v_mul_f32 v{m}, v{m}, v164")
    for pp in range(1, 12):
        e(f"v_fma_f32 v{vLg+pp}, v{vLg+pp}, v164, -v{m}")
    for pp in range(1, 12):
        e(f"v_exp_f32 v{vLg+pp}, v{vLg+pp}")
    e(f"v_add_f32 v{m}, v{vLg+1}, v{vLg+2}")
    e(f"v_add_f32 v{m+1}, v{vLg+3}, v{vLg+4}")
    for pp in range(5, 11, 2):
        e(f"v_add_f32 v{m}, v{m}, v{vLg+pp}")
        e(f"v_add_f32 v{m+1}, v{m+1}, v{vLg+pp+1}")
    e(f"v_add_f32 v{m}, v{m}, v{vLg+11}")
    e(f"v_add_f32 v{m}, v{m}, v{m+1}")
    e(f"v_rcp_f32 v{m}, v{m}")
    e(f"v_mov_b32 v{vLg}, 0")
    for pp in range(1, 12):
        e(f"v_mul_f32 v{vLg+pp}, v{vLg+pp}, v{vRK+pp}")
    for j in range(6):
        e(f"v_cvt_pk_bf16_f32 v{vPf+j}, v{vLg+2*j}, v{vLg+2*j+1}")
    e("s_waitcnt lgkmcnt(0)")
    e("s_nop 0")
    for kb in range(3):
        for t in range(5):
            cin = "0" if kb == 0 else vr(vO + 4 * t, 4)
            e(f"v_mfma_f32_4x4x4_16b_bf16 {vr(vO+4*t,4)}, {vr(vVf+2*(5*kb+t),2)}, {vr(vPf+2*kb,2)}, {cin}")
    e("s_nop 1")
    for t in range(5):
        for r in range(4):
            e(f"v_mul_f32 v{vO+4*t+r}, v{vO+4*t+r}, v{m}")
        e(f"v_cvt_pk_bf16_f32 v{vOp+2*t}, v{vO+4*t}, v{vO+4*t+1}")
        e(f"v_cvt_pk_bf16_f32 v{vOp+2*t+1}, v{vO+4*t+2}, v{vO+4*t+3}")
    e(f"buffer_store_dwordx4 {vr(vOp,4)}, v{qOa}, s[{S_WS}:{S_WS+3}], s{sJ} offen sc1")
    e(f"buffer_store_dwordx4 {vr(vOp+4,4)}, v{qOa}, s[{S_WS}:{S_WS+3}], s{sJ} offen offset:1024 sc1")
    e(f"buffer_store_dwordx2 {vr(vOp+8,2)}, v{qOb}, s[{S_WS}:{S_WS+3}], s{sJ+1} offen sc1")
    stamp(8)
    e("s_branch L_p2")

    lab("L_epi_F")
    e("s_setprio 0")
    vST = 160
    vB1 = 128
    for i in range(4):
        e(f"ds_read_b64 v[{vST+2*i}:{vST+2*i+1}], v{fSm} offset:{128*i}")
    for u in range(4):
        e(f"ds_read_b128 {vr(vB1+4*u,4)}, v{fCSu} offset:{64*u+FM_B1-FM_CS}")
    e(f"s_mov_b64 exec, s[{sMaskW}:{sMaskW+1}]")
    e(f"ds_write_b128 v{fCSh}, {vr(vHACC,4)}")
    e(f"s_cmp_le_u32 s{sNH}, 1")
    e("s_cbranch_scc1 L_f_cs_done")
    e(f"ds_write_b128 v{fCSh}, {vr(vHACC+4,4)} offset:64")
    lab("L_f_cs_done")
    e("s_mov_b64 exec, -1")
    e(f"s_lshl_b32 s{sT}, s{sRB}, 3")
    e(f"s_lshl_b32 s{sT+1}, s{sRh}, 2")
    e(f"s_add_u32 s{sT}, s{sT}, s{sT+1}")
    e(f"s_mul_i32 s{sT}, s{sT}, 68")
    e(f"s_mul_i32 s{sT+1}, s{sG}, 6")
    e(f"s_add_u32 s{sT}, s{sT}, s{sT+1}")
    e(f"s_lshr_b32 s{sT+1}, s{sU0}, 1")
    e(f"s_add_u32 s{sT}, s{sT}, s{sT+1}")
    e(f"s_lshl_b32 s{sT}, s{sT}, 10")
    for i in range(1, 4):
        e(f"s_add_u32 s{sT+i}, s{sT}, {i*68*1024}")
    vPw = fL16
    e("s_waitcnt lgkmcnt(0)")
    e("s_barrier")
    stamp(5)
    for u in range(4):
        e(f"ds_read_b128 {vr(vCS+4*u,4)}, v{fCSu} offset:{64*u}")
    vPk = 144
    k = 0
    for pr in range(2):
        if pr == 1:
            e(f"s_cmp_eq_u32 s{sNU}, 2")
            e("s_cbranch_scc1 L_f_done")
        e(f"s_waitcnt lgkmcnt({2-2*pr})")
        for i in range(4):
            pk = vPk + 4 * (k & 3); k += 1
            nm, rs = vST + 2 * i, vST + 2 * i + 1
            for uu in range(2):
                u = 2 * pr + uu
                a = acc(u, i)
                for r in range(4):
                    e(f"v_fmac_f32 v{a+r}, v{vCS+4*u+r}, v{nm}")
                for r in range(4):
                    e(f"v_fma_f32 v{a+r}, v{a+r}, v{rs}, v{vB1+4*u+r}")
                if "b" in OPT:
                    for r in range(4):
                        e(f"v_mul_f32 v{a+r}, v{a+r}, abs(v{a+r})")
                    e(f"v_cvt_pk_bf16_f32 v{pk+2*uu}, v{a}, v{a+1}")
                    e(f"v_cvt_pk_bf16_f32 v{pk+2*uu+1}, v{a+2}, v{a+3}")
                    e(f"v_pk_max_i16 v{pk+2*uu}, v{pk+2*uu}, 0")
                    e(f"v_pk_max_i16 v{pk+2*uu+1}, v{pk+2*uu+1}, 0")
                else:
                    for r in range(4):
                        e(f"v_max_f32 v{a+r}, 0, v{a+r}")
                    for r in range(4):
                        e(f"v_mul_f32 v{a+r}, v{a+r}, v{a+r}")
                    e(f"v_cvt_pk_bf16_f32 v{pk+2*uu}, v{a}, v{a+1}")
                    e(f"v_cvt_pk_bf16_f32 v{pk+2*uu+1}, v{a+2}, v{a+3}")
            e(f"buffer_store_dwordx4 {vr(pk,4)}, v{vPw}, s[{S_WS}:{S_WS+3}], s{sT+i} offen offset:{1024*pr} sc1")
    lab("L_f_done")
    stamp(6)
    e("s_waitcnt vmcnt(0) lgkmcnt(0)")
    stamp(7)
    e("s_barrier")
    stamp(8)
    p2_compute()
    lab("L_end")
    e("s_endpgm")


def main():
    L.append("; Fused LN + [QKV|W1] GEMM + dilated local attention + [h|o]x[w2;wo] GEMM + gating, one persistent kernel")
    L.append(f"; @launch grid=(256,1,1) block=(768,1,1) lds={LDS_TOTAL}")
    L.append('.amdgcn_target "amdgcn-amd-amdhsa--gfx950"')
    L.append(".text")
    gen()
    L.append('.section .rodata,"a"')
    L.append(".p2align 6")
    L.append(f".amdhsa_kernel {NAME}_kernel")
    L.append(f"  .amdhsa_next_free_vgpr {NVGPR}")
    L.append("  .amdhsa_next_free_sgpr 102")
    L.append(f"  .amdhsa_accum_offset {NVGPR}")
    L.append("  .amdhsa_group_segment_fixed_size 0")
    L.append("  .amdhsa_kernarg_size 88")
    L.append("  .amdhsa_user_sgpr_count 2")
    L.append("  .amdhsa_user_sgpr_kernarg_segment_ptr 1")
    L.append("  .amdhsa_system_sgpr_workgroup_id_x 1")
    L.append(".end_amdhsa_kernel")
    out = sys.argv[1] if len(sys.argv) > 1 else OUT
    open(out, "w").write("\n".join(L) + "\n")
    print("wrote", out, len(L), "lines")


main()
```

```python
import sys
import os
import struct

NAME = "recurrent_scan__sliding_local_dilated__dense_activation_squared_relu__prompt"
OUT = f"cdna_kernels/{NAME}.s"
STAMP = os.environ.get("STAMP") in ("1", "2", "3")
STAMP_MIN = os.environ.get("STAMP") == "3"
OPT = os.environ.get("OPT", "abf")
STAMP_RT = os.environ.get("STAMP") == "2"
STAMP_OFF = 16 << 20
L = []


DIAG = os.environ.get("DIAG", "")
ZONE = [""]


def e(s=""):
    if ZONE[0] == "p2c" and "nocomp2" in DIAG and (s.startswith("ds_read") or s.startswith("v_mfma")):
        return
    if ZONE[0] == "p2l" and "nodma2" in DIAG and s.startswith("buffer_load"):
        return
    if ZONE[0] == "p1c" and "nocomp1" in DIAG and (s.startswith("ds_read") or s.startswith("v_mfma")):
        return
    if ZONE[0] == "p1l" and "nodma1" in DIAG and s.startswith("buffer_load"):
        return
    L.append("    " + s)


def lab(s):
    L.append(s + ":")


def vr(a, n=1):
    return f"v{a}" if n == 1 else f"v[{a}:{a+n-1}]"


def f32(x):
    return hex(struct.unpack("<I", struct.pack("<f", x))[0])


A2_OFF = 0
A2_SIZE = 128 * 68 * 1024
B2_OFF = A2_SIZE
ST_OFF = B2_OFF + 8 * 68 * 5120
FL_OFF = ST_OFF + 2048 * 16
NONCE_OFF = FL_OFF + 256 * 128
WS_USED = NONCE_OFF + 128 if not STAMP else (32 << 20)

Q_P, Q_GP = 480, 3968
Q_XB = 8 * Q_GP
Q_STAGE = Q_XB + 9 * 2048
F_P, F_GP = 416, 3456
F_XB = 8 * F_GP
F_STAGE = F_XB + 8 * 2048
PLANE = 5120
Q_PL = 73728
Q_MISC = 3 * Q_STAGE
QM_ST, QM_CS, QM_RK = 0, 1152, 2112
F_JOB = 3 * F_STAGE
F_MISC = 158720
FM_ST, FM_CS, FM_B1 = 0, 1024, 1792
SLOT = 36864
X2 = 4 * SLOT
B2L = X2 + 10240
LDS_TOTAL = F_MISC + FM_B1 + 768
assert Q_PL + 15 * PLANE == Q_MISC and B2L + 320 <= F_MISC and F_JOB + 5 * 5120 <= F_MISC and LDS_TOTAL <= 163840

S_X, S_W, S_WS, S_R, S_DBG = 8, 12, 16, 20, 24
sWave, sS, sG, sRB = 40, 41, 42, 43
sCur, sNxt, sKW, sKX, sIt = 44, 45, 46, 47, 48
sWoff, sXoff, sHoff = 49, 50, 51
sMaskW, sMaskH = 52, 54
sT = 56
sA = 70
sRh, sU0, sH0, sNH = 70, 71, 72, 73
sRet = 96
sNo = 30
sNU = 74
sJ = 75
sSt = 80

vLane = 1
vX0, vX1, vH0 = 2, 3, 4
vWd = 6
vWl, vXl0, vXl1, vWa, vXa = 10, 11, 12, 13, 14
vT = 16
vOnes = 28
vACC = 32
vHACC = 96
vWF = 112
vXF = 128
NVGPR = 168
qAt, qAq, qAv, qRk, qOa, qOb, qPw, qPh = 2, 3, 4, 5, 6, 7, 8, 9
qCSu, qCSh, qSa, qSm, qRq = 15, 16, 17, 18, 19


def qMk(p):
    return 20 + (p - 1 if p < 8 else p - 2)


TOUCH = os.environ.get("TOUCH", "0") == "1"
CODEPF = os.environ.get("CODEPF", "1") == "1"
BPF = os.environ.get("BPF", "0") == "1"
TOUCH2 = os.environ.get("TOUCH2", "1") == "1"
ROT = os.environ.get("ROT", "0") == "1"
TSKIP = int(os.environ.get("TSKIP", "38"))
PREBF = int(os.environ.get("PREBF", "2"))
PREBQ = int(os.environ.get("PREBQ", "2"))
OUTPOL = os.environ.get("OUTPOL", " sc1")
AMP = [int(x) for x in os.environ["AMP"].split(",")] if os.environ.get("AMP") else None
RSCHED = int(os.environ.get("RSCHED", "0"))
JD = int(os.environ.get("JD", "0"))
NBK = int(os.environ.get("NBK", "1"))
NRS = int(os.environ.get("NRS", "0"))
TS = [int(x) for x in os.environ.get("TS", "2,3,5,6").split(",")]
DBGOUT = os.environ.get("DBGOUT", "0") == "1"
TSH = int(os.environ.get("TSH", "0"))


def acc(u, i):
    return vACC + (u * 4 + i) * 4


def wf(u):
    return vWF + 4 * u


def xf(b, i):
    return vXF + (b * 5 + i) * 4


def srd(d, base, nrec):
    e(f"s_mov_b32 s{d}, s{base}")
    e(f"s_and_b32 s{d+1}, s{base+1}, 0xffff")
    e(f"s_mov_b32 s{d+2}, {nrec}")
    e(f"s_mov_b32 s{d+3}, 0x00020000")


def nonce_load():
    e(f"s_add_u32 s{sNo}, s68, {NONCE_OFF}")
    e(f"s_addc_u32 s{sNo+1}, s69, 0")
    e(f"s_load_dwordx2 s[{sNo}:{sNo+1}], s[{sNo}:{sNo+1}], 0")


def nonce_fix():
    e(f"s_add_u32 s{sNo}, s{sNo}, 1")
    e(f"s_addc_u32 s{sNo+1}, s{sNo+1}, 0")


def stamp(i, real=False):
    if STAMP and not (STAMP_MIN and i not in (0, 13, 14, 15)):
        e(f"{'s_memrealtime' if (real or STAMP_RT) else 's_memtime'} s[100:101]")
        e("s_waitcnt lgkmcnt(0)")
        e(f"s_mov_b32 s{sSt+i}, s100")


def stamp_flush():
    if STAMP:
        e("s_waitcnt vmcnt(0)")
        stamp(13)
        stamp(15, real=True)
        for i in range(16):
            e(f"v_mov_b32 v{32+i}, s{sSt+i}")
        e(f"s_mul_i32 s{sT}, s2, 12")
        e(f"s_add_u32 s{sT}, s{sT}, s{sWave}")
        e(f"s_lshl_b32 s{sT}, s{sT}, 6")
        e(f"s_add_u32 s{sT}, s{sT}, {STAMP_OFF}")
        e("v_mov_b32 v48, 0")
        e("s_mov_b64 exec, 1")
        for i in range(4):
            e(f"buffer_store_dwordx4 v[{32+4*i}:{35+4*i}], v48, s[{S_WS}:{S_WS+3}], s{sT} offen offset:{16*i}")


QCFG = [(0, 0, 4, 0, 4), (0, 4, 4, 0, 4), (0, 8, 4, 0, 2), (1, 4, 4, 0, 0),
        (0, 12, 3, 0, 2), (1, 12, 3, 2, 1), (1, 0, 4, 0, 0), (1, 8, 4, 2, 2)]
FCFG = [(0, 0, 4, 0, 2), (0, 6, 4, 0, 2), (1, 0, 4, 2, 2), (1, 6, 4, 2, 2),
        (0, 4, 2, 0, 1), (0, 10, 2, 0, 1), (1, 4, 2, 1, 1), (1, 10, 2, 1, 1)]


def p1_dma(typ):
    P2_ = 960 if typ == "Q" else 832
    GP = Q_GP if typ == "Q" else F_GP
    RP = 3840 if typ == "Q" else 3072
    e(f"s_add_u32 m0, s{sCur}, s{sXoff}")
    e(f"s_add_u32 s{sT}, s{sKX}, 1280")
    e(f"buffer_load_dwordx4 v{vX0}, s[{S_X}:{S_X+3}], s{sKX} offen lds")
    e(f"buffer_load_dwordx4 v{vX1}, s[{S_X}:{S_X+3}], s{sKX} offen offset:1024 lds")
    e(f"s_add_u32 m0, m0, 2048")
    e("s_nop 0")
    e(f"buffer_load_dwordx4 v{vX0}, s[{S_X}:{S_X+3}], s{sT} offen lds")
    e(f"buffer_load_dwordx4 v{vX1}, s[{S_X}:{S_X+3}], s{sT} offen offset:1024 lds")
    if typ == "Q":
        e(f"s_add_u32 m0, s{sCur}, s{sHoff}")
        e(f"s_mov_b64 exec, s[{sMaskH}:{sMaskH+1}]")
        e(f"buffer_load_dwordx4 v{vH0}, s[{S_X}:{S_X+3}], s{sKX} offen lds")
    e(f"s_add_u32 m0, s{sCur}, s{sWoff}")
    e(f"s_mov_b64 exec, s[{sMaskW}:{sMaskW+1}]")
    for t in range(4):
        e(f"buffer_load_dwordx4 v{vWd+t}, s[{S_W}:{S_W+3}], s{sKW} offen offset:{P2_*t} lds")
    e(f"s_add_u32 m0, m0, {4*GP}")
    e(f"s_add_u32 s{sT}, s{sKW}, {32*RP}")
    for t in range(4):
        e(f"buffer_load_dwordx4 v{vWd+t}, s[{S_W}:{S_W+3}], s{sT} offen offset:{P2_*t} lds")
    e("s_mov_b64 exec, -1")
    e(f"s_add_u32 s{sKW}, s{sKW}, {64*RP}")
    e(f"s_add_u32 s{sKX}, s{sKX}, 128")
    STG = Q_STAGE if typ == "Q" else F_STAGE
    e(f"s_add_u32 s{sCur}, s{sCur}, {STG}")
    e(f"s_cmp_eq_u32 s{sCur}, {3*STG}")
    e(f"s_cselect_b32 s{sCur}, 0, s{sCur}")


def p1_loop(typ, w):
    rh, u0, nu, h0, nh = (QCFG if typ == "Q" else FCFG)[w]
    STG = Q_STAGE if typ == "Q" else F_STAGE
    P, GP, XB = (Q_P, Q_GP, Q_XB) if typ == "Q" else (F_P, F_GP, F_XB)
    tag = f"{typ}{w}"
    usehx = typ == "Q" and nh > 0
    tasks = typ == "F" and w >= 4
    tlast = TS[3]

    def xreads(b):
        o = []
        for i in range(4):
            off = XB + 2048 * (4 * rh + i + (1 if typ == "Q" else 0))
            o.append(f"ds_read_b128 {vr(xf(b,i),4)}, v{vXa} offset:{off}")
        if usehx:
            o.append(f"ds_read_b128 {vr(xf(b,4),4)}, v{vXa} offset:{XB}")
        return o

    def wreads(u, ks):
        U = u0 + u
        col = (U // 5) * 160 + 8 * (U % 5) if typ == "Q" else 32 * U
        return [f"ds_read_b64_tr_b16 {vr(wf(u)+2*h,2)}, v{vWa} offset:{ks*4*GP+h*4*P+col}" for h in range(2)]

    def mfmas(u, b):
        o = [f"v_mfma_f32_16x16x32_bf16 {vr(acc(u,i),4)}, {vr(wf(u),4)}, {vr(xf(b,i),4)}, {vr(acc(u,i),4)}" for i in range(4)]
        if h0 <= u < h0 + nh:
            a = vHACC + 4 * (u - h0)
            bsrc = xf(b, 4) if typ == "Q" else vOnes
            o.append(f"v_mfma_f32_16x16x32_bf16 {vr(a,4)}, {vr(wf(u),4)}, {vr(bsrc,4)}, {vr(a,4)}")
        return o

    lab(f"L_p1_{tag}")
    stamp(2)
    e("s_barrier")
    stamp(3)
    for x in xreads(0):
        e(x)
    for u in range(nu):
        for x in wreads(u, 0):
            e(x)
    e(f"v_mov_b32 v{vXa}, v{vXl1}")
    e("s_waitcnt lgkmcnt(0)")
    lab(f"L_p1_{tag}_loop")
    body = []
    NB = NBK if nu > NBK else 1
    for ph in range(2):
        pend = []
        if ph == 0:
            pend += [("l", x, ("x", 1)) for x in xreads(1)]
        for u in range(nu):
            if ph == 1 and u == NB:
                body.append(("o", f"v_add_u32 v{vXa}, s{sNxt}, v{vXl0}"))
                body.append(("o", f"v_add_u32 v{vWa}, s{sNxt}, v{vWl}"))
                if tasks:
                    body.append(("o", f"s_cmp_gt_u32 s{sIt}, {tlast}"))
                    body.append(("o", f"s_cbranch_scc1 L_p1_{tag}_nt"))
                    body.append(("o", f"s_call_b64 s[{sRet}:{sRet+1}], {'L_task' if typ == 'F' else 'L_syncQ'}"))
                    body.append(("lab", f"L_p1_{tag}_nt"))
                    body.append(("w0", "s_waitcnt lgkmcnt(0)"))
                else:
                    body.append(("w0", "s_waitcnt lgkmcnt(0)"))
                body.append(("o", "s_barrier"))
                pend = [("l", x, ("x", 0)) for x in xreads(0)] + pend
            ms = mfmas(u, ph)
            rem_after = sum(len(mfmas(uu, ph)) for uu in range(u + 1, nu))
            for mi, m in enumerate(ms):
                body.append(("m", m, [("w", u, ph), ("x", ph)] if mi == 0 else []))
                if mi == len(ms) - 1:
                    pend += [("l", x, ("w", u, 1 - ph)) for x in wreads(u, 1 - ph)]
                if not (ph == 1 and u < NB):
                    left = len(ms) - 1 - mi + rem_after + 1
                    k = 1 if len(pend) <= left else 2
                    while pend and k > 0:
                        body.append(pend.pop(0)); k -= 1
        while pend:
            body.append(pend.pop(0))
        if ph == 1:
            body.append(("o", f"v_add_u32 v{vXa}, s{sNxt}, v{vXl1}"))
            body.append(("o", f"s_add_u32 s{sNxt}, s{sNxt}, {STG}"))
            body.append(("o", f"s_cmp_eq_u32 s{sNxt}, {3*STG}"))
            body.append(("o", f"s_cselect_b32 s{sNxt}, 0, s{sNxt}"))
            body.append(("o", f"s_add_u32 s{sIt}, s{sIt}, 1"))
    n = len(body)
    waits = {}
    covered, ops = -1, []
    for pos, it in enumerate(body + body):
        if it[0] == "l":
            ops.append(it[2])
        elif it[0] == "w0":
            covered = len(ops) - 1
        elif it[0] == "m" and it[2]:
            need = -1
            for tg in it[2]:
                idx = [i for i, t in enumerate(ops) if t == tg]
                if idx:
                    need = max(need, idx[-1])
            if need > covered:
                cnt = min(13, len(ops) - 1 - need)
                covered = len(ops) - 1 - cnt
                if pos >= n:
                    waits[pos - n] = min(cnt, waits.get(pos - n, 99))
                else:
                    waits[pos] = cnt
    ops, covered = [], -1
    for pos, it in enumerate(body * 3):
        p0 = pos % n
        if p0 in waits:
            covered = max(covered, len(ops) - 1 - waits[p0])
        if it[0] == "l":
            ops.append(it[2])
        elif it[0] == "w0":
            covered = len(ops) - 1
        elif it[0] == "m" and it[2]:
            for tg in it[2]:
                idx = [i for i, t in enumerate(ops) if t == tg]
                assert not idx or idx[-1] <= covered, (tag, pos, tg)
    ZONE[0] = "p1c"
    for pos, it in enumerate(body):
        if pos in waits:
            e(f"s_waitcnt lgkmcnt({waits[pos]})")
        if it[0] == "lab":
            lab(it[1])
        else:
            e(it[1])
    ZONE[0] = ""
    e(f"s_cmp_lt_u32 s{sIt}, 10")
    e(f"s_cbranch_scc1 L_p1_{tag}_loop")
    e("s_waitcnt lgkmcnt(0)")
    stamp(4)
    e(f"s_branch L_epi_{typ}")


_spin = [0]


def spin_check(vreg, want_s, reload_fn, wide=True):
    k = _spin[0]; _spin[0] += 1
    regs = vreg if isinstance(vreg, list) else [vreg]
    e(f"s_mov_b32 s{sT+7}, 0")
    lab(f"L_spin{k}")
    for i, r in enumerate(regs):
        dst = "vcc" if i == 0 else f"s[{sT+4}:{sT+5}]"
        if wide:
            e(f"v_cmp_ne_u64 {dst}, s[{want_s}:{want_s+1}], v[{r}:{r+1}]")
        else:
            e(f"v_cmp_ne_u32 {dst}, s{want_s}, v{r}")
        if i:
            e("s_nop 1")
            e(f"s_or_b64 vcc, vcc, s[{sT+4}:{sT+5}]")
    e("s_nop 1")
    e(f"s_cmp_eq_u64 vcc, 0")
    e(f"s_cbranch_scc1 L_spin{k}_ok")
    e(f"s_add_u32 s{sT+7}, s{sT+7}, 1")
    e(f"s_cmp_gt_u32 s{sT+7}, 0x40000")
    e(f"s_cbranch_scc1 L_spin{k}_ok")
    e("s_sleep 2")
    reload_fn()
    e("s_waitcnt vmcnt(0)")
    e(f"s_branch L_spin{k}")
    lab(f"L_spin{k}_ok")


def loader(typ):
    N = 13 if typ == "Q" else 12
    N2 = 9
    vP, vFa, vL16, vSa = vT + 8, vT + 9, vT + 10, vT + 11
    vE1, vGl, vLs, vRs, vD = 32, 33, 34, 35, 36
    vP = 40
    sSrcA, sSrcB, sDst, sMA, sMB, sOne, sFl = sA, sA + 1, sA + 2, sA + 3, sA + 4, sA + 5, sA + 6
    e(f"s_mov_b32 s{sCur}, 0")
    if "p" in OPT:
        e("s_setprio 2")
    nonce_load()
    p1_dma(typ)
    if "z" in OPT:
        srd(S_WS, 68, WS_USED)
        e(f"s_waitcnt vmcnt(0) lgkmcnt(0)")
        e("s_barrier")
        stamp(1)
        p1_dma(typ)
        p1_dma(typ)
    elif ("y" in OPT and typ == "Q") or ("x" in OPT and typ == "F"):
        p1_dma(typ)
        p1_dma(typ)
        srd(S_WS, 68, WS_USED)
        e(f"s_waitcnt vmcnt({2*N}) lgkmcnt(0)")
        e("s_barrier")
        stamp(1)
    else:
        p1_dma(typ)
        srd(S_WS, 68, WS_USED)
        e(f"s_waitcnt vmcnt({N}) lgkmcnt(0)")
        e("s_barrier")
        stamp(1)
        p1_dma(typ)
    e(f"v_lshlrev_b32 v{vL16}, 4, v{vLane}")
    e(f"v_lshlrev_b32 v{vFa}, 7, v{vLane}")
    e(f"v_lshlrev_b32 v{vSa}, 2, v{vLane}")
    nonce_fix()
    e(f"v_lshrrev_b32 v{vE1}, 2, v{vLane}")
    e(f"v_lshlrev_b32 v{vE1}, 4, v{vE1}")
    e(f"v_bfe_u32 v{vT}, v{vLane}, 1, 1")
    e(f"v_lshl_add_u32 v{vE1}, v{vT}, 2, v{vE1}")
    e(f"v_and_b32 v{vT}, 1, v{vLane}")
    e(f"v_add_u32 v{vE1}, v{vE1}, v{vT}")
    e(f"s_and_b32 s{sT}, s2, 1")
    e(f"s_lshl_b32 s{sT}, s{sT}, 1")
    e(f"s_add_u32 s{sT}, s{sT}, 8")
    e(f"v_add_lshl_u32 v{vE1}, v{vE1}, s{sT}, 7")
    per = 36 if typ == "Q" else 32
    t0, t1, t2, t3 = vT, vT + 1, vT + 2, vT + 3
    e(f"s_mul_i32 s{sT}, s{sS}, {per}")
    if typ == "Q":
        e(f"s_sub_u32 s{sT}, s{sT}, 16")
    e(f"v_add_u32 v{t0}, s{sT}, v{vLane}")
    e(f"s_lshl_b32 s{sT}, s{sRB}, 7")
    e(f"v_add_u32 v{t1}, s{sT}, v{t0}")
    e(f"v_max_i32 v{t1}, 0, v{t1}")
    e(f"v_lshlrev_b32 v{vGl}, 4, v{t1}")
    e(f"v_ashrrev_i32 v{t1}, 5, v{t0}")
    e(f"v_and_b32 v{t2}, 1, v{t0}")
    e(f"v_lshl_add_u32 v{t1}, v{t1}, 1, v{t2}")
    e(f"v_bfe_u32 v{t3}, v{t0}, 1, 4")
    e(f"v_lshl_add_u32 v{t1}, v{t1}, 4, v{t3}")
    if typ == "Q":
        e(f"v_add_u32 v{t1}, 16, v{t1}")
        e(f"v_and_b32 v{t3}, 7, v{t3}")
        e(f"v_cmp_gt_i32 vcc, 0, v{t0}")
        e(f"v_lshl_add_u32 v{t3}, v{t2}, 3, v{t3}")
        e("s_nop 0")
        e(f"v_cndmask_b32 v{t1}, v{t1}, v{t3}, vcc")
    e(f"v_lshlrev_b32 v{vLs}, 3, v{t1}")
    e(f"v_add_u32 v{vLs}, {(Q_MISC+QM_ST) if typ == 'Q' else (F_MISC+FM_ST)}, v{vLs}")
    if typ == "Q":
        e(f"v_add_u32 v{t1}, 16, v{t0}")
        e(f"v_lshrrev_b32 v{t1}, 1, v{t1}")
        e(f"v_mul_u32_u24 v{t2}, 320, v{t2}")
        e(f"v_lshl_add_u32 v{vRs}, v{t1}, 2, v{t2}")
        e(f"v_add_u32 v{vRs}, {Q_MISC+QM_RK}, v{vRs}")
    e(f"s_bfe_u32 s{sT}, s2, 0x10001")
    e(f"s_lshl_b32 s{sT+1}, s{sRB}, 1")
    e(f"s_add_u32 s{sT}, s{sT}, s{sT+1}")
    e(f"s_lshl_b32 s{sFl}, s{sRB}, 11")
    e(f"s_add_u32 s{sFl}, s{sFl}, {FL_OFF}")
    e(f"s_lshl_b32 s{sSrcA}, s{sT}, 2")
    e(f"s_add_u32 s{sSrcA}, s{sSrcA}, s{sS}")
    e(f"s_mul_i32 s{sSrcA}, s{sSrcA}, {68*1024}")
    cg_of(sT, sT + 1)
    e(f"s_mul_i32 s{sSrcB}, s{sT}, 68")
    e(f"s_add_u32 s{sSrcB}, s{sSrcB}, s{sS}")
    e(f"s_mul_i32 s{sSrcB}, s{sSrcB}, 5120")
    e(f"s_add_u32 s{sSrcB}, s{sSrcB}, {B2_OFF}")
    e(f"s_mul_i32 s{sMB}, s{sS}, 5120")
    e(f"s_lshl_b32 s{sMA}, s{sS}, 12")
    e(f"s_add_u32 s{sMA}, s{sMA}, 20480")
    e(f"s_mov_b32 s{sOne}, 1")
    T0 = 0
    if "l" in OPT:
        RP = 3840 if typ == "Q" else 3072
        nl = 50 if typ == "Q" else 60
        e(f"s_lshl_b32 s{sT}, s{sRB}, 3")
        e(f"s_add_u32 s{sT+2}, s{sT}, s{sG}")
        e(f"s_mul_i32 s{sT}, s{sT+2}, {5*RP}")
        e(f"s_mul_i32 s{sT+1}, s{sS}, {nl*128}")
        e(f"s_add_u32 s{sT}, s{sT}, s{sT+1}")
        e(f"s_cmp_lt_u32 s{sT+2}, {TSKIP}")
        e(f"s_cselect_b32 s{sT}, 0x7f000000, s{sT}")
        e(f"s_cmp_ge_u32 s{sS}, {3 if typ == 'Q' else 2}")
        e(f"s_cselect_b32 s{sT}, 0x7f000000, s{sT}")
        e(f"s_mov_b32 s{sT+2}, -1")
        e(f"s_mov_b32 s{sT+3}, {hex((1 << (nl - 32)) - 1)}")
        e(f"s_mov_b64 exec, s[{sT+2}:{sT+3}]")
        e(f"buffer_load_dword v0, v{vFa}, s[{S_W}:{S_W+3}], s{sT} offen")
        e("s_mov_b64 exec, -1")
        Q1 = [1] * N + [2] * N + ["T"]
        if typ == "F":
            e(f"s_lshl_b32 s{sT}, s{sRB}, 3")
            e(f"s_add_u32 s{sT}, s{sT}, s{sG}")
            e(f"s_lshl_b32 s{sT}, s{sT}, 2")
            e(f"s_add_u32 s{sT}, s{sT}, s{sS}")
            e(f"s_lshl_b32 s99, s{sT}, 6")
            e(f"s_add_u32 s99, s99, {ST_OFF}")
            e(f"s_mul_i32 s{sT}, s{sT}, 5120")
            e(f"s_add_u32 s{sT+1}, s{sT}, 2560")
            for r in range(4):
                e(f"buffer_load_dwordx4 {vr(48+8*r,4)}, v{vL16}, s[{S_X}:{S_X+3}], s{sT+(r>>1)} offen offset:{1280*(r&1)}")
                e(f"buffer_load_dword v{52+8*r}, v{vSa}, s[{S_X}:{S_X+3}], s{sT+(r>>1)} offen offset:{1280*(r&1)+1024}")
            Q1 += ["R"] * 8

        def w1(tag):
            idx = [i for i, t in enumerate(Q1) if t == tag]
            if idx:
                e(f"s_waitcnt vmcnt({len(Q1) - 1 - idx[-1]})")
                del Q1[:idx[-1] + 1]
        T0 = 2 if typ == "Q" else 6
        rows = {1: [0], 2: [1], 3: [2], 4: [3]} if RSCHED == 0 else {1: [0, 1], 2: [2, 3]}
        for t in range(T0):
            w1(t + 1)
            e("s_barrier")
            if t in (0, 2, 5):
                stamp({0: 2, 2: 3, 5: 4}[t])
            p1_dma(typ)
            Q1 += [t + 3] * N
            if typ == "F":
                for r in rows.get(t, []):
                    w1("R")
                    row_stats(src=48 + 8 * r, goff=16 * r, wait=False, O=80 + 4 * r)
                    Q1.append("G")
    e(f"s_mov_b32 s{sIt}, {T0}")
    lab(f"L_ld{typ}_loop")
    e(f"s_waitcnt vmcnt({N})")
    e("s_barrier")
    if STAMP:
        for it_, ix in ((0, 2), (2, 3), (5, 4), (6, 6)):
            e(f"s_cmp_lg_u32 s{sIt}, {it_}")
            e(f"s_cbranch_scc1 L_ld{typ}_st{it_}")
            stamp(ix)
            lab(f"L_ld{typ}_st{it_}")
    ZONE[0] = "p1l"
    p1_dma(typ)
    ZONE[0] = ""
    e(f"s_add_u32 s{sIt}, s{sIt}, 1")
    e(f"s_cmp_lt_u32 s{sIt}, 7")
    e(f"s_cbranch_scc1 L_ld{typ}_loop")
    e(f"s_waitcnt vmcnt({N})")
    e("s_barrier")
    stamp(7)

    def ld_stats():
        e(f"s_mov_b32 s{sT}, {ST_OFF}")
        e(f"s_mov_b32 s{sT+2}, -1")
        e(f"s_mov_b32 s{sT+3}, {0xf if typ == 'Q' else 0}")
        e(f"s_mov_b64 exec, s[{sT+2}:{sT+3}]")
        e(f"buffer_load_dwordx4 {vr(vD,4)}, v{vGl}, s[{S_WS}:{S_WS+3}], s{sT} offen sc1")
    def ld_bflags():
        e(f"s_mov_b32 s{sT}, {FL_OFF}")
        e(f"buffer_load_dwordx2 v[{vP}:{vP+1}], v{vE1}, s[{S_WS}:{S_WS+3}], s{sT} offen offset:8 sc1")
    if NRS:
        ld_bflags()
    ld_stats()
    e(f"s_waitcnt vmcnt({2 if NRS else 1})")
    e("s_barrier")
    stamp(10)
    e("s_waitcnt vmcnt(0)")
    spin_check(vD + 2, sNo, ld_stats)
    e(f"ds_write_b64 v{vLs}, v[{vD}:{vD+1}]")
    if typ == "Q":
        e(f"ds_write_b32 v{vRs}, v{vD+1}")
    e("s_mov_b64 exec, -1")
    stamp(9)
    e("s_waitcnt lgkmcnt(0)")

    Qs = []

    def dmaB(k=None):
        e(f"s_add_u32 m0, s{sDst}, s{sMB}")
        e(f"s_add_u32 s{sT}, s{sSrcB}, 4096")
        ZONE[0] = "p2l"
        for i in range(4):
            e(f"buffer_load_dwordx4 v{vL16}, s[{S_WS}:{S_WS+3}], s{sSrcB} offen offset:{1024*i} sc1 lds")
        e(f"s_add_u32 m0, m0, 4096")
        e(f"s_add_u32 s{sSrcB}, s{sSrcB}, 20480")
        e(f"buffer_load_dwordx4 v{vL16}, s[{S_WS}:{S_WS+3}], s{sT} offen sc1 lds")
        ZONE[0] = ""
        Qs.extend([k] * 5)

    def dmaA(k=None):
        e(f"s_add_u32 m0, s{sDst}, s{sMA}")
        e("s_nop 0")
        ZONE[0] = "p2l"
        for i in range(4):
            e(f"buffer_load_dwordx4 v{vL16}, s[{S_WS}:{S_WS+3}], s{sSrcA} offen offset:{1024*i} sc1 lds")
        ZONE[0] = ""
        e(f"s_add_u32 s{sSrcA}, s{sSrcA}, 4096")
        Qs.extend([k] * 4)

    def stage(k=None):
        dmaB(k); dmaA(k)
        e(f"s_add_u32 s{sDst}, s{sDst}, {SLOT}")
        e(f"s_cmp_eq_u32 s{sDst}, {4*SLOT}")
        e(f"s_cselect_b32 s{sDst}, 0, s{sDst}")

    def wait_for(tag):
        idx = [i for i, t in enumerate(Qs) if t == tag]
        if idx:
            e(f"s_waitcnt vmcnt({len(Qs) - 1 - idx[-1]})")
            del Qs[:idx[-1] + 1]

    def load_flags():
        e("s_mov_b64 exec, 0xff")
        e(f"buffer_load_dwordx2 v[{vP+2}:{vP+3}], v{vFa}, s[{S_WS}:{S_WS+3}], s{sFl} offen offset:1024 sc1")

    PRE = 2 if typ == "Q" else 4
    vRB = 44
    RS = [PRE + 1 + (i * (16 - PRE)) // NRS for i in range(NRS)] if NRS else []
    sBaseB, sSrcR = sKW, sKX

    def reg_load(i0, i1):
        for i in range(i0, min(i1, 5 * NRS)):
            if i % 5 in (0, 4) or i == i0:
                e(f"s_add_u32 s{sSrcR}, s{sBaseB}, {RS[i//5]*20480 + (4096 if i % 5 == 4 else 0)}")
            e(f"buffer_load_dwordx4 {vr(vRB+4*i,4)}, v{vL16}, s[{S_WS}:{S_WS+3}], s{sSrcR} offen offset:{1024*(i%5%4) if i % 5 < 4 else 0} sc1")

    def putB(k):
        i0 = RS.index(k) * 5
        e(f"s_add_u32 s{sT}, s{sMB}, {(k%4)*SLOT}")
        e(f"v_add_u32 v{vT+6}, s{sT}, v{vL16}")
        for i in range(5):
            e(f"ds_write_b128 v{vT+6}, {vr(vRB+4*(i0+i),4)} offset:{1024*i}")
    if NRS:
        e(f"s_mov_b32 s{sBaseB}, s{sSrcB}")
        spin_check(vP, sNo, ld_bflags)
        stamp(8)
        reg_load(0, 10)
        e("s_barrier")
        stamp(11)
        reg_load(10, 15)
        e("s_barrier")
        reg_load(15, 99)
    else:
        ld_bflags()
        e("s_barrier")
        stamp(11)
        e("s_barrier")
        e("s_waitcnt vmcnt(0)")
        spin_check(vP, sNo, ld_bflags)
        stamp(8)
    PREB = PREBQ if typ == "Q" else PREBF
    for k in range(PREB):
        e(f"s_mov_b32 s{sDst}, {k*SLOT}")
        dmaB(k)
    if BPF:
        e(f"s_lshr_b32 s{sT}, s2, 5")
        e(f"s_lshl_b32 s{sT}, s{sT}, 2")
        e(f"s_add_u32 s{sT}, s{sT}, s{sS}")
        e(f"s_mul_i32 s{sT}, s{sT}, {85*128}")
        e(f"s_add_u32 s{sT}, s{sT}, s{sSrcB}")
        e(f"s_sub_u32 s{sT}, s{sT}, s{sMB}")
        e(f"s_sub_u32 s{sT}, s{sT}, {PREB*20480}")
        e(f"s_add_u32 s{sT+1}, s{sT}, 8192")
        e(f"buffer_load_dword v{vD}, v{vFa}, s[{S_WS}:{S_WS+3}], s{sT} offen sc1")
        e(f"s_mov_b64 exec, 0x1fffff")
        e(f"buffer_load_dword v{vD}, v{vFa}, s[{S_WS}:{S_WS+3}], s{sT+1} offen sc1")
        e("s_mov_b64 exec, -1")
    if typ == "Q":
        load_flags()
        e("s_mov_b64 exec, -1")
    e("s_barrier")
    if typ == "F":
        e(f"s_lshl_b32 s{sT}, s{sG}, 7")
        e(f"s_add_u32 s{sT}, s{sT}, s{sFl}")
        e(f"s_cmp_eq_u32 s{sS}, 0")
        e(f"s_cselect_b32 s{sT}, s{sT}, 0x7f000000")
        e(f"v_mov_b32 v{vT}, s{sNo}")
        e(f"v_mov_b32 v{vT+1}, s{sNo+1}")
        e(f"v_mov_b32 v{vT+2}, 0")
        e("s_mov_b64 exec, 1")
        e(f"buffer_store_dwordx2 v[{vT}:{vT+1}], v{vT+2}, s[{S_WS}:{S_WS+3}], s{sT} offen offset:1024 sc1")
        e("s_mov_b64 exec, -1")
        for k in range(PREB, PRE):
            e(f"s_mov_b32 s{sDst}, {k*SLOT}")
            dmaB(k)
        load_flags()
    e("s_waitcnt vmcnt(0)")
    del Qs[:]
    if typ == "Q":
        for k in range(PREB, PRE):
            e(f"s_mov_b32 s{sDst}, {k*SLOT}")
            dmaB(k)
    e("s_mov_b64 exec, 0xff")
    spin_check(vP + 2, sNo, load_flags)
    e("s_mov_b64 exec, -1")
    stamp(5)
    for k in range(PRE):
        e(f"s_mov_b32 s{sDst}, {k*SLOT}")
        dmaA(k)
    e(f"s_mov_b32 s{sDst}, {(PRE % 4)*SLOT}")
    srd(S_R, 38, 1280)
    e(f"v_mul_u32_u24 v{vT}, 26, v{vLane}")
    e(f"v_lshrrev_b32 v{vT}, 8, v{vT}")
    e(f"v_mul_u32_u24 v{vT+1}, 10, v{vT}")
    e(f"v_sub_u32 v{vT+1}, v{vLane}, v{vT+1}")
    e(f"v_mul_u32_u24 v{vT}, 2560, v{vT}")
    e(f"v_lshl_add_u32 v{vT}, v{vT+1}, 4, v{vT}")
    e(f"v_lshlrev_b32 v{vT+1}, 3, v{vLane}")
    e(f"v_add_u32 v{vT+1}, {B2L}, v{vT+1}")
    e(f"s_mov_b32 s{sMaskH}, -1")
    e(f"s_mov_b32 s{sMaskH+1}, 0xff")
    issued = PRE
    NUN = 14 if NRS else 5
    for T in range(NUN):
        wait_for(T)
        if NRS and T != 4:
            e("s_waitcnt lgkmcnt(0)")
        if T == 4:
            wait_for("X")
            e(f"v_lshlrev_b32 v{vT+4}, 16, v{vD}")
            e(f"v_and_b32 v{vT+5}, 0xffff0000, v{vD}")
            e(f"s_mov_b64 exec, s[{sMaskH}:{sMaskH+1}]")
            e(f"ds_write_b64 v{vT+1}, v[{vT+4}:{vT+5}]")
            e("s_mov_b64 exec, -1")
            e("s_waitcnt lgkmcnt(0)")
        e("s_barrier")
        puts = []
        while issued <= T + 3:
            if issued in RS:
                dmaA(issued)
                e(f"s_add_u32 s{sSrcB}, s{sSrcB}, 20480")
                e(f"s_mov_b32 s{sDst}, {((issued+1)%4)*SLOT}")
                puts.append(issued)
            else:
                stage(issued)
            issued += 1
        for k_ in puts:
            putB(k_)
        if T == 0:
            p2_rowcol(sT, sT + 1)
            e(f"s_mul_i32 s{sT+2}, s{sS}, 2560")
            e(f"s_add_u32 m0, s{sT+2}, {X2}")
            e(f"s_mov_b64 exec, s[{sMaskH}:{sMaskH+1}]")
            for i in range(4):
                e(f"s_add_u32 s{sT+4}, s{sT}, {i*(4*2560-640)}")
                e(f"buffer_load_dwordx4 v{vT}, s[{S_X}:{S_X+3}], s{sT+4} offen offset:{640*i} lds")
            e(f"buffer_load_dword v{vD}, v{vSa}, s[{S_R}:{S_R+3}], s{sT+1} offen")
            e("s_mov_b64 exec, -1")
            Qs.extend(["X"] * 5)
    if not NRS:
        e(f"s_mov_b32 s{sIt}, {NUN}")
        lab(f"L_ld{typ}_p2b")
        e(f"s_waitcnt vmcnt({2*N2})")
        e("s_barrier")
        stage()
        e(f"s_add_u32 s{sIt}, s{sIt}, 1")
        e(f"s_cmp_lt_u32 s{sIt}, 14")
        e(f"s_cbranch_scc1 L_ld{typ}_p2b")
    for T in range(14, 17):
        if NRS:
            wait_for(T)
            e("s_waitcnt lgkmcnt(0)")
        else:
            e(f"s_waitcnt vmcnt({(16-T)*N2})")
        e("s_barrier")
    e("s_mov_b64 exec, -1")
    if AMP:
        ai, ak = AMP
        stamp(13)
        e(f"s_sub_u32 s{sT}, s{sSt+ai}, s{sSt}")
        e(f"s_mul_i32 s{sT}, s{sT}, {ak}")
        lab(f"L_amp{typ}")
        e("s_memrealtime s[100:101]")
        e("s_waitcnt lgkmcnt(0)")
        e(f"s_sub_u32 s{sT+1}, s100, s{sSt+13}")
        e(f"s_cmp_lt_u32 s{sT+1}, s{sT}")
        e(f"s_cbranch_scc1 L_amp{typ}")
        e("s_endpgm")
    stamp_flush()
    e("s_endpgm")


def cg_of(sd, st):
    e(f"s_and_b32 s{sd}, s2, 1")
    e(f"s_lshl_b32 s{sd}, s{sd}, 2")
    e(f"s_bfe_u32 s{st}, s2, 0x20003")
    e(f"s_add_u32 s{sd}, s{sd}, s{st}")


def p2_rowcol(sd, sc):
    e(f"s_bfe_u32 s{sd}, s2, 0x10001")
    e(f"s_lshl_b32 s{sc}, s{sRB}, 1")
    e(f"s_add_u32 s{sd}, s{sd}, s{sc}")
    e(f"s_lshl_b32 s{sd}, s{sd}, 6")
    e(f"s_lshr_b32 s{sc}, s{sS}, 1")
    e(f"s_lshl_b32 s{sc}, s{sc}, 5")
    e(f"s_add_u32 s{sd}, s{sd}, s{sc}")
    e(f"s_and_b32 s{sc}, s{sS}, 1")
    e(f"s_add_u32 s{sd}, s{sd}, s{sc}")
    e(f"s_mul_i32 s{sd}, s{sd}, 1280")
    cg_of(sc, sd + 2)
    e(f"s_mul_i32 s{sc}, s{sc}, 160")
    e(f"s_add_u32 s{sd}, s{sd}, s{sc}")


def p2_compute():
    vAl, vBl, vAa, vBa = 10, 11, 12, 13
    vF, vS = 32, 44
    vFr = 56
    vPo, vFo = 8, 15
    ICHK = 9
    lab("L_p2")
    e(f"v_lshlrev_b32 v{vBl}, 4, v{vLane}")
    e(f"s_lshl_b32 s{sT}, s{sS}, 12")
    e(f"s_add_u32 s{sT}, s{sT}, 20480")
    e(f"v_add_u32 v{vAl}, s{sT}, v{vBl}")
    for r in range(24):
        e(f"v_mov_b32 v{vF+r}, 0")
    e(f"s_mov_b32 s{sCur}, 0")
    e(f"s_mov_b32 s{sIt}, 0")
    e(f"v_lshlrev_b32 v{vFo}, 7, v{vLane}")
    e(f"s_lshl_b32 s{sJ}, s{sRB}, 11")
    e(f"s_add_u32 s{sJ}, s{sJ}, {FL_OFF}")
    srd(S_DBG, 66, 256)
    stamp(9)
    e(f"s_cmp_ge_u32 s{sWave}, 4")
    e("s_cbranch_scc1 L_p2_1")
    for hf in range(2):
        nu = 3 if hf == 0 else 2
        u0 = 0 if hf == 0 else 3

        def fr(st, ks, i):
            return vFr + ((st * 2 + ks) * (1 + nu) + i) * 4

        def half(st, accprev, nomf=False):
            if st == 0:
                e(f"v_add_u32 v{vAa}, s{sCur}, v{vAl}")
                e(f"v_add_u32 v{vBa}, s{sCur}, v{vBl}")
            e("s_waitcnt lgkmcnt(0)")
            if st == 0:
                e("s_barrier")
            rds = []
            for ks in range(2):
                kk = 2 * st + ks
                rds.append(f"ds_read_b128 {vr(fr(st,ks,0),4)}, v{vAa} offset:{1024*kk}")
                for i in range(nu):
                    rds.append(f"ds_read_b128 {vr(fr(st,ks,1+i),4)}, v{vBa} offset:{(kk*5+u0+i)*1024}")
            ms = []
            if not nomf:
                for ks in range(2):
                    for i in range(nu):
                        a = accprev + 4 * i
                        ms.append(f"v_mfma_f32_16x16x32_bf16 {vr(a,4)}, {vr(fr(1-st,ks,1+i),4)}, {vr(fr(1-st,ks,0),4)}, {vr(a,4)}")
            ZONE[0] = "p2c"
            e(rds.pop(0)); e(rds.pop(0))
            for m in ms:
                e(m)
                if rds:
                    e(rds.pop(0))
            for x in rds:
                e(x)
            ZONE[0] = ""
            if st == 1:
                e(f"s_add_u32 s{sCur}, s{sCur}, {SLOT}")
                e(f"s_cmp_eq_u32 s{sCur}, {4*SLOT}")
                e(f"s_cselect_b32 s{sCur}, 0, s{sCur}")
                e(f"s_add_u32 s{sIt}, s{sIt}, 1")

        lab(f"L_p2_{hf}")
        half(0, vF, nomf=True)
        stamp(10)
        half(1, vF)
        e("s_waitcnt vmcnt(0)")
        lab(f"L_p2_{hf}_h")
        if hf == 0:
            def ld_o():
                e("s_mov_b64 exec, 0xff")
                e(f"buffer_load_dwordx2 v[{vPo}:{vPo+1}], v{vFo}, s[{S_WS}:{S_WS+3}], s{sJ} offen sc1")
            e(f"s_cmp_lg_u32 s{sWave}, 0")
            e(f"s_cbranch_scc1 L_p2_nv")
            e(f"s_cmp_lg_u32 s{sIt}, 2")
            e(f"s_cbranch_scc1 L_p2_n2")
            e(f"s_lshl_b32 s{sT}, s{sG}, 7")
            e(f"s_add_u32 s{sT}, s{sT}, s{sJ}")
            e("s_bitcmp1_b32 s2, 3")
            e(f"s_cselect_b32 s{sT}, 0x7f000000, s{sT}")
            e(f"v_mov_b32 v{vT}, s{sNo}")
            e(f"v_mov_b32 v{vT+1}, s{sNo+1}")
            e(f"v_mov_b32 v{vT+2}, 0")
            e("s_mov_b64 exec, 1")
            e(f"buffer_store_dwordx2 v[{vT}:{vT+1}], v{vT+2}, s[{S_WS}:{S_WS+3}], s{sT} offen sc1")
            e("s_mov_b64 exec, -1")
            lab("L_p2_n2")
            e(f"s_cmp_lg_u32 s{sIt}, {ICHK-2}")
            e(f"s_cbranch_scc1 L_p2_n3")
            ld_o()
            e("s_mov_b64 exec, -1")
            lab("L_p2_n3")
            e(f"s_cmp_lg_u32 s{sIt}, {ICHK}")
            e(f"s_cbranch_scc1 L_p2_nv")
            e("s_waitcnt vmcnt(0)")
            e("s_mov_b64 exec, 0xff")
            spin_check(vPo, sNo, ld_o)
            e(f"s_lshl_b32 s{sT}, s{sRB}, 2")
            e(f"s_and_b32 s{sT+1}, s2, 0x1b")
            e(f"s_cmp_eq_u32 s{sT+1}, 0")
            e(f"s_cselect_b32 s{sT}, s{sT}, 0x1000")
            e(f"v_mov_b32 v{vT}, 1")
            e(f"v_mov_b32 v{vT+1}, 0")
            e("s_mov_b64 exec, 1")
            e(f"buffer_store_dword v{vT}, v{vT+1}, s[{S_DBG}:{S_DBG+3}], s{sT} offen sc1")
            e("s_mov_b64 exec, -1")
            lab("L_p2_nv")
        half(0, vF)
        half(1, vF)
        e(f"s_cmp_lt_u32 s{sIt}, 12")
        e(f"s_cbranch_scc1 L_p2_{hf}_h")
        half(0, vF)
        nel = 4 * nu
        cb = 4 * u0
        vG, vSl = vT, vT + 1
        vBb, vXx, vE, vXf = 128, 160, 140, 128
        e(f"v_lshrrev_b32 v{vG}, 4, v{vLane}")
        e(f"v_and_b32 v{vSl}, 15, v{vLane}")
        e(f"v_mul_u32_u24 v{vT+2}, 80, v{vG}")
        e(f"v_add_u32 v{vT+2}, {B2L+4*cb}, v{vT+2}")
        e(f"v_mul_u32_u24 v{vT+3}, 160, v{vSl}")
        e(f"v_mul_u32_u24 v{vT+4}, 40, v{vG}")
        e(f"s_mul_i32 s{sT}, s{sS}, 2560")
        e(f"s_add_u32 s{sT}, s{sT}, {X2+2*cb}")
        e(f"v_add3_u32 v{vT+3}, v{vT+3}, v{vT+4}, s{sT}")
        e(f"v_mul_u32_u24 v{vT+5}, 2560, v{vSl}")
        e(f"v_add_u32 v{vT+5}, v{vT+5}, v{vT+4}")
        for i in range(nu):
            e(f"ds_read_b128 {vr(vBb+4*i,4)}, v{vT+2} offset:{16*i}")
        for i in range(nu):
            e(f"ds_read_b64 {vr(vXx+2*i,2)}, v{vT+3} offset:{8*i}")
        half(1, vS)
        e(f"s_mov_b32 s{sT+1}, {f32(-1.4426950408889634)}")
        for r in range(nel):
            e(f"v_add_f32 v{vF+r}, v{vF+r}, v{vBb+r}")
        for r in range(nel):
            e(f"v_mul_f32 v{vE+r}, s{sT+1}, v{vF+r}")
        for r in range(nel):
            e(f"v_exp_f32 v{vE+r}, v{vE+r}")
        for d in range(nel // 2):
            e(f"v_lshlrev_b32 v{vXf+2*d}, 16, v{vXx+d}")
            e(f"v_and_b32 v{vXf+2*d+1}, 0xffff0000, v{vXx+d}")
        for r in range(nel):
            e(f"v_add_f32 v{vE+r}, 1.0, v{vE+r}")
        for r in range(nel):
            e(f"v_rcp_f32 v{vE+r}, v{vE+r}")
        p2_rowcol(sT, sT + 1)
        srd(S_R, 64, 2048 * 1280)
        e(f"v_lshlrev_b32 v{vT+9}, 2, v{vLane}")
        if "f" in OPT:
            e(f"s_mul_i32 s{sT+2}, s{sS}, 2560")
            e(f"s_add_u32 s{sT+2}, s{sT+2}, {X2+1280*hf}")
            e(f"v_lshlrev_b32 v{vT+6}, 4, v{vLane}")
            e(f"v_mul_u32_u24 v{vT+7}, 26, v{vLane}")
            e(f"v_lshrrev_b32 v{vT+7}, 8, v{vT+7}")
            e(f"v_mul_u32_u24 v{vT+7}, {2560-160}, v{vT+7}")
            e(f"v_add3_u32 v{vT+7}, v{vT+7}, v{vT+6}, 0")
            e(f"v_add_u32 v{vT+7}, {8*2560*hf}, v{vT+7}")
            e(f"v_add_u32 v{vT+6}, s{sT+2}, v{vT+6}")
        if "o" in OPT:
            e(f"s_mov_b32 s{sT+2}, -1")
            e(f"s_mov_b32 s{sT+3}, 0xff")
            e(f"s_add_u32 s{sT+1}, s{sT}, {4*2560}")
            e(f"s_mov_b64 exec, s[{sT+2}:{sT+3}]")
            e(f"buffer_store_dwordx4 {vr(vXx,4)}, v{vT+7}, s[{S_R}:{S_R+3}], s{sT} offen{OUTPOL}")
            e(f"buffer_store_dwordx4 {vr(vXx,4)}, v{vT+7}, s[{S_R}:{S_R+3}], s{sT+1} offen{OUTPOL}")
            e("s_mov_b64 exec, -1")
        for r in range(nel):
            e(f"v_mul_f32 v{vF+r}, v{vF+r}, v{vE+r}")
        lab(f"L_p2_{hf}_o")
        if hf == 1:
            e(f"s_or_b32 s{sT+2}, s{sS}, s2")
            e(f"s_cmp_lg_u32 s{sT+2}, 0")
            e("s_cbranch_scc1 L_nonce_skip")

            def ld_dbg():
                e(f"buffer_load_dword v{vT+8}, v{vT+9}, s[{S_DBG}:{S_DBG+3}], 0 offen sc1")
            e("s_mov_b64 exec, 0xffff")
            e(f"s_cmp_lg_u32 s{sIt}, 13")
            e("s_cbranch_scc1 L_nonce_b")
            ld_dbg()
            lab("L_nonce_b")
            e(f"s_cmp_lg_u32 s{sIt}, 15")
            e("s_cbranch_scc1 L_nonce_c")
            e(f"s_mov_b32 s{sT+6}, 1")
            e("s_waitcnt vmcnt(0)")
            spin_check(vT + 8, sT + 6, ld_dbg, wide=False)
            e(f"v_mov_b32 v{vT+10}, s{sNo}")
            e(f"v_mov_b32 v{vT+11}, s{sNo+1}")
            e(f"s_mov_b32 s{sT+2}, {NONCE_OFF}")
            e("s_mov_b64 exec, 1")
            e(f"buffer_store_dwordx2 v[{vT+10}:{vT+11}], v{vT+9}, s[{S_WS}:{S_WS+3}], s{sT+2} offen sc1")
            lab("L_nonce_c")
            e("s_mov_b64 exec, -1")
            lab("L_nonce_skip")
        half(0, vS)
        half(1, vS)
        e(f"s_cmp_lt_u32 s{sIt}, 17")
        e(f"s_cbranch_scc1 L_p2_{hf}_o")
        e("s_waitcnt lgkmcnt(0)")
        for ks in range(2):
            for i in range(nu):
                a = vS + 4 * i
                e(f"v_mfma_f32_16x16x32_bf16 {vr(a,4)}, {vr(fr(1,ks,1+i),4)}, {vr(fr(1,ks,0),4)}, {vr(a,4)}")
        stamp(11)
        e("s_nop 7")
        for r in range(nel):
            e(f"v_fmac_f32 v{vXf+r}, v{vF+r}, v{vS+r}")
        for d in range(nel // 2):
            e(f"v_cvt_pk_bf16_f32 v{vE+d}, v{vXf+2*d}, v{vXf+2*d+1}")
        if "f" in OPT:
            for i in range(nu):
                e(f"ds_write_b64 v{vT+3}, {vr(vE+2*i,2)} offset:{8*i}")
            e(f"s_mov_b32 s{sT+2}, -1")
            e(f"s_mov_b32 s{sT+3}, 0xff")
            e(f"s_add_u32 s{sT+1}, s{sT}, {4*2560}")
            e("s_waitcnt vmcnt(0) lgkmcnt(0)" if "o" in OPT else "s_waitcnt lgkmcnt(0)")
            e("s_barrier")
            e(f"s_mov_b64 exec, s[{sT+2}:{sT+3}]")
            e(f"ds_read_b128 {vr(vE,4)}, v{vT+6}")
            e(f"ds_read_b128 {vr(vE+4,4)}, v{vT+6} offset:640")
            e("s_waitcnt lgkmcnt(1)")
            e(f"buffer_store_dwordx4 {vr(vE,4)}, v{vT+7}, s[{S_R}:{S_R+3}], s{sT} offen{OUTPOL}")
            e("s_waitcnt lgkmcnt(0)")
            e(f"buffer_store_dwordx4 {vr(vE+4,4)}, v{vT+7}, s[{S_R}:{S_R+3}], s{sT+1} offen{OUTPOL}")
            e("s_mov_b64 exec, -1")
        else:
            e(f"buffer_store_dwordx4 {vr(vE,4)}, v{vT+5}, s[{S_R}:{S_R+3}], s{sT} offen offset:{2*cb}")
            if hf == 0:
                e(f"buffer_store_dwordx2 {vr(vE+4,2)}, v{vT+5}, s[{S_R}:{S_R+3}], s{sT} offen offset:16")
        stamp(12)
        stamp_flush()
        e("s_endpgm")


def wave_sum(v, t):
    for ctl in ("quad_perm:[1,0,3,2]", "quad_perm:[2,3,0,1]", "row_half_mirror", "row_mirror"):
        e("s_nop 1")
        e(f"v_add_f32_dpp v{v}, v{v}, v{v} {ctl} row_mask:0xf bank_mask:0xf")
    for sw in ("v_permlane16_swap_b32", "v_permlane32_swap_b32"):
        e(f"v_mov_b32 v{t}, v{v}")
        e("s_nop 1")
        e(f"{sw} v{v}, v{t}")
        e("s_nop 0")
        e(f"v_add_f32 v{v}, v{v}, v{t}")


def wave_sum2(a, b, ta, tb):
    for ctl in ("quad_perm:[1,0,3,2]", "quad_perm:[2,3,0,1]", "row_half_mirror", "row_mirror"):
        e("s_nop 0")
        e(f"v_add_f32_dpp v{a}, v{a}, v{a} {ctl} row_mask:0xf bank_mask:0xf")
        e(f"v_add_f32_dpp v{b}, v{b}, v{b} {ctl} row_mask:0xf bank_mask:0xf")
    for sw in ("v_permlane16_swap_b32", "v_permlane32_swap_b32"):
        e(f"v_mov_b32 v{ta}, v{a}")
        e(f"v_mov_b32 v{tb}, v{b}")
        e("s_nop 1")
        e(f"{sw} v{a}, v{ta}")
        e(f"{sw} v{b}, v{tb}")
        e("s_nop 0")
        e(f"v_add_f32 v{a}, v{a}, v{ta}")
        e(f"v_add_f32 v{b}, v{b}, v{tb}")


def w_touch(typ):
    if not TOUCH2 or "e" in OPT:
        return
    RP = 3840 if typ == "Q" else 3072
    nl = 50 if typ == "Q" else 60
    e(f"s_cmp_ge_u32 s{sWave}, {3 if typ == 'Q' else 2}")
    e(f"s_cbranch_scc1 L_notouch{typ}")
    e(f"v_lshlrev_b32 v{vXF+10}, 7, v{vLane}")
    srd(S_R, 6 if typ == "Q" else 32, 640 * RP)
    e(f"s_lshl_b32 s{sT}, s{sRB}, 3")
    e(f"s_add_u32 s{sT}, s{sT}, s{sG}")
    e(f"s_cmp_lt_u32 s{sT}, {TSKIP}")
    e(f"s_cbranch_scc1 L_notouch{typ}")
    e(f"s_mul_i32 s{sT}, s{sT}, {5*RP}")
    e(f"s_mul_i32 s{sT+1}, s{sWave}, {nl*128}")
    e(f"s_add_u32 s{sT}, s{sT}, s{sT+1}")
    e(f"s_mov_b32 s{sT+2}, -1")
    e(f"s_mov_b32 s{sT+3}, {hex((1 << (nl - 32)) - 1)}")
    e(f"s_mov_b64 exec, s[{sT+2}:{sT+3}]")
    e(f"buffer_load_dword v0, v{vXF+10}, s[{S_R}:{S_R+3}], s{sT} offen")
    e("s_mov_b64 exec, -1")
    lab(f"L_notouch{typ}")


def w_touch_early(typ):
    RP = 3840 if typ == "Q" else 3072
    nl = 50 if typ == "Q" else 60
    e(f"v_lshlrev_b32 v{vXF+10}, 7, v{vLane}")
    srd(S_R, 6 if typ == "Q" else 32, 640 * RP)
    e(f"s_lshl_b32 s{sT}, s{sRB}, 3")
    e(f"s_add_u32 s{sT+2}, s{sT}, s{sG}")
    e(f"s_mul_i32 s{sT}, s{sT+2}, {5*RP}")
    e(f"s_mul_i32 s{sT+1}, s{sWave}, {nl*128}")
    e(f"s_add_u32 s{sT}, s{sT}, s{sT+1}")
    e(f"s_cmp_lt_u32 s{sT+2}, {TSKIP}")
    e(f"s_cselect_b32 s{sT}, 0x7f000000, s{sT}")
    e(f"s_cmp_ge_u32 s{sWave}, {3 if typ == 'Q' else 2}")
    e(f"s_cselect_b32 s{sT}, 0x7f000000, s{sT}")
    e(f"s_mov_b32 s{sT+2}, -1")
    e(f"s_mov_b32 s{sT+3}, {hex((1 << (nl - 32)) - 1)}")
    e(f"s_mov_b64 exec, s[{sT+2}:{sT+3}]")
    e(f"buffer_load_dword v0, v{vXF+10}, s[{S_R}:{S_R+3}], s{sT} offen")
    e("s_mov_b64 exec, -1")


def row_stats(src=vXF, goff=0, wait=True, O=vXF + 28):
    U = [vXF + 12 + i for i in range(10)]
    M = vXF + 24
    if wait:
        e("s_waitcnt vmcnt(1)" if "e" in OPT else "s_waitcnt vmcnt(0)")
    for d in range(5):
        e(f"v_lshlrev_b32 v{U[2*d]}, 16, v{src+d}")
        e(f"v_and_b32 v{U[2*d+1]}, 0xffff0000, v{src+d}")
    e(f"v_add_f32 v{M}, v{U[0]}, v{U[1]}")
    e(f"v_add_f32 v{M+1}, v{U[2]}, v{U[3]}")
    for k in range(4, 10, 2):
        e(f"v_add_f32 v{M}, v{M}, v{U[k]}")
        e(f"v_add_f32 v{M+1}, v{M+1}, v{U[k+1]}")
    e(f"v_add_f32 v{M}, v{M}, v{M+1}")
    wave_sum(M, M + 1)
    e(f"v_mul_f32 v{O}, {f32(-1.0/640)}, v{M}")
    for k in range(10):
        e(f"v_add_f32 v{U[k]}, v{U[k]}, v{O}")
    e(f"v_mul_f32 v{M}, v{U[0]}, v{U[0]}")
    e(f"v_mul_f32 v{M+1}, v{U[1]}, v{U[1]}")
    for k in range(2, 10, 2):
        e(f"v_fmac_f32 v{M}, v{U[k]}, v{U[k]}")
        e(f"v_fmac_f32 v{M+1}, v{U[k+1]}, v{U[k+1]}")
    e(f"v_add_f32 v{M}, v{M}, v{M+1}")
    wave_sum(M, M + 1)
    e(f"v_mov_b32 v{M+1}, {f32(1e-5)}")
    e(f"v_fmac_f32 v{M+1}, {f32(1.0/640)}, v{M}")
    e(f"v_rsq_f32 v{O+1}, v{M+1}")
    e(f"v_mov_b32 v{O+2}, s{sNo}")
    e(f"v_mov_b32 v{O+3}, s{sNo+1}")
    e(f"v_mov_b32 v{M}, 0")
    e("s_mov_b64 exec, 1")
    e(f"buffer_store_dwordx4 {vr(O,4)}, v{M}, s[{S_WS}:{S_WS+3}], s99 offen offset:{goff} sc1")
    e("s_mov_b64 exec, -1")


def cfg_lookup(cfg):
    def tab(f):
        return hex(sum((f(c) & 15) << (4 * i) for i, c in enumerate(cfg)))
    e(f"s_lshl_b32 s{sT}, s{sWave}, 2")
    for dst, f in ((sRh, lambda c: c[0]), (sU0, lambda c: c[1]), (sH0, lambda c: c[1] + c[3]), (sNH, lambda c: c[4]), (sNU, lambda c: c[2])):
        e(f"s_lshr_b32 s{dst}, {tab(f)}, s{sT}")
        e(f"s_and_b32 s{dst}, s{dst}, 15")


def gen():
    K = NAME + "_kernel"
    L.append(f".globl {K}")
    L.append(".p2align 8")
    L.append(f".type {K},@function")
    lab(K)
    e("s_cmp_ge_u32 s2, 256")
    e("s_cbranch_scc1 L_end")
    stamp(0)
    stamp(14, real=True)
    e("s_load_dwordx4 s[4:7], s[0:1], 0")
    e("s_load_dwordx8 s[32:39], s[0:1], 32")
    e("s_load_dwordx2 s[28:29], s[0:1], 16")
    e("s_load_dwordx4 s[64:67], s[0:1], 64")
    e("s_load_dwordx2 s[68:69], s[0:1], 80")
    e(f"v_lshrrev_b32 v{vT}, 6, v0")
    e(f"v_and_b32 v{vLane}, 63, v0")
    e(f"v_readfirstlane_b32 s{sWave}, v{vT}")
    e(f"s_and_b32 s{sT}, s2, 3")
    e(f"s_lshl_b32 s{sT}, s{sT}, 1")
    e(f"s_bfe_u32 s{sG}, s2, 0x10004")
    e(f"s_add_u32 s{sG}, s{sG}, s{sT}")
    e(f"s_bfe_u32 s{sT}, s2, 0x10002")
    e(f"s_lshl_b32 s{sT}, s{sT}, 3")
    e(f"s_lshr_b32 s{sRB}, s2, 5")
    e(f"s_add_u32 s{sRB}, s{sRB}, s{sT}")
    e(f"s_and_b32 s{sS}, s{sWave}, 3")
    e(f"v_lshrrev_b32 v{vT}, 4, v{vLane}")
    e(f"s_cmp_lt_u32 s{sWave}, 8")
    e("s_cbranch_scc1 L_compute")

    e(f"v_and_b32 v{vT+1}, 7, v{vLane}")
    e(f"v_xor_b32 v{vT+5}, v{vT+1}, v{vT}")
    e(f"v_lshlrev_b32 v{vT+5}, 4, v{vT+5}")
    e(f"v_lshrrev_b32 v{vT+2}, 3, v{vLane}")
    e(f"v_mul_u32_u24 v{vT+2}, 2560, v{vT+2}")
    e(f"v_add_u32 v{vT+3}, v{vT+2}, v{vT+5}")
    e(f"v_xor_b32 v{vT+5}, 64, v{vT+5}")
    e(f"v_add_u32 v{vT+4}, v{vT+2}, v{vT+5}")
    e(f"s_lshl_b32 s{sT}, s{sRB}, 7")
    e(f"s_lshl_b32 s{sT+1}, s{sS}, 5")
    e(f"s_add_u32 s{sT+1}, s{sT+1}, s{sT}")
    e(f"s_mul_i32 s{sT+1}, s{sT+1}, 1280")
    e(f"v_add_u32 v{vX0}, s{sT+1}, v{vT+3}")
    e(f"s_add_u32 s{sT+1}, s{sT+1}, {16*1280-1024}")
    e(f"v_add_u32 v{vX1}, s{sT+1}, v{vT+4}")
    e(f"s_mov_b32 s{sKW}, 0")
    e(f"s_mov_b32 s{sKX}, 0")
    e("s_bitcmp1_b32 s2, 3")
    e("s_cbranch_scc1 L_ldF")
    e(f"s_lshl_b32 s{sT+1}, s{sS}, 1")
    e(f"v_add_u32 v{vT+3}, s{sT+1}, v{vT}")
    e(f"v_xor_b32 v{vT+3}, v{vT+3}, v{vT+1}")
    e(f"v_and_b32 v{vT+3}, 7, v{vT+3}")
    e(f"v_lshl_add_u32 v{vT+3}, v{vT+3}, 4, v{vT+2}")
    e(f"s_and_b32 s{sT+1}, s{sS}, 1")
    e(f"s_lshl_b32 s{sT+1}, s{sT+1}, 3")
    e(f"s_lshr_b32 s{sT+2}, s{sS}, 1")
    e(f"s_add_u32 s{sT+1}, s{sT+1}, s{sT+2}")
    e(f"s_add_u32 s{sT+1}, s{sT+1}, s{sT}")
    e(f"s_sub_u32 s{sT+1}, s{sT+1}, 16")
    e(f"s_mul_i32 s{sT+1}, s{sT+1}, 1280")
    e(f"v_add_u32 v{vH0}, s{sT+1}, v{vT+3}")
    e(f"s_lshl_b32 s{sHoff}, s{sS}, 9")
    e(f"s_add_u32 s{sHoff}, s{sHoff}, {Q_XB}")
    e(f"s_cmp_eq_u32 s{sS}, 0")
    e(f"s_cselect_b32 s{sMaskH}, 0xffffff00, -1")
    e(f"s_mov_b32 s{sMaskH+1}, 0")
    e(f"v_cmp_le_u32 vcc, 30, v{vLane}")
    e(f"v_mov_b32 v{vT+3}, 0")
    e(f"v_mov_b32 v{vT+4}, 30")
    e(f"v_cndmask_b32 v{vT+3}, v{vT+3}, v{vT+4}, vcc")
    e(f"v_sub_u32 v{vT+4}, v{vLane}, v{vT+3}")
    e(f"v_mul_u32_u24 v{vT+3}, 128, v{vT+3}")
    e(f"v_mul_u32_u24 v{vT+5}, 26, v{vT+4}")
    e(f"v_lshrrev_b32 v{vT+5}, 8, v{vT+5}")
    e(f"v_mul_u32_u24 v{vT+6}, 10, v{vT+5}")
    e(f"v_sub_u32 v{vT+4}, v{vT+4}, v{vT+6}")
    e(f"v_lshl_add_u32 v{vT+3}, v{vT+4}, 4, v{vT+3}")
    e(f"v_add_u32 v{vT+5}, 1, v{vT+5}")
    e(f"v_cmp_le_u32 vcc, 3, v{vT+5}")
    e(f"v_mov_b32 v{vT+6}, 0")
    e(f"s_mul_i32 s{sT}, s{sS}, {8*3840}")
    e(f"v_cndmask_b32 v{vT+5}, v{vT+5}, v{vT+6}, vcc")
    e(f"v_mul_u32_u24 v{vT+5}, 1280, v{vT+5}")
    e(f"v_add_u32 v{vT+3}, v{vT+3}, v{vT+5}")
    e(f"s_mul_i32 s{sT+1}, s{sG}, 160")
    e(f"s_add_u32 s{sT}, s{sT}, s{sT+1}")
    e(f"v_add_u32 v{vWd}, s{sT}, v{vT+3}")
    for t in range(1, 4):
        e(f"v_add_u32 v{vWd+t}, {6720*t}, v{vWd}")
    e(f"s_mul_i32 s{sWoff}, s{sS}, {Q_GP}")
    e(f"s_lshl_b32 s{sXoff}, s{sS}, 12")
    e(f"s_add_u32 s{sXoff}, s{sXoff}, {Q_XB+2048}")
    e(f"s_mov_b32 s{sMaskW}, -1")
    e(f"s_mov_b32 s{sMaskW+1}, 0x0fffffff")
    e("s_waitcnt lgkmcnt(0)")
    srd(S_X, 4, 2048 * 1280)
    srd(S_W, 6, 640 * 3840)
    loader("Q")
    lab("L_ldF")
    e(f"v_cmp_le_u32 vcc, 26, v{vLane}")
    e(f"v_mov_b32 v{vT+3}, 0")
    e(f"v_mov_b32 v{vT+4}, {3072-26*16}")
    e(f"v_cndmask_b32 v{vT+3}, v{vT+3}, v{vT+4}, vcc")
    e(f"v_lshl_add_u32 v{vT+3}, v{vLane}, 4, v{vT+3}")
    e(f"s_mul_i32 s{sT}, s{sS}, {8*3072}")
    e(f"s_mul_i32 s{sT+1}, s{sG}, 384")
    e(f"s_add_u32 s{sT}, s{sT}, s{sT+1}")
    e(f"v_add_u32 v{vWd}, s{sT}, v{vT+3}")
    for t in range(1, 4):
        e(f"v_add_u32 v{vWd+t}, {5312*t}, v{vWd}")
    e(f"s_mul_i32 s{sWoff}, s{sS}, {F_GP}")
    e(f"s_lshl_b32 s{sXoff}, s{sS}, 12")
    e(f"s_add_u32 s{sXoff}, s{sXoff}, {F_XB}")
    e(f"s_mov_b32 s{sMaskW}, 0xfcffffff")
    e(f"s_mov_b32 s{sMaskW+1}, 0x0003ffff")
    e("s_waitcnt lgkmcnt(0)")
    srd(S_X, 4, 2048 * 1280)
    srd(S_W, 32, 640 * 3072)
    loader("F")

    lab("L_compute")
    if CODEPF:
        e(f"s_getpc_b64 s[{sT}:{sT+1}]")
        lab("L_pc")
        e(f"s_sub_u32 s{sT}, s{sT}, L_pc-{K}")
        e(f"s_subb_u32 s{sT+1}, s{sT+1}, 0")
        e(f"v_lshlrev_b32 v{vT+1}, 7, v0")
        e(f"v_min_u32 v{vT+1}, L_end-{K}, v{vT+1}")
        e(f"s_bfe_u32 s{sT+2}, s2, 0x20004")
        e(f"s_cmp_lg_u32 s{sT+2}, 0")
        e("s_cbranch_scc1 L_nopf")
        e(f"s_cmp_gt_u32 s{sWave}, 4")
        e("s_cbranch_scc1 L_nopf")
        e(f"global_load_dword v0, v{vT+1}, s[{sT}:{sT+1}]")
        lab("L_nopf")
    e(f"v_and_b32 v{vT+1}, 15, v{vLane}")
    e(f"v_lshrrev_b32 v{vT+2}, 1, v{vT+1}")
    e(f"v_xor_b32 v{vT+2}, v{vT+2}, v{vT}")
    e(f"v_lshlrev_b32 v{vT+2}, 4, v{vT+2}")
    e(f"v_lshl_add_u32 v{vXl0}, v{vT+1}, 7, v{vT+2}")
    e(f"v_xor_b32 v{vXl1}, 64, v{vXl0}")
    e(f"v_mov_b32 v{vXa}, v{vXl0}")
    e(f"v_bfe_u32 v{vT+1}, v{vLane}, 2, 2")
    e(f"v_and_b32 v{vT+2}, 3, v{vLane}")
    e(f"s_mov_b32 s{sIt}, 0")
    e(f"s_lshl_b32 s{sT}, s{sRB}, 4")
    e(f"s_add_u32 s{sT}, s{sT}, s{sG}")
    e(f"s_and_b32 s{sT+1}, s2, 8")
    e(f"s_add_u32 s{sT}, s{sT}, s{sT+1}")
    e(f"s_lshl_b32 s{sT}, s{sT}, 3")
    e(f"s_add_u32 s{sT}, s{sT}, s{sWave}")
    e(f"s_lshl_b32 s99, s{sT}, 4")
    e(f"s_add_u32 s99, s99, {ST_OFF}")
    e(f"s_mul_i32 s{sT}, s{sT}, 1280")
    e(f"v_lshlrev_b32 v{vXF+8}, 4, v{vLane}")
    e(f"v_lshlrev_b32 v{vXF+9}, 2, v{vLane}")
    e("s_waitcnt lgkmcnt(0)")
    stamp(1)
    srd(S_X, 4, 2048 * 1280)
    if "l" not in OPT:
        e(f"buffer_load_dwordx4 {vr(vXF,4)}, v{vXF+8}, s[{S_X}:{S_X+3}], s{sT} offen")
        e(f"buffer_load_dword v{vXF+4}, v{vXF+9}, s[{S_X}:{S_X+3}], s{sT} offen offset:1024")
    nonce_load()
    srd(S_WS, 68, WS_USED)
    if "t" in OPT:
        e(f"s_cmp_lg_u32 s{sWave}, 6")
        e("s_cbranch_scc1 L_notlb")
        srd(S_R, 64, 2048 * 1280)
        e(f"v_lshlrev_b32 v{vXF+10}, 20, v{vLane}")
        e("s_mov_b64 exec, 0xfff")
        e(f"buffer_load_dword v0, v{vXF+10}, s[{S_WS}:{S_WS+3}], 0 offen sc1")
        e("s_mov_b64 exec, 7")
        e(f"buffer_load_dword v0, v{vXF+10}, s[{S_R}:{S_R+3}], 0 offen sc1")
        e("s_mov_b64 exec, -1")
        lab("L_notlb")
    e("s_bitcmp1_b32 s2, 3")
    e("s_cbranch_scc1 L_F")
    if "e" in OPT:
        w_touch_early("Q")
    e(f"v_mul_u32_u24 v{vWl}, {Q_GP}, v{vT}")
    e(f"v_mul_u32_u24 v{vT+3}, {Q_P}, v{vT+1}")
    e(f"v_add_u32 v{vWl}, v{vWl}, v{vT+3}")
    e(f"v_mul_u32_u24 v{vT+3}, 40, v{vT+2}")
    e(f"v_add_u32 v{vWl}, v{vWl}, v{vT+3}")
    e(f"v_mov_b32 v{vWa}, v{vWl}")
    e(f"v_and_b32 v{vT+3}, 31, v{vLane}")
    e(f"v_lshlrev_b32 v{vT+3}, 2, v{vT+3}")
    e(f"v_mov_b32 v{vT+4}, 0x3f803f80")
    e(f"ds_write_b32 v{vT+3}, v{vT+4} offset:{Q_XB}")
    e(f"v_add_u32 v{vT+3}, {Q_STAGE}, v{vT+3}")
    e(f"ds_write_b32 v{vT+3}, v{vT+4} offset:{Q_XB}")
    e(f"v_add_u32 v{vT+3}, {Q_STAGE}, v{vT+3}")
    e(f"ds_write_b32 v{vT+3}, v{vT+4} offset:{Q_XB}")
    for r in range(vACC, vHACC + 16):
        e(f"v_mov_b32 v{r}, 0")
    e(f"s_mov_b32 s{sNxt}, {Q_STAGE}")
    cfg_lookup(QCFG)
    tG, tS, tR, tC, t0, t1 = 112, 113, 114, 115, 116, 117
    e(f"v_mov_b32 v{tG}, v{vT}")
    e(f"v_mov_b32 v{tR}, v{vT+1}")
    e(f"v_mov_b32 v{tC}, v{vT+2}")
    e(f"v_and_b32 v{tS}, 15, v{vLane}")
    e(f"v_lshlrev_b32 v{t0}, 4, v{tG}")
    e(f"s_lshl_b32 s{sT}, s{sH0}, 6")
    e(f"s_add_u32 s{sT}, s{sT}, {Q_MISC+QM_CS}")
    e(f"v_add_u32 v{qCSh}, s{sT}, v{t0}")
    e(f"s_lshl_b32 s{sT}, s{sU0}, 6")
    e(f"s_add_u32 s{sT}, s{sT}, {Q_MISC+QM_CS}")
    e(f"v_add_u32 v{qCSu}, s{sT}, v{t0}")
    e(f"v_lshlrev_b32 v{qSa}, 3, v{tS}")
    e(f"v_add_u32 v{qSa}, {Q_MISC+QM_ST}, v{qSa}")
    e(f"s_lshl_b32 s{sT}, s{sRh}, 9")
    e(f"v_add_u32 v{qSm}, s{sT}, v{qSa}")
    e(f"v_mul_u32_u24 v{t0}, 640, v{tG}")
    e(f"v_lshl_add_u32 v{t0}, v{tS}, 3, v{t0}")
    e(f"v_lshrrev_b32 v{qPh}, 3, v{tS}")
    e(f"v_mul_u32_u24 v{qPh}, {2560-64}, v{qPh}")
    e(f"s_mul_i32 s{sT}, s{sH0}, {PLANE}")
    e(f"s_add_u32 s{sT}, s{sT}, {Q_PL}")
    e(f"v_add3_u32 v{qPh}, v{qPh}, v{t0}, s{sT}")
    e(f"s_and_b32 s{sT}, s{sWave}, 1")
    e(f"s_mul_i32 s{sT+2}, s{sT}, 320")
    e(f"s_mul_i32 s{sT}, s{sT}, 2560")
    e(f"s_lshr_b32 s{sT+1}, s{sWave}, 1")
    e(f"s_lshl_b32 s{sT+3}, s{sT+1}, 6")
    e(f"s_add_u32 s{sT+2}, s{sT+2}, s{sT+3}")
    e(f"s_add_u32 s{sT+2}, s{sT+2}, {Q_MISC+QM_RK}")
    e(f"s_lshl_b32 s{sT+1}, s{sT+1}, 7")
    e(f"s_add_u32 s{sT}, s{sT}, s{sT+1}")
    e(f"s_add_u32 s{sT}, s{sT}, {Q_PL}")
    e(f"v_add_u32 v{qAt}, s{sT}, v{t0}")
    e(f"v_add_u32 v{qAq}, {10*PLANE+64}, v{qAt}")
    e(f"v_lshl_add_u32 v{t1}, v{tC}, 2, v{tR}")
    e(f"v_mul_u32_u24 v{qAv}, 640, v{tG}")
    e(f"v_lshl_add_u32 v{qAv}, v{t1}, 3, v{qAv}")
    e(f"v_add_u32 v{qAv}, s{sT}, v{qAv}")
    e(f"v_lshlrev_b32 v{qRk}, 4, v{tR}")
    e(f"v_add_u32 v{qRk}, s{sT+2}, v{qRk}")
    e(f"v_lshl_add_u32 v{qRq}, v{tC}, 2, v{qRk}")
    e(f"s_mul_i32 s{sT}, s{sU0}, {PLANE}")
    e(f"s_lshl_b32 s{sT+1}, s{sRh}, 8")
    e(f"s_add_u32 s{sT}, s{sT}, s{sT+1}")
    e(f"s_add_u32 s{sT}, s{sT}, {Q_PL+64}")
    e(f"v_add_u32 v{qPw}, s{sT}, v{t0}")
    e(f"v_lshlrev_b32 v{qOa}, 4, v{vLane}")
    e(f"v_lshrrev_b32 v{qOb}, 5, v{vLane}")
    e(f"v_lshlrev_b32 v{qOb}, 8, v{qOb}")
    e(f"v_lshl_add_u32 v{qOb}, v{tS}, 4, v{qOb}")
    e(f"v_bfe_u32 v{t1}, v{vLane}, 4, 1")
    e(f"v_lshl_add_u32 v{qOb}, v{t1}, 3, v{qOb}")
    BIG = 2.0 ** 100
    lo, hi = t0, t1
    e(f"v_lshlrev_b32 v{lo}, 2, v{tR}")
    e(f"s_lshr_b32 s{sT}, s{sWave}, 1")
    e(f"s_or_b32 s{sT}, s{sRB}, s{sT}")
    e(f"s_cmp_eq_u32 s{sT}, 0")
    e(f"s_cselect_b32 s{sT}, 8, 0")
    e(f"v_sub_u32 v{lo}, s{sT}, v{lo}")
    e(f"v_add_u32 v{hi}, 1, v{tC}")
    e(f"v_max_i32 v{lo}, v{lo}, v{hi}")
    e(f"v_cvt_f32_i32 v{lo}, v{lo}")
    e(f"v_cvt_f32_i32 v{hi}, v{tC}")
    e(f"v_mov_b32 v{tG}, {f32(-BIG)}")
    e(f"v_mov_b32 v{tS}, {f32(BIG)}")
    for pp in range(1, 8):
        e(f"v_fmaak_f32 v{qMk(pp)}, v{lo}, v{tG}, {f32(pp*BIG)}")
        e(f"v_min_f32 v{qMk(pp)}, 0, v{qMk(pp)}")
    for pp in range(9, 12):
        e(f"v_fmaak_f32 v{qMk(pp)}, v{hi}, v{tS}, {f32(-(pp-8)*BIG)}")
        e(f"v_min_f32 v{qMk(pp)}, 0, v{qMk(pp)}")
    e(f"s_lshl_b32 s{sT}, s{sRB}, 3")
    e(f"s_add_u32 s{sT}, s{sT}, s{sWave}")
    e(f"s_mul_i32 s{sT}, s{sT}, 68")
    e(f"s_lshr_b32 s{sT+1}, s{sG}, 1")
    e(f"s_mul_i32 s{sT+1}, s{sT+1}, 5")
    e(f"s_add_u32 s{sT}, s{sT}, s{sT+1}")
    e(f"s_add_u32 s{sT}, s{sT}, 48")
    e(f"s_and_b32 s{sT+1}, s{sG}, 1")
    e(f"s_lshl_b32 s{sJ}, s{sT+1}, 1")
    e(f"s_add_u32 s{sJ}, s{sJ}, s{sT}")
    e(f"s_lshl_b32 s{sJ}, s{sJ}, 10")
    e(f"s_add_u32 s{sT}, s{sT}, 4")
    e(f"s_lshl_b32 s{sT}, s{sT}, 10")
    e(f"s_lshl_b32 s{sT+1}, s{sT+1}, 9")
    e(f"s_add_u32 s{sJ+1}, s{sT}, s{sT+1}")
    e(f"s_mov_b32 s{sMaskW}, 0x00010001")
    e(f"s_mov_b32 s{sMaskW+1}, 0x00010001")
    e("s_waitcnt lgkmcnt(0)")
    nonce_fix()
    if "l" not in OPT:
        row_stats()
        w_touch("Q")
    for w in range(7):
        e(f"s_cmp_eq_u32 s{sWave}, {w}")
        e(f"s_cbranch_scc1 L_p1_Q{w}")
    e("s_branch L_p1_Q7")

    lab("L_F")
    if "e" in OPT:
        w_touch_early("F")
    e(f"v_mul_u32_u24 v{vWl}, {F_GP}, v{vT}")
    e(f"v_mul_u32_u24 v{vT+3}, {F_P}, v{vT+1}")
    e(f"v_add_u32 v{vWl}, v{vWl}, v{vT+3}")
    e(f"v_lshl_add_u32 v{vWl}, v{vT+2}, 3, v{vWl}")
    e(f"v_mov_b32 v{vWa}, v{vWl}")
    srd(S_X, 4, 2048 * 1280)
    fL16, fTr, fCSu, fCSh, fSm = 2, 3, 4, 5, 6
    e(f"v_lshlrev_b32 v{fL16}, 4, v{vLane}")
    cfg_lookup(FCFG)
    e(f"v_lshlrev_b32 v{vT+3}, 4, v{vT}")
    e(f"s_lshl_b32 s{sT}, s{sH0}, 6")
    e(f"s_add_u32 s{sT}, s{sT}, {F_MISC+FM_CS}")
    e(f"v_add_u32 v{fCSh}, s{sT}, v{vT+3}")
    e(f"s_lshl_b32 s{sT}, s{sU0}, 6")
    e(f"s_add_u32 s{sT}, s{sT}, {F_MISC+FM_CS}")
    e(f"v_add_u32 v{fCSu}, s{sT}, v{vT+3}")
    e(f"v_and_b32 v{fSm}, 15, v{vLane}")
    e(f"v_lshlrev_b32 v{fSm}, 3, v{fSm}")
    e(f"s_lshl_b32 s{sT}, s{sRh}, 9")
    e(f"s_add_u32 s{sT}, s{sT}, {F_MISC+FM_ST}")
    e(f"v_add_u32 v{fSm}, s{sT}, v{fSm}")
    e(f"s_mov_b32 s{sMaskW}, 0x00010001")
    e(f"s_mov_b32 s{sMaskW+1}, 0x00010001")
    sRow, sF = sKW, sKX
    e(f"s_lshl_b32 s{sRow}, s{sRB}, 7")
    e(f"s_bfe_u32 s{sT}, s2, 0x10004")
    e(f"s_lshl_b32 s{sT}, s{sT}, 6")
    e(f"s_add_u32 s{sRow}, s{sRow}, s{sT}")
    e(f"s_lshr_b32 s{sF}, s2, 4")
    e(f"s_cmp_ge_u32 s{sWave}, 4")
    e("s_cbranch_scc1 L_F_helper")
    if TOUCH:
        e(f"v_mul_u32_u24 v{vT+3}, 26, v{vLane}")
        e(f"v_lshrrev_b32 v{vT+3}, 8, v{vT+3}")
        e(f"v_mul_u32_u24 v{vT+4}, 10, v{vT+3}")
        e(f"v_sub_u32 v{vT+4}, v{vLane}, v{vT+4}")
        e(f"v_lshlrev_b32 v{vT+4}, 7, v{vT+4}")
        e(f"s_and_b32 s{sT}, s2, 3")
        e(f"s_lshl_b32 s{sT}, s{sT}, 4")
        e(f"s_mul_i32 s{sT+4}, s{sRow}, 1280")
        e(f"s_mov_b32 s{sT+6}, -1")
        e(f"s_mov_b32 s{sT+7}, 0x0fffffff")
        for i in range(2):
            e(f"s_mul_i32 s{sT+2}, s{sWave}, 12")
            e(f"s_add_u32 s{sT+2}, s{sT+2}, {6*i}")
            e(f"v_add_u32 v{vT+5}, s{sT+2}, v{vT+3}")
            e(f"v_cmp_le_u32 vcc, s{sT}, v{vT+5}")
            e(f"v_add_u32 v{vT+6}, 16, v{vT+5}")
            e("s_nop 0")
            e(f"v_cndmask_b32 v{vT+5}, v{vT+5}, v{vT+6}, vcc")
            e(f"v_mul_u32_u24 v{vT+5}, 1280, v{vT+5}")
            e(f"v_add_u32 v{vT+7+i}, v{vT+5}, v{vT+4}")
        e(f"v_mul_u32_u24 v{vT+3}, 57, v{vLane}")
        e(f"v_lshrrev_b32 v{vT+3}, 9, v{vT+3}")
        e(f"v_mul_u32_u24 v{vT+4}, 9, v{vT+3}")
        e(f"v_sub_u32 v{vT+4}, v{vLane}, v{vT+4}")
        e(f"v_mul_u32_u24 v{vT+5}, 86, v{vT+4}")
        e(f"v_lshrrev_b32 v{vT+5}, 8, v{vT+5}")
        e(f"v_mul_u32_u24 v{vT+3}, 3840, v{vT+3}")
        e(f"v_lshl_add_u32 v{vT+3}, v{vT+4}, 7, v{vT+3}")
        e(f"v_mul_u32_u24 v{vT+5}, {1280-384}, v{vT+5}")
        e(f"v_add_u32 v{vT+3}, v{vT+3}, v{vT+5}")
        e(f"v_mul_u32_u24 v{vT+4}, 43, v{vLane}")
        e(f"v_lshrrev_b32 v{vT+4}, 8, v{vT+4}")
        e(f"v_mul_u32_u24 v{vT+4}, {3072-768}, v{vT+4}")
        e(f"v_lshl_add_u32 v{vT+4}, v{vLane}, 7, v{vT+4}")
        e(f"s_mul_i32 s{sT}, s{sF}, 40")
        e(f"s_mul_i32 s{sT+1}, s{sWave}, 10")
        e(f"s_add_u32 s{sT}, s{sT}, s{sT+1}")
        e(f"s_and_b32 s{sT+1}, s2, 3")
        e(f"s_mul_i32 s{sT+2}, s{sT+1}, 320")
        e(f"s_and_b32 s{sT+2}, s{sT+2}, 0xffffff80")
        e(f"s_mul_i32 s{sT+3}, s{sT}, 3840")
        e(f"s_add_u32 s{sT+2}, s{sT+2}, s{sT+3}")
        e(f"s_add_u32 s{sT+3}, s{sT+2}, {5*3840}")
        e(f"s_mul_i32 s{sT+1}, s{sT+1}, 768")
        e(f"s_mul_i32 s{sT}, s{sT}, 3072")
        e(f"s_add_u32 s{sT}, s{sT}, s{sT+1}")
        srd(S_W, 6, 640 * 3840)
        srd(S_R, 32, 640 * 3072)
        e(f"s_mov_b64 exec, s[{sT+6}:{sT+7}]")
        e(f"buffer_load_dword v{vT+10}, v{vT+4}, s[{S_R}:{S_R+3}], s{sT} offen")
        e(f"buffer_load_dword v{vT+10}, v{vT+7}, s[{S_X}:{S_X+3}], s{sT+4} offen")
        e(f"buffer_load_dword v{vT+10}, v{vT+8}, s[{S_X}:{S_X+3}], s{sT+4} offen")
        e(f"s_mov_b32 s{sT+7}, 0x1fff")
        e(f"s_mov_b64 exec, s[{sT+6}:{sT+7}]")
        e(f"buffer_load_dword v{vT+10}, v{vT+3}, s[{S_W}:{S_W+3}], s{sT+2} offen")
        e(f"buffer_load_dword v{vT+10}, v{vT+3}, s[{S_W}:{S_W+3}], s{sT+3} offen")
        e("s_mov_b64 exec, -1")
    for r in range(vACC + 32, vACC + 64):
        e(f"v_mov_b32 v{r}, 0")
    lab("L_F_go")
    for r in list(range(vACC, vACC + 32)) + list(range(vHACC, vHACC + 8)):
        e(f"v_mov_b32 v{r}, 0")
    for r in range(4):
        e(f"v_mov_b32 v{vOnes+r}, 0x3f803f80")
    e(f"s_mov_b32 s{sNxt}, {F_STAGE}")
    e("s_waitcnt lgkmcnt(0)")
    nonce_fix()
    if "l" not in OPT:
        row_stats()
        w_touch("F")
    for w in range(7):
        e(f"s_cmp_eq_u32 s{sWave}, {w}")
        e(f"s_cbranch_scc1 L_p1_F{w}")
    e("s_branch L_p1_F7")

    lab("L_F_helper")
    sD1, sD2, sJb1, sNJ = sJ + 1, sJ + 2, sJ + 3, sJ + 4
    JV1 = [64, 65, 66, 67, 68]
    JV2 = [72, 73, 74, 75, 76]
    for r_ in JV1:
        e(f"v_mov_b32 v{r_}, 0")
    srd(S_W, 36, 1536 * 1280)
    srd(S_DBG, 34, 3072)
    sKS, sCGj, sBase, sJa, sJb, sP, sTt = sWoff, sXoff, sHoff, sMaskH, sMaskH + 1, sCur, 98
    e(f"s_bfe_u32 s{sKS}, s2, 0x20001")
    e(f"s_mul_i32 s{sKS}, s{sKS}, 17")
    e(f"s_add_u32 s{sKS}, s{sKS}, s{sF}")
    e(f"s_and_b32 s{sCGj}, s2, 1")
    e(f"s_lshl_b32 s{sCGj}, s{sCGj}, 2")
    e(f"s_add_u32 s{sCGj}, s{sCGj}, s{sS}")
    e(f"s_mul_i32 s{sJb1}, s{sS}, 5120")
    e(f"s_add_u32 s{sJb1}, s{sJb1}, {F_JOB}")
    e(f"s_cmp_eq_u32 s{sF}, s{sS}")
    e(f"s_cselect_b32 s{sNJ}, 2, 1")
    e(f"s_mov_b32 s{sT+6}, 0")
    e(f"v_lshrrev_b32 v{fTr}, 2, v{vLane}")
    e(f"v_mul_u32_u24 v{fTr}, 160, v{fTr}")
    e(f"v_mul_u32_u24 v{vT+4}, 40, v{vT+2}")
    e(f"v_add_u32 v{fTr}, v{fTr}, v{vT+4}")
    lab("L_F_jobissue")
    e(f"s_sub_u32 s{sT}, s{sKS}, 48")
    e(f"s_mul_i32 s{sP}, s{sT}, 52")
    e(f"s_lshr_b32 s{sP}, s{sP}, 8")
    e(f"s_mul_i32 s{sTt}, s{sP}, 5")
    e(f"s_sub_u32 s{sTt}, s{sT}, s{sTt}")
    e(f"s_mul_i32 s{sP}, s{sP}, 160")
    e(f"s_lshr_b32 s{sBase}, s{sTt}, 1")
    e(f"s_mul_i32 s{sBase}, s{sBase}, 80")
    e(f"s_and_b32 s{sJa}, s{sTt}, 1")
    e(f"s_lshl_b32 s{sJa}, s{sJa}, 3")
    e(f"s_add_u32 s{sBase}, s{sBase}, s{sJa}")
    e(f"s_cmp_eq_u32 s{sTt}, 4")
    e(f"s_cselect_b32 s{sBase}, 16, s{sBase}")
    e(f"s_cselect_b32 s{sJa}, 40, 20")
    e(f"s_cselect_b32 s{sJb}, 20, 4")
    e(f"s_add_u32 s{sBase}, s{sBase}, s{sP}")
    e(f"s_lshl_b32 s{sP}, s{sKS}, 5")
    e(f"s_mov_b32 s{S_R+2}, {640*1280}")
    e(f"s_cmp_ge_u32 s{sKS}, 48")
    e(f"s_cselect_b32 s{sBase}, s{sBase}, s{sP}")
    e(f"s_cselect_b32 s{sJa}, s{sJa}, 4")
    e(f"s_cselect_b32 s{sJb}, s{sJb}, 16")
    e(f"s_cselect_b32 s{S_R}, s28, s36")
    e(f"s_cselect_b32 s{S_R+1}, s29, s37")
    e(f"s_cselect_b32 s{S_R+2}, s{S_R+2}, {1536*1280}")
    e(f"s_and_b32 s{S_R+1}, s{S_R+1}, 0xffff")
    e(f"s_mov_b32 s{S_R+3}, 0x00020000")
    e(f"s_mul_i32 s{sBase}, s{sBase}, 1280")
    e(f"s_mul_i32 s{sP}, s{sCGj}, 160")
    e(f"s_add_u32 s{sBase}, s{sBase}, s{sP}")
    e(f"s_mul_i32 s{sJa}, s{sJa}, 1280")
    e(f"s_mul_i32 s{sJb}, s{sJb}, 1280")
    e(f"s_mul_i32 s{sD2}, s{sCGj}, 68")
    e(f"s_add_u32 s{sD2}, s{sD2}, s{sKS}")
    e(f"s_mul_i32 s{sD2}, s{sD2}, 5120")
    e(f"s_add_u32 s{sD2}, s{sD2}, {B2_OFF}")
    for i in range(5):
        q, rho, t1 = vT + 3, vT + 4, vT + 5
        e(f"v_add_u32 v{q}, {64*i}, v{vLane}")
        e(f"v_mul_u32_u24 v{rho}, 205, v{q}")
        e(f"v_lshrrev_b32 v{rho}, 11, v{rho}")
        e(f"v_mul_u32_u24 v{t1}, 10, v{rho}")
        e(f"v_sub_u32 v{q}, v{q}, v{t1}")
        e(f"v_and_b32 v{t1}, 3, v{rho}")
        e(f"v_mul_u32_u24 v{t1}, 1280, v{t1}")
        e(f"v_lshl_add_u32 v{q}, v{q}, 4, v{t1}")
        e(f"v_bfe_u32 v{t1}, v{rho}, 2, 2")
        e(f"v_mad_u32_u24 v{q}, v{t1}, s{sJa}, v{q}")
        e(f"v_lshrrev_b32 v{t1}, 4, v{rho}")
        e(f"v_mad_u32_u24 v{q}, v{t1}, s{sJb}, v{q}")
        e(f"v_add_u32 v{JV2[i]}, s{sBase}, v{q}")
    e(f"s_add_u32 s{sT+6}, s{sT+6}, 1")
    e(f"s_cmp_ge_u32 s{sT+6}, 2")
    e("s_cbranch_scc1 L_F_jobs_done")
    e(f"s_mov_b32 s{sD1}, s{sD2}")
    for i_ in range(5):
        e(f"v_mov_b32 v{JV1[i_]}, v{JV2[i_]}")
    for i_ in range(3):
        e(f"s_mov_b32 s{S_W+i_}, s{S_R+i_}")
    e(f"s_mov_b32 s{S_W+3}, 0x00020000")
    e(f"s_cmp_eq_u32 s{sNJ}, 1")
    e("s_cbranch_scc1 L_F_jobs_done")
    e(f"s_sub_u32 s{sKS}, s{sKS}, s{sF}")
    e(f"s_add_u32 s{sKS}, s{sKS}, 16")
    e("s_branch L_F_jobissue")
    lab("L_F_jobs_done")
    e("s_setprio 1")
    e("s_branch L_F_go")
    lab("L_task_jdma")
    e(f"s_mul_i32 s{sT+4}, s{sG}, 384")
    e(f"v_lshlrev_b32 v{vT+3}, 3, v{vLane}")
    e(f"buffer_load_dwordx2 v[70:71], v{vT+3}, s[{S_DBG}:{S_DBG+3}], s{sT+4} offen")
    for jn, (JV, SR) in enumerate(((JV1, S_W), (JV2, S_R))):
        if jn == 0:
            e(f"s_mov_b32 m0, s{sJb1}")
        else:
            e(f"s_cmp_eq_u32 s{sNJ}, 1")
            e("s_cbranch_scc1 L_task_ret")
            e(f"s_mov_b32 m0, {F_JOB+20480}")
        for i in range(5):
            e("s_nop 0")
            e(f"buffer_load_dwordx4 v{JV[i]}, s[{SR}:{SR+3}], 0 offen lds")
            e(f"s_add_u32 m0, m0, 1024")
    e(f"s_setpc_b64 s[{sRet}:{sRet+1}]")
    lab("L_task")
    for it_, tgt in ((JD, "L_task_jdma"), (TS[0], "L_task_0"), (TS[1], "L_task_j2"), (TS[3], "L_task_6")):
        e(f"s_cmp_eq_u32 s{sIt}, {it_}")
        e(f"s_cbranch_scc1 {tgt}")
    e(f"s_cmp_lg_u32 s{sIt}, {TS[2]}")
    e("s_cbranch_scc1 L_task_ret")
    e("s_waitcnt vmcnt(0)")
    e(f"s_setpc_b64 s[{sRet}:{sRet+1}]")
    lab("L_task_0")
    e("s_waitcnt vmcnt(0)")
    e(f"v_lshlrev_b32 v16, 16, v70")
    e(f"v_and_b32 v17, 0xffff0000, v70")
    e(f"v_lshlrev_b32 v18, 16, v71")
    e(f"v_and_b32 v19, 0xffff0000, v71")
    e(f"v_add_u32 v20, {F_MISC+FM_B1}, v{fL16}")
    e(f"s_mov_b32 s{sT+2}, -1")
    e(f"s_mov_b32 s{sT+3}, 0xffff")
    e(f"s_mov_b64 exec, s[{sT+2}:{sT+3}]")
    e(f"ds_write_b128 v20, v[16:19]")
    e("s_mov_b64 exec, -1")
    e(f"v_add_u32 v24, s{sJb1}, v{fTr}")
    e(f"s_mov_b32 s{sT}, s{sD1}")
    lab("L_task_job")
    e(f"s_add_u32 s{sT+1}, s{sT}, 4096")
    e("s_waitcnt lgkmcnt(0)")
    for U in range(5):
        for h in range(2):
            e(f"ds_read_b64_tr_b16 {vr(76+4*U+2*h,2)}, v24 offset:{8*U+2560*h}")
    for U in range(5):
        e(f"s_waitcnt lgkmcnt({2*(4-U)})")
        e(f"buffer_store_dwordx4 {vr(76+4*U,4)}, v{fL16}, s[{S_WS}:{S_WS+3}], s{sT + (U >> 2)} offen offset:{1024*(U&3)} sc1")
    e(f"s_setpc_b64 s[{sRet}:{sRet+1}]")
    lab("L_task_6")
    e(f"s_cmp_lg_u32 s{sWave}, 4")
    e("s_cbranch_scc1 L_task_ret")
    e(f"s_lshl_b32 s{sT}, s{sRB}, 4")
    e(f"s_add_u32 s{sT}, s{sT}, s{sG}")
    e(f"s_lshl_b32 s{sT}, s{sT}, 7")
    e(f"s_add_u32 s{sT}, s{sT}, {FL_OFF+1024}")
    e(f"v_mov_b32 v24, s{sNo}")
    e(f"v_mov_b32 v25, s{sNo+1}")
    e(f"v_mov_b32 v26, 0")
    e("s_mov_b64 exec, 1")
    e(f"buffer_store_dwordx2 v[24:25], v26, s[{S_WS}:{S_WS+3}], s{sT} offen offset:8 sc1")
    e("s_mov_b64 exec, -1")
    e(f"s_setpc_b64 s[{sRet}:{sRet+1}]")
    lab("L_task_j2")
    e(f"s_cmp_eq_u32 s{sNJ}, 1")
    e("s_cbranch_scc1 L_task_ret")
    e(f"v_add_u32 v24, {F_JOB+20480}, v{fTr}")
    e(f"s_mov_b32 s{sT}, s{sD2}")
    e("s_branch L_task_job")
    lab("L_task_ret")
    e(f"s_setpc_b64 s[{sRet}:{sRet+1}]")

    for typ in "QF":
        for w in range(8):
            p1_loop(typ, w)

    lab("L_epi_Q")
    vST = vXF
    for i in range(4):
        e(f"ds_read_b32 v{vST+i}, v{qSm} offset:{128*(i+1)}")
    e(f"ds_read_b32 v{vST+4}, v{qSa}")
    e(f"s_mov_b64 exec, s[{sMaskW}:{sMaskW+1}]")
    e("s_nop 1")
    for j in range(4):
        e(f"s_cmp_le_u32 s{sNH}, {j}")
        e("s_cbranch_scc1 L_q_cs_done")
        e(f"ds_write_b128 v{qCSh}, {vr(vHACC+4*j,4)} offset:{64*j}")
    lab("L_q_cs_done")
    e("s_mov_b64 exec, -1")
    e("s_waitcnt lgkmcnt(0)")
    e("s_barrier")
    stamp(5)
    vCS, vCSH = vWF, 136
    for u in range(4):
        e(f"ds_read_b128 {vr(vCS+4*u,4)}, v{qCSu} offset:{64*u}")
    for j in range(4):
        e(f"ds_read_b128 {vr(vCSH+4*j,4)}, v{qCSh} offset:{64*j}")
    vRK = 152
    for kb in range(3):
        e(f"ds_read_b128 {vr(vRK+4*kb,4)}, v{qRk} offset:{16*kb}")
    e(f"ds_read_b32 v164, v{qRq} offset:32")

    def norm_unit(a, cs, nm, addr, off):
        for r in range(4):
            e(f"v_fmac_f32 v{a+r}, v{cs+r}, v{nm}")
        e(f"v_cvt_pk_bf16_f32 v{a}, v{a}, v{a+1}")
        e(f"v_cvt_pk_bf16_f32 v{a+1}, v{a+2}, v{a+3}")
        e(f"ds_write_b64 v{addr}, v[{a}:{a+1}] offset:{off}")

    for u in range(4):
        if u == 3:
            e(f"s_cmp_eq_u32 s{sNU}, 3")
            e("s_cbranch_scc1 L_q_skip3")
        if u == 0:
            e("s_waitcnt lgkmcnt(11)")
        if u == 1:
            e("s_waitcnt lgkmcnt(12)")
        for i in range(4):
            norm_unit(acc(u, i), vCS + 4 * u, vST + i, qPw, u * PLANE + (i & 1) * 2560 + (i >> 1) * 128)
    lab("L_q_skip3")
    e("s_waitcnt lgkmcnt(12)")
    for j in range(4):
        e(f"s_cmp_le_u32 s{sNH}, {j}")
        e("s_cbranch_scc1 L_q_halo_done")
        norm_unit(vHACC + 4 * j, vCSH + 4 * j, vST + 4, qPh, j * PLANE)
    lab("L_q_halo_done")
    vLg = 112
    vKf, vVf, vQf, vO, vPf, vOp = 32, 62, 92, 32, 104, 124
    vAt, vAq, vAv = qAt, qAq, qAv
    cexp = (20 ** -0.5) * 1.4426950408889634
    e(f"v_mul_f32 v164, {f32(cexp)}, v164")
    e("s_waitcnt lgkmcnt(0)")
    stamp(6)
    e("s_barrier")
    stamp(7)

    def qk_reads(t):
        e(f"ds_read_b64 {vr(vQf+2*t,2)}, v{vAq} offset:{t*PLANE}")
        for kb in range(3):
            e(f"ds_read_b64 {vr(vKf+2*(3*t+kb),2)}, v{vAt} offset:{t*PLANE+32*kb}")
    for t in range(2):
        qk_reads(t)
    for t in range(5):
        if t < 3:
            qk_reads(t + 2)
        e(f"s_waitcnt lgkmcnt({min(8, 4*(4-t))})")
        for kb in range(3):
            cin = "0" if t == 0 else vr(vLg + 4 * kb, 4)
            e(f"v_mfma_f32_4x4x4_16b_bf16 {vr(vLg+4*kb,4)}, {vr(vKf+2*(3*t+kb),2)}, {vr(vQf+2*t,2)}, {cin}")
    for kb in range(3):
        for t in range(5):
            e(f"ds_read_b64_tr_b16 {vr(vVf+2*(5*kb+t),2)}, v{vAv} offset:{(5+t)*PLANE+32*kb}")
    for pp in range(1, 12):
        if pp == 8:
            e(f"v_mul_f32 v{vLg+pp}, v{vLg+pp}, v{vRK+pp}")
        else:
            e(f"v_fma_f32 v{vLg+pp}, v{vLg+pp}, v{vRK+pp}, v{qMk(pp)}")
    m = 136
    e(f"v_max3_f32 v{m}, v{vLg+1}, v{vLg+2}, v{vLg+3}")
    e(f"v_max3_f32 v{m+1}, v{vLg+4}, v{vLg+5}, v{vLg+6}")
    e(f"v_max3_f32 v{m+2}, v{vLg+7}, v{vLg+8}, v{vLg+9}")
    e(f"v_max3_f32 v{m}, v{m}, v{vLg+10}, v{vLg+11}")
    e(f"v_max3_f32 v{m}, v{m}, v{m+1}, v{m+2}")
    e(f"v_mul_f32 v{m}, v{m}, v164")
    for pp in range(1, 12):
        e(f"v_fma_f32 v{vLg+pp}, v{vLg+pp}, v164, -v{m}")
    for pp in range(1, 12):
        e(f"v_exp_f32 v{vLg+pp}, v{vLg+pp}")
    e(f"v_add_f32 v{m}, v{vLg+1}, v{vLg+2}")
    e(f"v_add_f32 v{m+1}, v{vLg+3}, v{vLg+4}")
    for pp in range(5, 11, 2):
        e(f"v_add_f32 v{m}, v{m}, v{vLg+pp}")
        e(f"v_add_f32 v{m+1}, v{m+1}, v{vLg+pp+1}")
    e(f"v_add_f32 v{m}, v{m}, v{vLg+11}")
    e(f"v_add_f32 v{m}, v{m}, v{m+1}")
    e(f"v_rcp_f32 v{m}, v{m}")
    e(f"v_mov_b32 v{vLg}, 0")
    for pp in range(1, 12):
        e(f"v_mul_f32 v{vLg+pp}, v{vLg+pp}, v{vRK+pp}")
    for j in range(6):
        e(f"v_cvt_pk_bf16_f32 v{vPf+j}, v{vLg+2*j}, v{vLg+2*j+1}")
    e("s_waitcnt lgkmcnt(0)")
    e("s_nop 0")
    for kb in range(3):
        for t in range(5):
            cin = "0" if kb == 0 else vr(vO + 4 * t, 4)
            e(f"v_mfma_f32_4x4x4_16b_bf16 {vr(vO+4*t,4)}, {vr(vVf+2*(5*kb+t),2)}, {vr(vPf+2*kb,2)}, {cin}")
    e("s_nop 1")
    for t in range(5):
        for r in range(4):
            e(f"v_mul_f32 v{vO+4*t+r}, v{vO+4*t+r}, v{m}")
        e(f"v_cvt_pk_bf16_f32 v{vOp+2*t}, v{vO+4*t}, v{vO+4*t+1}")
        e(f"v_cvt_pk_bf16_f32 v{vOp+2*t+1}, v{vO+4*t+2}, v{vO+4*t+3}")
    e(f"buffer_store_dwordx4 {vr(vOp,4)}, v{qOa}, s[{S_WS}:{S_WS+3}], s{sJ} offen sc1")
    e(f"buffer_store_dwordx4 {vr(vOp+4,4)}, v{qOa}, s[{S_WS}:{S_WS+3}], s{sJ} offen offset:1024 sc1")
    e(f"buffer_store_dwordx2 {vr(vOp+8,2)}, v{qOb}, s[{S_WS}:{S_WS+3}], s{sJ+1} offen sc1")
    stamp(8)
    e("s_branch L_p2")

    lab("L_epi_F")
    e("s_setprio 0")
    vST = 160
    vB1 = 128
    for i in range(4):
        e(f"ds_read_b64 v[{vST+2*i}:{vST+2*i+1}], v{fSm} offset:{128*i}")
    for u in range(4):
        e(f"ds_read_b128 {vr(vB1+4*u,4)}, v{fCSu} offset:{64*u+FM_B1-FM_CS}")
    e(f"s_mov_b64 exec, s[{sMaskW}:{sMaskW+1}]")
    e(f"ds_write_b128 v{fCSh}, {vr(vHACC,4)}")
    e(f"s_cmp_le_u32 s{sNH}, 1")
    e("s_cbranch_scc1 L_f_cs_done")
    e(f"ds_write_b128 v{fCSh}, {vr(vHACC+4,4)} offset:64")
    lab("L_f_cs_done")
    e("s_mov_b64 exec, -1")
    e(f"s_lshl_b32 s{sT}, s{sRB}, 3")
    e(f"s_lshl_b32 s{sT+1}, s{sRh}, 2")
    e(f"s_add_u32 s{sT}, s{sT}, s{sT+1}")
    e(f"s_mul_i32 s{sT}, s{sT}, 68")
    e(f"s_mul_i32 s{sT+1}, s{sG}, 6")
    e(f"s_add_u32 s{sT}, s{sT}, s{sT+1}")
    e(f"s_lshr_b32 s{sT+1}, s{sU0}, 1")
    e(f"s_add_u32 s{sT}, s{sT}, s{sT+1}")
    e(f"s_lshl_b32 s{sT}, s{sT}, 10")
    for i in range(1, 4):
        e(f"s_add_u32 s{sT+i}, s{sT}, {i*68*1024}")
    vPw = fL16
    e("s_waitcnt lgkmcnt(0)")
    e("s_barrier")
    stamp(5)
    for u in range(4):
        e(f"ds_read_b128 {vr(vCS+4*u,4)}, v{fCSu} offset:{64*u}")
    vPk = 144
    k = 0
    for pr in range(2):
        if pr == 1:
            e(f"s_cmp_eq_u32 s{sNU}, 2")
            e("s_cbranch_scc1 L_f_done")
        e(f"s_waitcnt lgkmcnt({2-2*pr})")
        for i in range(4):
            pk = vPk + 4 * (k & 3); k += 1
            nm, rs = vST + 2 * i, vST + 2 * i + 1
            for uu in range(2):
                u = 2 * pr + uu
                a = acc(u, i)
                for r in range(4):
                    e(f"v_fmac_f32 v{a+r}, v{vCS+4*u+r}, v{nm}")
                for r in range(4):
                    e(f"v_fma_f32 v{a+r}, v{a+r}, v{rs}, v{vB1+4*u+r}")
                if "b" in OPT:
                    for r in range(4):
                        e(f"v_mul_f32 v{a+r}, v{a+r}, abs(v{a+r})")
                    e(f"v_cvt_pk_bf16_f32 v{pk+2*uu}, v{a}, v{a+1}")
                    e(f"v_cvt_pk_bf16_f32 v{pk+2*uu+1}, v{a+2}, v{a+3}")
                    e(f"v_pk_max_i16 v{pk+2*uu}, v{pk+2*uu}, 0")
                    e(f"v_pk_max_i16 v{pk+2*uu+1}, v{pk+2*uu+1}, 0")
                else:
                    for r in range(4):
                        e(f"v_max_f32 v{a+r}, 0, v{a+r}")
                    for r in range(4):
                        e(f"v_mul_f32 v{a+r}, v{a+r}, v{a+r}")
                    e(f"v_cvt_pk_bf16_f32 v{pk+2*uu}, v{a}, v{a+1}")
                    e(f"v_cvt_pk_bf16_f32 v{pk+2*uu+1}, v{a+2}, v{a+3}")
            e(f"buffer_store_dwordx4 {vr(pk,4)}, v{vPw}, s[{S_WS}:{S_WS+3}], s{sT+i} offen offset:{1024*pr} sc1")
    lab("L_f_done")
    stamp(6)
    e("s_waitcnt vmcnt(0) lgkmcnt(0)")
    stamp(7)
    e("s_barrier")
    stamp(8)
    p2_compute()
    lab("L_end")
    e("s_endpgm")


def main():
    L.append("; Fused LN + [QKV|W1] GEMM + dilated local attention + [h|o]x[w2;wo] GEMM + gating, one persistent kernel")
    L.append(f"; @launch grid=(256,1,1) block=(768,1,1) lds={LDS_TOTAL}")
    L.append('.amdgcn_target "amdgcn-amd-amdhsa--gfx950"')
    L.append(".text")
    gen()
    L.append('.section .rodata,"a"')
    L.append(".p2align 6")
    L.append(f".amdhsa_kernel {NAME}_kernel")
    L.append(f"  .amdhsa_next_free_vgpr {NVGPR}")
    L.append("  .amdhsa_next_free_sgpr 102")
    L.append(f"  .amdhsa_accum_offset {NVGPR}")
    L.append("  .amdhsa_group_segment_fixed_size 0")
    L.append("  .amdhsa_kernarg_size 88")
    L.append("  .amdhsa_user_sgpr_count 2")
    L.append("  .amdhsa_user_sgpr_kernarg_segment_ptr 1")
    L.append("  .amdhsa_system_sgpr_workgroup_id_x 1")
    L.append(".end_amdhsa_kernel")
    out = sys.argv[1] if len(sys.argv) > 1 else OUT
    open(out, "w").write("\n".join(L) + "\n")
    print("wrote", out, len(L), "lines")


main()
```

```python
import sys
import os
import struct

NAME = "recurrent_scan__sliding_local_dilated__dense_activation_squared_relu__prompt"
OUT = f"cdna_kernels/{NAME}.s"
STAMP = os.environ.get("STAMP") in ("1", "2", "3")
STAMP_MIN = os.environ.get("STAMP") == "3"
OPT = os.environ.get("OPT", "abf")
STAMP_RT = os.environ.get("STAMP") == "2"
STAMP_OFF = 16 << 20
L = []


DIAG = os.environ.get("DIAG", "")
ZONE = [""]


def e(s=""):
    if ZONE[0] == "p2c" and "nocomp2" in DIAG and (s.startswith("ds_read") or s.startswith("v_mfma")):
        return
    if ZONE[0] == "p2l" and "nodma2" in DIAG and s.startswith("buffer_load"):
        return
    if ZONE[0] == "p1c" and "nocomp1" in DIAG and (s.startswith("ds_read") or s.startswith("v_mfma")):
        return
    if ZONE[0] == "p1l" and "nodma1" in DIAG and s.startswith("buffer_load"):
        return
    L.append("    " + s)


def lab(s):
    L.append(s + ":")


def vr(a, n=1):
    return f"v{a}" if n == 1 else f"v[{a}:{a+n-1}]"


def f32(x):
    return hex(struct.unpack("<I", struct.pack("<f", x))[0])


A2_OFF = 0
A2_SIZE = 128 * 68 * 1024
B2_OFF = A2_SIZE
ST_OFF = B2_OFF + 8 * 68 * 5120
FL_OFF = ST_OFF + 2048 * 16
FB_OFF = FL_OFF + 256 * 128
NONCE_OFF = FB_OFF + 256 * 128
WS_USED = NONCE_OFF + 128 if not STAMP else (32 << 20)

Q_P, Q_GP = 480, 3968
Q_XB = 8 * Q_GP
Q_STAGE = Q_XB + 9 * 2048
F_P, F_GP = 416, 3456
F_XB = 8 * F_GP
F_STAGE = F_XB + 8 * 2048
PLANE = 5120
Q_PL = 73728
Q_MISC = 3 * Q_STAGE
QM_ST, QM_CS, QM_RK = 0, 1152, 2112
F_JOB = 3 * F_STAGE
F_MISC = 158720
FM_ST, FM_CS, FM_B1 = 0, 1024, 1792
EJ_LDS = 102400
SLOT = 36864
X2 = 4 * SLOT
B2L = X2 + 10240
LDS_TOTAL = F_MISC + FM_B1 + 768
assert Q_PL + 15 * PLANE == Q_MISC and B2L + 320 <= F_MISC and F_JOB + 5 * 5120 <= F_MISC and LDS_TOTAL <= 163840

S_X, S_W, S_WS, S_R, S_DBG = 8, 12, 16, 20, 24
sWave, sS, sG, sRB = 40, 41, 42, 43
sCur, sNxt, sKW, sKX, sIt = 44, 45, 46, 47, 48
sWoff, sXoff, sHoff = 49, 50, 51
sMaskW, sMaskH = 52, 54
sT = 56
sA = 70
sRh, sU0, sH0, sNH = 70, 71, 72, 73
sRet = 96
sNo = 30
sNU = 74
sJ = 75
sSt = 80

vLane = 1
vX0, vX1, vH0 = 2, 3, 4
vWd = 6
vWl, vXl0, vXl1, vWa, vXa = 10, 11, 12, 13, 14
vT = 16
vOnes = 28
vACC = 32
vHACC = 96
vWF = 112
vXF = 128
NVGPR = 168
qAt, qAq, qAv, qRk, qOa, qOb, qPw, qPh = 2, 3, 4, 5, 6, 7, 8, 9
qCSu, qCSh, qSa, qSm, qRq = 15, 16, 17, 18, 19


def qMk(p):
    return 20 + (p - 1 if p < 8 else p - 2)


TOUCH = os.environ.get("TOUCH", "0") == "1"
CODEPF = os.environ.get("CODEPF", "1") == "1"
BPF = os.environ.get("BPF", "0") == "1"
TOUCH2 = os.environ.get("TOUCH2", "1") == "1"
ROT = os.environ.get("ROT", "0") == "1"
TSKIP = int(os.environ.get("TSKIP", "38"))
PREBF = int(os.environ.get("PREBF", "2"))
PREBQ = int(os.environ.get("PREBQ", "2"))
OUTPOL = os.environ.get("OUTPOL", " sc1")
AMP = [int(x) for x in os.environ["AMP"].split(",")] if os.environ.get("AMP") else None
RSCHED = int(os.environ.get("RSCHED", "0"))
JD = int(os.environ.get("JD", "0"))
QD = int(os.environ.get("QD", "4"))
JW = int(os.environ.get("JW", "2"))
NBK = int(os.environ.get("NBK", "1"))
NRS = int(os.environ.get("NRS", "0"))
TS = [int(x) for x in os.environ.get("TS", "2,3,5,6").split(",")]
DBGOUT = os.environ.get("DBGOUT", "0") == "1"
TSH = int(os.environ.get("TSH", "0"))


def acc(u, i):
    return vACC + (u * 4 + i) * 4


def wf(u):
    return vWF + 4 * u


def xf(b, i):
    return vXF + (b * 5 + i) * 4


def srd(d, base, nrec):
    e(f"s_mov_b32 s{d}, s{base}")
    e(f"s_and_b32 s{d+1}, s{base+1}, 0xffff")
    e(f"s_mov_b32 s{d+2}, {nrec}")
    e(f"s_mov_b32 s{d+3}, 0x00020000")


def nonce_load():
    e(f"s_add_u32 s{sNo}, s68, {NONCE_OFF}")
    e(f"s_addc_u32 s{sNo+1}, s69, 0")
    e(f"s_load_dwordx2 s[{sNo}:{sNo+1}], s[{sNo}:{sNo+1}], 0")


def nonce_fix():
    e(f"s_add_u32 s{sNo}, s{sNo}, 1")
    e(f"s_addc_u32 s{sNo+1}, s{sNo+1}, 0")


def stamp(i, real=False):
    if STAMP and not (STAMP_MIN and i not in (0, 13, 14, 15)):
        e(f"{'s_memrealtime' if (real or STAMP_RT) else 's_memtime'} s[100:101]")
        e("s_waitcnt lgkmcnt(0)")
        e(f"s_mov_b32 s{sSt+i}, s100")


def stamp_flush():
    if STAMP:
        e("s_waitcnt vmcnt(0)")
        stamp(13)
        stamp(15, real=True)
        for i in range(16):
            e(f"v_mov_b32 v{32+i}, s{sSt+i}")
        e(f"s_mul_i32 s{sT}, s2, 12")
        e(f"s_add_u32 s{sT}, s{sT}, s{sWave}")
        e(f"s_lshl_b32 s{sT}, s{sT}, 6")
        e(f"s_add_u32 s{sT}, s{sT}, {STAMP_OFF}")
        e("v_mov_b32 v48, 0")
        e("s_mov_b64 exec, 1")
        for i in range(4):
            e(f"buffer_store_dwordx4 v[{32+4*i}:{35+4*i}], v48, s[{S_WS}:{S_WS+3}], s{sT} offen offset:{16*i}")


QCFG = [(0, 0, 4, 0, 4), (0, 4, 4, 0, 4), (0, 8, 4, 0, 2), (1, 4, 4, 0, 0),
        (0, 12, 3, 0, 2), (1, 12, 3, 2, 1), (1, 0, 4, 0, 0), (1, 8, 4, 2, 2)]
FCFG = [(0, 0, 4, 0, 2), (0, 6, 4, 0, 2), (1, 0, 4, 2, 2), (1, 6, 4, 2, 2),
        (0, 4, 2, 0, 1), (0, 10, 2, 0, 1), (1, 4, 2, 1, 1), (1, 10, 2, 1, 1)]


def p1_dma(typ):
    P2_ = 960 if typ == "Q" else 832
    GP = Q_GP if typ == "Q" else F_GP
    RP = 3840 if typ == "Q" else 3072
    e(f"s_add_u32 m0, s{sCur}, s{sXoff}")
    e(f"s_add_u32 s{sT}, s{sKX}, 1280")
    e(f"buffer_load_dwordx4 v{vX0}, s[{S_X}:{S_X+3}], s{sKX} offen lds")
    e(f"buffer_load_dwordx4 v{vX1}, s[{S_X}:{S_X+3}], s{sKX} offen offset:1024 lds")
    e(f"s_add_u32 m0, m0, 2048")
    e("s_nop 0")
    e(f"buffer_load_dwordx4 v{vX0}, s[{S_X}:{S_X+3}], s{sT} offen lds")
    e(f"buffer_load_dwordx4 v{vX1}, s[{S_X}:{S_X+3}], s{sT} offen offset:1024 lds")
    if typ == "Q":
        e(f"s_add_u32 m0, s{sCur}, s{sHoff}")
        e(f"s_mov_b64 exec, s[{sMaskH}:{sMaskH+1}]")
        e(f"buffer_load_dwordx4 v{vH0}, s[{S_X}:{S_X+3}], s{sKX} offen lds")
    e(f"s_add_u32 m0, s{sCur}, s{sWoff}")
    e(f"s_mov_b64 exec, s[{sMaskW}:{sMaskW+1}]")
    for t in range(4):
        e(f"buffer_load_dwordx4 v{vWd+t}, s[{S_W}:{S_W+3}], s{sKW} offen offset:{P2_*t} lds")
    e(f"s_add_u32 m0, m0, {4*GP}")
    e(f"s_add_u32 s{sT}, s{sKW}, {32*RP}")
    for t in range(4):
        e(f"buffer_load_dwordx4 v{vWd+t}, s[{S_W}:{S_W+3}], s{sT} offen offset:{P2_*t} lds")
    e("s_mov_b64 exec, -1")
    e(f"s_add_u32 s{sKW}, s{sKW}, {64*RP}")
    e(f"s_add_u32 s{sKX}, s{sKX}, 128")
    STG = Q_STAGE if typ == "Q" else F_STAGE
    e(f"s_add_u32 s{sCur}, s{sCur}, {STG}")
    e(f"s_cmp_eq_u32 s{sCur}, {3*STG}")
    e(f"s_cselect_b32 s{sCur}, 0, s{sCur}")


def p1_loop(typ, w):
    rh, u0, nu, h0, nh = (QCFG if typ == "Q" else FCFG)[w]
    STG = Q_STAGE if typ == "Q" else F_STAGE
    P, GP, XB = (Q_P, Q_GP, Q_XB) if typ == "Q" else (F_P, F_GP, F_XB)
    tag = f"{typ}{w}"
    usehx = typ == "Q" and nh > 0
    tasks = typ == "F" and w >= 4 and "j" not in OPT
    tlast = TS[3]

    def xreads(b):
        o = []
        for i in range(4):
            off = XB + 2048 * (4 * rh + i + (1 if typ == "Q" else 0))
            o.append(f"ds_read_b128 {vr(xf(b,i),4)}, v{vXa} offset:{off}")
        if usehx:
            o.append(f"ds_read_b128 {vr(xf(b,4),4)}, v{vXa} offset:{XB}")
        return o

    def wreads(u, ks):
        U = u0 + u
        col = (U // 5) * 160 + 8 * (U % 5) if typ == "Q" else 32 * U
        return [f"ds_read_b64_tr_b16 {vr(wf(u)+2*h,2)}, v{vWa} offset:{ks*4*GP+h*4*P+col}" for h in range(2)]

    def mfmas(u, b):
        o = [f"v_mfma_f32_16x16x32_bf16 {vr(acc(u,i),4)}, {vr(wf(u),4)}, {vr(xf(b,i),4)}, {vr(acc(u,i),4)}" for i in range(4)]
        if h0 <= u < h0 + nh:
            a = vHACC + 4 * (u - h0)
            bsrc = xf(b, 4) if typ == "Q" else vOnes
            o.append(f"v_mfma_f32_16x16x32_bf16 {vr(a,4)}, {vr(wf(u),4)}, {vr(bsrc,4)}, {vr(a,4)}")
        return o

    lab(f"L_p1_{tag}")
    stamp(2)
    e("s_barrier")
    stamp(3)
    for x in xreads(0):
        e(x)
    for u in range(nu):
        for x in wreads(u, 0):
            e(x)
    e(f"v_mov_b32 v{vXa}, v{vXl1}")
    e("s_waitcnt lgkmcnt(0)")
    lab(f"L_p1_{tag}_loop")
    body = []
    NB = NBK if nu > NBK else 1
    for ph in range(2):
        pend = []
        if ph == 0:
            pend += [("l", x, ("x", 1)) for x in xreads(1)]
        for u in range(nu):
            if ph == 1 and u == NB:
                body.append(("o", f"v_add_u32 v{vXa}, s{sNxt}, v{vXl0}"))
                body.append(("o", f"v_add_u32 v{vWa}, s{sNxt}, v{vWl}"))
                if tasks:
                    body.append(("o", f"s_cmp_gt_u32 s{sIt}, {tlast}"))
                    body.append(("o", f"s_cbranch_scc1 L_p1_{tag}_nt"))
                    body.append(("o", f"s_call_b64 s[{sRet}:{sRet+1}], {'L_task' if typ == 'F' else 'L_syncQ'}"))
                    body.append(("lab", f"L_p1_{tag}_nt"))
                    body.append(("w0", "s_waitcnt lgkmcnt(0)"))
                else:
                    if "j" in OPT and w < 3:
                        body.append(("o", f"s_cmp_lg_u32 s{sIt}, {JW}"))
                        body.append(("o", f"s_cbranch_scc1 L_p1_{tag}_nw"))
                        body.append(("o", "s_waitcnt vmcnt(0)"))
                        body.append(("lab", f"L_p1_{tag}_nw"))
                    if "j" in OPT and w == 5:
                        body.append(("o", f"s_cmp_lg_u32 s{sIt}, {JW+1}"))
                        body.append(("o", f"s_cbranch_scc1 L_p1_{tag}_nf"))
                        body.append(("o", f"s_lshl_b32 s{sT}, s2, 7"))
                        body.append(("o", f"s_add_u32 s{sT}, s{sT}, {FB_OFF}"))
                        body.append(("o", f"v_mov_b32 v104, s{sNo}"))
                        body.append(("o", f"v_mov_b32 v105, s{sNo+1}"))
                        body.append(("o", f"v_mov_b32 v106, 0"))
                        body.append(("o", "s_mov_b64 exec, 1"))
                        body.append(("o", f"buffer_store_dwordx2 v[104:105], v106, s[{S_WS}:{S_WS+3}], s{sT} offen sc1"))
                        body.append(("o", "s_mov_b64 exec, -1"))
                        body.append(("lab", f"L_p1_{tag}_nf"))
                    body.append(("w0", "s_waitcnt lgkmcnt(0)"))
                body.append(("o", "s_barrier"))
                pend = [("l", x, ("x", 0)) for x in xreads(0)] + pend
            ms = mfmas(u, ph)
            rem_after = sum(len(mfmas(uu, ph)) for uu in range(u + 1, nu))
            for mi, m in enumerate(ms):
                body.append(("m", m, [("w", u, ph), ("x", ph)] if mi == 0 else []))
                if mi == len(ms) - 1:
                    pend += [("l", x, ("w", u, 1 - ph)) for x in wreads(u, 1 - ph)]
                if not (ph == 1 and u < NB):
                    left = len(ms) - 1 - mi + rem_after + 1
                    k = 1 if len(pend) <= left else 2
                    while pend and k > 0:
                        body.append(pend.pop(0)); k -= 1
        while pend:
            body.append(pend.pop(0))
        if ph == 1:
            body.append(("o", f"v_add_u32 v{vXa}, s{sNxt}, v{vXl1}"))
            body.append(("o", f"s_add_u32 s{sNxt}, s{sNxt}, {STG}"))
            body.append(("o", f"s_cmp_eq_u32 s{sNxt}, {3*STG}"))
            body.append(("o", f"s_cselect_b32 s{sNxt}, 0, s{sNxt}"))
            body.append(("o", f"s_add_u32 s{sIt}, s{sIt}, 1"))
    n = len(body)
    waits = {}
    covered, ops = -1, []
    for pos, it in enumerate(body + body):
        if it[0] == "l":
            ops.append(it[2])
        elif it[0] == "w0":
            covered = len(ops) - 1
        elif it[0] == "m" and it[2]:
            need = -1
            for tg in it[2]:
                idx = [i for i, t in enumerate(ops) if t == tg]
                if idx:
                    need = max(need, idx[-1])
            if need > covered:
                cnt = min(13, len(ops) - 1 - need)
                covered = len(ops) - 1 - cnt
                if pos >= n:
                    waits[pos - n] = min(cnt, waits.get(pos - n, 99))
                else:
                    waits[pos] = cnt
    ops, covered = [], -1
    for pos, it in enumerate(body * 3):
        p0 = pos % n
        if p0 in waits:
            covered = max(covered, len(ops) - 1 - waits[p0])
        if it[0] == "l":
            ops.append(it[2])
        elif it[0] == "w0":
            covered = len(ops) - 1
        elif it[0] == "m" and it[2]:
            for tg in it[2]:
                idx = [i for i, t in enumerate(ops) if t == tg]
                assert not idx or idx[-1] <= covered, (tag, pos, tg)
    ZONE[0] = "p1c"
    for pos, it in enumerate(body):
        if pos in waits:
            e(f"s_waitcnt lgkmcnt({waits[pos]})")
        if it[0] == "lab":
            lab(it[1])
        else:
            e(it[1])
    ZONE[0] = ""
    e(f"s_cmp_lt_u32 s{sIt}, 10")
    e(f"s_cbranch_scc1 L_p1_{tag}_loop")
    e("s_waitcnt lgkmcnt(0)")
    stamp(4)
    e(f"s_branch L_epi_{typ}")


_spin = [0]


def spin_check(vreg, want_s, reload_fn, wide=True):
    k = _spin[0]; _spin[0] += 1
    regs = vreg if isinstance(vreg, list) else [vreg]
    e(f"s_mov_b32 s{sT+7}, 0")
    lab(f"L_spin{k}")
    for i, r in enumerate(regs):
        dst = "vcc" if i == 0 else f"s[{sT+4}:{sT+5}]"
        if wide:
            e(f"v_cmp_ne_u64 {dst}, s[{want_s}:{want_s+1}], v[{r}:{r+1}]")
        else:
            e(f"v_cmp_ne_u32 {dst}, s{want_s}, v{r}")
        if i:
            e("s_nop 1")
            e(f"s_or_b64 vcc, vcc, s[{sT+4}:{sT+5}]")
    e("s_nop 1")
    e(f"s_cmp_eq_u64 vcc, 0")
    e(f"s_cbranch_scc1 L_spin{k}_ok")
    e(f"s_add_u32 s{sT+7}, s{sT+7}, 1")
    e(f"s_cmp_gt_u32 s{sT+7}, 0x40000")
    e(f"s_cbranch_scc1 L_spin{k}_ok")
    e("s_sleep 2")
    reload_fn()
    e("s_waitcnt vmcnt(0)")
    e(f"s_branch L_spin{k}")
    lab(f"L_spin{k}_ok")


def loader(typ):
    N = 13 if typ == "Q" else 12
    N2 = 9
    vP, vFa, vL16, vSa = vT + 8, vT + 9, vT + 10, vT + 11
    vE1, vGl, vLs, vRs, vD = 32, 33, 34, 35, 36
    vP = 40
    sSrcA, sSrcB, sDst, sMA, sMB, sOne, sFl = sA, sA + 1, sA + 2, sA + 3, sA + 4, sA + 5, sA + 6
    e(f"s_mov_b32 s{sCur}, 0")
    if "p" in OPT:
        e("s_setprio 2")
    nonce_load()
    p1_dma(typ)
    if "z" in OPT:
        srd(S_WS, 68, WS_USED)
        e(f"s_waitcnt vmcnt(0) lgkmcnt(0)")
        e("s_barrier")
        stamp(1)
        p1_dma(typ)
        p1_dma(typ)
    elif ("y" in OPT and typ == "Q") or ("x" in OPT and typ == "F"):
        p1_dma(typ)
        p1_dma(typ)
        srd(S_WS, 68, WS_USED)
        e(f"s_waitcnt vmcnt({2*N}) lgkmcnt(0)")
        e("s_barrier")
        stamp(1)
    else:
        p1_dma(typ)
        srd(S_WS, 68, WS_USED)
        e(f"s_waitcnt vmcnt({N}) lgkmcnt(0)")
        e("s_barrier")
        stamp(1)
        p1_dma(typ)
    e(f"v_lshlrev_b32 v{vL16}, 4, v{vLane}")
    e(f"v_lshlrev_b32 v{vFa}, 7, v{vLane}")
    e(f"v_lshlrev_b32 v{vSa}, 2, v{vLane}")
    nonce_fix()
    e(f"v_lshrrev_b32 v{vE1}, 2, v{vLane}")
    e(f"v_lshlrev_b32 v{vE1}, 4, v{vE1}")
    e(f"v_bfe_u32 v{vT}, v{vLane}, 1, 1")
    e(f"v_lshl_add_u32 v{vE1}, v{vT}, 2, v{vE1}")
    e(f"v_and_b32 v{vT}, 1, v{vLane}")
    e(f"v_add_u32 v{vE1}, v{vE1}, v{vT}")
    e(f"s_and_b32 s{sT}, s2, 1")
    e(f"s_lshl_b32 s{sT}, s{sT}, 1")
    e(f"s_add_u32 s{sT}, s{sT}, 8")
    e(f"v_add_lshl_u32 v{vE1}, v{vE1}, s{sT}, 7")
    if "j" in OPT:
        cg_of(sT, sT + 1)
        e(f"s_mul_i32 s{sT+1}, s{sT}, 34")
        e(f"s_cmp_eq_u32 s{sT}, 7")
        e(f"s_cselect_b32 s{sT+2}, 49, 33")
        e(f"v_min_u32 v{vE1}, s{sT+2}, v{vLane}")
        e(f"v_add_u32 v{vE1}, s{sT+1}, v{vE1}")
        e(f"v_and_b32 v{vE1}, 255, v{vE1}")
        e(f"v_lshlrev_b32 v{vE1}, 7, v{vE1}")
    per = 36 if typ == "Q" else 32
    t0, t1, t2, t3 = vT, vT + 1, vT + 2, vT + 3
    e(f"s_mul_i32 s{sT}, s{sS}, {per}")
    if typ == "Q":
        e(f"s_sub_u32 s{sT}, s{sT}, 16")
    e(f"v_add_u32 v{t0}, s{sT}, v{vLane}")
    e(f"s_lshl_b32 s{sT}, s{sRB}, 7")
    e(f"v_add_u32 v{t1}, s{sT}, v{t0}")
    e(f"v_max_i32 v{t1}, 0, v{t1}")
    e(f"v_lshlrev_b32 v{vGl}, 4, v{t1}")
    e(f"v_ashrrev_i32 v{t1}, 5, v{t0}")
    e(f"v_and_b32 v{t2}, 1, v{t0}")
    e(f"v_lshl_add_u32 v{t1}, v{t1}, 1, v{t2}")
    e(f"v_bfe_u32 v{t3}, v{t0}, 1, 4")
    e(f"v_lshl_add_u32 v{t1}, v{t1}, 4, v{t3}")
    if typ == "Q":
        e(f"v_add_u32 v{t1}, 16, v{t1}")
        e(f"v_and_b32 v{t3}, 7, v{t3}")
        e(f"v_cmp_gt_i32 vcc, 0, v{t0}")
        e(f"v_lshl_add_u32 v{t3}, v{t2}, 3, v{t3}")
        e("s_nop 0")
        e(f"v_cndmask_b32 v{t1}, v{t1}, v{t3}, vcc")
    e(f"v_lshlrev_b32 v{vLs}, 3, v{t1}")
    e(f"v_add_u32 v{vLs}, {(Q_MISC+QM_ST) if typ == 'Q' else (F_MISC+FM_ST)}, v{vLs}")
    if typ == "Q":
        e(f"v_add_u32 v{t1}, 16, v{t0}")
        e(f"v_lshrrev_b32 v{t1}, 1, v{t1}")
        e(f"v_mul_u32_u24 v{t2}, 320, v{t2}")
        e(f"v_lshl_add_u32 v{vRs}, v{t1}, 2, v{t2}")
        e(f"v_add_u32 v{vRs}, {Q_MISC+QM_RK}, v{vRs}")
    e(f"s_bfe_u32 s{sT}, s2, 0x10001")
    e(f"s_lshl_b32 s{sT+1}, s{sRB}, 1")
    e(f"s_add_u32 s{sT}, s{sT}, s{sT+1}")
    e(f"s_lshl_b32 s{sFl}, s{sRB}, 11")
    e(f"s_add_u32 s{sFl}, s{sFl}, {FL_OFF}")
    e(f"s_lshl_b32 s{sSrcA}, s{sT}, 2")
    e(f"s_add_u32 s{sSrcA}, s{sSrcA}, s{sS}")
    e(f"s_mul_i32 s{sSrcA}, s{sSrcA}, {68*1024}")
    cg_of(sT, sT + 1)
    e(f"s_mul_i32 s{sSrcB}, s{sT}, 68")
    e(f"s_add_u32 s{sSrcB}, s{sSrcB}, s{sS}")
    e(f"s_mul_i32 s{sSrcB}, s{sSrcB}, 5120")
    e(f"s_add_u32 s{sSrcB}, s{sSrcB}, {B2_OFF}")
    e(f"s_mul_i32 s{sMB}, s{sS}, 5120")
    e(f"s_lshl_b32 s{sMA}, s{sS}, 12")
    e(f"s_add_u32 s{sMA}, s{sMA}, 20480")
    e(f"s_mov_b32 s{sOne}, 1")
    T0 = 0
    if "l" in OPT:
        RP = 3840 if typ == "Q" else 3072
        nl = 50 if typ == "Q" else 60
        e(f"s_lshl_b32 s{sT}, s{sRB}, 3")
        e(f"s_add_u32 s{sT+2}, s{sT}, s{sG}")
        e(f"s_mul_i32 s{sT}, s{sT+2}, {5*RP}")
        e(f"s_mul_i32 s{sT+1}, s{sS}, {nl*128}")
        e(f"s_add_u32 s{sT}, s{sT}, s{sT+1}")
        e(f"s_cmp_lt_u32 s{sT+2}, {TSKIP}")
        e(f"s_cselect_b32 s{sT}, 0x7f000000, s{sT}")
        e(f"s_cmp_ge_u32 s{sS}, {3 if typ == 'Q' else 2}")
        e(f"s_cselect_b32 s{sT}, 0x7f000000, s{sT}")
        e(f"s_mov_b32 s{sT+2}, -1")
        e(f"s_mov_b32 s{sT+3}, {hex((1 << (nl - 32)) - 1)}")
        e(f"s_mov_b64 exec, s[{sT+2}:{sT+3}]")
        e(f"buffer_load_dword v0, v{vFa}, s[{S_W}:{S_W+3}], s{sT} offen")
        e("s_mov_b64 exec, -1")
        Q1 = [1] * N + [2] * N + ["T"]
        if typ == "F":
            e(f"s_lshl_b32 s{sT}, s{sRB}, 3")
            e(f"s_add_u32 s{sT}, s{sT}, s{sG}")
            e(f"s_lshl_b32 s{sT}, s{sT}, 2")
            e(f"s_add_u32 s{sT}, s{sT}, s{sS}")
            e(f"s_lshl_b32 s99, s{sT}, 6")
            e(f"s_add_u32 s99, s99, {ST_OFF}")
            e(f"s_mul_i32 s{sT}, s{sT}, 5120")
            e(f"s_add_u32 s{sT+1}, s{sT}, 2560")
            for r in range(4):
                e(f"buffer_load_dwordx4 {vr(48+8*r,4)}, v{vL16}, s[{S_X}:{S_X+3}], s{sT+(r>>1)} offen offset:{1280*(r&1)}")
                e(f"buffer_load_dword v{52+8*r}, v{vSa}, s[{S_X}:{S_X+3}], s{sT+(r>>1)} offen offset:{1280*(r&1)+1024}")
            Q1 += ["R"] * 8

        def w1(tag):
            idx = [i for i, t in enumerate(Q1) if t == tag]
            if idx:
                e(f"s_waitcnt vmcnt({len(Q1) - 1 - idx[-1]})")
                del Q1[:idx[-1] + 1]
        T0 = 2 if typ == "Q" else 6
        rows = {1: [0], 2: [1], 3: [2], 4: [3]} if RSCHED == 0 else {1: [0, 1], 2: [2, 3]}
        for t in range(T0):
            w1(t + 1)
            e("s_barrier")
            if t in (0, 2, 5):
                stamp({0: 2, 2: 3, 5: 4}[t])
            p1_dma(typ)
            Q1 += [t + 3] * N
            if typ == "F":
                for r in rows.get(t, []):
                    w1("R")
                    row_stats(src=48 + 8 * r, goff=16 * r, wait=False, O=80 + 4 * r)
                    Q1.append("G")
    e(f"s_mov_b32 s{sIt}, {T0}")
    lab(f"L_ld{typ}_loop")
    e(f"s_waitcnt vmcnt({N})")
    e("s_barrier")
    if STAMP:
        for it_, ix in ((0, 2), (2, 3), (5, 4), (6, 6)):
            e(f"s_cmp_lg_u32 s{sIt}, {it_}")
            e(f"s_cbranch_scc1 L_ld{typ}_st{it_}")
            stamp(ix)
            lab(f"L_ld{typ}_st{it_}")
    ZONE[0] = "p1l"
    p1_dma(typ)
    ZONE[0] = ""
    e(f"s_add_u32 s{sIt}, s{sIt}, 1")
    e(f"s_cmp_lt_u32 s{sIt}, 7")
    e(f"s_cbranch_scc1 L_ld{typ}_loop")
    e(f"s_waitcnt vmcnt({N})")
    e("s_barrier")
    stamp(7)

    def ld_stats():
        e(f"s_mov_b32 s{sT}, {ST_OFF}")
        e(f"s_mov_b32 s{sT+2}, -1")
        e(f"s_mov_b32 s{sT+3}, {0xf if typ == 'Q' else 0}")
        e(f"s_mov_b64 exec, s[{sT+2}:{sT+3}]")
        e(f"buffer_load_dwordx4 {vr(vD,4)}, v{vGl}, s[{S_WS}:{S_WS+3}], s{sT} offen sc1")
    def ld_bflags():
        e(f"s_mov_b32 s{sT}, {FB_OFF if 'j' in OPT else FL_OFF + 8}")
        e(f"buffer_load_dwordx2 v[{vP}:{vP+1}], v{vE1}, s[{S_WS}:{S_WS+3}], s{sT} offen sc1")
    if NRS:
        ld_bflags()
    ld_stats()
    e(f"s_waitcnt vmcnt({2 if NRS else 1})")
    e("s_barrier")
    stamp(10)
    e("s_waitcnt vmcnt(0)")
    spin_check(vD + 2, sNo, ld_stats)
    e(f"ds_write_b64 v{vLs}, v[{vD}:{vD+1}]")
    if typ == "Q":
        e(f"ds_write_b32 v{vRs}, v{vD+1}")
    e("s_mov_b64 exec, -1")
    stamp(9)
    e("s_waitcnt lgkmcnt(0)")

    Qs = []

    def dmaB(k=None):
        e(f"s_add_u32 m0, s{sDst}, s{sMB}")
        e(f"s_add_u32 s{sT}, s{sSrcB}, 4096")
        ZONE[0] = "p2l"
        for i in range(4):
            e(f"buffer_load_dwordx4 v{vL16}, s[{S_WS}:{S_WS+3}], s{sSrcB} offen offset:{1024*i} sc1 lds")
        e(f"s_add_u32 m0, m0, 4096")
        e(f"s_add_u32 s{sSrcB}, s{sSrcB}, 20480")
        e(f"buffer_load_dwordx4 v{vL16}, s[{S_WS}:{S_WS+3}], s{sT} offen sc1 lds")
        ZONE[0] = ""
        Qs.extend([k] * 5)

    def dmaA(k=None):
        e(f"s_add_u32 m0, s{sDst}, s{sMA}")
        e("s_nop 0")
        ZONE[0] = "p2l"
        for i in range(4):
            e(f"buffer_load_dwordx4 v{vL16}, s[{S_WS}:{S_WS+3}], s{sSrcA} offen offset:{1024*i} sc1 lds")
        ZONE[0] = ""
        e(f"s_add_u32 s{sSrcA}, s{sSrcA}, 4096")
        Qs.extend([k] * 4)

    def stage(k=None):
        dmaB(k); dmaA(k)
        e(f"s_add_u32 s{sDst}, s{sDst}, {SLOT}")
        e(f"s_cmp_eq_u32 s{sDst}, {4*SLOT}")
        e(f"s_cselect_b32 s{sDst}, 0, s{sDst}")

    def wait_for(tag):
        idx = [i for i, t in enumerate(Qs) if t == tag]
        if idx:
            e(f"s_waitcnt vmcnt({len(Qs) - 1 - idx[-1]})")
            del Qs[:idx[-1] + 1]

    def load_flags():
        e("s_mov_b64 exec, 0xff")
        e(f"buffer_load_dwordx2 v[{vP+2}:{vP+3}], v{vFa}, s[{S_WS}:{S_WS+3}], s{sFl} offen offset:1024 sc1")

    PRE = 2 if typ == "Q" else 4
    vRB = 44
    RS = [PRE + 1 + (i * (16 - PRE)) // NRS for i in range(NRS)] if NRS else []
    sBaseB, sSrcR = sKW, sKX

    def reg_load(i0, i1):
        for i in range(i0, min(i1, 5 * NRS)):
            if i % 5 in (0, 4) or i == i0:
                e(f"s_add_u32 s{sSrcR}, s{sBaseB}, {RS[i//5]*20480 + (4096 if i % 5 == 4 else 0)}")
            e(f"buffer_load_dwordx4 {vr(vRB+4*i,4)}, v{vL16}, s[{S_WS}:{S_WS+3}], s{sSrcR} offen offset:{1024*(i%5%4) if i % 5 < 4 else 0} sc1")

    def putB(k):
        i0 = RS.index(k) * 5
        e(f"s_add_u32 s{sT}, s{sMB}, {(k%4)*SLOT}")
        e(f"v_add_u32 v{vT+6}, s{sT}, v{vL16}")
        for i in range(5):
            e(f"ds_write_b128 v{vT+6}, {vr(vRB+4*(i0+i),4)} offset:{1024*i}")
    if NRS:
        e(f"s_mov_b32 s{sBaseB}, s{sSrcB}")
        spin_check(vP, sNo, ld_bflags)
        stamp(8)
        reg_load(0, 10)
        e("s_barrier")
        stamp(11)
        reg_load(10, 15)
        e("s_barrier")
        reg_load(15, 99)
    else:
        ld_bflags()
        e("s_barrier")
        stamp(11)
        e("s_barrier")
        e("s_waitcnt vmcnt(0)")
        spin_check(vP, sNo, ld_bflags)
        stamp(8)
    PREB = PREBQ if typ == "Q" else PREBF
    for k in range(PREB):
        e(f"s_mov_b32 s{sDst}, {k*SLOT}")
        dmaB(k)
    if BPF:
        e(f"s_lshr_b32 s{sT}, s2, 5")
        e(f"s_lshl_b32 s{sT}, s{sT}, 2")
        e(f"s_add_u32 s{sT}, s{sT}, s{sS}")
        e(f"s_mul_i32 s{sT}, s{sT}, {85*128}")
        e(f"s_add_u32 s{sT}, s{sT}, s{sSrcB}")
        e(f"s_sub_u32 s{sT}, s{sT}, s{sMB}")
        e(f"s_sub_u32 s{sT}, s{sT}, {PREB*20480}")
        e(f"s_add_u32 s{sT+1}, s{sT}, 8192")
        e(f"buffer_load_dword v{vD}, v{vFa}, s[{S_WS}:{S_WS+3}], s{sT} offen sc1")
        e(f"s_mov_b64 exec, 0x1fffff")
        e(f"buffer_load_dword v{vD}, v{vFa}, s[{S_WS}:{S_WS+3}], s{sT+1} offen sc1")
        e("s_mov_b64 exec, -1")
    if typ == "Q":
        load_flags()
        e("s_mov_b64 exec, -1")
    e("s_barrier")
    if typ == "F":
        e(f"s_lshl_b32 s{sT}, s{sG}, 7")
        e(f"s_add_u32 s{sT}, s{sT}, s{sFl}")
        e(f"s_cmp_eq_u32 s{sS}, 0")
        e(f"s_cselect_b32 s{sT}, s{sT}, 0x7f000000")
        e(f"v_mov_b32 v{vT}, s{sNo}")
        e(f"v_mov_b32 v{vT+1}, s{sNo+1}")
        e(f"v_mov_b32 v{vT+2}, 0")
        e("s_mov_b64 exec, 1")
        e(f"buffer_store_dwordx2 v[{vT}:{vT+1}], v{vT+2}, s[{S_WS}:{S_WS+3}], s{sT} offen offset:1024 sc1")
        e("s_mov_b64 exec, -1")
        for k in range(PREB, PRE):
            e(f"s_mov_b32 s{sDst}, {k*SLOT}")
            dmaB(k)
        load_flags()
    e("s_waitcnt vmcnt(0)")
    del Qs[:]
    if typ == "Q":
        for k in range(PREB, PRE):
            e(f"s_mov_b32 s{sDst}, {k*SLOT}")
            dmaB(k)
    e("s_mov_b64 exec, 0xff")
    spin_check(vP + 2, sNo, load_flags)
    e("s_mov_b64 exec, -1")
    stamp(5)
    for k in range(PRE):
        e(f"s_mov_b32 s{sDst}, {k*SLOT}")
        dmaA(k)
    e(f"s_mov_b32 s{sDst}, {(PRE % 4)*SLOT}")
    srd(S_R, 38, 1280)
    e(f"v_mul_u32_u24 v{vT}, 26, v{vLane}")
    e(f"v_lshrrev_b32 v{vT}, 8, v{vT}")
    e(f"v_mul_u32_u24 v{vT+1}, 10, v{vT}")
    e(f"v_sub_u32 v{vT+1}, v{vLane}, v{vT+1}")
    e(f"v_mul_u32_u24 v{vT}, 2560, v{vT}")
    e(f"v_lshl_add_u32 v{vT}, v{vT+1}, 4, v{vT}")
    e(f"v_lshlrev_b32 v{vT+1}, 3, v{vLane}")
    e(f"v_add_u32 v{vT+1}, {B2L}, v{vT+1}")
    e(f"s_mov_b32 s{sMaskH}, -1")
    e(f"s_mov_b32 s{sMaskH+1}, 0xff")
    issued = PRE
    NUN = 14 if NRS else 5
    for T in range(NUN):
        wait_for(T)
        if NRS and T != 4:
            e("s_waitcnt lgkmcnt(0)")
        if T == 4:
            wait_for("X")
            e(f"v_lshlrev_b32 v{vT+4}, 16, v{vD}")
            e(f"v_and_b32 v{vT+5}, 0xffff0000, v{vD}")
            e(f"s_mov_b64 exec, s[{sMaskH}:{sMaskH+1}]")
            e(f"ds_write_b64 v{vT+1}, v[{vT+4}:{vT+5}]")
            e("s_mov_b64 exec, -1")
            e("s_waitcnt lgkmcnt(0)")
        e("s_barrier")
        puts = []
        while issued <= T + 3:
            if issued in RS:
                dmaA(issued)
                e(f"s_add_u32 s{sSrcB}, s{sSrcB}, 20480")
                e(f"s_mov_b32 s{sDst}, {((issued+1)%4)*SLOT}")
                puts.append(issued)
            else:
                stage(issued)
            issued += 1
        for k_ in puts:
            putB(k_)
        if T == 0:
            p2_rowcol(sT, sT + 1)
            e(f"s_mul_i32 s{sT+2}, s{sS}, 2560")
            e(f"s_add_u32 m0, s{sT+2}, {X2}")
            e(f"s_mov_b64 exec, s[{sMaskH}:{sMaskH+1}]")
            for i in range(4):
                e(f"s_add_u32 s{sT+4}, s{sT}, {i*(4*2560-640)}")
                e(f"buffer_load_dwordx4 v{vT}, s[{S_X}:{S_X+3}], s{sT+4} offen offset:{640*i} lds")
            e(f"buffer_load_dword v{vD}, v{vSa}, s[{S_R}:{S_R+3}], s{sT+1} offen")
            e("s_mov_b64 exec, -1")
            Qs.extend(["X"] * 5)
    if not NRS:
        e(f"s_mov_b32 s{sIt}, {NUN}")
        lab(f"L_ld{typ}_p2b")
        e(f"s_waitcnt vmcnt({2*N2})")
        e("s_barrier")
        stage()
        e(f"s_add_u32 s{sIt}, s{sIt}, 1")
        e(f"s_cmp_lt_u32 s{sIt}, 14")
        e(f"s_cbranch_scc1 L_ld{typ}_p2b")
    for T in range(14, 17):
        if NRS:
            wait_for(T)
            e("s_waitcnt lgkmcnt(0)")
        else:
            e(f"s_waitcnt vmcnt({(16-T)*N2})")
        e("s_barrier")
    e("s_mov_b64 exec, -1")
    if AMP:
        ai, ak = AMP
        stamp(13)
        e(f"s_sub_u32 s{sT}, s{sSt+ai}, s{sSt}")
        e(f"s_mul_i32 s{sT}, s{sT}, {ak}")
        lab(f"L_amp{typ}")
        e("s_memrealtime s[100:101]")
        e("s_waitcnt lgkmcnt(0)")
        e(f"s_sub_u32 s{sT+1}, s100, s{sSt+13}")
        e(f"s_cmp_lt_u32 s{sT+1}, s{sT}")
        e(f"s_cbranch_scc1 L_amp{typ}")
        e("s_endpgm")
    stamp_flush()
    e("s_endpgm")


def cg_of(sd, st):
    e(f"s_and_b32 s{sd}, s2, 1")
    e(f"s_lshl_b32 s{sd}, s{sd}, 2")
    e(f"s_bfe_u32 s{st}, s2, 0x20003")
    e(f"s_add_u32 s{sd}, s{sd}, s{st}")


def p2_rowcol(sd, sc):
    e(f"s_bfe_u32 s{sd}, s2, 0x10001")
    e(f"s_lshl_b32 s{sc}, s{sRB}, 1")
    e(f"s_add_u32 s{sd}, s{sd}, s{sc}")
    e(f"s_lshl_b32 s{sd}, s{sd}, 6")
    e(f"s_lshr_b32 s{sc}, s{sS}, 1")
    e(f"s_lshl_b32 s{sc}, s{sc}, 5")
    e(f"s_add_u32 s{sd}, s{sd}, s{sc}")
    e(f"s_and_b32 s{sc}, s{sS}, 1")
    e(f"s_add_u32 s{sd}, s{sd}, s{sc}")
    e(f"s_mul_i32 s{sd}, s{sd}, 1280")
    cg_of(sc, sd + 2)
    e(f"s_mul_i32 s{sc}, s{sc}, 160")
    e(f"s_add_u32 s{sd}, s{sd}, s{sc}")


def p2_compute():
    vAl, vBl, vAa, vBa = 10, 11, 12, 13
    vF, vS = 32, 44
    vFr = 56
    vPo, vFo = 8, 15
    ICHK = 9
    lab("L_p2")
    e(f"v_lshlrev_b32 v{vBl}, 4, v{vLane}")
    e(f"s_lshl_b32 s{sT}, s{sS}, 12")
    e(f"s_add_u32 s{sT}, s{sT}, 20480")
    e(f"v_add_u32 v{vAl}, s{sT}, v{vBl}")
    for r in range(24):
        e(f"v_mov_b32 v{vF+r}, 0")
    e(f"s_mov_b32 s{sCur}, 0")
    e(f"s_mov_b32 s{sIt}, 0")
    e(f"v_lshlrev_b32 v{vFo}, 7, v{vLane}")
    e(f"s_lshl_b32 s{sJ}, s{sRB}, 11")
    e(f"s_add_u32 s{sJ}, s{sJ}, {FL_OFF}")
    srd(S_DBG, 66, 256)
    stamp(9)
    e(f"s_cmp_ge_u32 s{sWave}, 4")
    e("s_cbranch_scc1 L_p2_1")
    for hf in range(2):
        nu = 3 if hf == 0 else 2
        u0 = 0 if hf == 0 else 3

        def fr(st, ks, i):
            return vFr + ((st * 2 + ks) * (1 + nu) + i) * 4

        def half(st, accprev, nomf=False):
            if st == 0:
                e(f"v_add_u32 v{vAa}, s{sCur}, v{vAl}")
                e(f"v_add_u32 v{vBa}, s{sCur}, v{vBl}")
            e("s_waitcnt lgkmcnt(0)")
            if st == 0:
                e("s_barrier")
            rds = []
            for ks in range(2):
                kk = 2 * st + ks
                rds.append(f"ds_read_b128 {vr(fr(st,ks,0),4)}, v{vAa} offset:{1024*kk}")
                for i in range(nu):
                    rds.append(f"ds_read_b128 {vr(fr(st,ks,1+i),4)}, v{vBa} offset:{(kk*5+u0+i)*1024}")
            ms = []
            if not nomf:
                for ks in range(2):
                    for i in range(nu):
                        a = accprev + 4 * i
                        ms.append(f"v_mfma_f32_16x16x32_bf16 {vr(a,4)}, {vr(fr(1-st,ks,1+i),4)}, {vr(fr(1-st,ks,0),4)}, {vr(a,4)}")
            ZONE[0] = "p2c"
            e(rds.pop(0)); e(rds.pop(0))
            for m in ms:
                e(m)
                if rds:
                    e(rds.pop(0))
            for x in rds:
                e(x)
            ZONE[0] = ""
            if st == 1:
                e(f"s_add_u32 s{sCur}, s{sCur}, {SLOT}")
                e(f"s_cmp_eq_u32 s{sCur}, {4*SLOT}")
                e(f"s_cselect_b32 s{sCur}, 0, s{sCur}")
                e(f"s_add_u32 s{sIt}, s{sIt}, 1")

        lab(f"L_p2_{hf}")
        half(0, vF, nomf=True)
        stamp(10)
        half(1, vF)
        e("s_waitcnt vmcnt(0)")
        lab(f"L_p2_{hf}_h")
        if hf == 0:
            def ld_o():
                e("s_mov_b64 exec, 0xff")
                e(f"buffer_load_dwordx2 v[{vPo}:{vPo+1}], v{vFo}, s[{S_WS}:{S_WS+3}], s{sJ} offen sc1")
            e(f"s_cmp_lg_u32 s{sWave}, 0")
            e(f"s_cbranch_scc1 L_p2_nv")
            e(f"s_cmp_lg_u32 s{sIt}, 2")
            e(f"s_cbranch_scc1 L_p2_n2")
            e(f"s_lshl_b32 s{sT}, s{sG}, 7")
            e(f"s_add_u32 s{sT}, s{sT}, s{sJ}")
            e("s_bitcmp1_b32 s2, 3")
            e(f"s_cselect_b32 s{sT}, 0x7f000000, s{sT}")
            e(f"v_mov_b32 v{vT}, s{sNo}")
            e(f"v_mov_b32 v{vT+1}, s{sNo+1}")
            e(f"v_mov_b32 v{vT+2}, 0")
            e("s_mov_b64 exec, 1")
            e(f"buffer_store_dwordx2 v[{vT}:{vT+1}], v{vT+2}, s[{S_WS}:{S_WS+3}], s{sT} offen sc1")
            e("s_mov_b64 exec, -1")
            lab("L_p2_n2")
            e(f"s_cmp_lg_u32 s{sIt}, {ICHK-2}")
            e(f"s_cbranch_scc1 L_p2_n3")
            ld_o()
            e("s_mov_b64 exec, -1")
            lab("L_p2_n3")
            e(f"s_cmp_lg_u32 s{sIt}, {ICHK}")
            e(f"s_cbranch_scc1 L_p2_nv")
            e("s_waitcnt vmcnt(0)")
            e("s_mov_b64 exec, 0xff")
            spin_check(vPo, sNo, ld_o)
            e(f"s_lshl_b32 s{sT}, s{sRB}, 2")
            e(f"s_and_b32 s{sT+1}, s2, 0x1b")
            e(f"s_cmp_eq_u32 s{sT+1}, 0")
            e(f"s_cselect_b32 s{sT}, s{sT}, 0x1000")
            e(f"v_mov_b32 v{vT}, 1")
            e(f"v_mov_b32 v{vT+1}, 0")
            e("s_mov_b64 exec, 1")
            e(f"buffer_store_dword v{vT}, v{vT+1}, s[{S_DBG}:{S_DBG+3}], s{sT} offen sc1")
            e("s_mov_b64 exec, -1")
            lab("L_p2_nv")
        half(0, vF)
        half(1, vF)
        e(f"s_cmp_lt_u32 s{sIt}, 12")
        e(f"s_cbranch_scc1 L_p2_{hf}_h")
        half(0, vF)
        nel = 4 * nu
        cb = 4 * u0
        vG, vSl = vT, vT + 1
        vBb, vXx, vE, vXf = 128, 160, 140, 128
        e(f"v_lshrrev_b32 v{vG}, 4, v{vLane}")
        e(f"v_and_b32 v{vSl}, 15, v{vLane}")
        e(f"v_mul_u32_u24 v{vT+2}, 80, v{vG}")
        e(f"v_add_u32 v{vT+2}, {B2L+4*cb}, v{vT+2}")
        e(f"v_mul_u32_u24 v{vT+3}, 160, v{vSl}")
        e(f"v_mul_u32_u24 v{vT+4}, 40, v{vG}")
        e(f"s_mul_i32 s{sT}, s{sS}, 2560")
        e(f"s_add_u32 s{sT}, s{sT}, {X2+2*cb}")
        e(f"v_add3_u32 v{vT+3}, v{vT+3}, v{vT+4}, s{sT}")
        e(f"v_mul_u32_u24 v{vT+5}, 2560, v{vSl}")
        e(f"v_add_u32 v{vT+5}, v{vT+5}, v{vT+4}")
        for i in range(nu):
            e(f"ds_read_b128 {vr(vBb+4*i,4)}, v{vT+2} offset:{16*i}")
        for i in range(nu):
            e(f"ds_read_b64 {vr(vXx+2*i,2)}, v{vT+3} offset:{8*i}")
        half(1, vS)
        e(f"s_mov_b32 s{sT+1}, {f32(-1.4426950408889634)}")
        for r in range(nel):
            e(f"v_add_f32 v{vF+r}, v{vF+r}, v{vBb+r}")
        for r in range(nel):
            e(f"v_mul_f32 v{vE+r}, s{sT+1}, v{vF+r}")
        for r in range(nel):
            e(f"v_exp_f32 v{vE+r}, v{vE+r}")
        for d in range(nel // 2):
            e(f"v_lshlrev_b32 v{vXf+2*d}, 16, v{vXx+d}")
            e(f"v_and_b32 v{vXf+2*d+1}, 0xffff0000, v{vXx+d}")
        for r in range(nel):
            e(f"v_add_f32 v{vE+r}, 1.0, v{vE+r}")
        for r in range(nel):
            e(f"v_rcp_f32 v{vE+r}, v{vE+r}")
        p2_rowcol(sT, sT + 1)
        srd(S_R, 64, 2048 * 1280)
        e(f"v_lshlrev_b32 v{vT+9}, 2, v{vLane}")
        if "f" in OPT:
            e(f"s_mul_i32 s{sT+2}, s{sS}, 2560")
            e(f"s_add_u32 s{sT+2}, s{sT+2}, {X2+1280*hf}")
            e(f"v_lshlrev_b32 v{vT+6}, 4, v{vLane}")
            e(f"v_mul_u32_u24 v{vT+7}, 26, v{vLane}")
            e(f"v_lshrrev_b32 v{vT+7}, 8, v{vT+7}")
            e(f"v_mul_u32_u24 v{vT+7}, {2560-160}, v{vT+7}")
            e(f"v_add3_u32 v{vT+7}, v{vT+7}, v{vT+6}, 0")
            e(f"v_add_u32 v{vT+7}, {8*2560*hf}, v{vT+7}")
            e(f"v_add_u32 v{vT+6}, s{sT+2}, v{vT+6}")
        if "o" in OPT:
            e(f"s_mov_b32 s{sT+2}, -1")
            e(f"s_mov_b32 s{sT+3}, 0xff")
            e(f"s_add_u32 s{sT+1}, s{sT}, {4*2560}")
            e(f"s_mov_b64 exec, s[{sT+2}:{sT+3}]")
            e(f"buffer_store_dwordx4 {vr(vXx,4)}, v{vT+7}, s[{S_R}:{S_R+3}], s{sT} offen{OUTPOL}")
            e(f"buffer_store_dwordx4 {vr(vXx,4)}, v{vT+7}, s[{S_R}:{S_R+3}], s{sT+1} offen{OUTPOL}")
            e("s_mov_b64 exec, -1")
        for r in range(nel):
            e(f"v_mul_f32 v{vF+r}, v{vF+r}, v{vE+r}")
        lab(f"L_p2_{hf}_o")
        if hf == 1:
            e(f"s_or_b32 s{sT+2}, s{sS}, s2")
            e(f"s_cmp_lg_u32 s{sT+2}, 0")
            e("s_cbranch_scc1 L_nonce_skip")

            def ld_dbg():
                e(f"buffer_load_dword v{vT+8}, v{vT+9}, s[{S_DBG}:{S_DBG+3}], 0 offen sc1")
            e("s_mov_b64 exec, 0xffff")
            e(f"s_cmp_lg_u32 s{sIt}, 13")
            e("s_cbranch_scc1 L_nonce_b")
            ld_dbg()
            lab("L_nonce_b")
            e(f"s_cmp_lg_u32 s{sIt}, 15")
            e("s_cbranch_scc1 L_nonce_c")
            e(f"s_mov_b32 s{sT+6}, 1")
            e("s_waitcnt vmcnt(0)")
            spin_check(vT + 8, sT + 6, ld_dbg, wide=False)
            e(f"v_mov_b32 v{vT+10}, s{sNo}")
            e(f"v_mov_b32 v{vT+11}, s{sNo+1}")
            e(f"s_mov_b32 s{sT+2}, {NONCE_OFF}")
            e("s_mov_b64 exec, 1")
            e(f"buffer_store_dwordx2 v[{vT+10}:{vT+11}], v{vT+9}, s[{S_WS}:{S_WS+3}], s{sT+2} offen sc1")
            lab("L_nonce_c")
            e("s_mov_b64 exec, -1")
            lab("L_nonce_skip")
        half(0, vS)
        half(1, vS)
        e(f"s_cmp_lt_u32 s{sIt}, 17")
        e(f"s_cbranch_scc1 L_p2_{hf}_o")
        e("s_waitcnt lgkmcnt(0)")
        for ks in range(2):
            for i in range(nu):
                a = vS + 4 * i
                e(f"v_mfma_f32_16x16x32_bf16 {vr(a,4)}, {vr(fr(1,ks,1+i),4)}, {vr(fr(1,ks,0),4)}, {vr(a,4)}")
        stamp(11)
        e("s_nop 7")
        for r in range(nel):
            e(f"v_fmac_f32 v{vXf+r}, v{vF+r}, v{vS+r}")
        for d in range(nel // 2):
            e(f"v_cvt_pk_bf16_f32 v{vE+d}, v{vXf+2*d}, v{vXf+2*d+1}")
        if "f" in OPT:
            for i in range(nu):
                e(f"ds_write_b64 v{vT+3}, {vr(vE+2*i,2)} offset:{8*i}")
            e(f"s_mov_b32 s{sT+2}, -1")
            e(f"s_mov_b32 s{sT+3}, 0xff")
            e(f"s_add_u32 s{sT+1}, s{sT}, {4*2560}")
            e("s_waitcnt vmcnt(0) lgkmcnt(0)" if "o" in OPT else "s_waitcnt lgkmcnt(0)")
            e("s_barrier")
            e(f"s_mov_b64 exec, s[{sT+2}:{sT+3}]")
            e(f"ds_read_b128 {vr(vE,4)}, v{vT+6}")
            e(f"ds_read_b128 {vr(vE+4,4)}, v{vT+6} offset:640")
            e("s_waitcnt lgkmcnt(1)")
            e(f"buffer_store_dwordx4 {vr(vE,4)}, v{vT+7}, s[{S_R}:{S_R+3}], s{sT} offen{OUTPOL}")
            e("s_waitcnt lgkmcnt(0)")
            e(f"buffer_store_dwordx4 {vr(vE+4,4)}, v{vT+7}, s[{S_R}:{S_R+3}], s{sT+1} offen{OUTPOL}")
            e("s_mov_b64 exec, -1")
        else:
            e(f"buffer_store_dwordx4 {vr(vE,4)}, v{vT+5}, s[{S_R}:{S_R+3}], s{sT} offen offset:{2*cb}")
            if hf == 0:
                e(f"buffer_store_dwordx2 {vr(vE+4,2)}, v{vT+5}, s[{S_R}:{S_R+3}], s{sT} offen offset:16")
        stamp(12)
        stamp_flush()
        e("s_endpgm")


def wave_sum(v, t):
    for ctl in ("quad_perm:[1,0,3,2]", "quad_perm:[2,3,0,1]", "row_half_mirror", "row_mirror"):
        e("s_nop 1")
        e(f"v_add_f32_dpp v{v}, v{v}, v{v} {ctl} row_mask:0xf bank_mask:0xf")
    for sw in ("v_permlane16_swap_b32", "v_permlane32_swap_b32"):
        e(f"v_mov_b32 v{t}, v{v}")
        e("s_nop 1")
        e(f"{sw} v{v}, v{t}")
        e("s_nop 0")
        e(f"v_add_f32 v{v}, v{v}, v{t}")


def wave_sum2(a, b, ta, tb):
    for ctl in ("quad_perm:[1,0,3,2]", "quad_perm:[2,3,0,1]", "row_half_mirror", "row_mirror"):
        e("s_nop 0")
        e(f"v_add_f32_dpp v{a}, v{a}, v{a} {ctl} row_mask:0xf bank_mask:0xf")
        e(f"v_add_f32_dpp v{b}, v{b}, v{b} {ctl} row_mask:0xf bank_mask:0xf")
    for sw in ("v_permlane16_swap_b32", "v_permlane32_swap_b32"):
        e(f"v_mov_b32 v{ta}, v{a}")
        e(f"v_mov_b32 v{tb}, v{b}")
        e("s_nop 1")
        e(f"{sw} v{a}, v{ta}")
        e(f"{sw} v{b}, v{tb}")
        e("s_nop 0")
        e(f"v_add_f32 v{a}, v{a}, v{ta}")
        e(f"v_add_f32 v{b}, v{b}, v{tb}")


def w_touch(typ):
    if not TOUCH2 or "e" in OPT:
        return
    RP = 3840 if typ == "Q" else 3072
    nl = 50 if typ == "Q" else 60
    e(f"s_cmp_ge_u32 s{sWave}, {3 if typ == 'Q' else 2}")
    e(f"s_cbranch_scc1 L_notouch{typ}")
    e(f"v_lshlrev_b32 v{vXF+10}, 7, v{vLane}")
    srd(S_R, 6 if typ == "Q" else 32, 640 * RP)
    e(f"s_lshl_b32 s{sT}, s{sRB}, 3")
    e(f"s_add_u32 s{sT}, s{sT}, s{sG}")
    e(f"s_cmp_lt_u32 s{sT}, {TSKIP}")
    e(f"s_cbranch_scc1 L_notouch{typ}")
    e(f"s_mul_i32 s{sT}, s{sT}, {5*RP}")
    e(f"s_mul_i32 s{sT+1}, s{sWave}, {nl*128}")
    e(f"s_add_u32 s{sT}, s{sT}, s{sT+1}")
    e(f"s_mov_b32 s{sT+2}, -1")
    e(f"s_mov_b32 s{sT+3}, {hex((1 << (nl - 32)) - 1)}")
    e(f"s_mov_b64 exec, s[{sT+2}:{sT+3}]")
    e(f"buffer_load_dword v0, v{vXF+10}, s[{S_R}:{S_R+3}], s{sT} offen")
    e("s_mov_b64 exec, -1")
    lab(f"L_notouch{typ}")


def w_touch_early(typ):
    RP = 3840 if typ == "Q" else 3072
    nl = 50 if typ == "Q" else 60
    e(f"v_lshlrev_b32 v{vXF+10}, 7, v{vLane}")
    srd(S_R, 6 if typ == "Q" else 32, 640 * RP)
    e(f"s_lshl_b32 s{sT}, s{sRB}, 3")
    e(f"s_add_u32 s{sT+2}, s{sT}, s{sG}")
    e(f"s_mul_i32 s{sT}, s{sT+2}, {5*RP}")
    e(f"s_mul_i32 s{sT+1}, s{sWave}, {nl*128}")
    e(f"s_add_u32 s{sT}, s{sT}, s{sT+1}")
    e(f"s_cmp_lt_u32 s{sT+2}, {TSKIP}")
    e(f"s_cselect_b32 s{sT}, 0x7f000000, s{sT}")
    e(f"s_cmp_ge_u32 s{sWave}, {3 if typ == 'Q' else 2}")
    e(f"s_cselect_b32 s{sT}, 0x7f000000, s{sT}")
    e(f"s_mov_b32 s{sT+2}, -1")
    e(f"s_mov_b32 s{sT+3}, {hex((1 << (nl - 32)) - 1)}")
    e(f"s_mov_b64 exec, s[{sT+2}:{sT+3}]")
    e(f"buffer_load_dword v0, v{vXF+10}, s[{S_R}:{S_R+3}], s{sT} offen")
    e("s_mov_b64 exec, -1")


def ejob_issue():
    sKS, sCGj, sBase, sJa, sJb, sP, sTt = sWoff, sXoff, sHoff, sMaskH, sMaskH + 1, sCur, 98
    e(f"s_lshl_b32 s{sT}, s2, 1")
    e(f"s_add_u32 s{sT}, s{sT}, s{sWave}")
    e(f"s_add_u32 s{sT+1}, s2, 512")
    e(f"s_cmp_eq_u32 s{sWave}, 2")
    e(f"s_cselect_b32 s{sT}, s{sT+1}, s{sT}")
    e(f"s_mov_b32 s{sKX}, 0")
    e(f"s_cmp_gt_u32 s{sWave}, 2")
    e("s_cbranch_scc1 L_ej_none")
    e(f"s_cmp_ge_u32 s{sT}, 544")
    e("s_cbranch_scc1 L_ej_none")
    e(f"s_mov_b32 s{sKX}, 1")
    e(f"s_mul_i32 s{sKW}, s{sT}, 5120")
    e(f"s_add_u32 s{sKW}, s{sKW}, {B2_OFF}")
    e(f"s_mul_i32 s{sCGj}, s{sT}, 241")
    e(f"s_lshr_b32 s{sCGj}, s{sCGj}, 14")
    e(f"s_mul_i32 s{sKS}, s{sCGj}, 68")
    e(f"s_sub_u32 s{sKS}, s{sT}, s{sKS}")
    e(f"s_sub_u32 s{sT}, s{sKS}, 48")
    e(f"s_mul_i32 s{sP}, s{sT}, 52")
    e(f"s_lshr_b32 s{sP}, s{sP}, 8")
    e(f"s_mul_i32 s{sTt}, s{sP}, 5")
    e(f"s_sub_u32 s{sTt}, s{sT}, s{sTt}")
    e(f"s_mul_i32 s{sP}, s{sP}, 160")
    e(f"s_lshr_b32 s{sBase}, s{sTt}, 1")
    e(f"s_mul_i32 s{sBase}, s{sBase}, 80")
    e(f"s_and_b32 s{sJa}, s{sTt}, 1")
    e(f"s_lshl_b32 s{sJa}, s{sJa}, 3")
    e(f"s_add_u32 s{sBase}, s{sBase}, s{sJa}")
    e(f"s_cmp_eq_u32 s{sTt}, 4")
    e(f"s_cselect_b32 s{sBase}, 16, s{sBase}")
    e(f"s_cselect_b32 s{sJa}, 40, 20")
    e(f"s_cselect_b32 s{sJb}, 20, 4")
    e(f"s_add_u32 s{sBase}, s{sBase}, s{sP}")
    e(f"s_lshl_b32 s{sP}, s{sKS}, 5")
    e(f"s_mov_b32 s{S_R+2}, {640*1280}")
    e(f"s_cmp_ge_u32 s{sKS}, 48")
    e(f"s_cselect_b32 s{sBase}, s{sBase}, s{sP}")
    e(f"s_cselect_b32 s{sJa}, s{sJa}, 4")
    e(f"s_cselect_b32 s{sJb}, s{sJb}, 16")
    e(f"s_cselect_b32 s{S_R}, s28, s36")
    e(f"s_cselect_b32 s{S_R+1}, s29, s37")
    e(f"s_cselect_b32 s{S_R+2}, s{S_R+2}, {1536*1280}")
    e(f"s_and_b32 s{S_R+1}, s{S_R+1}, 0xffff")
    e(f"s_mov_b32 s{S_R+3}, 0x00020000")
    e(f"s_mul_i32 s{sBase}, s{sBase}, 1280")
    e(f"s_mul_i32 s{sP}, s{sCGj}, 160")
    e(f"s_add_u32 s{sBase}, s{sBase}, s{sP}")
    e(f"s_mul_i32 s{sJa}, s{sJa}, 1280")
    e(f"s_mul_i32 s{sJb}, s{sJb}, 1280")
    e(f"s_mul_i32 s{sP}, s{sWave}, 5120")
    e(f"s_add_u32 m0, s{sP}, {EJ_LDS}")
    for i in range(5):
        q, rho, t1 = vWF + 8, vWF + 9, vWF + 10
        e(f"v_add_u32 v{q}, {64*i}, v{vLane}")
        e(f"v_mul_u32_u24 v{rho}, 205, v{q}")
        e(f"v_lshrrev_b32 v{rho}, 11, v{rho}")
        e(f"v_mul_u32_u24 v{t1}, 10, v{rho}")
        e(f"v_sub_u32 v{q}, v{q}, v{t1}")
        e(f"v_and_b32 v{t1}, 3, v{rho}")
        e(f"v_mul_u32_u24 v{t1}, 1280, v{t1}")
        e(f"v_lshl_add_u32 v{q}, v{q}, 4, v{t1}")
        e(f"v_bfe_u32 v{t1}, v{rho}, 2, 2")
        e(f"v_mad_u32_u24 v{q}, v{t1}, s{sJa}, v{q}")
        e(f"v_lshrrev_b32 v{t1}, 4, v{rho}")
        e(f"v_mad_u32_u24 v{q}, v{t1}, s{sJb}, v{q}")
        e(f"buffer_load_dwordx4 v{q}, s[{S_R}:{S_R+3}], s{sBase} offen lds")
        e(f"s_add_u32 m0, m0, 1024")
    lab("L_ej_none")


def ejob_proc(typ):
    e(f"s_cmp_eq_u32 s{sKX}, 0")
    e(f"s_cbranch_scc1 L_ejp_none{typ}")
    a, l16 = vWF + 8, vWF + 9
    e(f"v_lshrrev_b32 v{a}, 2, v{vLane}")
    e(f"v_mul_u32_u24 v{a}, 160, v{a}")
    e(f"v_and_b32 v{l16}, 3, v{vLane}")
    e(f"v_mul_u32_u24 v{l16}, 40, v{l16}")
    e(f"s_mul_i32 s{sT}, s{sWave}, 5120")
    e(f"s_add_u32 s{sT}, s{sT}, {EJ_LDS}")
    e(f"v_add3_u32 v{a}, v{a}, v{l16}, s{sT}")
    e(f"v_lshlrev_b32 v{l16}, 4, v{vLane}")
    e(f"s_add_u32 s{sT+1}, s{sKW}, 4096")
    for U in range(5):
        for h in range(2):
            e(f"ds_read_b64_tr_b16 {vr(vXF+4*U+2*h,2)}, v{a} offset:{8*U+2560*h}")
    for U in range(5):
        e(f"s_waitcnt lgkmcnt({2*(4-U)})")
        e(f"buffer_store_dwordx4 {vr(vXF+4*U,4)}, v{l16}, s[{S_WS}:{S_WS+3}], s{sKW if U < 4 else sT+1} offen offset:{1024*(U&3)} sc1")
    lab(f"L_ejp_none{typ}")


def row_stats(src=vXF, goff=0, wait=True, O=vXF + 28):
    U = [vXF + 12 + i for i in range(10)]
    M = vXF + 24
    if wait:
        e("s_waitcnt vmcnt(1)" if "e" in OPT else "s_waitcnt vmcnt(0)")
    for d in range(5):
        e(f"v_lshlrev_b32 v{U[2*d]}, 16, v{src+d}")
        e(f"v_and_b32 v{U[2*d+1]}, 0xffff0000, v{src+d}")
    e(f"v_add_f32 v{M}, v{U[0]}, v{U[1]}")
    e(f"v_add_f32 v{M+1}, v{U[2]}, v{U[3]}")
    for k in range(4, 10, 2):
        e(f"v_add_f32 v{M}, v{M}, v{U[k]}")
        e(f"v_add_f32 v{M+1}, v{M+1}, v{U[k+1]}")
    e(f"v_add_f32 v{M}, v{M}, v{M+1}")
    wave_sum(M, M + 1)
    e(f"v_mul_f32 v{O}, {f32(-1.0/640)}, v{M}")
    for k in range(10):
        e(f"v_add_f32 v{U[k]}, v{U[k]}, v{O}")
    e(f"v_mul_f32 v{M}, v{U[0]}, v{U[0]}")
    e(f"v_mul_f32 v{M+1}, v{U[1]}, v{U[1]}")
    for k in range(2, 10, 2):
        e(f"v_fmac_f32 v{M}, v{U[k]}, v{U[k]}")
        e(f"v_fmac_f32 v{M+1}, v{U[k+1]}, v{U[k+1]}")
    e(f"v_add_f32 v{M}, v{M}, v{M+1}")
    wave_sum(M, M + 1)
    e(f"v_mov_b32 v{M+1}, {f32(1e-5)}")
    e(f"v_fmac_f32 v{M+1}, {f32(1.0/640)}, v{M}")
    e(f"v_rsq_f32 v{O+1}, v{M+1}")
    e(f"v_mov_b32 v{O+2}, s{sNo}")
    e(f"v_mov_b32 v{O+3}, s{sNo+1}")
    e(f"v_mov_b32 v{M}, 0")
    e("s_mov_b64 exec, 1")
    e(f"buffer_store_dwordx4 {vr(O,4)}, v{M}, s[{S_WS}:{S_WS+3}], s99 offen offset:{goff} sc1")
    e("s_mov_b64 exec, -1")


def cfg_lookup(cfg):
    def tab(f):
        return hex(sum((f(c) & 15) << (4 * i) for i, c in enumerate(cfg)))
    e(f"s_lshl_b32 s{sT}, s{sWave}, 2")
    for dst, f in ((sRh, lambda c: c[0]), (sU0, lambda c: c[1]), (sH0, lambda c: c[1] + c[3]), (sNH, lambda c: c[4]), (sNU, lambda c: c[2])):
        e(f"s_lshr_b32 s{dst}, {tab(f)}, s{sT}")
        e(f"s_and_b32 s{dst}, s{dst}, 15")


def gen():
    K = NAME + "_kernel"
    L.append(f".globl {K}")
    L.append(".p2align 8")
    L.append(f".type {K},@function")
    lab(K)
    e("s_cmp_ge_u32 s2, 256")
    e("s_cbranch_scc1 L_end")
    stamp(0)
    stamp(14, real=True)
    e("s_load_dwordx4 s[4:7], s[0:1], 0")
    e("s_load_dwordx8 s[32:39], s[0:1], 32")
    e("s_load_dwordx2 s[28:29], s[0:1], 16")
    e("s_load_dwordx4 s[64:67], s[0:1], 64")
    e("s_load_dwordx2 s[68:69], s[0:1], 80")
    e(f"v_lshrrev_b32 v{vT}, 6, v0")
    e(f"v_and_b32 v{vLane}, 63, v0")
    e(f"v_readfirstlane_b32 s{sWave}, v{vT}")
    e(f"s_and_b32 s{sT}, s2, 3")
    e(f"s_lshl_b32 s{sT}, s{sT}, 1")
    e(f"s_bfe_u32 s{sG}, s2, 0x10004")
    e(f"s_add_u32 s{sG}, s{sG}, s{sT}")
    e(f"s_bfe_u32 s{sT}, s2, 0x10002")
    e(f"s_lshl_b32 s{sT}, s{sT}, 3")
    e(f"s_lshr_b32 s{sRB}, s2, 5")
    e(f"s_add_u32 s{sRB}, s{sRB}, s{sT}")
    e(f"s_and_b32 s{sS}, s{sWave}, 3")
    e(f"v_lshrrev_b32 v{vT}, 4, v{vLane}")
    e(f"s_cmp_lt_u32 s{sWave}, 8")
    e("s_cbranch_scc1 L_compute")

    e(f"v_and_b32 v{vT+1}, 7, v{vLane}")
    e(f"v_xor_b32 v{vT+5}, v{vT+1}, v{vT}")
    e(f"v_lshlrev_b32 v{vT+5}, 4, v{vT+5}")
    e(f"v_lshrrev_b32 v{vT+2}, 3, v{vLane}")
    e(f"v_mul_u32_u24 v{vT+2}, 2560, v{vT+2}")
    e(f"v_add_u32 v{vT+3}, v{vT+2}, v{vT+5}")
    e(f"v_xor_b32 v{vT+5}, 64, v{vT+5}")
    e(f"v_add_u32 v{vT+4}, v{vT+2}, v{vT+5}")
    e(f"s_lshl_b32 s{sT}, s{sRB}, 7")
    e(f"s_lshl_b32 s{sT+1}, s{sS}, 5")
    e(f"s_add_u32 s{sT+1}, s{sT+1}, s{sT}")
    e(f"s_mul_i32 s{sT+1}, s{sT+1}, 1280")
    e(f"v_add_u32 v{vX0}, s{sT+1}, v{vT+3}")
    e(f"s_add_u32 s{sT+1}, s{sT+1}, {16*1280-1024}")
    e(f"v_add_u32 v{vX1}, s{sT+1}, v{vT+4}")
    e(f"s_mov_b32 s{sKW}, 0")
    e(f"s_mov_b32 s{sKX}, 0")
    e("s_bitcmp1_b32 s2, 3")
    e("s_cbranch_scc1 L_ldF")
    e(f"s_lshl_b32 s{sT+1}, s{sS}, 1")
    e(f"v_add_u32 v{vT+3}, s{sT+1}, v{vT}")
    e(f"v_xor_b32 v{vT+3}, v{vT+3}, v{vT+1}")
    e(f"v_and_b32 v{vT+3}, 7, v{vT+3}")
    e(f"v_lshl_add_u32 v{vT+3}, v{vT+3}, 4, v{vT+2}")
    e(f"s_and_b32 s{sT+1}, s{sS}, 1")
    e(f"s_lshl_b32 s{sT+1}, s{sT+1}, 3")
    e(f"s_lshr_b32 s{sT+2}, s{sS}, 1")
    e(f"s_add_u32 s{sT+1}, s{sT+1}, s{sT+2}")
    e(f"s_add_u32 s{sT+1}, s{sT+1}, s{sT}")
    e(f"s_sub_u32 s{sT+1}, s{sT+1}, 16")
    e(f"s_mul_i32 s{sT+1}, s{sT+1}, 1280")
    e(f"v_add_u32 v{vH0}, s{sT+1}, v{vT+3}")
    e(f"s_lshl_b32 s{sHoff}, s{sS}, 9")
    e(f"s_add_u32 s{sHoff}, s{sHoff}, {Q_XB}")
    e(f"s_cmp_eq_u32 s{sS}, 0")
    e(f"s_cselect_b32 s{sMaskH}, 0xffffff00, -1")
    e(f"s_mov_b32 s{sMaskH+1}, 0")
    e(f"v_cmp_le_u32 vcc, 30, v{vLane}")
    e(f"v_mov_b32 v{vT+3}, 0")
    e(f"v_mov_b32 v{vT+4}, 30")
    e(f"v_cndmask_b32 v{vT+3}, v{vT+3}, v{vT+4}, vcc")
    e(f"v_sub_u32 v{vT+4}, v{vLane}, v{vT+3}")
    e(f"v_mul_u32_u24 v{vT+3}, 128, v{vT+3}")
    e(f"v_mul_u32_u24 v{vT+5}, 26, v{vT+4}")
    e(f"v_lshrrev_b32 v{vT+5}, 8, v{vT+5}")
    e(f"v_mul_u32_u24 v{vT+6}, 10, v{vT+5}")
    e(f"v_sub_u32 v{vT+4}, v{vT+4}, v{vT+6}")
    e(f"v_lshl_add_u32 v{vT+3}, v{vT+4}, 4, v{vT+3}")
    e(f"v_add_u32 v{vT+5}, 1, v{vT+5}")
    e(f"v_cmp_le_u32 vcc, 3, v{vT+5}")
    e(f"v_mov_b32 v{vT+6}, 0")
    e(f"s_mul_i32 s{sT}, s{sS}, {8*3840}")
    e(f"v_cndmask_b32 v{vT+5}, v{vT+5}, v{vT+6}, vcc")
    e(f"v_mul_u32_u24 v{vT+5}, 1280, v{vT+5}")
    e(f"v_add_u32 v{vT+3}, v{vT+3}, v{vT+5}")
    e(f"s_mul_i32 s{sT+1}, s{sG}, 160")
    e(f"s_add_u32 s{sT}, s{sT}, s{sT+1}")
    e(f"v_add_u32 v{vWd}, s{sT}, v{vT+3}")
    for t in range(1, 4):
        e(f"v_add_u32 v{vWd+t}, {6720*t}, v{vWd}")
    e(f"s_mul_i32 s{sWoff}, s{sS}, {Q_GP}")
    e(f"s_lshl_b32 s{sXoff}, s{sS}, 12")
    e(f"s_add_u32 s{sXoff}, s{sXoff}, {Q_XB+2048}")
    e(f"s_mov_b32 s{sMaskW}, -1")
    e(f"s_mov_b32 s{sMaskW+1}, 0x0fffffff")
    e("s_waitcnt lgkmcnt(0)")
    srd(S_X, 4, 2048 * 1280)
    srd(S_W, 6, 640 * 3840)
    loader("Q")
    lab("L_ldF")
    e(f"v_cmp_le_u32 vcc, 26, v{vLane}")
    e(f"v_mov_b32 v{vT+3}, 0")
    e(f"v_mov_b32 v{vT+4}, {3072-26*16}")
    e(f"v_cndmask_b32 v{vT+3}, v{vT+3}, v{vT+4}, vcc")
    e(f"v_lshl_add_u32 v{vT+3}, v{vLane}, 4, v{vT+3}")
    e(f"s_mul_i32 s{sT}, s{sS}, {8*3072}")
    e(f"s_mul_i32 s{sT+1}, s{sG}, 384")
    e(f"s_add_u32 s{sT}, s{sT}, s{sT+1}")
    e(f"v_add_u32 v{vWd}, s{sT}, v{vT+3}")
    for t in range(1, 4):
        e(f"v_add_u32 v{vWd+t}, {5312*t}, v{vWd}")
    e(f"s_mul_i32 s{sWoff}, s{sS}, {F_GP}")
    e(f"s_lshl_b32 s{sXoff}, s{sS}, 12")
    e(f"s_add_u32 s{sXoff}, s{sXoff}, {F_XB}")
    e(f"s_mov_b32 s{sMaskW}, 0xfcffffff")
    e(f"s_mov_b32 s{sMaskW+1}, 0x0003ffff")
    e("s_waitcnt lgkmcnt(0)")
    srd(S_X, 4, 2048 * 1280)
    srd(S_W, 32, 640 * 3072)
    loader("F")

    lab("L_compute")
    if CODEPF:
        e(f"s_getpc_b64 s[{sT}:{sT+1}]")
        lab("L_pc")
        e(f"s_sub_u32 s{sT}, s{sT}, L_pc-{K}")
        e(f"s_subb_u32 s{sT+1}, s{sT+1}, 0")
        e(f"v_lshlrev_b32 v{vT+1}, 7, v0")
        e(f"v_min_u32 v{vT+1}, L_end-{K}, v{vT+1}")
        e(f"s_bfe_u32 s{sT+2}, s2, 0x20004")
        e(f"s_cmp_lg_u32 s{sT+2}, 0")
        e("s_cbranch_scc1 L_nopf")
        e(f"s_cmp_gt_u32 s{sWave}, 4")
        e("s_cbranch_scc1 L_nopf")
        e(f"global_load_dword v0, v{vT+1}, s[{sT}:{sT+1}]")
        lab("L_nopf")
    e(f"v_and_b32 v{vT+1}, 15, v{vLane}")
    e(f"v_lshrrev_b32 v{vT+2}, 1, v{vT+1}")
    e(f"v_xor_b32 v{vT+2}, v{vT+2}, v{vT}")
    e(f"v_lshlrev_b32 v{vT+2}, 4, v{vT+2}")
    e(f"v_lshl_add_u32 v{vXl0}, v{vT+1}, 7, v{vT+2}")
    e(f"v_xor_b32 v{vXl1}, 64, v{vXl0}")
    e(f"v_mov_b32 v{vXa}, v{vXl0}")
    e(f"v_bfe_u32 v{vT+1}, v{vLane}, 2, 2")
    e(f"v_and_b32 v{vT+2}, 3, v{vLane}")
    e(f"s_mov_b32 s{sIt}, 0")
    e(f"s_lshl_b32 s{sT}, s{sRB}, 4")
    e(f"s_add_u32 s{sT}, s{sT}, s{sG}")
    e(f"s_and_b32 s{sT+1}, s2, 8")
    e(f"s_add_u32 s{sT}, s{sT}, s{sT+1}")
    e(f"s_lshl_b32 s{sT}, s{sT}, 3")
    e(f"s_add_u32 s{sT}, s{sT}, s{sWave}")
    e(f"s_lshl_b32 s99, s{sT}, 4")
    e(f"s_add_u32 s99, s99, {ST_OFF}")
    e(f"s_mul_i32 s{sT}, s{sT}, 1280")
    e(f"v_lshlrev_b32 v{vXF+8}, 4, v{vLane}")
    e(f"v_lshlrev_b32 v{vXF+9}, 2, v{vLane}")
    e("s_waitcnt lgkmcnt(0)")
    stamp(1)
    srd(S_X, 4, 2048 * 1280)
    if "l" not in OPT:
        e(f"buffer_load_dwordx4 {vr(vXF,4)}, v{vXF+8}, s[{S_X}:{S_X+3}], s{sT} offen")
        e(f"buffer_load_dword v{vXF+4}, v{vXF+9}, s[{S_X}:{S_X+3}], s{sT} offen offset:1024")
    nonce_load()
    srd(S_WS, 68, WS_USED)
    if "j" in OPT:
        ejob_issue()
    if "t" in OPT:
        e(f"s_cmp_lg_u32 s{sWave}, 6")
        e("s_cbranch_scc1 L_notlb")
        srd(S_R, 64, 2048 * 1280)
        e(f"v_lshlrev_b32 v{vXF+10}, 20, v{vLane}")
        e("s_mov_b64 exec, 0xfff")
        e(f"buffer_load_dword v0, v{vXF+10}, s[{S_WS}:{S_WS+3}], 0 offen sc1")
        e("s_mov_b64 exec, 7")
        e(f"buffer_load_dword v0, v{vXF+10}, s[{S_R}:{S_R+3}], 0 offen sc1")
        e("s_mov_b64 exec, -1")
        lab("L_notlb")
    e("s_bitcmp1_b32 s2, 3")
    e("s_cbranch_scc1 L_F")
    if "e" in OPT:
        w_touch_early("Q")
    e(f"v_mul_u32_u24 v{vWl}, {Q_GP}, v{vT}")
    e(f"v_mul_u32_u24 v{vT+3}, {Q_P}, v{vT+1}")
    e(f"v_add_u32 v{vWl}, v{vWl}, v{vT+3}")
    e(f"v_mul_u32_u24 v{vT+3}, 40, v{vT+2}")
    e(f"v_add_u32 v{vWl}, v{vWl}, v{vT+3}")
    e(f"v_mov_b32 v{vWa}, v{vWl}")
    e(f"v_and_b32 v{vT+3}, 31, v{vLane}")
    e(f"v_lshlrev_b32 v{vT+3}, 2, v{vT+3}")
    e(f"v_mov_b32 v{vT+4}, 0x3f803f80")
    e(f"ds_write_b32 v{vT+3}, v{vT+4} offset:{Q_XB}")
    e(f"v_add_u32 v{vT+3}, {Q_STAGE}, v{vT+3}")
    e(f"ds_write_b32 v{vT+3}, v{vT+4} offset:{Q_XB}")
    e(f"v_add_u32 v{vT+3}, {Q_STAGE}, v{vT+3}")
    e(f"ds_write_b32 v{vT+3}, v{vT+4} offset:{Q_XB}")
    for r in range(vACC, vHACC + 16):
        e(f"v_mov_b32 v{r}, 0")
    e(f"s_mov_b32 s{sNxt}, {Q_STAGE}")
    cfg_lookup(QCFG)
    tG, tS, tR, tC, t0, t1 = 112, 113, 114, 115, 116, 117
    e(f"v_mov_b32 v{tG}, v{vT}")
    e(f"v_mov_b32 v{tR}, v{vT+1}")
    e(f"v_mov_b32 v{tC}, v{vT+2}")
    e(f"v_and_b32 v{tS}, 15, v{vLane}")
    e(f"v_lshlrev_b32 v{t0}, 4, v{tG}")
    e(f"s_lshl_b32 s{sT}, s{sH0}, 6")
    e(f"s_add_u32 s{sT}, s{sT}, {Q_MISC+QM_CS}")
    e(f"v_add_u32 v{qCSh}, s{sT}, v{t0}")
    e(f"s_lshl_b32 s{sT}, s{sU0}, 6")
    e(f"s_add_u32 s{sT}, s{sT}, {Q_MISC+QM_CS}")
    e(f"v_add_u32 v{qCSu}, s{sT}, v{t0}")
    e(f"v_lshlrev_b32 v{qSa}, 3, v{tS}")
    e(f"v_add_u32 v{qSa}, {Q_MISC+QM_ST}, v{qSa}")
    e(f"s_lshl_b32 s{sT}, s{sRh}, 9")
    e(f"v_add_u32 v{qSm}, s{sT}, v{qSa}")
    e(f"v_mul_u32_u24 v{t0}, 640, v{tG}")
    e(f"v_lshl_add_u32 v{t0}, v{tS}, 3, v{t0}")
    e(f"v_lshrrev_b32 v{qPh}, 3, v{tS}")
    e(f"v_mul_u32_u24 v{qPh}, {2560-64}, v{qPh}")
    e(f"s_mul_i32 s{sT}, s{sH0}, {PLANE}")
    e(f"s_add_u32 s{sT}, s{sT}, {Q_PL}")
    e(f"v_add3_u32 v{qPh}, v{qPh}, v{t0}, s{sT}")
    e(f"s_and_b32 s{sT}, s{sWave}, 1")
    e(f"s_mul_i32 s{sT+2}, s{sT}, 320")
    e(f"s_mul_i32 s{sT}, s{sT}, 2560")
    e(f"s_lshr_b32 s{sT+1}, s{sWave}, 1")
    e(f"s_lshl_b32 s{sT+3}, s{sT+1}, 6")
    e(f"s_add_u32 s{sT+2}, s{sT+2}, s{sT+3}")
    e(f"s_add_u32 s{sT+2}, s{sT+2}, {Q_MISC+QM_RK}")
    e(f"s_lshl_b32 s{sT+1}, s{sT+1}, 7")
    e(f"s_add_u32 s{sT}, s{sT}, s{sT+1}")
    e(f"s_add_u32 s{sT}, s{sT}, {Q_PL}")
    e(f"v_add_u32 v{qAt}, s{sT}, v{t0}")
    e(f"v_add_u32 v{qAq}, {10*PLANE+64}, v{qAt}")
    e(f"v_lshl_add_u32 v{t1}, v{tC}, 2, v{tR}")
    e(f"v_mul_u32_u24 v{qAv}, 640, v{tG}")
    e(f"v_lshl_add_u32 v{qAv}, v{t1}, 3, v{qAv}")
    e(f"v_add_u32 v{qAv}, s{sT}, v{qAv}")
    e(f"v_lshlrev_b32 v{qRk}, 4, v{tR}")
    e(f"v_add_u32 v{qRk}, s{sT+2}, v{qRk}")
    e(f"v_lshl_add_u32 v{qRq}, v{tC}, 2, v{qRk}")
    e(f"s_mul_i32 s{sT}, s{sU0}, {PLANE}")
    e(f"s_lshl_b32 s{sT+1}, s{sRh}, 8")
    e(f"s_add_u32 s{sT}, s{sT}, s{sT+1}")
    e(f"s_add_u32 s{sT}, s{sT}, {Q_PL+64}")
    e(f"v_add_u32 v{qPw}, s{sT}, v{t0}")
    e(f"v_lshlrev_b32 v{qOa}, 4, v{vLane}")
    e(f"v_lshrrev_b32 v{qOb}, 5, v{vLane}")
    e(f"v_lshlrev_b32 v{qOb}, 8, v{qOb}")
    e(f"v_lshl_add_u32 v{qOb}, v{tS}, 4, v{qOb}")
    e(f"v_bfe_u32 v{t1}, v{vLane}, 4, 1")
    e(f"v_lshl_add_u32 v{qOb}, v{t1}, 3, v{qOb}")
    BIG = 2.0 ** 100
    lo, hi = t0, t1
    e(f"v_lshlrev_b32 v{lo}, 2, v{tR}")
    e(f"s_lshr_b32 s{sT}, s{sWave}, 1")
    e(f"s_or_b32 s{sT}, s{sRB}, s{sT}")
    e(f"s_cmp_eq_u32 s{sT}, 0")
    e(f"s_cselect_b32 s{sT}, 8, 0")
    e(f"v_sub_u32 v{lo}, s{sT}, v{lo}")
    e(f"v_add_u32 v{hi}, 1, v{tC}")
    e(f"v_max_i32 v{lo}, v{lo}, v{hi}")
    e(f"v_cvt_f32_i32 v{lo}, v{lo}")
    e(f"v_cvt_f32_i32 v{hi}, v{tC}")
    e(f"v_mov_b32 v{tG}, {f32(-BIG)}")
    e(f"v_mov_b32 v{tS}, {f32(BIG)}")
    for pp in range(1, 8):
        e(f"v_fmaak_f32 v{qMk(pp)}, v{lo}, v{tG}, {f32(pp*BIG)}")
        e(f"v_min_f32 v{qMk(pp)}, 0, v{qMk(pp)}")
    for pp in range(9, 12):
        e(f"v_fmaak_f32 v{qMk(pp)}, v{hi}, v{tS}, {f32(-(pp-8)*BIG)}")
        e(f"v_min_f32 v{qMk(pp)}, 0, v{qMk(pp)}")
    e(f"s_lshl_b32 s{sT}, s{sRB}, 3")
    e(f"s_add_u32 s{sT}, s{sT}, s{sWave}")
    e(f"s_mul_i32 s{sT}, s{sT}, 68")
    e(f"s_lshr_b32 s{sT+1}, s{sG}, 1")
    e(f"s_mul_i32 s{sT+1}, s{sT+1}, 5")
    e(f"s_add_u32 s{sT}, s{sT}, s{sT+1}")
    e(f"s_add_u32 s{sT}, s{sT}, 48")
    e(f"s_and_b32 s{sT+1}, s{sG}, 1")
    e(f"s_lshl_b32 s{sJ}, s{sT+1}, 1")
    e(f"s_add_u32 s{sJ}, s{sJ}, s{sT}")
    e(f"s_lshl_b32 s{sJ}, s{sJ}, 10")
    e(f"s_add_u32 s{sT}, s{sT}, 4")
    e(f"s_lshl_b32 s{sT}, s{sT}, 10")
    e(f"s_lshl_b32 s{sT+1}, s{sT+1}, 9")
    e(f"s_add_u32 s{sJ+1}, s{sT}, s{sT+1}")
    e(f"s_mov_b32 s{sMaskW}, 0x00010001")
    e(f"s_mov_b32 s{sMaskW+1}, 0x00010001")
    e("s_waitcnt lgkmcnt(0)")
    nonce_fix()
    if "l" not in OPT:
        row_stats()
        if "j" in OPT:
            ejob_proc("Q")
        w_touch("Q")
    for w in range(7):
        e(f"s_cmp_eq_u32 s{sWave}, {w}")
        e(f"s_cbranch_scc1 L_p1_Q{w}")
    e("s_branch L_p1_Q7")

    lab("L_F")
    if "e" in OPT:
        w_touch_early("F")
    e(f"v_mul_u32_u24 v{vWl}, {F_GP}, v{vT}")
    e(f"v_mul_u32_u24 v{vT+3}, {F_P}, v{vT+1}")
    e(f"v_add_u32 v{vWl}, v{vWl}, v{vT+3}")
    e(f"v_lshl_add_u32 v{vWl}, v{vT+2}, 3, v{vWl}")
    e(f"v_mov_b32 v{vWa}, v{vWl}")
    srd(S_X, 4, 2048 * 1280)
    fL16, fTr, fCSu, fCSh, fSm = 2, 3, 4, 5, 6
    e(f"v_lshlrev_b32 v{fL16}, 4, v{vLane}")
    cfg_lookup(FCFG)
    e(f"v_lshlrev_b32 v{vT+3}, 4, v{vT}")
    e(f"s_lshl_b32 s{sT}, s{sH0}, 6")
    e(f"s_add_u32 s{sT}, s{sT}, {F_MISC+FM_CS}")
    e(f"v_add_u32 v{fCSh}, s{sT}, v{vT+3}")
    e(f"s_lshl_b32 s{sT}, s{sU0}, 6")
    e(f"s_add_u32 s{sT}, s{sT}, {F_MISC+FM_CS}")
    e(f"v_add_u32 v{fCSu}, s{sT}, v{vT+3}")
    e(f"v_and_b32 v{fSm}, 15, v{vLane}")
    e(f"v_lshlrev_b32 v{fSm}, 3, v{fSm}")
    e(f"s_lshl_b32 s{sT}, s{sRh}, 9")
    e(f"s_add_u32 s{sT}, s{sT}, {F_MISC+FM_ST}")
    e(f"v_add_u32 v{fSm}, s{sT}, v{fSm}")
    e(f"s_mov_b32 s{sMaskW}, 0x00010001")
    e(f"s_mov_b32 s{sMaskW+1}, 0x00010001")
    if "j" in OPT:
        srd(S_DBG, 34, 3072)
        e(f"s_mul_i32 s{sT+4}, s{sG}, 384")
        e(f"v_lshlrev_b32 v{vT+3}, 3, v{vLane}")
        e(f"buffer_load_dwordx2 v[{vXF+6}:{vXF+7}], v{vT+3}, s[{S_DBG}:{S_DBG+3}], s{sT+4} offen")
        for r in range(vACC + 32, vACC + 64):
            e(f"v_mov_b32 v{r}, 0")
        e("s_branch L_F_go")
    sRow, sF = sKW, sKX
    e(f"s_lshl_b32 s{sRow}, s{sRB}, 7")
    e(f"s_bfe_u32 s{sT}, s2, 0x10004")
    e(f"s_lshl_b32 s{sT}, s{sT}, 6")
    e(f"s_add_u32 s{sRow}, s{sRow}, s{sT}")
    e(f"s_lshr_b32 s{sF}, s2, 4")
    e(f"s_cmp_ge_u32 s{sWave}, 4")
    e("s_cbranch_scc1 L_F_helper")
    if TOUCH:
        e(f"v_mul_u32_u24 v{vT+3}, 26, v{vLane}")
        e(f"v_lshrrev_b32 v{vT+3}, 8, v{vT+3}")
        e(f"v_mul_u32_u24 v{vT+4}, 10, v{vT+3}")
        e(f"v_sub_u32 v{vT+4}, v{vLane}, v{vT+4}")
        e(f"v_lshlrev_b32 v{vT+4}, 7, v{vT+4}")
        e(f"s_and_b32 s{sT}, s2, 3")
        e(f"s_lshl_b32 s{sT}, s{sT}, 4")
        e(f"s_mul_i32 s{sT+4}, s{sRow}, 1280")
        e(f"s_mov_b32 s{sT+6}, -1")
        e(f"s_mov_b32 s{sT+7}, 0x0fffffff")
        for i in range(2):
            e(f"s_mul_i32 s{sT+2}, s{sWave}, 12")
            e(f"s_add_u32 s{sT+2}, s{sT+2}, {6*i}")
            e(f"v_add_u32 v{vT+5}, s{sT+2}, v{vT+3}")
            e(f"v_cmp_le_u32 vcc, s{sT}, v{vT+5}")
            e(f"v_add_u32 v{vT+6}, 16, v{vT+5}")
            e("s_nop 0")
            e(f"v_cndmask_b32 v{vT+5}, v{vT+5}, v{vT+6}, vcc")
            e(f"v_mul_u32_u24 v{vT+5}, 1280, v{vT+5}")
            e(f"v_add_u32 v{vT+7+i}, v{vT+5}, v{vT+4}")
        e(f"v_mul_u32_u24 v{vT+3}, 57, v{vLane}")
        e(f"v_lshrrev_b32 v{vT+3}, 9, v{vT+3}")
        e(f"v_mul_u32_u24 v{vT+4}, 9, v{vT+3}")
        e(f"v_sub_u32 v{vT+4}, v{vLane}, v{vT+4}")
        e(f"v_mul_u32_u24 v{vT+5}, 86, v{vT+4}")
        e(f"v_lshrrev_b32 v{vT+5}, 8, v{vT+5}")
        e(f"v_mul_u32_u24 v{vT+3}, 3840, v{vT+3}")
        e(f"v_lshl_add_u32 v{vT+3}, v{vT+4}, 7, v{vT+3}")
        e(f"v_mul_u32_u24 v{vT+5}, {1280-384}, v{vT+5}")
        e(f"v_add_u32 v{vT+3}, v{vT+3}, v{vT+5}")
        e(f"v_mul_u32_u24 v{vT+4}, 43, v{vLane}")
        e(f"v_lshrrev_b32 v{vT+4}, 8, v{vT+4}")
        e(f"v_mul_u32_u24 v{vT+4}, {3072-768}, v{vT+4}")
        e(f"v_lshl_add_u32 v{vT+4}, v{vLane}, 7, v{vT+4}")
        e(f"s_mul_i32 s{sT}, s{sF}, 40")
        e(f"s_mul_i32 s{sT+1}, s{sWave}, 10")
        e(f"s_add_u32 s{sT}, s{sT}, s{sT+1}")
        e(f"s_and_b32 s{sT+1}, s2, 3")
        e(f"s_mul_i32 s{sT+2}, s{sT+1}, 320")
        e(f"s_and_b32 s{sT+2}, s{sT+2}, 0xffffff80")
        e(f"s_mul_i32 s{sT+3}, s{sT}, 3840")
        e(f"s_add_u32 s{sT+2}, s{sT+2}, s{sT+3}")
        e(f"s_add_u32 s{sT+3}, s{sT+2}, {5*3840}")
        e(f"s_mul_i32 s{sT+1}, s{sT+1}, 768")
        e(f"s_mul_i32 s{sT}, s{sT}, 3072")
        e(f"s_add_u32 s{sT}, s{sT}, s{sT+1}")
        srd(S_W, 6, 640 * 3840)
        srd(S_R, 32, 640 * 3072)
        e(f"s_mov_b64 exec, s[{sT+6}:{sT+7}]")
        e(f"buffer_load_dword v{vT+10}, v{vT+4}, s[{S_R}:{S_R+3}], s{sT} offen")
        e(f"buffer_load_dword v{vT+10}, v{vT+7}, s[{S_X}:{S_X+3}], s{sT+4} offen")
        e(f"buffer_load_dword v{vT+10}, v{vT+8}, s[{S_X}:{S_X+3}], s{sT+4} offen")
        e(f"s_mov_b32 s{sT+7}, 0x1fff")
        e(f"s_mov_b64 exec, s[{sT+6}:{sT+7}]")
        e(f"buffer_load_dword v{vT+10}, v{vT+3}, s[{S_W}:{S_W+3}], s{sT+2} offen")
        e(f"buffer_load_dword v{vT+10}, v{vT+3}, s[{S_W}:{S_W+3}], s{sT+3} offen")
        e("s_mov_b64 exec, -1")
    for r in range(vACC + 32, vACC + 64):
        e(f"v_mov_b32 v{r}, 0")
    lab("L_F_go")
    for r in list(range(vACC, vACC + 32)) + list(range(vHACC, vHACC + 8)):
        e(f"v_mov_b32 v{r}, 0")
    for r in range(4):
        e(f"v_mov_b32 v{vOnes+r}, 0x3f803f80")
    e(f"s_mov_b32 s{sNxt}, {F_STAGE}")
    e("s_waitcnt lgkmcnt(0)")
    nonce_fix()
    if "l" not in OPT:
        row_stats()
        if "j" in OPT:
            ejob_proc("F")
            e(f"v_lshlrev_b32 v{vXF+32}, 16, v{vXF+6}")
            e(f"v_and_b32 v{vXF+33}, 0xffff0000, v{vXF+6}")
            e(f"v_lshlrev_b32 v{vXF+34}, 16, v{vXF+7}")
            e(f"v_and_b32 v{vXF+35}, 0xffff0000, v{vXF+7}")
            e(f"v_add_u32 v{vWF+8}, {F_MISC+FM_B1}, v{fL16}")
            e(f"s_cmp_eq_u32 s{sWave}, 7")
            e(f"s_cselect_b32 s{sT+2}, -1, 0")
            e(f"s_cselect_b32 s{sT+3}, 0xffff, 0")
            e(f"s_mov_b64 exec, s[{sT+2}:{sT+3}]")
            e(f"ds_write_b128 v{vWF+8}, {vr(vXF+32,4)}")
            e("s_mov_b64 exec, -1")
            e("s_waitcnt lgkmcnt(0)")
        w_touch("F")
    for w in range(7):
        e(f"s_cmp_eq_u32 s{sWave}, {w}")
        e(f"s_cbranch_scc1 L_p1_F{w}")
    e("s_branch L_p1_F7")

    lab("L_F_helper")
    sD1, sD2, sJb1, sNJ = sJ + 1, sJ + 2, sJ + 3, sJ + 4
    JV1 = [64, 65, 66, 67, 68]
    JV2 = [72, 73, 74, 75, 76]
    for r_ in JV1:
        e(f"v_mov_b32 v{r_}, 0")
    srd(S_W, 36, 1536 * 1280)
    srd(S_DBG, 34, 3072)
    sKS, sCGj, sBase, sJa, sJb, sP, sTt = sWoff, sXoff, sHoff, sMaskH, sMaskH + 1, sCur, 98
    e(f"s_bfe_u32 s{sKS}, s2, 0x20001")
    e(f"s_mul_i32 s{sKS}, s{sKS}, 17")
    e(f"s_add_u32 s{sKS}, s{sKS}, s{sF}")
    e(f"s_and_b32 s{sCGj}, s2, 1")
    e(f"s_lshl_b32 s{sCGj}, s{sCGj}, 2")
    e(f"s_add_u32 s{sCGj}, s{sCGj}, s{sS}")
    e(f"s_mul_i32 s{sJb1}, s{sS}, 5120")
    e(f"s_add_u32 s{sJb1}, s{sJb1}, {F_JOB}")
    e(f"s_cmp_eq_u32 s{sF}, s{sS}")
    e(f"s_cselect_b32 s{sNJ}, 2, 1")
    e(f"s_mov_b32 s{sT+6}, 0")
    e(f"v_lshrrev_b32 v{fTr}, 2, v{vLane}")
    e(f"v_mul_u32_u24 v{fTr}, 160, v{fTr}")
    e(f"v_mul_u32_u24 v{vT+4}, 40, v{vT+2}")
    e(f"v_add_u32 v{fTr}, v{fTr}, v{vT+4}")
    lab("L_F_jobissue")
    e(f"s_sub_u32 s{sT}, s{sKS}, 48")
    e(f"s_mul_i32 s{sP}, s{sT}, 52")
    e(f"s_lshr_b32 s{sP}, s{sP}, 8")
    e(f"s_mul_i32 s{sTt}, s{sP}, 5")
    e(f"s_sub_u32 s{sTt}, s{sT}, s{sTt}")
    e(f"s_mul_i32 s{sP}, s{sP}, 160")
    e(f"s_lshr_b32 s{sBase}, s{sTt}, 1")
    e(f"s_mul_i32 s{sBase}, s{sBase}, 80")
    e(f"s_and_b32 s{sJa}, s{sTt}, 1")
    e(f"s_lshl_b32 s{sJa}, s{sJa}, 3")
    e(f"s_add_u32 s{sBase}, s{sBase}, s{sJa}")
    e(f"s_cmp_eq_u32 s{sTt}, 4")
    e(f"s_cselect_b32 s{sBase}, 16, s{sBase}")
    e(f"s_cselect_b32 s{sJa}, 40, 20")
    e(f"s_cselect_b32 s{sJb}, 20, 4")
    e(f"s_add_u32 s{sBase}, s{sBase}, s{sP}")
    e(f"s_lshl_b32 s{sP}, s{sKS}, 5")
    e(f"s_mov_b32 s{S_R+2}, {640*1280}")
    e(f"s_cmp_ge_u32 s{sKS}, 48")
    e(f"s_cselect_b32 s{sBase}, s{sBase}, s{sP}")
    e(f"s_cselect_b32 s{sJa}, s{sJa}, 4")
    e(f"s_cselect_b32 s{sJb}, s{sJb}, 16")
    e(f"s_cselect_b32 s{S_R}, s28, s36")
    e(f"s_cselect_b32 s{S_R+1}, s29, s37")
    e(f"s_cselect_b32 s{S_R+2}, s{S_R+2}, {1536*1280}")
    e(f"s_and_b32 s{S_R+1}, s{S_R+1}, 0xffff")
    e(f"s_mov_b32 s{S_R+3}, 0x00020000")
    e(f"s_mul_i32 s{sBase}, s{sBase}, 1280")
    e(f"s_mul_i32 s{sP}, s{sCGj}, 160")
    e(f"s_add_u32 s{sBase}, s{sBase}, s{sP}")
    e(f"s_mul_i32 s{sJa}, s{sJa}, 1280")
    e(f"s_mul_i32 s{sJb}, s{sJb}, 1280")
    e(f"s_mul_i32 s{sD2}, s{sCGj}, 68")
    e(f"s_add_u32 s{sD2}, s{sD2}, s{sKS}")
    e(f"s_mul_i32 s{sD2}, s{sD2}, 5120")
    e(f"s_add_u32 s{sD2}, s{sD2}, {B2_OFF}")
    for i in range(5):
        q, rho, t1 = vT + 3, vT + 4, vT + 5
        e(f"v_add_u32 v{q}, {64*i}, v{vLane}")
        e(f"v_mul_u32_u24 v{rho}, 205, v{q}")
        e(f"v_lshrrev_b32 v{rho}, 11, v{rho}")
        e(f"v_mul_u32_u24 v{t1}, 10, v{rho}")
        e(f"v_sub_u32 v{q}, v{q}, v{t1}")
        e(f"v_and_b32 v{t1}, 3, v{rho}")
        e(f"v_mul_u32_u24 v{t1}, 1280, v{t1}")
        e(f"v_lshl_add_u32 v{q}, v{q}, 4, v{t1}")
        e(f"v_bfe_u32 v{t1}, v{rho}, 2, 2")
        e(f"v_mad_u32_u24 v{q}, v{t1}, s{sJa}, v{q}")
        e(f"v_lshrrev_b32 v{t1}, 4, v{rho}")
        e(f"v_mad_u32_u24 v{q}, v{t1}, s{sJb}, v{q}")
        e(f"v_add_u32 v{JV2[i]}, s{sBase}, v{q}")
    e(f"s_add_u32 s{sT+6}, s{sT+6}, 1")
    e(f"s_cmp_ge_u32 s{sT+6}, 2")
    e("s_cbranch_scc1 L_F_jobs_done")
    e(f"s_mov_b32 s{sD1}, s{sD2}")
    for i_ in range(5):
        e(f"v_mov_b32 v{JV1[i_]}, v{JV2[i_]}")
    for i_ in range(3):
        e(f"s_mov_b32 s{S_W+i_}, s{S_R+i_}")
    e(f"s_mov_b32 s{S_W+3}, 0x00020000")
    e(f"s_cmp_eq_u32 s{sNJ}, 1")
    e("s_cbranch_scc1 L_F_jobs_done")
    e(f"s_sub_u32 s{sKS}, s{sKS}, s{sF}")
    e(f"s_add_u32 s{sKS}, s{sKS}, 16")
    e("s_branch L_F_jobissue")
    lab("L_F_jobs_done")
    if "q" in OPT:
        e(f"v_mul_u32_u24 v{vT+3}, 57, v{vLane}")
        e(f"v_lshrrev_b32 v{vT+3}, 9, v{vT+3}")
        e(f"v_mul_u32_u24 v{vT+4}, 9, v{vT+3}")
        e(f"v_sub_u32 v{vT+4}, v{vLane}, v{vT+4}")
        e(f"v_mul_u32_u24 v{vT+5}, 86, v{vT+4}")
        e(f"v_lshrrev_b32 v{vT+5}, 8, v{vT+5}")
        e(f"v_mul_u32_u24 v{vT+3}, 3840, v{vT+3}")
        e(f"v_lshl_add_u32 v{vT+3}, v{vT+4}, 7, v{vT+3}")
        e(f"v_mul_u32_u24 v{vT+5}, {1280-384}, v{vT+5}")
        e(f"s_and_b32 s{sT+1}, s2, 3")
        e(f"s_mul_i32 s{sT+1}, s{sT+1}, 320")
        e(f"s_and_b32 s{sT+1}, s{sT+1}, 0xffffff80")
        e(f"s_mul_i32 s{sT}, s{sF}, {4*3840}")
        e(f"s_add_u32 s{sT}, s{sT}, s{sT+1}")
        e(f"v_add3_u32 v7, v{vT+3}, v{vT+5}, s{sT}")
    e("s_setprio 1")
    e("s_branch L_F_go")
    lab("L_task_jdma")
    e(f"s_mul_i32 s{sT+4}, s{sG}, 384")
    e(f"v_lshlrev_b32 v{vT+3}, 3, v{vLane}")
    e(f"buffer_load_dwordx2 v[70:71], v{vT+3}, s[{S_DBG}:{S_DBG+3}], s{sT+4} offen")
    for jn, (JV, SR) in enumerate(((JV1, S_W), (JV2, S_R))):
        if jn == 0:
            e(f"s_mov_b32 m0, s{sJb1}")
        else:
            e(f"s_cmp_eq_u32 s{sNJ}, 1")
            e("s_cbranch_scc1 L_task_ret")
            e(f"s_mov_b32 m0, {F_JOB+20480}")
        for i in range(5):
            e("s_nop 0")
            e(f"buffer_load_dwordx4 v{JV[i]}, s[{SR}:{SR+3}], 0 offen lds")
            e(f"s_add_u32 m0, m0, 1024")
    e(f"s_setpc_b64 s[{sRet}:{sRet+1}]")
    lab("L_task")
    if "q" in OPT:
        e(f"s_cmp_lg_u32 s{sWave}, 7")
        e("s_cbranch_scc1 L_task_nq")
        srd(S_X, 6, 640 * 3840)
        e(f"s_add_u32 s{sT}, s{sIt}, {QD}")
        e(f"s_mul_i32 s{sT}, s{sT}, {64*3840}")
        e(f"s_mov_b32 s{sT+2}, -1")
        e(f"s_mov_b32 s{sT+3}, 0xf")
        e(f"s_mov_b64 exec, s[{sT+2}:{sT+3}]")
        e(f"buffer_load_dword v0, v7, s[{S_X}:{S_X+3}], s{sT} offen")
        e("s_mov_b64 exec, -1")
        lab("L_task_nq")
    for it_, tgt in ((JD, "L_task_jdma"), (TS[0], "L_task_0"), (TS[1], "L_task_j2"), (TS[3], "L_task_6")):
        if "notask" in DIAG and tgt != "L_task_6":
            continue
        e(f"s_cmp_eq_u32 s{sIt}, {it_}")
        e(f"s_cbranch_scc1 {tgt}")
    if "notask" in DIAG:
        e(f"s_setpc_b64 s[{sRet}:{sRet+1}]")
    e(f"s_cmp_lg_u32 s{sIt}, {TS[2]}")
    e("s_cbranch_scc1 L_task_ret")
    e("s_waitcnt vmcnt(0)")
    e(f"s_setpc_b64 s[{sRet}:{sRet+1}]")
    lab("L_task_0")
    e("s_waitcnt vmcnt(0)")
    e(f"v_lshlrev_b32 v16, 16, v70")
    e(f"v_and_b32 v17, 0xffff0000, v70")
    e(f"v_lshlrev_b32 v18, 16, v71")
    e(f"v_and_b32 v19, 0xffff0000, v71")
    e(f"v_add_u32 v20, {F_MISC+FM_B1}, v{fL16}")
    e(f"s_mov_b32 s{sT+2}, -1")
    e(f"s_mov_b32 s{sT+3}, 0xffff")
    e(f"s_mov_b64 exec, s[{sT+2}:{sT+3}]")
    e(f"ds_write_b128 v20, v[16:19]")
    e("s_mov_b64 exec, -1")
    e(f"v_add_u32 v24, s{sJb1}, v{fTr}")
    e(f"s_mov_b32 s{sT}, s{sD1}")
    lab("L_task_job")
    e(f"s_add_u32 s{sT+1}, s{sT}, 4096")
    e("s_waitcnt lgkmcnt(0)")
    for U in range(5):
        for h in range(2):
            e(f"ds_read_b64_tr_b16 {vr(76+4*U+2*h,2)}, v24 offset:{8*U+2560*h}")
    for U in range(5):
        e(f"s_waitcnt lgkmcnt({2*(4-U)})")
        e(f"buffer_store_dwordx4 {vr(76+4*U,4)}, v{fL16}, s[{S_WS}:{S_WS+3}], s{sT + (U >> 2)} offen offset:{1024*(U&3)} sc1")
    e(f"s_setpc_b64 s[{sRet}:{sRet+1}]")
    lab("L_task_6")
    e(f"s_cmp_lg_u32 s{sWave}, 4")
    e("s_cbranch_scc1 L_task_ret")
    e(f"s_lshl_b32 s{sT}, s{sRB}, 4")
    e(f"s_add_u32 s{sT}, s{sT}, s{sG}")
    e(f"s_lshl_b32 s{sT}, s{sT}, 7")
    e(f"s_add_u32 s{sT}, s{sT}, {FL_OFF+1024}")
    e(f"v_mov_b32 v24, s{sNo}")
    e(f"v_mov_b32 v25, s{sNo+1}")
    e(f"v_mov_b32 v26, 0")
    e("s_mov_b64 exec, 1")
    e(f"buffer_store_dwordx2 v[24:25], v26, s[{S_WS}:{S_WS+3}], s{sT} offen offset:8 sc1")
    e("s_mov_b64 exec, -1")
    e(f"s_setpc_b64 s[{sRet}:{sRet+1}]")
    lab("L_task_j2")
    e(f"s_cmp_eq_u32 s{sNJ}, 1")
    e("s_cbranch_scc1 L_task_ret")
    e(f"v_add_u32 v24, {F_JOB+20480}, v{fTr}")
    e(f"s_mov_b32 s{sT}, s{sD2}")
    e("s_branch L_task_job")
    lab("L_task_ret")
    e(f"s_setpc_b64 s[{sRet}:{sRet+1}]")

    for typ in "QF":
        for w in range(8):
            p1_loop(typ, w)

    lab("L_epi_Q")
    vST = vXF
    for i in range(4):
        e(f"ds_read_b32 v{vST+i}, v{qSm} offset:{128*(i+1)}")
    e(f"ds_read_b32 v{vST+4}, v{qSa}")
    e(f"s_mov_b64 exec, s[{sMaskW}:{sMaskW+1}]")
    e("s_nop 1")
    for j in range(4):
        e(f"s_cmp_le_u32 s{sNH}, {j}")
        e("s_cbranch_scc1 L_q_cs_done")
        e(f"ds_write_b128 v{qCSh}, {vr(vHACC+4*j,4)} offset:{64*j}")
    lab("L_q_cs_done")
    e("s_mov_b64 exec, -1")
    e("s_waitcnt lgkmcnt(0)")
    e("s_barrier")
    stamp(5)
    vCS, vCSH = vWF, 136
    for u in range(4):
        e(f"ds_read_b128 {vr(vCS+4*u,4)}, v{qCSu} offset:{64*u}")
    for j in range(4):
        e(f"ds_read_b128 {vr(vCSH+4*j,4)}, v{qCSh} offset:{64*j}")
    vRK = 152
    for kb in range(3):
        e(f"ds_read_b128 {vr(vRK+4*kb,4)}, v{qRk} offset:{16*kb}")
    e(f"ds_read_b32 v164, v{qRq} offset:32")

    def norm_unit(a, cs, nm, addr, off):
        for r in range(4):
            e(f"v_fmac_f32 v{a+r}, v{cs+r}, v{nm}")
        e(f"v_cvt_pk_bf16_f32 v{a}, v{a}, v{a+1}")
        e(f"v_cvt_pk_bf16_f32 v{a+1}, v{a+2}, v{a+3}")
        e(f"ds_write_b64 v{addr}, v[{a}:{a+1}] offset:{off}")

    for u in range(4):
        if u == 3:
            e(f"s_cmp_eq_u32 s{sNU}, 3")
            e("s_cbranch_scc1 L_q_skip3")
        if u == 0:
            e("s_waitcnt lgkmcnt(11)")
        if u == 1:
            e("s_waitcnt lgkmcnt(12)")
        for i in range(4):
            norm_unit(acc(u, i), vCS + 4 * u, vST + i, qPw, u * PLANE + (i & 1) * 2560 + (i >> 1) * 128)
    lab("L_q_skip3")
    e("s_waitcnt lgkmcnt(12)")
    for j in range(4):
        e(f"s_cmp_le_u32 s{sNH}, {j}")
        e("s_cbranch_scc1 L_q_halo_done")
        norm_unit(vHACC + 4 * j, vCSH + 4 * j, vST + 4, qPh, j * PLANE)
    lab("L_q_halo_done")
    vLg = 112
    vKf, vVf, vQf, vO, vPf, vOp = 32, 62, 92, 32, 104, 124
    vAt, vAq, vAv = qAt, qAq, qAv
    cexp = (20 ** -0.5) * 1.4426950408889634
    e(f"v_mul_f32 v164, {f32(cexp)}, v164")
    e("s_waitcnt lgkmcnt(0)")
    stamp(6)
    e("s_barrier")
    stamp(7)

    def qk_reads(t):
        e(f"ds_read_b64 {vr(vQf+2*t,2)}, v{vAq} offset:{t*PLANE}")
        for kb in range(3):
            e(f"ds_read_b64 {vr(vKf+2*(3*t+kb),2)}, v{vAt} offset:{t*PLANE+32*kb}")
    for t in range(2):
        qk_reads(t)
    for t in range(5):
        if t < 3:
            qk_reads(t + 2)
        e(f"s_waitcnt lgkmcnt({min(8, 4*(4-t))})")
        for kb in range(3):
            cin = "0" if t == 0 else vr(vLg + 4 * kb, 4)
            e(f"v_mfma_f32_4x4x4_16b_bf16 {vr(vLg+4*kb,4)}, {vr(vKf+2*(3*t+kb),2)}, {vr(vQf+2*t,2)}, {cin}")
    for kb in range(3):
        for t in range(5):
            e(f"ds_read_b64_tr_b16 {vr(vVf+2*(5*kb+t),2)}, v{vAv} offset:{(5+t)*PLANE+32*kb}")
    for pp in range(1, 12):
        if pp == 8:
            e(f"v_mul_f32 v{vLg+pp}, v{vLg+pp}, v{vRK+pp}")
        else:
            e(f"v_fma_f32 v{vLg+pp}, v{vLg+pp}, v{vRK+pp}, v{qMk(pp)}")
    m = 136
    e(f"v_max3_f32 v{m}, v{vLg+1}, v{vLg+2}, v{vLg+3}")
    e(f"v_max3_f32 v{m+1}, v{vLg+4}, v{vLg+5}, v{vLg+6}")
    e(f"v_max3_f32 v{m+2}, v{vLg+7}, v{vLg+8}, v{vLg+9}")
    e(f"v_max3_f32 v{m}, v{m}, v{vLg+10}, v{vLg+11}")
    e(f"v_max3_f32 v{m}, v{m}, v{m+1}, v{m+2}")
    e(f"v_mul_f32 v{m}, v{m}, v164")
    for pp in range(1, 12):
        e(f"v_fma_f32 v{vLg+pp}, v{vLg+pp}, v164, -v{m}")
    for pp in range(1, 12):
        e(f"v_exp_f32 v{vLg+pp}, v{vLg+pp}")
    e(f"v_add_f32 v{m}, v{vLg+1}, v{vLg+2}")
    e(f"v_add_f32 v{m+1}, v{vLg+3}, v{vLg+4}")
    for pp in range(5, 11, 2):
        e(f"v_add_f32 v{m}, v{m}, v{vLg+pp}")
        e(f"v_add_f32 v{m+1}, v{m+1}, v{vLg+pp+1}")
    e(f"v_add_f32 v{m}, v{m}, v{vLg+11}")
    e(f"v_add_f32 v{m}, v{m}, v{m+1}")
    e(f"v_rcp_f32 v{m}, v{m}")
    e(f"v_mov_b32 v{vLg}, 0")
    for pp in range(1, 12):
        e(f"v_mul_f32 v{vLg+pp}, v{vLg+pp}, v{vRK+pp}")
    for j in range(6):
        e(f"v_cvt_pk_bf16_f32 v{vPf+j}, v{vLg+2*j}, v{vLg+2*j+1}")
    e("s_waitcnt lgkmcnt(0)")
    e("s_nop 0")
    for kb in range(3):
        for t in range(5):
            cin = "0" if kb == 0 else vr(vO + 4 * t, 4)
            e(f"v_mfma_f32_4x4x4_16b_bf16 {vr(vO+4*t,4)}, {vr(vVf+2*(5*kb+t),2)}, {vr(vPf+2*kb,2)}, {cin}")
    e("s_nop 1")
    for t in range(5):
        for r in range(4):
            e(f"v_mul_f32 v{vO+4*t+r}, v{vO+4*t+r}, v{m}")
        e(f"v_cvt_pk_bf16_f32 v{vOp+2*t}, v{vO+4*t}, v{vO+4*t+1}")
        e(f"v_cvt_pk_bf16_f32 v{vOp+2*t+1}, v{vO+4*t+2}, v{vO+4*t+3}")
    e(f"buffer_store_dwordx4 {vr(vOp,4)}, v{qOa}, s[{S_WS}:{S_WS+3}], s{sJ} offen sc1")
    e(f"buffer_store_dwordx4 {vr(vOp+4,4)}, v{qOa}, s[{S_WS}:{S_WS+3}], s{sJ} offen offset:1024 sc1")
    e(f"buffer_store_dwordx2 {vr(vOp+8,2)}, v{qOb}, s[{S_WS}:{S_WS+3}], s{sJ+1} offen sc1")
    stamp(8)
    e("s_branch L_p2")

    lab("L_epi_F")
    e("s_setprio 0")
    vST = 160
    vB1 = 128
    for i in range(4):
        e(f"ds_read_b64 v[{vST+2*i}:{vST+2*i+1}], v{fSm} offset:{128*i}")
    for u in range(4):
        e(f"ds_read_b128 {vr(vB1+4*u,4)}, v{fCSu} offset:{64*u+FM_B1-FM_CS}")
    e(f"s_mov_b64 exec, s[{sMaskW}:{sMaskW+1}]")
    e(f"ds_write_b128 v{fCSh}, {vr(vHACC,4)}")
    e(f"s_cmp_le_u32 s{sNH}, 1")
    e("s_cbranch_scc1 L_f_cs_done")
    e(f"ds_write_b128 v{fCSh}, {vr(vHACC+4,4)} offset:64")
    lab("L_f_cs_done")
    e("s_mov_b64 exec, -1")
    e(f"s_lshl_b32 s{sT}, s{sRB}, 3")
    e(f"s_lshl_b32 s{sT+1}, s{sRh}, 2")
    e(f"s_add_u32 s{sT}, s{sT}, s{sT+1}")
    e(f"s_mul_i32 s{sT}, s{sT}, 68")
    e(f"s_mul_i32 s{sT+1}, s{sG}, 6")
    e(f"s_add_u32 s{sT}, s{sT}, s{sT+1}")
    e(f"s_lshr_b32 s{sT+1}, s{sU0}, 1")
    e(f"s_add_u32 s{sT}, s{sT}, s{sT+1}")
    e(f"s_lshl_b32 s{sT}, s{sT}, 10")
    for i in range(1, 4):
        e(f"s_add_u32 s{sT+i}, s{sT}, {i*68*1024}")
    vPw = fL16
    e("s_waitcnt lgkmcnt(0)")
    e("s_barrier")
    stamp(5)
    for u in range(4):
        e(f"ds_read_b128 {vr(vCS+4*u,4)}, v{fCSu} offset:{64*u}")
    vPk = 144
    k = 0
    for pr in range(2):
        if pr == 1:
            e(f"s_cmp_eq_u32 s{sNU}, 2")
            e("s_cbranch_scc1 L_f_done")
        e(f"s_waitcnt lgkmcnt({2-2*pr})")
        for i in range(4):
            pk = vPk + 4 * (k & 3); k += 1
            nm, rs = vST + 2 * i, vST + 2 * i + 1
            for uu in range(2):
                u = 2 * pr + uu
                a = acc(u, i)
                for r in range(4):
                    e(f"v_fmac_f32 v{a+r}, v{vCS+4*u+r}, v{nm}")
                for r in range(4):
                    e(f"v_fma_f32 v{a+r}, v{a+r}, v{rs}, v{vB1+4*u+r}")
                if "b" in OPT:
                    for r in range(4):
                        e(f"v_mul_f32 v{a+r}, v{a+r}, abs(v{a+r})")
                    e(f"v_cvt_pk_bf16_f32 v{pk+2*uu}, v{a}, v{a+1}")
                    e(f"v_cvt_pk_bf16_f32 v{pk+2*uu+1}, v{a+2}, v{a+3}")
                    e(f"v_pk_max_i16 v{pk+2*uu}, v{pk+2*uu}, 0")
                    e(f"v_pk_max_i16 v{pk+2*uu+1}, v{pk+2*uu+1}, 0")
                else:
                    for r in range(4):
                        e(f"v_max_f32 v{a+r}, 0, v{a+r}")
                    for r in range(4):
                        e(f"v_mul_f32 v{a+r}, v{a+r}, v{a+r}")
                    e(f"v_cvt_pk_bf16_f32 v{pk+2*uu}, v{a}, v{a+1}")
                    e(f"v_cvt_pk_bf16_f32 v{pk+2*uu+1}, v{a+2}, v{a+3}")
            e(f"buffer_store_dwordx4 {vr(pk,4)}, v{vPw}, s[{S_WS}:{S_WS+3}], s{sT+i} offen offset:{1024*pr} sc1")
    lab("L_f_done")
    stamp(6)
    e("s_waitcnt vmcnt(0) lgkmcnt(0)")
    stamp(7)
    e("s_barrier")
    stamp(8)
    p2_compute()
    lab("L_end")
    e("s_endpgm")


def main():
    L.append("; Fused LN + [QKV|W1] GEMM + dilated local attention + [h|o]x[w2;wo] GEMM + gating, one persistent kernel")
    L.append(f"; @launch grid=(256,1,1) block=(768,1,1) lds={LDS_TOTAL}")
    L.append('.amdgcn_target "amdgcn-amd-amdhsa--gfx950"')
    L.append(".text")
    gen()
    L.append('.section .rodata,"a"')
    L.append(".p2align 6")
    L.append(f".amdhsa_kernel {NAME}_kernel")
    L.append(f"  .amdhsa_next_free_vgpr {NVGPR}")
    L.append("  .amdhsa_next_free_sgpr 102")
    L.append(f"  .amdhsa_accum_offset {NVGPR}")
    L.append("  .amdhsa_group_segment_fixed_size 0")
    L.append("  .amdhsa_kernarg_size 88")
    L.append("  .amdhsa_user_sgpr_count 2")
    L.append("  .amdhsa_user_sgpr_kernarg_segment_ptr 1")
    L.append("  .amdhsa_system_sgpr_workgroup_id_x 1")
    L.append(".end_amdhsa_kernel")
    out = sys.argv[1] if len(sys.argv) > 1 else OUT
    open(out, "w").write("\n".join(L) + "\n")
    print("wrote", out, len(L), "lines")


main()
```
